```python
import torch

def _softmax(x, axis=-1):
    return torch.softmax(x, dim=axis)
def _gelu(x):
    return torch.nn.functional.gelu(x, approximate="tanh")
def _silu(x):
    return torch.nn.functional.silu(x)
def _sigmoid(x):
    return torch.sigmoid(x)
def _layernorm(x, axis=-1, eps=1e-5):
    m = x.mean(dim=axis, keepdim=True)
    v = x.var(dim=axis, keepdim=True, unbiased=False)
    return (x - m) / torch.sqrt(v + eps)
def _scatter_add(tgt, idx, src, axis=0):
    return tgt.clone().index_add_(axis, idx, src)
def _segment_sum(src, seg, n):
    out = torch.zeros((n,) + src.shape[1:], dtype=src.dtype)
    return out.index_add_(0, seg, src)
def _pad(x, pw):
    flat = tuple(v for pair in reversed(pw) for v in pair)
    return torch.nn.functional.pad(x, flat)

kernel_name = 'gated_mix__linear_kernel_hedgehog__geglu_ffn__prompt'

def setup_inputs():

    _w = (lambda a: (lambda t: t.to(torch.bfloat16) if t.is_floating_point() else t)(torch.as_tensor(a)))
    def _A_setup():
        B, S, D, H = 1, 2048, 576, 32
        Dh = D // H
        return {
            "x": _w((lambda *s: torch.randn(*s, dtype=torch.bfloat16) * 0.05)(B, S, D)),
            "wqkv": _w((lambda *s: torch.randn(*s, dtype=torch.bfloat16) * 0.8)(D, 3 * D)),
            "w_phi": _w((lambda *s: torch.randn(*s, dtype=torch.bfloat16) * 0.8)(H, Dh, Dh) * (Dh ** -0.5)),
            "wo": _w((lambda *s: torch.randn(*s, dtype=torch.bfloat16) * 0.05)(D, D)),
        }
    _A_in = _A_setup()

    def _B_setup():
        B, S, D, F = 1, 2048, 576, 4608
        return {
            "x": _w((lambda *s: torch.randn(*s, dtype=torch.bfloat16) * 0.05)(B, S, D)),
            "w_gate": _w((lambda *s: torch.randn(*s, dtype=torch.bfloat16) * 0.05)(D, F)),
            "w_up": _w((lambda *s: torch.randn(*s, dtype=torch.bfloat16) * 0.05)(D, F)),
            "w_down": _w((lambda *s: torch.randn(*s, dtype=torch.bfloat16) * 0.05)(F, D)),
        }
    _B_in = _B_setup()

    return {
        "A_x": _A_in["x"],
        "A_wqkv": _A_in["wqkv"],
        "A_w_phi": _A_in["w_phi"],
        "A_wo": _A_in["wo"],
        "B_x": _B_in["x"],
        "B_w_gate": _B_in["w_gate"],
        "B_w_up": _B_in["w_up"],
        "B_w_down": _B_in["w_down"],
        "gate_w": _w((lambda *s: torch.randn(*s, dtype=torch.bfloat16) * 0.05)(576) * 16.0),
    }

def reference(A_x, A_wqkv, A_w_phi, A_wo, B_x, B_w_gate, B_w_up, B_w_down, gate_w):
    def _A_ref(x, wqkv, w_phi, wo):
        B, S, D = x.shape
        H = 32; Dh = D // H
        qkv = (lambda x, *d: x.permute(*d))((x @ wqkv).reshape(B, S, 3, H, Dh), 2, 0, 3, 1, 4)
        q, k, v = qkv[0], qkv[1], qkv[2]
        pq = torch.einsum("bhsd,hdf->bhsf", q, w_phi)
        pk = torch.einsum("bhsd,hdf->bhsf", k, w_phi)
        phi_q = torch.concatenate([_softmax(pq, axis=-1), _softmax(-pq, axis=-1)], axis=-1)
        phi_k = torch.concatenate([_softmax(pk, axis=-1), _softmax(-pk, axis=-1)], axis=-1)
        kv = torch.einsum("bhsf,bhsd->bhfd", phi_k, v)
        z  = torch.einsum("bhsf->bhf", phi_k)
        num = torch.einsum("bhqf,bhfd->bhqd", phi_q, kv)
        den = torch.einsum("bhqf,bhf->bhq", phi_q, z)[..., None] + 1e-6
        o = num / den
        return (lambda x, *d: x.permute(*d))(o, 0, 2, 1, 3).reshape(B, S, D) @ wo

    def _B_ref(x, w_gate, w_up, w_down):
        return (_gelu(x @ w_gate) * (x @ w_up)) @ w_down

    x = A_x
    g = _sigmoid((x * gate_w).sum(-1, keepdims=True))
    a = _A_ref(x, A_wqkv, A_w_phi, A_wo)
    b = _B_ref(x, B_w_gate, B_w_up, B_w_down)
    return g * a + (1 - g) * b
```

```python
import re

REG_RE = re.compile(r'^(-|\|)?(v|a|s)(\d+)\|?$')
RNG_RE = re.compile(r'^(-)?(v|a|s)\[(\d+):(\d+)\]$')

def regs_of(tok):
    tok = tok.strip()
    if tok.startswith('abs(') or tok.startswith('-abs('):
        tok = tok[tok.index('(')+1:-1]
    m = REG_RE.match(tok)
    if m: return [m.group(2)+m.group(3)]
    m = RNG_RE.match(tok)
    if m: return [m.group(2)+str(i) for i in range(int(m.group(3)), int(m.group(4))+1)]
    if tok in ('vcc',): return ['vcc_lo','vcc_hi']
    if tok in ('exec',): return ['exec_lo','exec_hi']
    if tok in ('vcc_lo','vcc_hi','exec_lo','exec_hi','m0','scc'): return [tok]
    return []

TRANS = ('v_exp_f32','v_log_f32','v_rcp_f32','v_rsq_f32','v_sqrt_f32','v_sin_f32','v_cos_f32','v_rcp_iflag_f32')

class Ins:
    __slots__=('text','op','kind','rd','wr','cost','ops','mods','tag')
    def __init__(self, text, tag=None):
        self.text = text; self.tag = tag
        t = text.split(';')[0].strip()
        self.rd=set(); self.wr=set(); self.cost=1; self.ops=[]; self.mods=''
        if t.endswith(':') or t.startswith('.') or t=='':
            self.op=t; self.kind='label'; self.cost=0; return
        sp = t.split(None,1)
        op = sp[0]; rest = sp[1] if len(sp)>1 else ''
        for suf in ('_e32','_e64','_dpp','_sdwa'):
            if op.endswith(suf): op = op[:-len(suf)]
        self.op = op
        parts=[]; depth=0; cur=''
        for ch in rest:
            if ch in '[(': depth+=1
            if ch in '])': depth-=1
            if ch==',' and depth==0: parts.append(cur.strip()); cur=''
            else: cur+=ch
        if cur.strip(): parts.append(cur.strip())
        mods=''
        if parts:
            lp = parts[-1].split()
            if len(lp)>1:
                parts[-1]=lp[0]; mods=' '.join(lp[1:])
        self.ops=parts; self.mods=mods
        R=lambda i: set(regs_of(parts[i])) if i<len(parts) else set()
        allr=lambda a: set().union(*[set(regs_of(p)) for p in parts[a:]]) if len(parts)>a else set()
        if op.startswith('v_mfma'):
            self.kind='mfma'; self.wr=R(0); self.rd=allr(1); self.cost=2
        elif op.startswith('ds_read') or op.startswith('ds_bpermute') or op.startswith('ds_swizzle') or op.startswith('ds_permute'):
            self.kind='ds'; self.wr=R(0); self.rd=allr(1)
            if 'd16' in op: self.rd|=R(0)
        elif op.startswith('ds_'):
            self.kind='ds'; self.rd=allr(0)
        elif op.startswith('buffer_load') or op.startswith('global_load'):
            if 'lds' in mods.split() or '_lds_' in op:
                self.kind='dma'; self.rd=allr(0)|{'m0'}
            else:
                self.kind='vmem'; self.wr=R(0); self.rd=allr(1)
        elif op.startswith('buffer_store') or op.startswith('global_store'):
            self.kind='vmem'; self.rd=allr(0)
        elif op.startswith('buffer_atomic') :
            self.kind='vmem'; self.rd=allr(0)
            if 'sc0' in mods.split(): self.wr=R(0)
        elif op.startswith('global_atomic'):
            self.kind='vmem'
            if 'sc0' in mods.split(): self.wr=R(0); self.rd=allr(1)
            else: self.rd=allr(0)
        elif op in ('buffer_wbl2','buffer_inv'):
            self.kind='vmem'
        elif op.startswith('s_load') or op in('s_memtime','s_memrealtime'):
            self.kind='smem'; self.wr=R(0); self.rd=allr(1)
        elif op=='s_waitcnt': self.kind='wait'
        elif op=='s_barrier': self.kind='barrier'
        elif op=='s_nop': self.kind='nop'; self.cost=int(parts[0],0)+1
        elif op in ('s_endpgm','s_setprio','s_sleep'): self.kind='salu'
        elif op.startswith('s_cbranch') or op=='s_branch':
            self.kind='branch'
            if 'scc' in op: self.rd={'scc'}
            if 'vcc' in op: self.rd={'vcc_lo','vcc_hi'}
            if 'exec' in op: self.rd={'exec_lo','exec_hi'}
        elif op.startswith('s_cmp') or op.startswith('s_bitcmp'):
            self.kind='salu'; self.rd=allr(0); self.wr={'scc'}
        elif op in ('s_setpc_b64',):
            self.kind='branch'; self.rd=allr(0)
        elif op.startswith('s_'):
            self.kind='salu'; self.wr=R(0); self.rd=allr(1)
            if 'saveexec' in op: self.wr|={'exec_lo','exec_hi','scc'}; self.rd|={'exec_lo','exec_hi'}
            if op.startswith(('s_add','s_sub','s_and','s_or','s_xor','s_lshl','s_lshr','s_ashr','s_min','s_max','s_not','s_bfe','s_andn2','s_orn2','s_abs')): self.wr|={'scc'}
            if op.startswith(('s_addc','s_subb','s_cselect','s_cmov')): self.rd|={'scc'}
            if op in('s_addk_i32','s_mulk_i32'): self.rd|=R(0)
        elif op.startswith('v_'):
            self.kind='trans' if op in TRANS else 'valu'
            if self.kind=='trans': self.cost=2
            if op.startswith('v_cmp'):
                self.wr=R(0); self.rd=allr(1)
            elif op in('v_add_co_u32','v_sub_co_u32','v_addc_co_u32','v_subb_co_u32','v_subrev_co_u32'):
                self.wr=R(0)|R(1); self.rd=allr(2)
            elif op.startswith('v_permlane') and 'swap' in op:
                self.wr=allr(0); self.rd=allr(0)
            elif op=='v_nop':
                pass
            else:
                self.wr=R(0); self.rd=allr(1)
                if op.startswith(('v_fmac','v_dot2c','v_writelane','v_pk_fmac')) : self.rd|=R(0)
                if 'dpp' in text.split()[0] or 'row_' in mods or 'quad_perm' in mods: self.rd|=R(0)
                if op=='v_cndmask_b32' and len(parts)==3: self.rd|={'vcc_lo','vcc_hi'}
            self.rd|={'exec_lo','exec_hi'} if False else set()
        else:
            raise ValueError('unknown op '+text)
    def __repr__(self): return self.text

class Prog:
    def __init__(self): self.ins=[]
    def __call__(self, *texts, tag=None):
        for t in texts:
            for line in t.split('\n'):
                line=line.strip()
                if line: self.ins.append(Ins(line, tag))
        return self
    def add(self, lst):
        for x in lst: self.ins.append(x if isinstance(x,Ins) else Ins(x))
    def label(self, n): self.ins.append(Ins(n+':'))
    def text(self):
        out=[]
        for i in self.ins:
            out.append(i.text if i.kind=='label' else '    '+i.text)
        return '\n'.join(out)+'\n'

def mfma_passes(op):
    if '32x32x16' in op: return 8
    if '16x16x32' in op: return 4
    raise ValueError(op)

def is_vec(r): return r[0] in 'va' and r[1:].isdigit()
def is_sgpr(r): return (r[0]=='s' and r[1:].isdigit()) or r.startswith('vcc')

def parse_wait(ins):
    vm=lg=None
    s=' '.join(ins.ops+[ins.mods])
    m=re.search(r'vmcnt\((\d+)\)',s)
    if m: vm=int(m.group(1))
    m=re.search(r'lgkmcnt\((\d+)\)',s)
    if m: lg=int(m.group(1))
    return vm,lg

def check(trace, name='', verbose=True, assume_clean_start=True):
    probs=[]
    pos=0
    lastw={}
    lastC={}
    laststore={}
    vmq=[]; lgq=[]
    pend={}
    def P(msg,i): probs.append(f"[{name}] #{idx}: {msg}: {i.text}")
    for idx,i in enumerate(trace):
        if i.kind=='label': continue
        if i.kind=='branch' and False: pass
        def need(r, n, why):
            w=lastw.get(r)
            if w is not None and pos-w[0] < n:
                P(f"hazard {why}: reg {r} dist {pos-w[0]} < {n} (producer {w[2].text})", i)
        for r in (i.rd|i.wr):
            if r in pend:
                P(f"reg {r} touched while load pending ({pend[r]})", i)
        if i.kind=='mfma':
            A=set(regs_of(i.ops[1])); B=set(regs_of(i.ops[2])); C=set(regs_of(i.ops[3])) if len(i.ops)>3 else set()
            D=set(regs_of(i.ops[0]))
            for r in A|B|C:
                w=lastw.get(r)
                if not w: continue
                if w[1] in('valu','trans'): need(r,2,'valu->mfma')
                if w[1]=='mfma':
                    ps=mfma_passes(w[2].op)
                    if r in A or r in B: need(r,{4:8,8:12}[ps],'mfma->mfma A/B')
                    elif r in C:
                        same = (w[2].ops[0]==i.ops[3]) and (w[2].op==i.op)
                        if not same: need(r,{4:6,8:10}[ps],'mfma->mfma C overlap')
            for r in D:
                w=lastw.get(r)
                if w and w[1]=='mfma' and r not in C:
                    ps=mfma_passes(w[2].op)
                    need(r,{4:6,8:10}[ps],'mfma->mfma WAW')
        if i.kind in('valu','trans','vmem','ds','dma'):
            for r in (i.rd | (i.wr if i.kind in('valu','trans','vmem','ds') else set())):
                w=lastw.get(r)
                if w and w[1]=='mfma':
                    need(r,{4:8,8:12}[mfma_passes(w[2].op)],'mfma->valu/mem')
        if i.kind in('valu','trans'):
            for r in i.rd:
                w=lastw.get(r)
                if not w: continue
                if w[1]=='trans' and is_vec(r) : need(r,1,'trans->valu')
                if w[1] in('valu','trans') and is_sgpr(r): need(r,2,'valu sgpr->valu const')
                if w[1] in('valu','trans') and is_vec(r):
                    if i.op in('v_readfirstlane_b32','v_readlane_b32'): need(r,1,'valu->readlane')
                    if i.op.startswith('v_permlane'): need(r,2,'valu->permlane')
                    if 'row_' in i.mods or 'quad_perm' in i.mods: need(r,2,'valu->dpp')
            for r in i.wr:
                c=lastC.get(r)
                if c and pos-c[0] < {4:3,8:7}[c[1]]: P(f"hazard mfma srcC WAR reg {r}",i)
                s=laststore.get(r)
                if s is not None and pos-s<2: P(f"hazard store data WAR reg {r}",i)
        if i.kind in('vmem','dma','ds'):
            for r in i.rd:
                w=lastw.get(r)
                if w and w[1] in('valu','trans') and is_sgpr(r): need(r,5,'valu sgpr->vmem')
                if w and w[1]=='trans' and is_vec(r): need(r,1,'trans->mem')
                if w and r=='m0' and w[1]=='salu' and i.kind=='dma': need(r,1,'m0->dma')
        if i.kind=='salu' or i.kind=='branch':
            for r in i.rd:
                w=lastw.get(r)
                if w and w[1] in('valu','trans') and is_sgpr(r) and not r.startswith('vcc'): need(r,1,'valu sgpr->salu (pad)')
        p_after = pos + (i.cost if i.kind=='nop' else 1)
        if i.kind=='wait':
            vm,lg=parse_wait(i)
            if vm is not None:
                while len(vmq)>vm:
                    d=vmq.pop(0)
                    for r in d: pend.pop(r,None)
            if lg is not None:
                if any(x[1] for x in lgq) and lg>0:
                    P("lgkmcnt(N>0) with smem outstanding",i)
                while len(lgq)>lg:
                    d=lgq.pop(0)
                    for r in d[0]: pend.pop(r,None)
        if i.kind in('vmem','dma'):
            vmq.append(set(i.wr))
            for r in i.wr: pend[r]='vm'
            if len(vmq)>63: P("vmcnt overflow >63",i)
            if 'store' in i.op and ('x4' in i.op or 'x3' in i.op):
                for r in regs_of(i.ops[0] if i.op.startswith('buffer') else i.ops[1]): laststore[r]=p_after
        if i.kind=='ds':
            lgq.append((set(i.wr),False))
            for r in i.wr: pend[r]='lg'
            if len(lgq)>15: P("lgkmcnt overflow >15 (counter saturates)",i)
        if i.kind=='smem':
            lgq.append((set(i.wr),True))
            for r in i.wr: pend[r]='lg'
        for r in i.wr:
            if i.kind in('valu','trans','mfma','salu'):
                lastw[r]=(p_after,i.kind,i)
            else:
                lastw.pop(r,None)
        if i.kind=='mfma' and len(i.ops)>3:
            for r in regs_of(i.ops[3]): lastC[r]=(p_after,mfma_passes(i.op))
        pos=p_after
    if verbose:
        for p in probs[:40]: print(p)
        if len(probs)>40: print('...',len(probs),'problems')
    return probs

def interleave(main, fill, budget=2, start=0, every=None):
    out=[]
    nm=sum(1 for x in main if x.kind=='mfma')
    fill=list(fill)
    total=sum(x.cost for x in fill)
    done=0; fi=0; k=0
    n=len(main)
    i=0
    while i<n:
        x=main[i]; out.append(x); i+=1
        if x.kind=='mfma':
            k+=1
            own=0; j=i
            while j<n and main[j].kind!='mfma':
                own+=main[j].cost; j+=1
            if k>start:
                target = total*(k-start)/max(1,(nm-start))
                room = budget-own
                while fi<len(fill) and (done+fill[fi].cost<=target+1e-9 or False) and room>=fill[fi].cost:
                    out.append(fill[fi]); done+=fill[fi].cost; room-=fill[fi].cost; fi+=1
                while fi<len(fill) and done+fill[fi].cost <= target-budget*2:
                    out.append(fill[fi]); done+=fill[fi].cost; fi+=1
    out.extend(fill[fi:])
    return out

def auto_lgkm(stream, init=None, group=1):
    q=[set(x) for x in (init or [])]
    out=[]
    for x in stream:
        if x.kind=='wait':
            vm,lg=parse_wait(x)
            if lg is not None:
                while len(q)>lg: q.pop(0)
            out.append(x); continue
        touch=(x.rd|x.wr)
        need=-1
        for i,d in enumerate(q):
            if d & touch: need=i
        if need>=0:
            n=len(q)-1-need
            out.append(Ins(f"s_waitcnt lgkmcnt({n})"))
            q=q[need+1:]
        if x.kind=='ds':
            if len(q)>=15:
                n=14
                out.append(Ins(f"s_waitcnt lgkmcnt({n})")); q=q[len(q)-n:]
            q.append(set(x.wr))
        out.append(x)
    return out, q
```

```python
from core import *
import k1_gemm as G1
import stamp as ST
G_OFF=0x1500000; KVP_OFF=0x1502000; P_OFF=0x1600000
LOG2E=1.4426950408889634
from k1_gemm import f2u

def prologue(p):
    p("s_cmp_ge_u32 s2, 256"); p("s_cbranch_scc1 L_k1_end")
    ST.stamp(p,0)
    p("s_load_dwordx4 s[56:59], s[0:1], 0")
    p("s_load_dwordx4 s[60:63], s[0:1], 16")
    p("s_load_dwordx2 s[42:43], s[0:1], 40")
    p("s_load_dwordx2 s[44:45], s[0:1], 48")
    p("s_load_dwordx2 s[64:65], s[0:1], 64")
    p("s_load_dwordx4 s[68:71], s[0:1], 80")
    p("v_lshrrev_b32 v1, 6, v0")
    p("s_and_b32 s4, s2, 7")
    p("s_lshr_b32 s5, s2, 3")
    p(f"v_readfirstlane_b32 s{G1.S_W}, v1")
    p("s_waitcnt lgkmcnt(0)")
    p("s_mov_b32 s46, s70"); p("s_mov_b32 s47, s71")
    p("s_mov_b32 s40, s56"); p("s_mov_b32 s41, s57")
    p("s_cmp_lt_u32 s5, 8"); p("s_cbranch_scc1 L_att")
    p("s_sub_u32 s6, s5, 8")
    p("s_mul_i32 s7, s4, 23"); p("s_mov_b32 s36, 23")
    p("s_cmp_lt_u32 s4, 4"); p("s_cbranch_scc1 L_k1_a")
    p("s_mul_i32 s7, s4, 22"); p("s_add_u32 s7, s7, 4"); p("s_mov_b32 s36, 22")
    p.label("L_k1_a")
    p("s_cmp_ge_u32 s6, s36"); p("s_cbranch_scc1 L_gate")
    p("s_add_u32 s7, s7, s6")
    p("s_mul_i32 s36, s7, 205"); p("s_lshr_b32 s36, s36, 10")
    p("s_mul_i32 s37, s36, 5"); p("s_sub_u32 s37, s7, s37")

def gate_role(p):
    p.label("L_gate")
    p("s_mov_b32 s7, s4")
    p("s_cmp_lt_u32 s4, 4"); p("s_cbranch_scc1 L_gate_b")
    p("s_lshl_b32 s7, s4, 1"); p("s_add_u32 s7, s7, s6"); p("s_sub_u32 s7, s7, 26")
    p.label("L_gate_b")
    p("s_lshl_b32 s7, s7, 2"); p(f"s_add_u32 s7, s7, s{G1.S_W}")
    p("s_mov_b32 s8, s56"); p("s_mov_b32 s9, s57"); p(f"s_mov_b32 s10, {2048*1152}"); p("s_mov_b32 s11, 0x20000")
    p("s_mov_b32 s12, s64"); p("s_mov_b32 s13, s65"); p("s_mov_b32 s14, 1152"); p("s_mov_b32 s15, 0x20000")
    p(f"s_add_u32 s16, s70, {G_OFF}"); p("s_addc_u32 s17, s71, 0"); p("s_mov_b32 s18, 8192"); p("s_mov_b32 s19, 0x20000")
    p("v_and_b32 v1, 63, v0"); p("v_lshrrev_b32 v2, 3, v1"); p("v_and_b32 v3, 7, v1")
    p("v_lshlrev_b32 v4, 4, v3")
    p("s_movk_i32 s20, 0x480"); p("v_mul_lo_u32 v5, v2, s20"); p("v_add_u32 v5, v5, v4")
    p("v_lshlrev_b32 v6, 2, v2")
    for c in range(9):
        p(f"buffer_load_dwordx4 v[{16+4*c}:{19+4*c}], v4, s[12:15], 0 offen offset:{128*c}")
    p.label("L_gate_loop")
    p(f"s_mul_i32 s21, s7, {8*1152}")
    for c in range(9):
        p(f"buffer_load_dwordx4 v[{64+4*c}:{67+4*c}], v5, s[8:11], s21 offen offset:{128*c}")
    p("v_mov_b32 v8, 0"); p("v_mov_b32 v9, 0")
    p("s_waitcnt vmcnt(0)")
    for c in range(9):
        for r in range(4):
            a=8+(r&1)
            p(f"v_dot2_f32_bf16 v{a}, v{64+4*c+r}, v{16+4*c+r}, v{a}")
    p("s_nop 3")
    p("v_add_f32 v8, v8, v9")
    for m in (0x041F,0x081F,0x101F):
        p("s_nop 0")
        p(f"ds_swizzle_b32 v9, v8 offset:0x{m:04X}"); p("s_waitcnt lgkmcnt(0)"); p("v_add_f32 v8, v8, v9")
    p(f"v_mul_f32 v8, 0x{f2u(-LOG2E):08x}, v8"); p("v_exp_f32 v8, v8"); p("s_nop 0"); p("v_add_f32 v8, 1.0, v8"); p("v_rcp_f32 v8, v8")
    p("s_lshl_b32 s21, s7, 5")
    p("v_cmp_eq_u32 vcc, 0, v3"); p("s_and_saveexec_b64 s[22:23], vcc")
    p("buffer_store_dword v8, v6, s[16:19], s21 offen")
    p("s_mov_b64 exec, s[22:23]")
    p("s_add_u32 s7, s7, 48"); p("s_cmp_lt_u32 s7, 256"); p("s_cbranch_scc1 L_gate_loop")
    p("s_endpgm")

def kernel_text(name, body, nv=512, ns=102, acc_off=256):
    t=f".globl {name}\n.p2align 8\n.type {name},@function\n{name}:\n"+body
    return t
def desc(name, nv=512, ns=102, acc_off=256):
    return f""".amdhsa_kernel {name}
  .amdhsa_next_free_vgpr {nv}
  .amdhsa_next_free_sgpr {ns}
  .amdhsa_accum_offset {acc_off}
  .amdhsa_group_segment_fixed_size 0
  .amdhsa_kernarg_size 96
  .amdhsa_user_sgpr_count 2
  .amdhsa_user_sgpr_kernarg_segment_ptr 1
  .amdhsa_system_sgpr_workgroup_id_x 1
  .amdhsa_float_denorm_mode_32 3
  .amdhsa_float_denorm_mode_16_64 3
.end_amdhsa_kernel
"""

def gen_k1(att=None, docheck=True):
    p=Prog()
    prologue(p)
    n0=len(p.ins)
    G1.gen_gemm1(p)
    il,idn=G1.gen_gemm1_main(p)
    p("s_endpgm")
    if docheck:
        ins=p.ins
        body=ins[il:idn]
        tr=ins[:il]+body+body+ins[il:il+[i for i,x in enumerate(body) if x.op=='s_cbranch_scc1'][0]+1]+ins[idn:]
        pr=check(tr,'gemm1')
        print("gemm1 check problems:",len(pr))
    q=Prog(); gate_role(q)
    if docheck: print("gate check problems:",len(check(q.ins,'gate')))
    p.ins+=q.ins
    if att is None:
        p.label("L_att"); p("s_endpgm")
    else:
        a=Prog(); att(a); p.ins+=a.ins
    p.label("L_k1_end"); p("s_endpgm")
    return p
if __name__=="__main__":
    for q in range(180): assert (q*205)>>10==q//5
    p=gen_k1()
    print(len(p.ins))
```

```python
from core import *
import stamp as ST
from k1_gemm import f2u, NKS_TOT, H_BYTES
KVP_OFF=0x1502000
LOG2E=1.4426950408889634
WSL=36864; W0=0; X0=73728; XSL=32768
PHI_L=139264; ZERO_L=PHI_L+3840
PL=0; VL=81920; KVL=122880
S_W=24
S_X=8; S_WQ=12; S_H=16; S_KV=20
S_XSO=25; S_XSO2=26; S_WSO=27; S_CNT=28; S_MW=29; S_MX=30; S_C=31; S_RT=32; S_QD=33
V_WD=1
V_XD=10
V_TR=14
V_XP=16
V_L=20
V_L16=21
V_BD=22
V_BD2=23
T0=24
QACC=0
KACC=96; VACC=176
def accq(t,tt): b=QACC+(t*4+tt)*4; return f"a[{b}:{b+3}]"
def acck(t,tt,r=None):
    b=KACC+(t*4+tt)*4; return f"v[{b}:{b+3}]" if r is None else f"v{b+r}"
def accv(t,tt,r=None):
    b=VACC+(t*4+tt)*4; return f"v[{b}:{b+3}]" if r is None else f"v{b+r}"
def acc(sec,t,tt): return (accq,acck,accv)[sec](t,tt)
AR=80; NAR=6
XF=104
def afr(i): b=AR+4*(i%NAR); return f"a[{b}:{b+3}]"
def afh(i,h): b=AR+4*(i%NAR)+2*h; return f"a[{b}:{b+1}]"
def xf(b_,tt): b=XF+(b_*4+tt)*4; return f"a[{b}:{b+3}]"

def dmas(slot):
    o=[]
    for i in range(9):
        if i%4==0:
            o.append(Ins(f"s_add_u32 m0, s{S_MW}, {W0+slot*WSL+4096*(i//4)}")); o.append(Ins("s_nop 0"))
        o.append(Ins(f"buffer_load_dwordx4 v{V_WD+i}, s[{S_WQ}:{S_WQ+3}], s{S_WSO} offen offset:{1024*(i%4)} lds"))
    o.append(Ins(f"s_add_u32 s{S_WSO}, s{S_WSO}, {64*3456}"))
    for i in range(8):
        if i%4==0:
            o.append(Ins(f"s_add_u32 m0, s{S_MX}, {X0+slot*XSL+4096*(i//4)}")); o.append(Ins("s_nop 0"))
        o.append(Ins(f"buffer_load_dwordx4 v{V_XD+(i%4)}, s[{S_X}:{S_X+3}], s{S_XSO if i<4 else S_XSO2} offen offset:{1024*(i%4)} lds"))
    o.append(Ins(f"s_add_u32 s{S_XSO}, s{S_XSO}, 128")); o.append(Ins(f"s_add_u32 s{S_XSO2}, s{S_XSO2}, 128"))
    return o

def superstep(slot):
    head=[Ins("s_waitcnt vmcnt(0)"),Ins("s_barrier")]
    main=[]
    def xr(b_): return [Ins(f"ds_read_b128 {xf(b_,tt)}, v{V_XP+2*slot+b_} offset:{tt*2048}") for tt in range(4)]
    main+=xr(0)
    seq=[(b_,sec,t) for b_ in range(2) for sec in range(3) for t in range(5)]
    def rd(i):
        b_,sec,t=seq[i]
        return [Ins(f"ds_read_b64_tr_b16 {afh(i,h)}, v{V_TR+slot} offset:{b_*18432+sec*6144+h*768+8*t}") for h in range(2)]
    PF=4
    for i in range(PF): main+=rd(i)
    for i,(b_,sec,t) in enumerate(seq):
        nxt=rd(i+PF) if i+PF<len(seq) else []
        if 6<=i<10: nxt=nxt+[xr(1)[i-6]]
        for tt in range(4):
            main.append(Ins(f"v_mfma_f32_16x16x32_bf16 {acc(sec,t,tt)}, {afr(i)}, {xf(b_,tt)}, {acc(sec,t,tt)}"))
            if tt<len(nxt): main.append(nxt[tt])
    main,q=auto_lgkm(main)
    assert not [d for d in q if d], q
    return head+main

def softmax_core(P, p, tmp, want_norm):
    Ep=[f"v{tmp+i}" for i in range(18)]; Em=[f"v{tmp+18+i}" for i in range(18)]
    mx=f"v{tmp+36}"; mn=f"v{tmp+37}"
    p(f"v_max3_f32 {mx}, {P[0]}, {P[1]}, {P[2]}"); p(f"v_min3_f32 {mn}, {P[0]}, {P[1]}, {P[2]}")
    for i in range(3,17,2):
        p(f"v_max3_f32 {mx}, {mx}, {P[i]}, {P[i+1]}"); p(f"v_min3_f32 {mn}, {mn}, {P[i]}, {P[i+1]}")
    p(f"v_max_f32 {mx}, {mx}, {P[17]}"); p(f"v_min_f32 {mn}, {mn}, {P[17]}")
    p(f"v_mul_f32 {mx}, -s{S_C}, {mx}" if False else f"v_mul_f32_e64 {mx}, -s{S_C}, {mx}"); p(f"v_mul_f32 {mn}, s{S_C}, {mn}")
    for i in range(18):
        p(f"v_fma_f32 {Ep[i]}, {P[i]}, s{S_C}, {mx}"); p(f"v_fma_f32 {Em[i]}, {P[i]}, -s{S_C}, {mn}")
    for i in range(18):
        p(f"v_exp_f32 {Ep[i]}, {Ep[i]}"); p(f"v_exp_f32 {Em[i]}, {Em[i]}")
    if want_norm:
        sp=f"v{tmp+38}"; sm=f"v{tmp+39}"
        p("s_nop 0")
        p(f"v_add_f32 {sp}, {Ep[0]}, {Ep[1]}"); p(f"v_add_f32 {sm}, {Em[0]}, {Em[1]}")
        for i in range(2,18):
            p(f"v_add_f32 {sp}, {sp}, {Ep[i]}"); p(f"v_add_f32 {sm}, {sm}, {Em[i]}")
        p(f"v_rcp_f32 {sp}, {sp}"); p(f"v_rcp_f32 {sm}, {sm}"); p("s_nop 0")
        for i in range(18):
            p(f"v_mul_f32 {Ep[i]}, {Ep[i]}, {sp}"); p(f"v_mul_f32 {Em[i]}, {Em[i]}, {sm}")
    return Ep,Em

def stage2(p, src_acc_reg, dst, B0):
    for tt in range(4):
        for t in range(5):
            p(f"v_cvt_pk_bf16_f32 v{B0+tt*12+2*t}, {src_acc_reg(t,tt,0)}, {src_acc_reg(t,tt,1)}")
            p(f"v_cvt_pk_bf16_f32 v{B0+tt*12+2*t+1}, {src_acc_reg(t,tt,2)}, {src_acc_reg(t,tt,3)}")
        p(f"v_mov_b32 v{B0+tt*12+10}, 0"); p(f"v_mov_b32 v{B0+tt*12+11}, 0")
    p("s_nop 1")
    for s in range(3):
        for u in range(5):
            for tt in range(4):
                a=80+4*(u*3+s); b=B0+tt*12+4*s
                c=dst(u,tt) if s>0 else "0"
                p(f"v_mfma_f32_16x16x32_bf16 {dst(u,tt)}, a[{a}:{a+3}], v[{b}:{b+3}], {c}")
    p("s_nop 7")

def gen_att(p, docheck=True):
    p.label("L_att")
    A=p
    A(f"s_mov_b32 s{S_RT}, s4"); A(f"s_mov_b32 s{S_QD}, s5")
    A(f"s_mov_b32 s{S_C}, 0x{f2u(LOG2E):08x}")
    A(f"s_mul_i32 s38, s{S_RT}, {256*1152}")
    A(f"s_add_u32 s{S_X}, s56, s38"); A(f"s_addc_u32 s{S_X+1}, s57, 0"); A(f"s_sub_u32 s{S_X}, s{S_X}, 4096"); A(f"s_subb_u32 s{S_X+1}, s{S_X+1}, 0")
    A(f"s_mov_b32 s{S_X+2}, {256*1152+4096}"); A(f"s_mov_b32 s{S_X+3}, 0x20000")
    A(f"s_sub_u32 s{S_WQ}, s58, 4096"); A(f"s_subb_u32 s{S_WQ+1}, s59, 0"); A(f"s_mov_b32 s{S_WQ+2}, {576*3456+4096}"); A(f"s_mov_b32 s{S_WQ+3}, 0x20000")
    A(f"s_mov_b32 s{S_H}, s70"); A(f"s_mov_b32 s{S_H+1}, s71"); A(f"s_mov_b32 s{S_H+2}, {H_BYTES}"); A(f"s_mov_b32 s{S_H+3}, 0x20000")
    A(f"s_add_u32 s{S_KV}, s70, {KVP_OFF}"); A(f"s_addc_u32 s{S_KV+1}, s71, 0"); A(f"s_mov_b32 s{S_KV+2}, {8*32*2880}"); A(f"s_mov_b32 s{S_KV+3}, 0x20000")
    A(f"v_and_b32 v{V_L}, 63, v0"); A(f"v_lshlrev_b32 v{V_L16}, 4, v{V_L}")
    g="v24"; t15="v25"; l3="v26"; l7="v27"; rp="v28"; cc="v29"
    A(f"v_lshrrev_b32 {g}, 4, v{V_L}"); A(f"v_and_b32 {t15}, 15, v{V_L}"); A(f"v_lshrrev_b32 {l3}, 3, v{V_L}"); A(f"v_and_b32 {l7}, 7, v{V_L}")
    A(f"v_lshrrev_b32 {rp}, 2, {t15}"); A(f"v_and_b32 {cc}, 3, {t15}")
    A(f"s_mul_i32 s38, s{S_W}, 576")
    for i in range(9):
        A(f"v_add_u32 v30, s38, v{V_L}")
        if i: A(f"v_add_u32 v30, {64*i}, v30")
        A("s_movk_i32 s39, 0x1556"); A("v_mul_lo_u32 v31, v30, s39"); A("v_lshrrev_b32 v31, 16, v31")
        A("v_mul_u32_u24 v32, 12, v31"); A("v_sub_u32 v32, v30, v32")
        A("v_mul_u32_u24 v33, 86, v32"); A("v_lshrrev_b32 v33, 8, v33")
        A("v_mul_u32_u24 v34, 3, v33"); A("v_sub_u32 v34, v32, v34")
        A("v_mul_u32_u24 v33, 36, v33"); A("v_lshlrev_b32 v34, 4, v34"); A("v_add_u32 v33, v33, v34")
        A("v_and_b32 v34, 31, v31")
        A("v_lshrrev_b32 v35, 5, v31")
        A("v_mul_u32_u24 v36, 86, v35"); A("v_lshrrev_b32 v36, 8, v36")
        A("v_mul_u32_u24 v37, 3, v36"); A("v_sub_u32 v37, v35, v37")
        A("v_lshlrev_b32 v36, 5, v36"); A("v_add_u32 v34, v34, v36")
        A("s_movk_i32 s39, 0xd80"); A("v_mul_lo_u32 v34, v34, s39")
        A("s_movk_i32 s39, 0x480"); A("v_mul_lo_u32 v37, v37, s39")
        A("v_add3_u32 v34, v34, v37, v33")
        A(f"v_add_u32 v{V_WD+i}, {4096-1024*(i%4)}, v34")
    A(f"s_mul_i32 s{S_WSO}, s{S_QD}, 144")
    A(f"s_mul_i32 s{S_MW}, s{S_W}, 9216")
    A("s_movk_i32 s39, 0x480")
    for i in range(4):
        A(f"v_add_u32 v30, {4*(i&1)}, {g}"); A("v_and_b32 v30, 7, v30"); A(f"v_xor_b32 v30, v30, {l7}"); A("v_lshlrev_b32 v30, 4, v30")
        A(f"v_add_u32 v31, {8*i}, {l3}"); A("v_mul_lo_u32 v31, v31, s39")
        A(f"v_add_u32 v30, v30, v31"); A(f"v_add_u32 v{V_XD+i}, {4096-1024*i}, v30")
    A(f"s_mul_i32 s{S_XSO}, s{S_W}, {64*1152}"); A(f"s_add_u32 s{S_XSO2}, s{S_XSO}, {32*1152}")
    A(f"s_lshl_b32 s{S_MX}, s{S_W}, 13")
    A.add(dmas(0))
    A(f"v_lshrrev_b32 v30, 1, {t15}"); A(f"v_xor_b32 v30, v30, {g}"); A("v_lshlrev_b32 v30, 4, v30"); A(f"v_lshlrev_b32 v31, 7, {t15}"); A("v_add_u32 v30, v30, v31")
    A(f"s_add_u32 s38, s{S_MX}, {X0}")
    A(f"v_add_u32 v{V_XP}, s38, v30"); A(f"v_xor_b32 v{V_XP+1}, 64, v{V_XP}")
    A(f"v_add_u32 v{V_XP+2}, {XSL}, v{V_XP}"); A(f"v_add_u32 v{V_XP+3}, {XSL}, v{V_XP+1}")
    A(f"v_lshlrev_b32 v30, 3, {g}"); A(f"v_add_u32 v30, v30, {rp}"); A("v_mul_u32_u24 v30, 192, v30"); A(f"v_mul_u32_u24 v31, 48, {cc}")
    A(f"v_add_u32 v{V_TR}, v30, v31"); A(f"v_add_u32 v{V_TR+1}, {WSL}, v{V_TR}")
    A(f"v_cmp_eq_u32 vcc, {cc}, {g}")
    A(f"v_mul_u32_u24 v30, 960, {g}"); A(f"v_mul_u32_u24 v31, 40, {rp}"); A("v_add_u32 v30, v30, v31"); A(f"v_add_u32 v30, {PHI_L}, v30")
    A(f"v_mov_b32 v32, {ZERO_L}"); A(f"v_cndmask_b32 v{V_BD}, v32, v30, vcc")
    A(f"v_mul_u32_u24 v30, 1920, {g}"); A("v_add_u32 v30, v30, v31"); A(f"v_add_u32 v30, {KVL}, v30"); A(f"v_cndmask_b32 v{V_BD2}, v32, v30, vcc")
    A("v_mov_b32 v40, 0"); A("v_mov_b32 v41, 0"); A("v_mov_b32 v42, 0"); A("v_mov_b32 v43, 0")
    A("v_lshlrev_b32 v30, 4, v0"); A(f"v_add_u32 v30, {PHI_L}, v30")
    A("ds_write_b128 v30, v[40:43]")
    A("v_cmp_gt_u32 vcc, 104, v0"); A("s_and_saveexec_b64 s[48:49], vcc"); A("s_cbranch_execz L_att_z1")
    A("ds_write_b128 v30, v[40:43] offset:4096")
    A.label("L_att_z1"); A("s_mov_b64 exec, s[48:49]")
    A(f"s_mul_i32 s38, s{S_QD}, {4*648}")
    A(f"s_add_u32 s48, s60, s38"); A("s_addc_u32 s49, s61, 0"); A(f"s_mov_b32 s50, {4*648}"); A("s_mov_b32 s51, 0x20000")
    A("v_lshlrev_b32 v30, 2, v0")
    for i in range(3): A(f"buffer_load_dword v{44+i}, v30, s[48:51], 0 offen offset:{1024*i}")
    for i in range(3):
        A(f"v_add_u32 v30, {256*i}, v0")
        A("s_movk_i32 s39, 0x195"); A("v_mul_lo_u32 v31, v30, s39"); A("v_lshrrev_b32 v31, 16, v31")
        A("v_mul_u32_u24 v32, 162, v31"); A("v_sub_u32 v32, v30, v32")
        A("v_mul_u32_u24 v33, 57, v32"); A("v_lshrrev_b32 v33, 9, v33")
        A("v_mul_u32_u24 v34, 9, v33"); A("v_sub_u32 v34, v32, v34")
        A("v_mul_u32_u24 v31, 960, v31"); A("v_mul_u32_u24 v33, 40, v33"); A("v_lshlrev_b32 v34, 2, v34")
        A(f"v_add3_u32 v{47+i}, v31, v33, v34"); A(f"v_add_u32 v{47+i}, {PHI_L}, v{47+i}")
    for r in range(80): A(f"v_accvgpr_write_b32 a{r}, 0")
    for r in range(96,256): A(f"v_mov_b32 v{r}, 0")
    A("s_waitcnt vmcnt(0) lgkmcnt(0)"); A("s_barrier")
    A("ds_write_b32 v47, v44"); A("ds_write_b32 v48, v45")
    A("v_cmp_gt_u32 vcc, 136, v0"); A("s_and_saveexec_b64 s[48:49], vcc"); A("s_cbranch_execz L_att_z2")
    A("ds_write_b32 v49, v46")
    A.label("L_att_z2"); A("s_mov_b64 exec, s[48:49]")
    ST.stamp(p,1)
    A(f"s_mov_b32 s{S_CNT}, 0")
    il=len(p.ins)
    A.label("L_att_loop")
    for slot in range(2):
        m=superstep(slot)
        ib=[i for i,x in enumerate(m) if x.kind=='barrier'][0]
        head=m[:ib+1]; rest=m[ib+1:]
        p.add(head); p.add(interleave(rest, dmas(1-slot), budget=2))
        if slot==0:
            A(f"s_cmp_eq_u32 s{S_CNT}, 4"); A("s_cbranch_scc1 L_att_pdone")
    A(f"s_add_u32 s{S_CNT}, s{S_CNT}, 1"); A("s_branch L_att_loop")
    idn=len(p.ins)
    A.label("L_att_pdone")
    A("s_waitcnt vmcnt(0) lgkmcnt(0)")
    ST.stamp(p,2)
    A("s_barrier")
    n=0
    for u in range(5):
        for s in range(3):
            for h in range(2):
                a=80+4*(u*3+s)+2*h
                A(f"ds_read_b64_tr_b16 a[{a}:{a+1}], v{V_BD} offset:{(8*s+4*h)*40+8*u}")
                n+=1
                if n%14==0: A("s_waitcnt lgkmcnt(0)")
    A("v_mov_b32 v40, 0"); A("v_mov_b32 v41, 0"); A("v_mov_b32 v42, 0"); A("v_mov_b32 v43, 0")
    A("v_lshlrev_b32 v30, 4, v0"); A(f"v_add_u32 v30, {KVL}, v30")
    A("ds_write_b128 v30, v[40:43]")
    A("v_cmp_gt_u32 vcc, 224, v0"); A("s_and_saveexec_b64 s[48:49], vcc"); A("s_cbranch_execz L_att_z3")
    A("ds_write_b128 v30, v[40:43] offset:4096")
    A.label("L_att_z3"); A("s_mov_b64 exec, s[48:49]")
    A("s_waitcnt lgkmcnt(0)")
    stage2(p, acck, acck, 24)
    A(f"v_and_b32 v72, 15, v{V_L}"); A(f"v_lshrrev_b32 v73, 4, v{V_L}")
    A(f"s_lshl_b32 s38, s{S_W}, 6"); A("v_add_u32 v72, s38, v72")
    A("v_mul_u32_u24 v74, 320, v72"); A("v_mul_u32_u24 v75, 80, v73"); A("v_add_u32 v74, v74, v75")
    A("v_mul_u32_u24 v75, 160, v72"); A("v_mul_u32_u24 v76, 40, v73"); A("v_add_u32 v75, v75, v76"); A(f"v_add_u32 v75, {VL}, v75")
    for tt in range(4):
        P=[acck(f//4,tt,f%4) for f in range(18)]
        Ep,Em=softmax_core(P,p,24,True)
        E=Ep+Em
        pk=64
        for i in range(18): A(f"v_cvt_pk_bf16_f32 v{78+i}, {E[2*i]}, {E[2*i+1]}")
        off=tt*16*320
        A("s_waitcnt lgkmcnt(0)")
        for i in range(4): A(f"ds_write_b128 v74, v[{78+4*i}:{81+4*i}] offset:{off+16*i}")
        A(f"ds_write_b64 v74, v[94:95] offset:{off+64}")
        A(f"v_mov_b32 {accv(4,tt,2)}, 1.0"); A(f"v_mov_b32 {accv(4,tt,3)}, 0")
        for t in range(5):
            A(f"v_cvt_pk_bf16_f32 v{24+2*t}, {accv(t,tt,0)}, {accv(t,tt,1)}"); A(f"v_cvt_pk_bf16_f32 v{25+2*t}, {accv(t,tt,2)}, {accv(t,tt,3)}")
        offv=tt*16*160
        for t in range(5): A(f"ds_write_b64 v75, v[{24+2*t}:{25+2*t}] offset:{offv+8*t}")
    A("s_waitcnt lgkmcnt(0)"); A("s_barrier")
    ST.stamp(p,3)
    A(f"v_and_b32 v24, 15, v{V_L}"); A(f"v_lshrrev_b32 v25, 4, v{V_L}"); A("v_lshrrev_b32 v26, 2, v24"); A("v_and_b32 v27, 3, v24")
    A("v_lshlrev_b32 v28, 3, v25"); A("v_add_u32 v28, v28, v26")
    A("v_mul_u32_u24 v29, 160, v28"); A("v_lshlrev_b32 v30, 3, v27"); A("v_add_u32 v29, v29, v30")
    A(f"s_mul_i32 s38, s{S_W}, 40"); A(f"s_add_u32 s38, s38, {VL}"); A("v_add_u32 v29, s38, v29")
    A("v_mul_u32_u24 v31, 320, v28"); A("v_add_u32 v31, v31, v30")
    A(f"s_mul_i32 s38, s{S_W}, 80"); A("v_add_u32 v31, s38, v31")
    A("v_add_u32 v32, 40960, v31")
    KV=96
    for ks in range(8):
        fr=40
        for dt in range(2):
            for h in range(2):
                A(f"ds_read_b64_tr_b16 v[{fr+4*dt+2*h}:{fr+4*dt+2*h+1}], v29 offset:{(32*ks+4*h)*160+32*dt}")
        for ft in range(3):
            for h in range(2):
                base,ko=("v31",ks) if ks<4 else ("v32",ks-4)
                A(f"ds_read_b64_tr_b16 v[{fr+8+4*ft+2*h}:{fr+8+4*ft+2*h+1}], {base} offset:{(32*ko+4*h)*320+32*ft}")
        A("s_waitcnt lgkmcnt(0)")
        for dt in range(2):
            for ft in range(3):
                d=KV+(dt*3+ft)*4
                c=f"v[{d}:{d+3}]" if ks>0 else "0"
                A(f"v_mfma_f32_16x16x32_bf16 v[{d}:{d+3}], v[{fr+4*dt}:{fr+4*dt+3}], v[{fr+8+4*ft}:{fr+8+4*ft+3}], {c}")
    A("s_nop 7")
    A(f"s_lshl_b32 s38, s{S_RT}, 5"); A(f"s_lshl_b32 s39, s{S_QD}, 2"); A("s_add_u32 s38, s38, s39"); A(f"s_add_u32 s38, s38, s{S_W}"); A("s_mul_i32 s38, s38, 2880")
    A("v_mul_u32_u24 v33, 80, v24"); A("v_lshlrev_b32 v34, 4, v25"); A("v_add_u32 v33, v33, v34")
    A("v_cmp_eq_u32 s[50:51], 0, v25")
    A("v_cmp_gt_u32 s[52:53], 4, v24")
    A("s_nop 1")
    A("s_and_b64 s[54:55], s[50:51], s[52:53]")
    for ft in range(3):
        for dt in range(2):
            d=KV+(dt*3+ft)*4
            mask={(0,0):None,(0,1):"s[50:51]"}.get((min(ft//2,1)*0,dt)) if ft<2 else ("s[52:53]" if dt==0 else "s[54:55]")
            if mask: A(f"s_mov_b64 exec, {mask}")
            A(f"buffer_store_dwordx4 v[{d}:{d+3}], v33, s[{S_KV}:{S_KV+3}], s38 offen offset:{ft*16*80+dt*64} sc1")
            if mask: A("s_mov_b64 exec, -1")
    A("s_waitcnt vmcnt(0)"); A("s_barrier")
    A(f"s_cmp_eq_u32 s{S_W}, 0"); A("s_cbranch_scc0 L_att_nosig")
    A(f"s_lshl_b32 s38, s{S_QD}, 2"); A("v_mov_b32 v33, s38"); A("v_mov_b32 v34, 1")
    A(f"v_cmp_eq_u32 vcc, 0, v{V_L}"); A("s_and_saveexec_b64 s[48:49], vcc")
    A("global_atomic_add v33, v34, s[68:69] sc1")
    A("s_mov_b64 exec, s[48:49]")
    A.label("L_att_nosig")
    ST.stamp(p,4)
    def accqv(t,tt,r): return f"v{96+(t*4+tt)*4+r}"
    for i in range(80): A(f"v_accvgpr_read_b32 v{96+i}, a{i}")
    stage2(p, accqv, lambda u,tt: f"v[{176+(u*4+tt)*4}:{176+(u*4+tt)*4+3}]", 24)
    for tt in range(4):
        P=[f"v{176+((f//4)*4+tt)*4+(f%4)}" for f in range(18)]
        Ep,Em=softmax_core(P,p,24,False)
        A("s_nop 0")
        for half,E in enumerate((Ep,Em)):
            for i in range(9):
                A(f"v_cvt_pk_bf16_f32 v{78+i}, {E[2*i]}, {E[2*i+1]}")
            for i in range(9): A(f"v_accvgpr_write_b32 a{140+tt*24+half*12+i}, v{78+i}")
            for i in range(9,12): A(f"v_accvgpr_write_b32 a{140+tt*24+half*12+i}, 0")
    ST.stamp(p,5)
    A(f"s_cmp_eq_u32 s{S_W}, 0"); A("s_cbranch_scc0 L_att_wdone")
    A(f"s_lshl_b32 s38, s{S_QD}, 2"); A("v_mov_b32 v33, s38")
    A("s_mov_b32 s39, 0")
    A.label("L_att_poll")
    A("s_add_u32 s39, s39, 1"); A("s_cmp_gt_u32 s39, 200000"); A("s_cbranch_scc1 L_att_wdone")
    A("global_load_dword v34, v33, s[68:69] sc1"); A("s_waitcnt vmcnt(0)")
    A("v_readfirstlane_b32 s38, v34"); A("s_nop 1"); A("s_cmp_ge_u32 s38, 8"); A("s_cbranch_scc1 L_att_wdone")
    A("s_sleep 4"); A("s_branch L_att_poll")
    A.label("L_att_wdone")
    A("s_barrier")
    ST.stamp(p,6)
    A(f"s_lshl_b32 s39, s{S_QD}, 2"); A(f"s_add_u32 s39, s39, s{S_W}"); A("s_mul_i32 s39, s39, 2880")
    for r in range(8):
        A(f"s_add_u32 s38, s39, {r*32*2880}")
        for i in range(3):
            b=96+(r*3+i)*4
            if i==2: A(f"v_cmp_gt_u32 vcc, 52, v{V_L}") if r==0 else None
            if i==2 : A("s_mov_b64 exec, vcc")
            A(f"buffer_load_dwordx4 v[{b}:{b+3}], v{V_L16}, s[{S_KV}:{S_KV+3}], s38 offen offset:{1024*i} sc1")
            if i==2: A("s_mov_b64 exec, -1")
    A("s_waitcnt vmcnt(0)")
    for i in range(3):
        for k in range(4):
            for r in range(1,8): A(f"v_add_f32 v{96+i*4+k}, v{96+i*4+k}, v{96+(r*3+i)*4+k}")
    for i in range(3):
        A(f"v_add_u32 v30, {64*i}, v{V_L}")
        A("v_mul_u32_u24 v31, 205, v30"); A("v_lshrrev_b32 v31, 10, v31")
        A("v_mul_u32_u24 v32, 5, v31"); A("v_sub_u32 v32, v30, v32")
        A("v_cmp_eq_u32 vcc, 4, v32"); A("s_nop 1"); A(f"v_cndmask_b32 v{96+i*4+3}, v{96+i*4+3}, 1.0, vcc" if False else f"v_mov_b32 v35, 1.0")
        A(f"v_cndmask_b32 v{96+i*4+3}, v{96+i*4+3}, v35, vcc")
        A("v_cmp_le_u32 vcc, 18, v31"); A("v_mov_b32 v36, 0"); A("v_mov_b32 v37, 240"); A("v_cndmask_b32 v36, v36, v37, vcc")
        A("v_mul_u32_u24 v31, 40, v31"); A("v_lshlrev_b32 v32, 3, v32"); A("v_add3_u32 v31, v31, v32, v36")
        A(f"s_mul_i32 s38, s{S_W}, 1920"); A(f"s_add_u32 s38, s38, {KVL}"); A("v_add_u32 v31, s38, v31")
        A(f"v_cvt_pk_bf16_f32 v38, v{96+i*4}, v{96+i*4+1}"); A(f"v_cvt_pk_bf16_f32 v39, v{96+i*4+2}, v{96+i*4+3}")
        if i==2: A(f"v_cmp_gt_u32 vcc, 52, v{V_L}"); A("s_mov_b64 exec, vcc") if False else None
        if i==2: A("s_nop 0"); A("s_mov_b64 exec, vcc")
        A("ds_write_b64 v31, v[38:39]")
        if i==2: A("s_mov_b64 exec, -1")
    A("s_waitcnt lgkmcnt(0)"); A("s_barrier")
    ST.stamp(p,7)
    def N(half,u,tt,r=None):
        b=96+((half*5+u)*4+tt)*4; return f"v[{b}:{b+3}]" if r is None else f"v{b+r}"
    seq=[(half,s,u) for half in range(2) for s in range(3) for u in range(5)]
    def rd(i):
        half,s,u=seq[i]
        return [f"ds_read_b64_tr_b16 {afh(i,h)}, v{V_BD2} offset:{half*960+(8*s+4*h)*40+8*u}" for h in range(2)]
    PF=4
    for i in range(PF):
        for x in rd(i): A(x)
    for i,(half,s,u) in enumerate(seq):
        rem=min(PF-1,len(seq)-1-i)
        A(f"s_waitcnt lgkmcnt({2*rem})")
        nxt=rd(i+PF) if i+PF<len(seq) else []
        for tt in range(4):
            e=140+tt*24+half*12+4*s
            c=N(half,u,tt) if s>0 else "0"
            A(f"v_mfma_f32_16x16x32_bf16 {N(half,u,tt)}, {afr(i)}, a[{e}:{e+3}], {c}")
            if tt<len(nxt): A(nxt[tt])
    A("s_nop 7")
    A(f"s_lshl_b32 s38, s{S_RT}, 4"); A(f"s_lshl_b32 s39, s{S_W}, 2"); A("s_add_u32 s38, s38, s39"); A(f"s_mul_i32 s38, s38, {NKS_TOT}")
    A(f"s_mul_i32 s39, s{S_QD}, 3"); A("s_add_u32 s38, s38, s39"); A("s_add_u32 s38, s38, 144"); A("s_lshl_b32 s38, s38, 10")
    for tt in range(4):
        a="v24"; b="v25"; den="v26"
        A(f"v_rcp_f32 {a}, {N(0,4,tt,3)}"); A(f"v_rcp_f32 {b}, {N(1,4,tt,3)}"); A("s_nop 0")
        A(f"v_mul_f32 {den}, {N(0,4,tt,2)}, {a}"); A(f"v_fmac_f32 {den}, {N(1,4,tt,2)}, {b}"); A(f"v_add_f32 {den}, 0x{f2u(1e-6):08x}, {den}")
        A(f"v_rcp_f32 {den}, {den}"); A("s_nop 0"); A(f"v_mul_f32 {a}, {a}, {den}"); A(f"v_mul_f32 {b}, {b}, {den}")
        for d in range(18):
            A(f"v_mul_f32 v{28+d}, {N(0,d//4,tt,d%4)}, {a}"); A(f"v_fmac_f32 v{28+d}, {N(1,d//4,tt,d%4)}, {b}")
        o=48+12*(tt%2)
        for i in range(9): A(f"v_cvt_pk_bf16_f32 v{o+i}, v{28+2*i}, v{29+2*i}")
        for i in range(9,12): A(f"v_mov_b32 v{o+i}, 0")
        for s in range(3):
            A(f"buffer_store_dwordx4 v[{o+4*s}:{o+4*s+3}], v{V_L16}, s[{S_H}:{S_H+3}], s38 offen offset:{1024*s}")
        A(f"s_add_u32 s38, s38, {NKS_TOT*1024}")
    if ST.ENABLE: A("s_waitcnt vmcnt(0)")
    ST.stamp(p,8)
    ST.flush(p,70,71,2)
    A("s_endpgm")
    if docheck:
        ins=p.ins
        body=ins[il:idn]
        cut=[i for i,x in enumerate(body) if x.op=='s_cbranch_scc1'][0]
        tr=ins[:il]+body+body[:cut+1]+ins[idn:]
        print("att check problems:",len(check(tr,'att')))
if __name__=="__main__":
    for n in range(2304): assert (n*0x1556)>>16==n//12
    for n in range(12): assert (n*86)>>8==n//3
    for n in range(768): assert (n*0x195)>>16==n//162, n
    for n in range(162): assert (n*57)>>9==n//9
    for n in range(192): assert (n*205)>>10==n//5
    p=Prog(); gen_att(p); print(len(p.ins))
```

```python
from core import *
import stamp as ST
import struct
def f2u(x): return struct.unpack('<I', struct.pack('<f', x))[0]
import math
C0 = -2.0*math.log2(math.e)*math.sqrt(2.0/math.pi)
C1 = C0*0.044715

NKS_TOT = 168
H_BYTES = 128*NKS_TOT*1024
XT = 36864
SLOT = [0, 36864, 122880, 73728]
WRING0 = 73728; WST = 16384; NWR = 5

def wfrag(ks,j):
    i=ks*4+j
    if i<64: return f"a[{4*i}:{4*i+3}]"
    i-=64
    return f"v[{224+4*i}:{224+4*i+3}]"
def wfrag_half(ks,j,h):
    i=ks*4+j
    if i<64: return f"a[{4*i+2*h}:{4*i+2*h+1}]"
    i-=64
    return f"v[{224+4*i+2*h}:{224+4*i+2*h+1}]"
ACC=[128,160]
def acc(buf,tt,j,r=None):
    b=ACC[buf]+16*tt+4*j
    return f"v[{b}:{b+3}]" if r is None else f"v{b+r}"
XR0=192; NX=6
def xfr(q):
    b=XR0+4*(q%NX); return f"v[{b}:{b+3}]"
HP=216
TMP0=96
V_XDMA=64
V_WDMA=73
V_WTR=75
V_XP=77
V_XA=[79,81]
V_L16=83
V_C0=84; V_C1=85
V_WTR2=86
S_X=8; S_G=12; S_U=16; S_H=20
S_W=24
S_XSO=25
S_HSO=26; S_HSO1=27
S_WSO=28
S_CNT=29
S_BE=30; S_BO=31
S_DE=32; S_DO=33
S_T=34; S_T2=35

def gelu_stream(buf):
    out=[]
    t=0
    res=[]
    for tt in range(2):
        chains=[]
        for j in range(2):
            for r in range(4):
                x=acc(buf,tt,j,r); u=acc(buf,tt,2+j,r)
                a=TMP0+4*((tt*8+j*4+r)%8);
                T,P,Y=f"v{a}",f"v{a+1}",f"v{a+2}"
                chains.append([f"v_mul_f32 {T}, {x}, {x}",
                               f"v_fmaak_f32 {T}, v{V_C1}, {T}, 0x{f2u(C0):08x}",
                               f"v_mul_f32 {T}, {T}, {x}",
                               f"v_exp_f32 {T}, {T}",
                               f"v_mul_f32 {Y}, {x}, {u}",
                               f"v_add_f32 {T}, 1.0, {T}",
                               f"v_rcp_f32 {T}, {T}",
                               None,
                               f"v_mul_f32 {Y}, {Y}, {T}"])
        for p in range(0,8,2):
            c0,c1=chains[p],chains[p+1]
            seq=[]
            for k in range(9):
                if c0[k]: seq.append(c0[k])
                if c1[k]: seq.append(c1[k])
            j=p//4; r=p%4
            y0=TMP0+4*((tt*8+p)%8)+2; y1=TMP0+4*((tt*8+p+1)%8)+2
            seq.append(f"v_cvt_pk_bf16_f32 v{HP+4*tt+p//2}, v{y0}, v{y1}")
            out+= [Ins(s) for s in seq]
        out.append(Ins(f"buffer_store_dwordx4 v[{HP+4*tt}:{HP+4*tt+3}], v{V_L16}, s[{S_H}:{S_H+3}], s{S_HSO if tt==0 else S_HSO1} offen", tag=f"store{tt}"))
    return out

def xread(par, q, nxt=False):
    ks,tt=q//2,q%2
    a=V_XA[par]+(ks&1)
    return Ins(f"ds_read_b128 {xfr(q)}, v{a} offset:{(ks>>1)*4096+tt*2048}")

def xdma(dst_sreg):
    out=[]
    for i in range(9):
        if i%4==0:
            out.append(Ins(f"s_add_u32 m0, s{dst_sreg}, {4096*(i//4)}" if i else f"s_mov_b32 m0, s{dst_sreg}"))
            out.append(None)
        out.append(Ins(f"buffer_load_dwordx4 v{V_XDMA+i}, s[{S_X}:{S_X+3}], s{S_XSO} offen offset:{1024*(i%4)} lds"))
    return out

def tile_body(par):
    buf=par
    main=[]
    dm=[x for x in xdma(S_DE if par==0 else S_DO)]
    for ks in range(18):
        main.append(Ins("s_waitcnt lgkmcnt(2)"))
        pre=[]
        for tt in range(2):
            q=2*ks+tt+4
            pre.append(xread(par,q) if q<36 else xread(1-par,q-36))
        for tt in range(2):
            for j in range(4):
                c = acc(buf,tt,j) if ks>0 else "0"
                main.append(Ins(f"v_mfma_f32_16x16x32_bf16 {acc(buf,tt,j)}, {wfrag(ks,j)}, {xfr(2*ks+tt)}, {c}"))
                if j==0: main.append(pre[tt])
        if ks==13:
            pass
    return main, dm

def emit_tile(p, par, first=False):
    main,dm=tile_body(par)
    idx=[i for i,x in enumerate(main) if x.kind=='wait']
    pos13=idx[13]
    extra=[Ins("s_waitcnt vmcnt(12)"),Ins("s_barrier")]
    main=main[:pos13]+extra+main[pos13:]
    nb = S_BO if par==0 else S_BE
    hk=[Ins(f"v_add_u32 v{V_XA[1-par]}, s{nb}, v{V_XP}"), Ins(f"v_add_u32 v{V_XA[1-par]+1}, s{nb}, v{V_XP+1}")]
    g=gelu_stream(1-par)
    out=[]; di=0; after=False; cnt=0
    dml=[]
    for x in dm:
        dml.append(x)
    k=0
    res=[]
    pend=list(dml)
    for x in main:
        res.append(x)
        if x.kind=='barrier': after=True; cnt=0; continue
        if after and x.kind=='mfma':
            cnt+=1
            if cnt%3==0 and pend:
                y=pend.pop(0)
                if y is not None: res.append(y)
                if pend and pend[0] is None: pend.pop(0)
    assert not pend, len(pend)
    tail=[Ins(f"s_add_u32 s{S_XSO}, s{S_XSO}, {XT}")]
    if par==0:
        tail.append(Ins(f"s_xor_b32 s{S_DE}, s{S_DE}, s{S_T}"))
        tail.append(Ins(f"s_xor_b32 s{S_BO}, s{S_BO}, {SLOT[1]^SLOT[3]}"))
    else:
        tail.append(Ins(f"s_xor_b32 s{S_DO}, s{S_DO}, s{S_T2}"))
        tail.append(Ins(f"s_xor_b32 s{S_BE}, s{S_BE}, {SLOT[0]^SLOT[2]}"))
    g2=g+[Ins(f"s_add_u32 s{S_HSO}, s{S_HSO}, {2*NKS_TOT*1024}"), Ins(f"s_add_u32 s{S_HSO1}, s{S_HSO1}, {2*NKS_TOT*1024}")]
    merged=interleave(res, hk+g2, budget=2)
    order=[('dma' if x.kind=='dma' else x.tag) for x in merged if x.kind in('dma','vmem')]
    assert order==['store0']+['dma']*9+['store1'], order
    i0=[i for i,x in enumerate(merged) if x.tag=='store0'][0]; ib=[i for i,x in enumerate(merged) if x.kind=='barrier'][0]
    assert i0<ib
    p.add(merged); p.add(tail)

def gen_gemm1(p):
    A=p
    A(f"s_mul_i32 s38, s37, {13*XT}")
    A(f"s_add_u32 s{S_X}, s40, s38"); A(f"s_addc_u32 s{S_X+1}, s41, 0")
    A(f"s_sub_u32 s{S_X}, s{S_X}, 4096"); A(f"s_subb_u32 s{S_X+1}, s{S_X+1}, 0")
    A(f"s_sub_u32 s{S_X+2}, {2048*1152+4096}, s38"); A(f"s_mov_b32 s{S_X+3}, 0x20000")
    A("s_lshl_b32 s39, s36, 8")
    A(f"s_add_u32 s{S_G}, s42, s39"); A(f"s_addc_u32 s{S_G+1}, s43, 0")
    A(f"s_sub_u32 s{S_G+2}, {576*9216}, s39"); A(f"s_mov_b32 s{S_G+3}, 0x20000")
    A(f"s_add_u32 s{S_U}, s44, s39"); A(f"s_addc_u32 s{S_U+1}, s45, 0")
    A(f"s_sub_u32 s{S_U+2}, {576*9216}, s39"); A(f"s_mov_b32 s{S_U+3}, 0x20000")
    A(f"s_mov_b32 s{S_H}, s46"); A(f"s_mov_b32 s{S_H+1}, s47"); A(f"s_mov_b32 s{S_H+2}, {H_BYTES}"); A(f"s_mov_b32 s{S_H+3}, 0x20000")
    A("v_and_b32 v1, 63, v0")
    A(f"v_lshlrev_b32 v{V_L16}, 4, v1")
    A("v_lshrrev_b32 v2, 4, v1")
    A("v_and_b32 v3, 15, v1")
    A("v_lshrrev_b32 v4, 3, v1")
    A("v_and_b32 v5, 7, v1")
    A(f"s_and_b32 s38, s{S_W}, 1"); A("s_lshl_b32 s38, s38, 3")
    A("v_lshlrev_b32 v6, 1, v2"); A("v_add_u32 v6, s38, v6")
    A("v_xor_b32 v6, v6, v3"); A("v_lshlrev_b32 v6, 4, v6")
    A(f"s_lshl_b32 s38, s{S_W}, 3")
    A("v_add_u32 v7, s38, v2")
    A("s_movk_i32 s39, 0x2400")
    A("v_mul_lo_u32 v7, v7, s39")
    A(f"v_add_u32 v{V_WDMA}, v7, v6")
    A(f"v_add_u32 v{V_WDMA+1}, {4*9216-1024}, v{V_WDMA}")
    A("v_lshrrev_b32 v6, 2, v3")
    A("v_and_b32 v7, 3, v3")
    A("v_lshlrev_b32 v8, 3, v2"); A("v_add_u32 v8, v8, v6"); A("v_lshlrev_b32 v8, 8, v8")
    A("v_lshrrev_b32 v9, 1, v7")
    A(f"s_lshl_b32 s38, s{S_W}, 2"); A("v_add_u32 v9, s38, v9")
    A("v_and_b32 v10, 1, v2"); A("v_lshlrev_b32 v10, 3, v10"); A("v_lshlrev_b32 v11, 1, v6"); A("v_add_u32 v10, v10, v11")
    A("v_xor_b32 v9, v9, v10"); A("v_lshlrev_b32 v9, 4, v9")
    A("v_and_b32 v7, 1, v7"); A("v_lshlrev_b32 v7, 3, v7")
    A("v_add3_u32 v8, v8, v9, v7")
    A(f"v_add_u32 v{V_WTR}, {WRING0}, v8")
    A(f"v_xor_b32 v8, 32, v8"); A(f"v_add_u32 v{V_WTR+1}, {WRING0}, v8")
    A(f"v_add_u32 v{V_WTR2}, {3*WST}, v{V_WTR}"); A(f"v_add_u32 v{V_WTR2+1}, {3*WST}, v{V_WTR+1}")
    A("s_movk_i32 s39, 0x480")
    A("v_mul_lo_u32 v6, v4, s39")
    A(f"s_mul_i32 s{S_T}, s{S_W}, 9")
    for i in range(9):
        A(f"s_add_u32 s38, s{S_T}, {i}")
        A("s_and_b32 s48, s38, 3")
        A("s_lshr_b32 s49, s38, 2")
        A("s_and_b32 s50, s48, 1"); A("s_lshl_b32 s50, s50, 2")
        A("v_add_u32 v7, s50, v2"); A("v_and_b32 v7, 7, v7"); A("v_xor_b32 v7, v7, v5"); A("v_lshlrev_b32 v7, 4, v7")
        A("s_mul_i32 s48, s48, 9216"); A("s_lshl_b32 s49, s49, 7"); A("s_add_u32 s48, s48, s49")
        A(f"s_add_u32 s48, s48, {4096-1024*(i%4)}")
        A("v_add_u32 v7, v7, v6")
        A(f"v_add_u32 v{V_XDMA+i}, s48, v7")
    A("v_lshrrev_b32 v6, 1, v3"); A("v_xor_b32 v6, v6, v2"); A("v_lshlrev_b32 v6, 4, v6")
    A("v_lshlrev_b32 v7, 7, v3")
    A(f"v_add_u32 v{V_XP}, v6, v7"); A(f"v_xor_b32 v{V_XP+1}, 64, v{V_XP}")
    A(f"v_mov_b32 v{V_C1}, 0x{f2u(C1):08x}")
    A(f"s_mul_i32 s38, s37, {13*2*NKS_TOT*1024}")
    A(f"s_lshl_b32 s39, s36, 2"); A(f"s_add_u32 s39, s39, s{S_W}"); A("s_lshl_b32 s39, s39, 10")
    A(f"s_add_u32 s{S_HSO}, s38, s39"); A(f"s_add_u32 s{S_HSO1}, s{S_HSO}, {NKS_TOT*1024}")
    A(f"s_mul_i32 s51, s{S_W}, 9216")
    A(f"s_lshl_b32 s52, s{S_W}, 11")
    return

def wdma(ks):
    slot=WRING0+WST*(ks%NWR)
    return [Ins(f"s_add_u32 m0, s52, {slot}"),
            Ins(f"s_mov_b32 s{S_WSO}, {ks*32*9216}"),
            Ins(f"buffer_load_dwordx4 v{V_WDMA}, s[{S_G}:{S_G+3}], s{S_WSO} offen lds"),
            Ins(f"buffer_load_dwordx4 v{V_WDMA+1}, s[{S_G}:{S_G+3}], s{S_WSO} offen offset:1024 lds"),
            Ins(f"s_add_u32 m0, s52, {slot+8192}"),
            Ins("s_nop 0"),
            Ins(f"buffer_load_dwordx4 v{V_WDMA}, s[{S_U}:{S_U+3}], s{S_WSO} offen lds"),
            Ins(f"buffer_load_dwordx4 v{V_WDMA+1}, s[{S_U}:{S_U+3}], s{S_WSO} offen offset:1024 lds")]

def xdma_full(p, slotbase, tile):
    p(f"s_add_u32 s53, s51, {slotbase}")
    p(f"s_mov_b32 s{S_XSO}, {tile*XT}")
    for x in xdma(53):
        p.add([x] if x is not None else [Ins("s_nop 0")])

def wreads(ks):
    out=[]
    sl=ks%NWR
    so=WST*(sl if sl<3 else sl-3)
    for j in range(4):
        i=j&1; u=j>>1
        for h in range(2):
            off=so+u*8192+h*1024
            base=(V_WTR if sl<3 else V_WTR2)+i
            if off>65535-0:
                raise ValueError
            out.append(Ins(f"ds_read_b64_tr_b16 {wfrag_half(ks,j,h)}, v{base} offset:{off}"))
    return out

def gen_gemm1_main(p):
    ST.stamp(p,1)
    p.add(wdma(0)); xdma_full(p,SLOT[0],0); p.add(wdma(1)); xdma_full(p,SLOT[1],1)
    p.add(wdma(2)); p.add(wdma(3)); p.add(wdma(4))
    p(f"v_mov_b32 v{V_XA[0]}, v{V_XP}"); p(f"v_mov_b32 v{V_XA[0]+1}, v{V_XP+1}")
    p(f"v_add_u32 v{V_XA[1]}, {SLOT[1]}, v{V_XP}"); p(f"v_add_u32 v{V_XA[1]+1}, {SLOT[1]}, v{V_XP+1}")
    p("s_waitcnt vmcnt(12)"); p("s_barrier")
    ST.stamp(p,2)
    p.add(wreads(0))
    def sx(tile,tt,ks):
        b = (XR0 if ks%2==0 else TMP0) + 4*(2*tile+tt)
        return f"v[{b}:{b+3}]"
    def sxread(ks):
        return [Ins(f"ds_read_b128 {sx(tile,tt,ks)}, v{V_XA[tile]+(ks&1)} offset:{(ks>>1)*4096+tt*2048}") for tile in range(2) for tt in range(2)]
    p.add(sxread(0))
    vm_issued_after = None
    log=['W2']*4+['W3']*4+['W4']*4
    for ks in range(18):
        if ks+1<18:
            tag=f'W{ks+1}'
            if tag in log:
                last=max(i for i,t in enumerate(log) if t==tag)
                n=len(log)-1-last
                p(f"s_waitcnt vmcnt({n}) lgkmcnt(0)")
                log=log[last+1:]
            else:
                p("s_waitcnt lgkmcnt(0)")
        else:
            p("s_waitcnt lgkmcnt(0)")
        p("s_barrier")
        ml=[]
        for tile in range(2):
            for tt in range(2):
                for j in range(4):
                    c=acc(tile,tt,j) if ks>0 else "0"
                    ml.append(Ins(f"v_mfma_f32_16x16x32_bf16 {acc(tile,tt,j)}, {wfrag(ks,j)}, {sx(tile,tt,ks)}, {c}"))
        fl=[]
        if ks+1<18:
            fl+=wreads(ks+1)[:]; fl+=sxread(ks+1)
        if ks+5<18:
            fl+=wdma(ks+5); log+= [f'W{ks+5}']*4
        if ks==15:
            fl.append(Ins(f"s_add_u32 s53, s51, {SLOT[2]}")); fl.append(Ins(f"s_mov_b32 s{S_XSO}, {2*XT}"))
            for x in xdma(53): fl.append(x if x is not None else Ins("s_nop 0"))
            log+=['X2']*9
        if ks==17:
            for (tile,slot) in ((3,SLOT[3]),(4,SLOT[0])):
                fl.append(Ins(f"s_add_u32 s53, s51, {slot}")); fl.append(Ins(f"s_mov_b32 s{S_XSO}, {tile*XT}"))
                for x in xdma(53): fl.append(x if x is not None else Ins("s_nop 0"))
        p.add(interleave(ml, fl, budget=2))
    ST.stamp(p,3)
    p(f"s_mov_b32 s{S_XSO}, {5*XT}")
    p(f"s_add_u32 s{S_DE}, s51, {SLOT[1]}")
    p(f"s_add_u32 s54, s51, {SLOT[3]}"); p(f"s_xor_b32 s{S_T}, s{S_DE}, s54")
    p(f"s_add_u32 s{S_DO}, s51, {SLOT[2]}")
    p(f"s_add_u32 s54, s51, {SLOT[0]}"); p(f"s_xor_b32 s{S_T2}, s{S_DO}, s54")
    p(f"s_mov_b32 s{S_BO}, {SLOT[3]}"); p(f"s_mov_b32 s{S_BE}, {SLOT[0]}")
    p("s_nop 7")
    g=gelu_stream(0)
    p.add(g)
    p(f"s_add_u32 s{S_HSO}, s{S_HSO}, {2*NKS_TOT*1024}"); p(f"s_add_u32 s{S_HSO1}, s{S_HSO1}, {2*NKS_TOT*1024}")
    p("s_waitcnt vmcnt(20)"); p("s_barrier")
    p(f"v_add_u32 v{V_XA[0]}, {SLOT[2]}, v{V_XP}"); p(f"v_add_u32 v{V_XA[0]+1}, {SLOT[2]}, v{V_XP+1}")
    for q in range(4): p.add([xread(0,q)])
    p(f"s_mov_b32 s{S_CNT}, 0")
    if ST.ENABLE:
        p("s_waitcnt lgkmcnt(0)")
    ST.stamp(p,4)
    i_loop=len(p.ins)
    p.label("L_g1_loop")
    emit_tile(p,0)
    p(f"s_cmp_eq_u32 s{S_CNT}, 5"); p("s_cbranch_scc1 L_g1_done")
    emit_tile(p,1)
    p(f"s_add_u32 s{S_CNT}, s{S_CNT}, 1"); p("s_branch L_g1_loop")
    p.label("L_g1_done")
    i_done=len(p.ins)
    p("s_waitcnt lgkmcnt(0)")
    ST.stamp(p,5)
    p("s_nop 7")
    p.add(gelu_stream(0))
    if ST.ENABLE: p("s_waitcnt vmcnt(0)")
    ST.stamp(p,6)
    ST.flush(p,46,47,0)
    return i_loop,i_done
```

```python
from core import *
import stamp as ST
from k1_gemm import NKS_TOT, H_BYTES, f2u
G_OFF=0x1500000; P_OFF=0x1600000
U=12; STG=12288
S0=[0,34,68,102,135]
ACCB=64; ACCA=160
def acc(st,q,tt,r=None):
    b=(ACCB if st==0 else ACCA)+(q*2+tt)*4
    return f"v[{b}:{b+3}]" if r is None else f"v{b+r}"
def hfr(u,tt): b=(u*2+tt)*4; return f"a[{b}:{b+3}]"
def afr(q): b=96+4*q; return f"a[{b}:{b+3}]"
def afh(q,h): b=96+4*q+2*h; return f"a[{b}:{b+1}]"
V_TR=8
V_DF=20
V_DA=23
V_L16=26
V_G=27
S_WD=8; S_WO=12; S_H=16; S_P=20; S_CUR=24
S_W=28; S_WB=29
S_DSO=30; S_INA=31; S_INB=32; S_HS0=33; S_HS1=34; S_RND=35; S_X8=36; S_X9=37; S_SP=38; S_CB=39

def trread(q,h,stage):
    grp=stage//5; so=(stage%5)*STG
    return Ins(f"ds_read_b64_tr_b16 {afh(q,h)}, v{V_TR+4*grp+(q&3)} offset:{so+(q>>2)*128+h*1536}")

def issue(u_dst, inc_sel, hoff):
    o=[]
    o.append(Ins(f"buffer_load_dwordx4 {hfr(u_dst,0)}, v{V_L16}, s[{S_H}:{S_H+3}], s{S_HS0} offen offset:{hoff}"))
    o.append(Ins(f"buffer_load_dwordx4 {hfr(u_dst,1)}, v{V_L16}, s[{S_H}:{S_H+3}], s{S_HS1} offen offset:{hoff}"))
    o.append(Ins(f"s_add_u32 m0, s{S_WB}, {u_dst*STG}"))
    if hoff==3072:
        o.append(Ins(f"s_add_u32 s{S_HS0}, s{S_HS0}, 4096"))
    else:
        o.append(Ins("s_nop 0"))
    for e in range(3):
        o.append(Ins(f"buffer_load_dwordx4 v{V_DF+e}, s[{S_CUR}:{S_CUR+3}], s{S_DSO} offen offset:{1024*e} lds"))
    o.append(Ins(f"s_add_u32 s{S_DSO}, s{S_DSO}, s{inc_sel}"))
    if hoff==3072:
        o.append(Ins(f"s_add_u32 s{S_HS1}, s{S_HS1}, 4096"))
    return o

def step(u, st):
    main=[Ins("s_waitcnt vmcnt(45)"),Ins("s_barrier")]
    un=(u+1)%U
    for q in range(12):
        if q%2==0: main.append(Ins("s_waitcnt lgkmcnt(8)"))
        qn=q+6
        rd=[trread(qn,h,u) for h in range(2)] if qn<12 else [trread(qn-12,h,un) for h in range(2)]
        for tt in range(2):
            main.append(Ins(f"v_mfma_f32_16x16x32_bf16 {acc(st,q,tt)}, {afr(q)}, {hfr(u,tt)}, {acc(st,q,tt)}"))
            main.append(rd[tt])
    ud=(u+11)%U
    hoff=1024*((u+11)%4)
    inc=S_INB if (u+2)%3==2 else S_INA
    fl=issue(ud,inc,hoff)
    return interleave(main, fl, budget=2)

def gen_k2(docheck=True):
    p=Prog()
    p("s_cmp_ge_u32 s2, 240"); p("s_cbranch_scc1 L_k2_end")
    ST.stamp(p,0)
    p("s_load_dwordx2 s[40:41], s[0:1], 24")
    p("s_load_dwordx2 s[42:43], s[0:1], 56")
    p("s_load_dwordx2 s[44:45], s[0:1], 88")
    p("v_lshrrev_b32 v1, 6, v0")
    p("s_and_b32 s4, s2, 7"); p("s_lshr_b32 s5, s2, 3")
    p(f"v_readfirstlane_b32 s{S_W}, v1")
    p("s_mul_i32 s4, s4, 30"); p("s_add_u32 s4, s4, s5")
    p("s_mul_i32 s5, s4, 171"); p("s_lshr_b32 s5, s5, 9")
    p("s_mul_i32 s6, s5, 3"); p("s_sub_u32 s6, s4, s6")
    p(f"s_lshr_b32 s{S_SP}, s5, 4")
    p("s_and_b32 s7, s5, 15")
    p(f"s_mul_i32 s46, s{S_SP}, 34"); p(f"s_cmp_eq_u32 s{S_SP}, 4"); p("s_cselect_b32 s47, 1, 0"); p("s_sub_u32 s46, s46, s47")
    p(f"s_mov_b32 s{S_X8}, 99"); p(f"s_mov_b32 s{S_X9}, 2")
    p(f"s_cmp_eq_u32 s{S_SP}, 3"); p(f"s_cselect_b32 s{S_X8}, 2, s{S_X8}")
    p(f"s_cmp_eq_u32 s{S_SP}, 4"); p(f"s_cselect_b32 s{S_X8}, 0, s{S_X8}")
    p("s_waitcnt lgkmcnt(0)")
    p("s_mul_i32 s47, s6, 384")
    for (S,lo,size) in ((S_WD,42,4608*1152),(S_WO,40,576*1152)):
        p(f"s_add_u32 s{S}, s{lo}, s47"); p(f"s_addc_u32 s{S+1}, s{lo+1}, 0")
        p(f"s_sub_u32 s{S}, s{S}, 4096"); p(f"s_subb_u32 s{S+1}, s{S+1}, 0")
        p(f"s_sub_u32 s{S+2}, {size+4096}, s47"); p(f"s_mov_b32 s{S+3}, 0x20000")
    p(f"s_mov_b32 s{S_H}, s44"); p(f"s_mov_b32 s{S_H+1}, s45"); p(f"s_mov_b32 s{S_H+2}, {H_BYTES}"); p(f"s_mov_b32 s{S_H+3}, 0x20000")
    p(f"s_lshl_b32 s47, s4, 2"); p(f"s_add_u32 s47, s47, s{S_W}"); p("s_mul_i32 s47, s47, 12288"); p(f"s_add_u32 s47, s47, {P_OFF}")
    p(f"s_add_u32 s{S_P}, s44, s47"); p(f"s_addc_u32 s{S_P+1}, s45, 0"); p(f"s_mov_b32 s{S_P+2}, 12288"); p(f"s_mov_b32 s{S_P+3}, 0x20000")
    for k in range(4): p(f"s_mov_b32 s{S_CUR+k}, s{S_WD+k}")
    p("v_and_b32 v1, 63, v0"); p(f"v_lshlrev_b32 v{V_L16}, 4, v1")
    p("v_lshrrev_b32 v2, 4, v1"); p("v_and_b32 v3, 15, v1")
    p("s_lshl_b32 s47, s7, 7"); p(f"s_lshl_b32 s48, s{S_W}, 5"); p("s_add_u32 s47, s47, s48")
    p("s_lshl_b32 s48, s47, 2"); p(f"s_add_u32 s48, s48, {G_OFF}")
    p("s_add_u32 s52, s44, s48"); p("s_addc_u32 s53, s45, 0"); p("s_mov_b32 s54, 128"); p("s_mov_b32 s55, 0x20000")
    p("v_lshlrev_b32 v4, 2, v3")
    p(f"buffer_load_dword v{V_G}, v4, s[52:55], 0 offen"); p(f"buffer_load_dword v{V_G+1}, v4, s[52:55], 0 offen offset:64")
    p("s_lshr_b32 s48, s47, 4"); p(f"s_mul_i32 s48, s48, {NKS_TOT}"); p("s_add_u32 s48, s48, s46"); p(f"s_lshl_b32 s{S_HS0}, s48, 10")
    p(f"s_add_u32 s{S_HS1}, s{S_HS0}, {NKS_TOT*1024}")
    p("v_lshrrev_b32 v4, 2, v3"); p("v_and_b32 v5, 3, v3")
    p("v_lshlrev_b32 v6, 3, v2"); p("v_add_u32 v6, v6, v4"); p("s_movk_i32 s48, 0x180"); p("v_mul_lo_u32 v6, v6, s48")
    p("v_lshlrev_b32 v5, 3, v5"); p("v_add_u32 v6, v6, v5")
    p("v_lshrrev_b32 v4, 1, v4"); p("v_and_b32 v5, 1, v2"); p("v_lshlrev_b32 v5, 1, v5"); p("v_or_b32 v4, v4, v5")
    for k in range(4):
        p(f"v_xor_b32 v5, {k}, v4"); p("v_lshlrev_b32 v5, 5, v5"); p(f"v_add_u32 v{V_TR+k}, v5, v6")
        p(f"v_add_u32 v{V_TR+4+k}, {5*STG}, v{V_TR+k}"); p(f"v_add_u32 v{V_TR+8+k}, {10*STG}, v{V_TR+k}")
    p(f"s_mul_i32 s48, s{S_W}, 192")
    for e in range(3):
        p(f"v_add_u32 v4, s48, v1");
        if e: p(f"v_add_u32 v4, {64*e}, v4")
        p("s_movk_i32 s49, 0xaab"); p("v_mul_lo_u32 v5, v4, s49"); p("v_lshrrev_b32 v5, 16, v5")
        p("v_mul_u32_u24 v6, 24, v5"); p("v_sub_u32 v6, v4, v6")
        p("v_bfe_u32 v7, v5, 1, 1"); p("v_bfe_u32 v4, v5, 3, 1"); p("v_lshlrev_b32 v4, 1, v4"); p("v_or_b32 v7, v7, v4")
        p("v_lshrrev_b32 v4, 1, v6"); p("v_xor_b32 v4, v4, v7"); p("v_lshlrev_b32 v4, 5, v4")
        p("v_and_b32 v6, 1, v6"); p("v_lshlrev_b32 v6, 4, v6"); p("v_add_u32 v4, v4, v6")
        p(f"v_add_u32 v4, {4096-1024*e}, v4")
        p("v_bfe_u32 v6, v5, 2, 1"); p("v_lshlrev_b32 v6, 4, v6"); p("v_lshrrev_b32 v7, 3, v5"); p("v_lshlrev_b32 v30, 2, v7"); p("v_add_u32 v6, v6, v30")
        p("v_and_b32 v30, 3, v5"); p("v_add_u32 v6, v6, v30")
        p("s_movk_i32 s49, 0x480"); p("v_mul_lo_u32 v6, v6, s49"); p(f"v_add_u32 v{V_DF+e}, v6, v4")
        p("v_mul_u32_u24 v6, 18, v7"); p("v_and_b32 v30, 7, v5"); p("v_add_u32 v6, v6, v30")
        p("v_mul_lo_u32 v6, v6, s49"); p(f"v_add_u32 v{V_DA+e}, v6, v4")
    p(f"s_mul_i32 s{S_WB}, s{S_W}, 3072")
    p(f"s_mul_i32 s{S_DSO}, s46, {32*1152}")
    p(f"s_mov_b32 s{S_INA}, {32*1152}"); p(f"s_mov_b32 s{S_INB}, {32*1152}")
    for r in range(ACCB,256): p(f"v_mov_b32 v{r}, 0")
    ST.stamp(p,1)
    for i in range(11):
        if i==9:
            p(f"s_cmp_eq_u32 s{S_SP}, 4"); p("s_cbranch_scc0 L_k2_nosw")
            for k in range(4): p(f"s_mov_b32 s{S_CUR+k}, s{S_WO+k}")
            for e in range(3): p(f"v_mov_b32 v{V_DF+e}, v{V_DA+e}")
            p(f"s_mov_b32 s{S_DSO}, 0"); p(f"s_mov_b32 s{S_INA}, {8*1152}"); p(f"s_mov_b32 s{S_INB}, {56*1152}")
            p.label("L_k2_nosw")
        p.add(issue(i, S_INA, 1024*(i%4)))
    p("s_waitcnt vmcnt(50)"); p("s_barrier")
    ST.stamp(p,2)
    for q in range(6):
        for h in range(2): p.add([trread(q,h,0)])
    p(f"s_mov_b32 s{S_RND}, 0"); p(f"s_mov_b32 s{S_CB}, 0")
    iA=len(p.ins)
    p.label("L_k2_A")
    marks={}
    for u in range(U):
        p.add(step(u,0))
        if u==8:
            p(f"s_cmp_eq_u32 s{S_RND}, s{S_X8}"); p("s_cbranch_scc1 L_k2_x8")
        if u==9:
            p(f"s_cmp_eq_u32 s{S_RND}, s{S_X9}"); p("s_cbranch_scc1 L_k2_done")
    p(f"s_add_u32 s{S_RND}, s{S_RND}, 1"); p("s_branch L_k2_A")
    iA2=len(p.ins)
    p.label("L_k2_x8")
    p(f"s_cmp_eq_u32 s{S_SP}, 4"); p("s_cbranch_scc0 L_k2_done")
    p("s_branch L_k2_B9")
    p.label("L_k2_B")
    iB=len(p.ins)
    for u in range(U):
        if u==9: p.label("L_k2_B9"); iB9=len(p.ins)
        p.add(step(u,1))
        if u==8:
            p(f"s_add_u32 s{S_CB}, s{S_CB}, 1"); p(f"s_cmp_eq_u32 s{S_CB}, 2"); p("s_cbranch_scc1 L_k2_done")
    p("s_branch L_k2_B")
    iB2=len(p.ins)
    p.label("L_k2_done")
    iD=len(p.ins)
    if ST.ENABLE: p("s_waitcnt lgkmcnt(0)")
    ST.stamp(p,3)
    p("s_waitcnt vmcnt(0) lgkmcnt(0)")
    ST.stamp(p,4)
    p("s_nop 7")
    for tt in range(2):
        for pp in range(6):
            regs=[]
            for q in (2*pp,2*pp+1):
                for r in range(4):
                    b=acc(0,q,tt,r); a=acc(1,q,tt,r)
                    p(f"v_sub_f32 {a}, {a}, {b}")
            for q in (2*pp,2*pp+1):
                for r in range(4):
                    b=acc(0,q,tt,r); a=acc(1,q,tt,r)
                    p(f"v_fmac_f32 {b}, v{V_G+tt}, {a}")
            t=32+4*((tt*6+pp)%4)
            k=0
            for q in (2*pp,2*pp+1):
                for r in (0,2):
                    p(f"v_cvt_pk_bf16_f32 v{t+k}, {acc(0,q,tt,r)}, {acc(0,q,tt,r+1)}"); k+=1
            off=(tt*6+pp)*1024
            p(f"s_mov_b32 s56, {off - off%4096}")
            p(f"buffer_store_dwordx4 v[{t}:{t+3}], v{V_L16}, s[{S_P}:{S_P+3}], s56 offen offset:{off%4096}")
    if ST.ENABLE: p("s_waitcnt vmcnt(0)")
    ST.stamp(p,5)
    ST.flush(p,44,45,1)
    p.label("L_k2_end"); p("s_endpgm")
    if docheck:
        ins=p.ins
        tr=ins[:iA2]+ins[iA:iA2]+ins[iD:]
        print("k2 A check problems:",len(check(tr,'k2A')))
        cut=[i for i,x in enumerate(ins) if x.text.startswith('s_cbranch_scc1 L_k2_x8')][0]
        tr=ins[:cut+1]+ins[iB9:iB2]+ins[iB:iB2]+ins[iD:]
        print("k2 B check problems:",len(check(tr,'k2B')))
    return p

def gen_k3(docheck=True):
    p=Prog()
    p("s_cmp_ge_u32 s2, 192"); p("s_cbranch_scc1 L_k3_end")
    p("s_load_dwordx2 s[4:5], s[0:1], 72")
    p("s_load_dwordx2 s[6:7], s[0:1], 88")
    p("v_lshrrev_b32 v1, 6, v0"); p("v_and_b32 v2, 63, v0")
    p("s_nop 0"); p("v_readfirstlane_b32 s8, v1")
    p("s_lshl_b32 s9, s2, 2"); p("s_add_u32 s9, s9, s8")
    p("s_lshr_b32 s10, s9, 4")
    p("s_and_b32 s11, s9, 15")
    p("s_lshr_b32 s12, s11, 2")
    p("s_bfe_u32 s13, s11, 0x10001")
    p("s_and_b32 s14, s11, 1")
    p("s_mul_i32 s15, s10, 171"); p("s_lshr_b32 s15, s15, 9")
    p("s_mul_i32 s16, s15, 3"); p("s_sub_u32 s16, s10, s16")
    p("s_lshl_b32 s17, s10, 2"); p("s_add_u32 s17, s17, s12"); p("s_mul_i32 s17, s17, 12288")
    p("s_mul_i32 s18, s13, 6144"); p("s_add_u32 s17, s17, s18"); p("s_mul_i32 s18, s14, 3072"); p("s_add_u32 s17, s17, s18")
    p("s_waitcnt lgkmcnt(0)")
    p(f"s_add_u32 s20, s6, {P_OFF}"); p("s_addc_u32 s21, s7, 0"); p(f"s_mov_b32 s22, {240*4*12288}"); p("s_mov_b32 s23, 0x20000")
    p("s_mov_b32 s24, s4"); p("s_mov_b32 s25, s5"); p(f"s_mov_b32 s26, {2048*1152}"); p("s_mov_b32 s27, 0x20000")
    p("v_lshlrev_b32 v3, 4, v2")
    for sp in range(5):
        p(f"s_add_u32 s19, s17, {sp*48*4*12288}")
        for c in range(3):
            b=16+(sp*3+c)*4
            p(f"buffer_load_dwordx4 v[{b}:{b+3}], v3, s[20:23], s19 offen offset:{1024*c}")
    p("v_and_b32 v4, 15, v2"); p("v_lshrrev_b32 v5, 4, v2")
    p("s_lshl_b32 s28, s15, 7"); p("s_lshl_b32 s29, s12, 5"); p("s_add_u32 s28, s28, s29"); p("s_lshl_b32 s29, s13, 4"); p("s_add_u32 s28, s28, s29")
    p("v_add_u32 v4, s28, v4"); p("s_movk_i32 s29, 0x480"); p("v_mul_lo_u32 v4, v4, s29")
    p("v_lshlrev_b32 v5, 3, v5"); p("v_add_u32 v4, v4, v5")
    p("s_mul_i32 s28, s16, 384"); p("s_mul_i32 s29, s14, 192"); p("s_add_u32 s28, s28, s29")
    p("s_waitcnt vmcnt(0)")
    for c in range(3):
        for k in range(4):
            lo=80+2*k; hi=81+2*k
            p(f"v_lshlrev_b32 v{lo}, 16, v{16+c*4+k}"); p(f"v_and_b32 v{hi}, 0xffff0000, v{16+c*4+k}")
            for sp in range(1,5):
                s=16+(sp*3+c)*4+k
                p(f"v_lshlrev_b32 v90, 16, v{s}"); p(f"v_and_b32 v91, 0xffff0000, v{s}")
                p(f"v_add_f32 v{lo}, v{lo}, v90"); p(f"v_add_f32 v{hi}, v{hi}, v91")
        o=92+4*c
        for k in range(4): p(f"v_cvt_pk_bf16_f32 v{o+k}, v{80+2*k}, v{81+2*k}")
        p(f"buffer_store_dwordx2 v[{o}:{o+1}], v4, s[24:27], s28 offen offset:{64*c}")
        p(f"buffer_store_dwordx2 v[{o+2}:{o+3}], v4, s[24:27], s28 offen offset:{64*c+32}")
    p.label("L_k3_end"); p("s_endpgm")
    if docheck: print("k3 check problems:",len(check(p.ins,'k3')))
    return p
if __name__=="__main__":
    for n in range(768): assert (n*0xaab)>>16==n//24
    for n in range(240): assert (n*171)>>9==n//3
    gen_k2(); gen_k3()
```

```python
from core import *
ENABLE=False
NST=0
def stamp(p, idx):
    if not ENABLE: return
    if idx==0:
        for i in range(80,100): p(f"s_mov_b32 s{i}, 0")
    p(f"s_memtime s[76:77]"); p("s_memrealtime s[78:79]"); p("s_waitcnt lgkmcnt(0)")
    p(f"s_mov_b32 s{80+idx}, s76"); p(f"s_mov_b32 s{90+idx}, s78")
def flush(p, ws_lo, ws_hi, kern, n=10):
    if not ENABLE: return
    p(f"s_lshl_b32 s76, s2, 7"); p(f"s_add_u32 s76, s76, {0x3000000+kern*0x20000}")
    p(f"s_add_u32 s76, s{ws_lo}, s76"); p(f"s_addc_u32 s77, s{ws_hi}, 0")
    p("v_mov_b32 v1, 0")
    p("v_cmp_eq_u32 vcc, 0, v0"); p("s_and_saveexec_b64 s[78:79], vcc"); p(f"s_cbranch_execz L_stskip{kern}_{len(p.ins)}")
    lab=f"L_stskip{kern}_{len(p.ins)-1}"
    for i in range(20):
        p(f"v_mov_b32 v2, s{80+i}"); p(f"global_store_dword v1, v2, s[76:77] offset:{4*i}")
    p.label(lab)
    p("s_mov_b64 exec, s[78:79]")
```

```python
import sys
from core import *
import k1,k2
HDR=open('gated_mix__linear_kernel_hedgehog__geglu_ffn__prompt.s.ref').read().split('; Override launch')[0]
def build(path, att=None, lists=None):
    p1=k1.gen_k1(att); p2=k2.gen_k2(); p3=k2.gen_k3()
    L=lists or [("k1_kernel",256,163840),("k2_kernel",240,147456),("k3_kernel",192,0)]
    t=HDR
    for (n,g,l) in L: t+=f"; @launch kernel={n} grid=({g},1,1) block=(256,1,1) lds={l}\n"
    t+='.amdgcn_target "amdgcn-amd-amdhsa--gfx950"\n.text\n'
    t+=k1.kernel_text("k1_kernel",p1.text())+k1.kernel_text("k2_kernel",p2.text())+k1.kernel_text("k3_kernel",p3.text())+"L_code_end:\n"
    t+='.section .rodata,"a"\n.p2align 6\n'+k1.desc("k1_kernel")+'.p2align 6\n'+k1.desc("k2_kernel")+'.p2align 6\n'+k1.desc("k3_kernel",nv=104,ns=40,acc_off=104)
    open(path,'w').write(t)
    print(path, len(t))
if __name__=="__main__":
    import stamp
    if "--stamp" in sys.argv: stamp.ENABLE=True; sys.argv.remove("--stamp")
    att=None
    try:
        import k1_att; att=k1_att.gen_att
    except ImportError: pass
    build(sys.argv[1] if len(sys.argv)>1 else 'out.s', att)
```

```python
import re

REG_RE = re.compile(r'^(-|\|)?(v|a|s)(\d+)\|?$')
RNG_RE = re.compile(r'^(-)?(v|a|s)\[(\d+):(\d+)\]$')

def regs_of(tok):
    tok = tok.strip()
    if tok.startswith('abs(') or tok.startswith('-abs('):
        tok = tok[tok.index('(')+1:-1]
    m = REG_RE.match(tok)
    if m: return [m.group(2)+m.group(3)]
    m = RNG_RE.match(tok)
    if m: return [m.group(2)+str(i) for i in range(int(m.group(3)), int(m.group(4))+1)]
    if tok in ('vcc',): return ['vcc_lo','vcc_hi']
    if tok in ('exec',): return ['exec_lo','exec_hi']
    if tok in ('vcc_lo','vcc_hi','exec_lo','exec_hi','m0','scc'): return [tok]
    return []

import os
DSCOST=int(os.environ.get('DSCOST','2'))
TRANS = ('v_exp_f32','v_log_f32','v_rcp_f32','v_rsq_f32','v_sqrt_f32','v_sin_f32','v_cos_f32','v_rcp_iflag_f32')

class Ins:
    __slots__=('text','op','kind','rd','wr','cost','ops','mods','tag')
    def __init__(self, text, tag=None):
        self.text = text; self.tag = tag
        t = text.split(';')[0].strip()
        self.rd=set(); self.wr=set(); self.cost=1; self.ops=[]; self.mods=''
        if t.endswith(':') or t.startswith('.') or t=='':
            self.op=t; self.kind='label'; self.cost=0; return
        sp = t.split(None,1)
        op = sp[0]; rest = sp[1] if len(sp)>1 else ''
        for suf in ('_e32','_e64','_dpp','_sdwa'):
            if op.endswith(suf): op = op[:-len(suf)]
        self.op = op
        parts=[]; depth=0; cur=''
        for ch in rest:
            if ch in '[(': depth+=1
            if ch in '])': depth-=1
            if ch==',' and depth==0: parts.append(cur.strip()); cur=''
            else: cur+=ch
        if cur.strip(): parts.append(cur.strip())
        mods=''
        if parts:
            lp = parts[-1].split()
            if len(lp)>1:
                parts[-1]=lp[0]; mods=' '.join(lp[1:])
        self.ops=parts; self.mods=mods
        R=lambda i: set(regs_of(parts[i])) if i<len(parts) else set()
        allr=lambda a: set().union(*[set(regs_of(p)) for p in parts[a:]]) if len(parts)>a else set()
        if op.startswith('v_mfma'):
            self.kind='mfma'; self.wr=R(0); self.rd=allr(1); self.cost=2
        elif False: pass
        elif op.startswith('ds_read') or op.startswith('ds_bpermute') or op.startswith('ds_swizzle') or op.startswith('ds_permute'):
            self.kind='ds'; self.wr=R(0); self.rd=allr(1); self.cost=DSCOST
            if 'd16' in op: self.rd|=R(0)
        elif op.startswith('ds_'):
            self.kind='ds'; self.rd=allr(0)
        elif op.startswith('buffer_load') or op.startswith('global_load'):
            if 'lds' in mods.split() or '_lds_' in op:
                self.kind='dma'; self.rd=allr(0)|{'m0'}
            else:
                self.kind='vmem'; self.wr=R(0); self.rd=allr(1)
        elif op.startswith('buffer_store') or op.startswith('global_store'):
            self.kind='vmem'; self.rd=allr(0)
        elif op.startswith('buffer_atomic') :
            self.kind='vmem'; self.rd=allr(0)
            if 'sc0' in mods.split(): self.wr=R(0)
        elif op.startswith('global_atomic'):
            self.kind='vmem'
            if 'sc0' in mods.split(): self.wr=R(0); self.rd=allr(1)
            else: self.rd=allr(0)
        elif op in ('buffer_wbl2','buffer_inv'):
            self.kind='vmem'
        elif op.startswith('s_load') or op in('s_memtime','s_memrealtime'):
            self.kind='smem'; self.wr=R(0); self.rd=allr(1)
        elif op=='s_waitcnt': self.kind='wait'
        elif op=='s_barrier': self.kind='barrier'
        elif op=='s_nop': self.kind='nop'; self.cost=int(parts[0],0)+1
        elif op in ('s_endpgm','s_setprio','s_sleep'): self.kind='salu'
        elif op.startswith('s_cbranch') or op=='s_branch':
            self.kind='branch'
            if 'scc' in op: self.rd={'scc'}
            if 'vcc' in op: self.rd={'vcc_lo','vcc_hi'}
            if 'exec' in op: self.rd={'exec_lo','exec_hi'}
        elif op.startswith('s_cmp') or op.startswith('s_bitcmp'):
            self.kind='salu'; self.rd=allr(0); self.wr={'scc'}
        elif op in ('s_setpc_b64',):
            self.kind='branch'; self.rd=allr(0)
        elif op.startswith('s_'):
            self.kind='salu'; self.wr=R(0); self.rd=allr(1)
            if 'saveexec' in op: self.wr|={'exec_lo','exec_hi','scc'}; self.rd|={'exec_lo','exec_hi'}
            if op.startswith(('s_add','s_sub','s_and','s_or','s_xor','s_lshl','s_lshr','s_ashr','s_min','s_max','s_not','s_bfe','s_andn2','s_orn2','s_abs')): self.wr|={'scc'}
            if op.startswith(('s_addc','s_subb','s_cselect','s_cmov')): self.rd|={'scc'}
            if op in('s_addk_i32','s_mulk_i32'): self.rd|=R(0)
        elif op.startswith('v_'):
            self.kind='trans' if op in TRANS else 'valu'
            if self.kind=='trans': self.cost=2
            if op.startswith('v_cmp'):
                self.wr=R(0); self.rd=allr(1)
            elif op in('v_add_co_u32','v_sub_co_u32','v_addc_co_u32','v_subb_co_u32','v_subrev_co_u32'):
                self.wr=R(0)|R(1); self.rd=allr(2)
            elif op.startswith('v_permlane') and 'swap' in op:
                self.wr=allr(0); self.rd=allr(0)
            elif op=='v_nop':
                pass
            else:
                self.wr=R(0); self.rd=allr(1)
                if op.startswith(('v_fmac','v_dot2c','v_writelane','v_pk_fmac')) : self.rd|=R(0)
                if 'dpp' in text.split()[0] or 'row_' in mods or 'quad_perm' in mods: self.rd|=R(0)
                if op=='v_cndmask_b32' and len(parts)==3: self.rd|={'vcc_lo','vcc_hi'}
            self.rd|={'exec_lo','exec_hi'} if False else set()
        else:
            raise ValueError('unknown op '+text)
    def __repr__(self): return self.text

class Prog:
    def __init__(self): self.ins=[]
    def __call__(self, *texts, tag=None):
        for t in texts:
            for line in t.split('\n'):
                line=line.strip()
                if line: self.ins.append(Ins(line, tag))
        return self
    def add(self, lst):
        for x in lst: self.ins.append(x if isinstance(x,Ins) else Ins(x))
    def label(self, n): self.ins.append(Ins(n+':'))
    def text(self):
        out=[]
        for i in self.ins:
            out.append(i.text if i.kind=='label' else '    '+i.text)
        return '\n'.join(out)+'\n'

def mfma_passes(op):
    if '32x32x16' in op: return 8
    if '16x16x32' in op: return 4
    raise ValueError(op)

def is_vec(r): return r[0] in 'va' and r[1:].isdigit()
def is_sgpr(r): return (r[0]=='s' and r[1:].isdigit()) or r.startswith('vcc')

def parse_wait(ins):
    vm=lg=None
    s=' '.join(ins.ops+[ins.mods])
    m=re.search(r'vmcnt\((\d+)\)',s)
    if m: vm=int(m.group(1))
    m=re.search(r'lgkmcnt\((\d+)\)',s)
    if m: lg=int(m.group(1))
    return vm,lg

def check(trace, name='', verbose=True, assume_clean_start=True):
    probs=[]
    pos=0
    lastw={}
    lastC={}
    laststore={}
    vmq=[]; lgq=[]
    pend={}
    def P(msg,i): probs.append(f"[{name}] #{idx}: {msg}: {i.text}")
    for idx,i in enumerate(trace):
        if i.kind=='label': continue
        if i.kind=='branch' and False: pass
        def need(r, n, why):
            w=lastw.get(r)
            if w is not None and pos-w[0] < n:
                P(f"hazard {why}: reg {r} dist {pos-w[0]} < {n} (producer {w[2].text})", i)
        for r in (i.rd|i.wr):
            if r in pend:
                P(f"reg {r} touched while load pending ({pend[r]})", i)
        if i.kind=='mfma':
            A=set(regs_of(i.ops[1])); B=set(regs_of(i.ops[2])); C=set(regs_of(i.ops[3])) if len(i.ops)>3 else set()
            D=set(regs_of(i.ops[0]))
            for r in A|B|C:
                w=lastw.get(r)
                if not w: continue
                if w[1] in('valu','trans'): need(r,2,'valu->mfma')
                if w[1]=='mfma':
                    ps=mfma_passes(w[2].op)
                    if r in A or r in B: need(r,{4:8,8:12}[ps],'mfma->mfma A/B')
                    elif r in C:
                        same = (w[2].ops[0]==i.ops[3]) and (w[2].op==i.op)
                        if not same: need(r,{4:6,8:10}[ps],'mfma->mfma C overlap')
            for r in D:
                w=lastw.get(r)
                if w and w[1]=='mfma' and r not in C:
                    ps=mfma_passes(w[2].op)
                    need(r,{4:6,8:10}[ps],'mfma->mfma WAW')
        if i.kind in('valu','trans','vmem','ds','dma'):
            for r in (i.rd | (i.wr if i.kind in('valu','trans','vmem','ds') else set())):
                w=lastw.get(r)
                if w and w[1]=='mfma':
                    need(r,{4:8,8:12}[mfma_passes(w[2].op)],'mfma->valu/mem')
        if i.kind in('valu','trans'):
            for r in i.rd:
                w=lastw.get(r)
                if not w: continue
                if w[1]=='trans' and is_vec(r) : need(r,1,'trans->valu')
                if w[1] in('valu','trans') and is_sgpr(r): need(r,2,'valu sgpr->valu const')
                if w[1] in('valu','trans') and is_vec(r):
                    if i.op in('v_readfirstlane_b32','v_readlane_b32'): need(r,1,'valu->readlane')
                    if i.op.startswith('v_permlane'): need(r,2,'valu->permlane')
                    if 'row_' in i.mods or 'quad_perm' in i.mods: need(r,2,'valu->dpp')
            for r in i.wr:
                c=lastC.get(r)
                if c and pos-c[0] < {4:3,8:7}[c[1]]: P(f"hazard mfma srcC WAR reg {r}",i)
                s=laststore.get(r)
                if s is not None and pos-s<2: P(f"hazard store data WAR reg {r}",i)
        if i.kind in('vmem','dma','ds'):
            for r in i.rd:
                w=lastw.get(r)
                if w and w[1] in('valu','trans') and is_sgpr(r): need(r,5,'valu sgpr->vmem')
                if w and w[1]=='trans' and is_vec(r): need(r,1,'trans->mem')
                if w and r=='m0' and w[1]=='salu' and i.kind=='dma': need(r,1,'m0->dma')
        if i.kind=='salu' or i.kind=='branch':
            for r in i.rd:
                w=lastw.get(r)
                if w and w[1] in('valu','trans') and is_sgpr(r) and not r.startswith('vcc'): need(r,1,'valu sgpr->salu (pad)')
        p_after = pos + (i.cost if i.kind=='nop' else 1)
        if i.kind=='wait':
            vm,lg=parse_wait(i)
            if vm is not None:
                while len(vmq)>vm:
                    d=vmq.pop(0)
                    for r in d: pend.pop(r,None)
            if lg is not None:
                if any(x[1] for x in lgq) and lg>0:
                    P("lgkmcnt(N>0) with smem outstanding",i)
                while len(lgq)>lg:
                    d=lgq.pop(0)
                    for r in d[0]: pend.pop(r,None)
        if i.kind in('vmem','dma'):
            vmq.append(set(i.wr))
            for r in i.wr: pend[r]='vm'
            if len(vmq)>63: P("vmcnt overflow >63",i)
            if 'store' in i.op and ('x4' in i.op or 'x3' in i.op):
                for r in regs_of(i.ops[0] if i.op.startswith('buffer') else i.ops[1]): laststore[r]=p_after
        if i.kind=='ds':
            lgq.append((set(i.wr),False))
            for r in i.wr: pend[r]='lg'
            if len(lgq)>15: P("lgkmcnt overflow >15 (counter saturates)",i)
        if i.kind=='smem':
            lgq.append((set(i.wr),True))
            for r in i.wr: pend[r]='lg'
        for r in i.wr:
            if i.kind in('valu','trans','mfma','salu'):
                lastw[r]=(p_after,i.kind,i)
            else:
                lastw.pop(r,None)
        if i.kind=='mfma' and len(i.ops)>3:
            for r in regs_of(i.ops[3]): lastC[r]=(p_after,mfma_passes(i.op))
        pos=p_after
    if verbose:
        for p in probs[:40]: print(p)
        if len(probs)>40: print('...',len(probs),'problems')
    return probs

def interleave(main, fill, budget=2, start=0, every=None):
    out=[]
    nm=sum(1 for x in main if x.kind=='mfma')
    fill=list(fill)
    total=sum(x.cost for x in fill)
    done=0; fi=0; k=0
    n=len(main)
    i=0
    while i<n:
        x=main[i]; out.append(x); i+=1
        if x.kind=='mfma':
            k+=1
            own=0; j=i
            while j<n and main[j].kind!='mfma':
                own+=main[j].cost; j+=1
            if k>start:
                target = total*(k-start)/max(1,(nm-start))
                room = budget-own
                while fi<len(fill) and (done+fill[fi].cost<=target+1e-9 or False) and room>=fill[fi].cost:
                    out.append(fill[fi]); done+=fill[fi].cost; room-=fill[fi].cost; fi+=1
                while fi<len(fill) and done+fill[fi].cost <= target-budget*2:
                    out.append(fill[fi]); done+=fill[fi].cost; fi+=1
    out.extend(fill[fi:])
    return out

def auto_lgkm(stream, init=None, group=1, extra=0):
    q=[set(x) for x in (init or [])]
    out=[]
    for x in stream:
        if x.kind=='wait':
            vm,lg=parse_wait(x)
            if lg is not None:
                while len(q)>lg: q.pop(0)
            out.append(x); continue
        touch=(x.rd|x.wr)
        need=-1
        for i,d in enumerate(q):
            if d & touch: need=i
        if need>=0:
            need=min(len(q)-1, need+extra)
            n=len(q)-1-need
            out.append(Ins(f"s_waitcnt lgkmcnt({n})"))
            q=q[need+1:]
        if x.kind=='ds':
            if len(q)>=15:
                n=14
                out.append(Ins(f"s_waitcnt lgkmcnt({n})")); q=q[len(q)-n:]
            q.append(set(x.wr))
        out.append(x)
    return out, q

def spread(main, items, first=0, last=None, group=None):
    idx=[i for i,x in enumerate(main) if getattr(x,'kind',None)=='mfma']
    last=len(idx) if last is None else last
    span=idx[first:last]
    n=len(items)
    pos={}
    for k,it in enumerate(items):
        j=span[min(len(span)-1,(k*len(span))//n + len(span)//(2*n))]
        pos.setdefault(j,[]).extend(it)
    out=[]
    for i,x in enumerate(main):
        out.append(x)
        if i in pos: out+=pos[i]
    return out
def dma_items(lst):
    items=[]; pend=[]
    for x in lst:
        if x.kind=='nop': continue
        if x.kind=='dma':
            if pend: items.append(pend); pend=[]
            items.append([x])
        else: pend.append(x)
    if pend: items.append(pend)
    return items
```

```python
from core import *
import k1_gemm as G1
import stamp as ST
G_OFF=0x1500000; KVP_OFF=0x1502000; P_OFF=0x1600000
import os
CPF=int(os.environ.get('CPF','1'))
WS_BASE=int(os.environ.get('WS_BASE','0'),0)
LOG2E=1.4426950408889634
from k1_gx import f2u

def prologue(p):
    p("s_cmp_ge_u32 s2, 256"); p("s_cbranch_scc1 L_k1_end")
    ST.stamp(p,0)
    p("s_load_dwordx4 s[56:59], s[0:1], 0")
    p("s_load_dwordx4 s[60:63], s[0:1], 16")
    p("s_load_dwordx2 s[42:43], s[0:1], 40")
    p("s_load_dwordx2 s[44:45], s[0:1], 48")
    p("s_load_dwordx2 s[64:65], s[0:1], 64")
    p("s_load_dwordx2 s[66:67], s[0:1], 56")
    p("s_load_dwordx4 s[68:71], s[0:1], 80")
    if CPF: code_prefetch(p,"k1_kernel","L_code_end",tmp_s=72,vaddr=1,vdst=56,uniq="k1")
    p("v_lshrrev_b32 v1, 6, v0")
    p("s_and_b32 s4, s2, 7")
    p("s_lshr_b32 s5, s2, 3")
    p(f"v_readfirstlane_b32 s{G1.S_W}, v1")
    p("s_waitcnt lgkmcnt(0)")
    ST.stamp(p,7)
    if WS_BASE: p(f"s_add_u32 s70, s70, {WS_BASE}"); p("s_addc_u32 s71, s71, 0")
    p("s_mov_b32 s46, s70"); p("s_mov_b32 s47, s71")
    p("s_mov_b32 s40, s56"); p("s_mov_b32 s41, s57")
    p("s_cmp_lt_u32 s5, 8"); p("s_cbranch_scc1 L_att")
    p("s_sub_u32 s6, s5, 8")
    p("s_lshr_b32 s36, s6, 3"); p("s_mul_i32 s7, s4, 3"); p("s_add_u32 s36, s36, s7")
    p("s_and_b32 s37, s6, 7")

def gate_role(p):
    p.label("L_gate")
    p("s_mov_b32 s7, s4")
    p("s_cmp_lt_u32 s4, 4"); p("s_cbranch_scc1 L_gate_b")
    p("s_lshl_b32 s7, s4, 1"); p("s_add_u32 s7, s7, s6"); p("s_sub_u32 s7, s7, 26")
    p.label("L_gate_b")
    p("s_lshl_b32 s7, s7, 2"); p(f"s_add_u32 s7, s7, s{G1.S_W}")
    p("s_mov_b32 s8, s56"); p("s_mov_b32 s9, s57"); p(f"s_mov_b32 s10, {2048*1152}"); p("s_mov_b32 s11, 0x20000")
    p("s_mov_b32 s12, s64"); p("s_mov_b32 s13, s65"); p("s_mov_b32 s14, 1152"); p("s_mov_b32 s15, 0x20000")
    p(f"s_add_u32 s16, s70, {G_OFF}"); p("s_addc_u32 s17, s71, 0"); p("s_mov_b32 s18, 8192"); p("s_mov_b32 s19, 0x20000")
    p("v_and_b32 v1, 63, v0"); p("v_lshrrev_b32 v2, 3, v1"); p("v_and_b32 v3, 7, v1")
    p("v_lshlrev_b32 v4, 4, v3")
    p("s_movk_i32 s20, 0x480"); p("v_mul_lo_u32 v5, v2, s20"); p("v_add_u32 v5, v5, v4")
    p("v_lshlrev_b32 v6, 2, v2")
    for c in range(9):
        p(f"buffer_load_dwordx4 v[{16+4*c}:{19+4*c}], v4, s[12:15], 0 offen offset:{128*c}")
    p.label("L_gate_loop")
    p(f"s_mul_i32 s21, s7, {8*1152}")
    for c in range(9):
        p(f"buffer_load_dwordx4 v[{64+4*c}:{67+4*c}], v5, s[8:11], s21 offen offset:{128*c}")
    p("v_mov_b32 v8, 0"); p("v_mov_b32 v9, 0")
    p("s_waitcnt vmcnt(0)")
    for c in range(9):
        for r in range(4):
            a=8+(r&1)
            p(f"v_dot2_f32_bf16 v{a}, v{64+4*c+r}, v{16+4*c+r}, v{a}")
    p("s_nop 3")
    p("v_add_f32 v8, v8, v9")
    for m in (0x041F,0x081F,0x101F):
        p("s_nop 0")
        p(f"ds_swizzle_b32 v9, v8 offset:0x{m:04X}"); p("s_waitcnt lgkmcnt(0)"); p("v_add_f32 v8, v8, v9")
    p(f"v_mul_f32 v8, 0x{f2u(-LOG2E):08x}, v8"); p("v_exp_f32 v8, v8"); p("s_nop 0"); p("v_add_f32 v8, 1.0, v8"); p("v_rcp_f32 v8, v8")
    p("s_lshl_b32 s21, s7, 5")
    p("v_cmp_eq_u32 vcc, 0, v3"); p("s_and_saveexec_b64 s[22:23], vcc")
    p("buffer_store_dword v8, v6, s[16:19], s21 offen")
    p("s_mov_b64 exec, s[22:23]")
    p("s_add_u32 s7, s7, 48"); p("s_cmp_lt_u32 s7, 256"); p("s_cbranch_scc1 L_gate_loop")
    p("s_load_dwordx2 s[24:25], s[0:1], 56"); p("s_load_dwordx2 s[26:27], s[0:1], 24"); p("s_waitcnt lgkmcnt(0)")
    p("s_mov_b32 s8, s24"); p("s_mov_b32 s9, s25"); p(f"s_mov_b32 s10, {4608*1152}"); p("s_mov_b32 s11, 0x20000")
    p("s_mov_b32 s12, s26"); p("s_mov_b32 s13, s27"); p(f"s_mov_b32 s14, {576*1152}"); p("s_mov_b32 s15, 0x20000")
    p("v_lshlrev_b32 v4, 4, v1")
    p("s_sub_u32 s7, s7, 48"); p.label("L_gate_m"); p("s_cmp_lt_u32 s7, 48"); p("s_cbranch_scc1 L_gate_m2"); p("s_sub_u32 s7, s7, 48"); p("s_branch L_gate_m"); p.label("L_gate_m2")
    p(f"s_mul_i32 s21, s7, {14*1024}")
    for i in range(14):
        p(f"buffer_load_dwordx4 v[{16+4*i}:{19+4*i}], v4, s[12:15], s21 offen"); p("s_add_u32 s21, s21, 1024")
    p("s_waitcnt vmcnt(0)")
    p("s_endpgm")

def kernel_text(name, body, nv=512, ns=102, acc_off=256):
    t=f".globl {name}\n.p2align 8\n.type {name},@function\n{name}:\n"+body
    return t
def desc(name, nv=512, ns=102, acc_off=256):
    return f""".amdhsa_kernel {name}
  .amdhsa_next_free_vgpr {nv}
  .amdhsa_next_free_sgpr {ns}
  .amdhsa_accum_offset {acc_off}
  .amdhsa_group_segment_fixed_size 0
  .amdhsa_kernarg_size 96
  .amdhsa_user_sgpr_count 2
  .amdhsa_user_sgpr_kernarg_segment_ptr 1
  .amdhsa_system_sgpr_workgroup_id_x 1
  .amdhsa_float_denorm_mode_32 3
  .amdhsa_float_denorm_mode_16_64 3
.end_amdhsa_kernel
"""

def gen_k1(att=None, docheck=True):
    import k1_gx as GX
    p=Prog()
    prologue(p)
    il,idn=GX.gen(p)
    p("s_endpgm")
    if docheck:
        ins=p.ins
        body=ins[il:idn]
        tr=ins[:il]+body+body+ins[idn:]
        pr=check(tr,'gemm1')
        print("gemm1 check problems:",len(pr))
    a=Prog(); att(a); p.ins+=a.ins
    p.label("L_k1_end"); p("s_endpgm")
    return p
```

```python
from core import *
import stamp as ST
from k1_gx import f2u, NKS_TOT, H_BYTES
KVP_OFF=0x1502000
LOG2E=1.4426950408889634
WSL=28672; W0=0; X0=3*WSL; XSL=32768
PHI_L=X0+2*XSL; ZERO_L=PHI_L+3840
PS=336; VS=168
PL=0; VL=256*PS; KVL=VL+256*VS
S_W=24
S_X=8; S_WQ=12; S_H=16; S_KV=20
S_XSO=25; S_XSO2=26; S_WSO=27; S_CNT=28; S_MW=29; S_MX=30; S_C=31; S_RT=32; S_QD=33; S_AW=34; S_AX=35; S_TW=36; S_TX=37; S_SD=72; S_SN=73; S_MWW=74
V_WD=1; V_TRB=8; V_XD=10; V_TR=14; V_XP=16; V_L=20; V_L16=21; V_BD=22; V_BD2=23
QACC=0; KACC=96; VACC=176
def accq(t,tt): b=QACC+(t*4+tt)*4; return f"a[{b}:{b+3}]"
def acck(t,tt,r=None):
    b=KACC+(t*4+tt)*4; return f"v[{b}:{b+3}]" if r is None else f"v{b+r}"
def accv(t,tt,r=None):
    b=VACC+(t*4+tt)*4; return f"v[{b}:{b+3}]" if r is None else f"v{b+r}"
def acc(sec,t,tt): return (accq,acck,accv)[sec](t,tt)
AR=80; NAR=6; XF=104
def afr(i): b=AR+4*(i%NAR); return f"a[{b}:{b+3}]"
def afh(i,h): b=AR+4*(i%NAR)+2*h; return f"a[{b}:{b+1}]"
def xf(b_,tt): b=XF+(b_*4+tt)*4; return f"a[{b}:{b+3}]"

def wdma():
    o=[Ins(f"s_add_u32 s{S_MW}, s{S_MWW}, s{S_SD}")]
    for i in range(7):
        if i%4==0:
            o.append(Ins(f"s_add_u32 m0, s{S_MW}, {4096*(i//4)}" if i else f"s_mov_b32 m0, s{S_MW}")); o.append(Ins("s_nop 0"))
        o.append(Ins(f"buffer_load_dwordx4 v{V_WD+i}, s[{S_WQ}:{S_WQ+3}], s{S_WSO} offen offset:{1024*(i%4)} lds"))
    o+= [Ins(f"s_add_u32 s{S_SD}, s{S_SD}, {WSL}"), Ins(f"s_cmp_eq_u32 s{S_SD}, {3*WSL}"), Ins(f"s_cselect_b32 s{S_SD}, 0, s{S_SD}"),
         Ins(f"s_add_u32 s{S_WSO}, s{S_WSO}, {64*3456}"), Ins(f"s_add_u32 s{S_AW}, s{S_AW}, 1"), Ins(f"s_cmp_eq_u32 s{S_AW}, 9"),
         Ins(f"s_cselect_b32 s38, {9*64*3456}, 0"), Ins(f"s_cselect_b32 s{S_AW}, 0, s{S_AW}"), Ins(f"s_sub_u32 s{S_WSO}, s{S_WSO}, s38")]
    return o
def xdma():
    o=[]
    for i in range(8):
        if i%4==0:
            o.append(Ins(f"s_add_u32 m0, s{S_MX}, {4096*(i//4)}" if i else f"s_mov_b32 m0, s{S_MX}")); o.append(Ins("s_nop 0"))
        o.append(Ins(f"buffer_load_dwordx4 v{V_XD+(i%4)}, s[{S_X}:{S_X+3}], s{S_XSO if i<4 else S_XSO2} offen offset:{1024*(i%4)} lds"))
    o+= [Ins(f"s_xor_b32 s{S_MX}, s{S_MX}, s{S_TX}"),
         Ins(f"s_add_u32 s{S_XSO}, s{S_XSO}, 128"), Ins(f"s_add_u32 s{S_AX}, s{S_AX}, 1"), Ins(f"s_cmp_eq_u32 s{S_AX}, 9"),
         Ins(f"s_cselect_b32 s39, {9*128}, 0"), Ins(f"s_cselect_b32 s{S_AX}, 0, s{S_AX}"), Ins(f"s_sub_u32 s{S_XSO}, s{S_XSO}, s39"),
         Ins(f"s_add_u32 s{S_XSO2}, s{S_XSO}, {32*1152}")]
    return o

SEQ=[(b_,sec,t) for b_ in range(2) for sec in range(3) for t in range(5)]
PF=4
def ard(i):
    nxt=i>=30; b_,sec,t=SEQ[i%30]
    return [Ins(f"ds_read_b64_tr_b16 {afh(i,h)}, v{V_TR+(1 if nxt else 0)} offset:{b_*13824+sec*144+h*1728+8*t}") for h in range(2)]
def xrd(b_,nxt): return [Ins(f"ds_read_b128 {xf(b_,tt)}, v{V_XP+(2 if nxt else 0)+b_} offset:{tt*2048}") for tt in range(4)]

def superstep():
    main=[]
    for i,(b_,sec,t) in enumerate(SEQ):
        if i==26:
            main.append(Ins("s_waitcnt vmcnt(7) lgkmcnt(0)")); main.append(Ins("s_barrier"))
        nxt=ard(i+PF)
        if 1<=i<5: nxt=nxt+[xrd(1,False)[i-1]]
        if i>=26: nxt=nxt+[xrd(0,True)[i-26]]
        if 22<=i<26: pass
        for tt in range(4):
            main.append(Ins(f"v_mfma_f32_16x16x32_bf16 {acc(sec,t,tt)}, {afr(i)}, {xf(b_,tt)}, {acc(sec,t,tt)}"))
            if tt<len(nxt): main.append(nxt[tt])
    return main

def entry_queue():
    q=[]
    for i in range(26,30):
        for x in ard(i+PF): q.append(x.wr)
        q.append(xrd(0,True)[i-26].wr)
    return q

def bc(r): return f"v[{r}:{r+1}]"
def softmax_pk(p, P0, tmp, want_norm):
    A=p
    P=[f"v{P0(f)}" for f in range(18)]
    mx=tmp+36; mn=tmp+38; sp=tmp+40; sm=tmp+42
    A(f"v_max3_f32 v{mx}, {P[0]}, {P[1]}, {P[2]}"); A(f"v_min3_f32 v{mn}, {P[0]}, {P[1]}, {P[2]}")
    for i in range(3,17,2):
        A(f"v_max3_f32 v{mx}, v{mx}, {P[i]}, {P[i+1]}"); A(f"v_min3_f32 v{mn}, v{mn}, {P[i]}, {P[i+1]}")
    A(f"v_max_f32 v{mx}, v{mx}, {P[17]}"); A(f"v_min_f32 v{mn}, v{mn}, {P[17]}")
    A(f"v_mul_f32_e64 v{mx}, -s{S_C}, v{mx}"); A(f"v_mul_f32 v{mn}, s{S_C}, v{mn}")
    for i in range(0,18,2):
        pr=bc(P0(i))
        A(f"v_pk_fma_f32 {bc(tmp+i)}, {pr}, {bc(94)}, {bc(mx)} op_sel_hi:[1,0,0]")
        A(f"v_pk_fma_f32 {bc(tmp+18+i)}, {pr}, {bc(94)}, {bc(mn)} op_sel_hi:[1,0,0] neg_lo:[0,1,0] neg_hi:[0,1,0]")
    for i in range(18):
        A(f"v_exp_f32 v{tmp+i}, v{tmp+i}"); A(f"v_exp_f32 v{tmp+18+i}, v{tmp+18+i}")
    if want_norm:
        A(f"v_pk_add_f32 {bc(sp)}, {bc(tmp)}, {bc(tmp+2)}");
        A("s_nop 0")
        A(f"v_pk_add_f32 {bc(sm)}, {bc(tmp+18)}, {bc(tmp+20)}")
        for i in range(4,18,2):
            A(f"v_pk_add_f32 {bc(sp)}, {bc(sp)}, {bc(tmp+i)}"); A(f"v_pk_add_f32 {bc(sm)}, {bc(sm)}, {bc(tmp+18+i)}")
        A(f"v_add_f32 v{sp}, v{sp}, v{sp+1}"); A(f"v_add_f32 v{sm}, v{sm}, v{sm+1}")
        A(f"v_rcp_f32 v{sp}, v{sp}"); A(f"v_rcp_f32 v{sm}, v{sm}"); A("s_nop 0")
        for i in range(0,18,2):
            A(f"v_pk_mul_f32 {bc(tmp+i)}, {bc(tmp+i)}, {bc(sp)} op_sel_hi:[1,0]"); A(f"v_pk_mul_f32 {bc(tmp+18+i)}, {bc(tmp+18+i)}, {bc(sm)} op_sel_hi:[1,0]")
    else:
        A("s_nop 0")

def stage2(p, src, dst, B0, pre=None):
    for tt in range(4):
        for t in range(5):
            p(f"v_cvt_pk_bf16_f32 v{B0+tt*12+2*t}, {src(t,tt,0)}, {src(t,tt,1)}")
            p(f"v_cvt_pk_bf16_f32 v{B0+tt*12+2*t+1}, {src(t,tt,2)}, {src(t,tt,3)}")
        p(f"v_mov_b32 v{B0+tt*12+10}, 0"); p(f"v_mov_b32 v{B0+tt*12+11}, 0")
    if pre: pre()
    p("s_nop 1")
    for tt in range(4):
        for s in range(3):
            for u in range(5):
                a=80+4*(u*3+s); b=B0+tt*12+4*s
                c=dst(u,tt) if s>0 else "0"
                p(f"v_mfma_f32_16x16x32_bf16 {dst(u,tt)}, a[{a}:{a+3}], v[{b}:{b+3}], {c}")
    p("s_nop 7")

def gen_att(p, docheck=True):
    p.label("L_att")
    A=p
    A(f"s_mov_b32 s{S_QD}, s4"); A(f"s_mov_b32 s{S_RT}, s5")
    A(f"s_sub_u32 s{S_WQ}, s58, 4096"); A(f"s_subb_u32 s{S_WQ+1}, s59, 0"); A(f"s_mov_b32 s{S_WQ+2}, {576*3456+4096}"); A(f"s_mov_b32 s{S_WQ+3}, 0x20000")
    A(f"v_and_b32 v{V_L}, 63, v0")
    A(f"s_mul_i32 s38, s{S_W}, 448")
    for i in range(7):
        A(f"v_add_u32 v30, s38, v{V_L}")
        if i: A(f"v_add_u32 v30, {64*i}, v30")
        A("v_mul_u32_u24 v31, 7282, v30"); A("v_lshrrev_b32 v31, 16, v31")
        A("v_mul_u32_u24 v32, 9, v31"); A("v_sub_u32 v32, v30, v32"); A("v_lshlrev_b32 v32, 4, v32")
        A("v_mul_u32_u24 v31, 0x480, v31")
        A(f"v_add3_u32 v{V_WD+i}, v32, v31, 0"); A(f"v_add_u32 v{V_WD+i}, {4096-1024*(i%4)}, v{V_WD+i}")
    A(f"s_mov_b32 s{S_AW}, s{S_RT}"); A(f"s_mov_b32 s{S_AX}, s{S_RT}")
    A(f"s_mul_i32 s{S_WSO}, s{S_RT}, {64*3456}"); A(f"s_mul_i32 s38, s{S_QD}, 144"); A(f"s_add_u32 s{S_WSO}, s{S_WSO}, s38")
    A(f"s_mul_i32 s{S_MWW}, s{S_W}, 7168"); A(f"s_mov_b32 s{S_SD}, 0")
    A.add(wdma())
    A(f"s_mul_i32 s38, s{S_RT}, {256*1152}")
    A(f"s_add_u32 s{S_X}, s56, s38"); A(f"s_addc_u32 s{S_X+1}, s57, 0"); A(f"s_sub_u32 s{S_X}, s{S_X}, 4096"); A(f"s_subb_u32 s{S_X+1}, s{S_X+1}, 0")
    A(f"s_mov_b32 s{S_X+2}, {256*1152+4096}"); A(f"s_mov_b32 s{S_X+3}, 0x20000")
    g="v24"; t15="v25"; l3="v26"; l7="v27"; rp="v28"; cc="v29"
    A(f"v_lshrrev_b32 {g}, 4, v{V_L}"); A(f"v_and_b32 {t15}, 15, v{V_L}"); A(f"v_lshrrev_b32 {l3}, 3, v{V_L}"); A(f"v_and_b32 {l7}, 7, v{V_L}")
    for i in range(4):
        A(f"v_add_u32 v30, {4*(i&1)}, {g}"); A("v_and_b32 v30, 7, v30"); A(f"v_xor_b32 v30, v30, {l7}"); A("v_lshlrev_b32 v30, 4, v30")
        A(f"v_add_u32 v31, {8*i}, {l3}"); A("v_mul_u32_u24 v31, 0x480, v31")
        A(f"v_add3_u32 v{V_XD+i}, v30, v31, 0"); A(f"v_add_u32 v{V_XD+i}, {4096-1024*i}, v{V_XD+i}")
    A(f"s_mul_i32 s{S_XSO}, s{S_W}, {64*1152}"); A(f"s_lshl_b32 s38, s{S_RT}, 7"); A(f"s_add_u32 s{S_XSO}, s{S_XSO}, s38"); A(f"s_add_u32 s{S_XSO2}, s{S_XSO}, {32*1152}")
    A(f"s_lshl_b32 s{S_MX}, s{S_W}, 13"); A(f"s_add_u32 s{S_MX}, s{S_MX}, {X0}"); A(f"s_add_u32 s38, s{S_MX}, {XSL}"); A(f"s_xor_b32 s{S_TX}, s{S_MX}, s38")
    A(f"s_mov_b32 s40, s{S_MX}")
    A.add(xdma())
    ST.stamp(p,1)
    A(f"s_mov_b32 s{S_C}, 0x{f2u(LOG2E):08x}")
    A(f"s_mov_b32 s{S_H}, s70"); A(f"s_mov_b32 s{S_H+1}, s71"); A(f"s_mov_b32 s{S_H+2}, {H_BYTES}"); A(f"s_mov_b32 s{S_H+3}, 0x20000")
    A(f"s_add_u32 s{S_KV}, s70, {KVP_OFF}"); A(f"s_addc_u32 s{S_KV+1}, s71, 0"); A(f"s_mov_b32 s{S_KV+2}, {8*32*2880}"); A(f"s_mov_b32 s{S_KV+3}, 0x20000")
    A(f"v_lshlrev_b32 v{V_L16}, 4, v{V_L}")
    A(f"v_lshrrev_b32 {rp}, 2, {t15}"); A(f"v_and_b32 {cc}, 3, {t15}")
    A(f"v_lshrrev_b32 v30, 1, {t15}"); A(f"v_xor_b32 v30, v30, {g}"); A("v_lshlrev_b32 v30, 4, v30"); A(f"v_lshlrev_b32 v31, 7, {t15}"); A("v_add_u32 v30, v30, v31")
    A(f"v_add_u32 v{V_XP}, s40, v30"); A(f"v_xor_b32 v{V_XP+1}, 64, v{V_XP}")
    A(f"v_add_u32 v{V_XP+2}, {XSL}, v{V_XP}"); A(f"v_add_u32 v{V_XP+3}, {XSL}, v{V_XP+1}")
    A(f"v_lshlrev_b32 v30, 3, {g}"); A(f"v_add_u32 v30, v30, {rp}"); A("v_mul_u32_u24 v30, 432, v30"); A(f"v_mul_u32_u24 v31, 36, {cc}")
    A(f"v_and_b32 v33, 1, {cc}"); A("v_lshlrev_b32 v33, 2, v33"); A("v_sub_u32 v31, v31, v33")
    A(f"v_add_u32 v{V_TRB}, v30, v31"); A(f"v_mov_b32 v{V_TR}, v{V_TRB}"); A(f"v_add_u32 v{V_TR+1}, {WSL}, v{V_TRB}"); A(f"s_mov_b32 s{S_SN}, {WSL}")
    A(f"v_cmp_eq_u32 vcc, {cc}, {g}")
    A(f"v_mul_u32_u24 v30, 960, {g}"); A(f"v_mul_u32_u24 v31, 40, {rp}"); A("v_add_u32 v30, v30, v31"); A(f"v_add_u32 v30, {PHI_L}, v30")
    A(f"v_mov_b32 v32, {ZERO_L}"); A(f"v_cndmask_b32 v{V_BD}, v32, v30, vcc")
    A(f"v_mul_u32_u24 v30, 1920, {g}"); A("v_add_u32 v30, v30, v31"); A(f"v_add_u32 v30, {KVL}, v30"); A(f"v_cndmask_b32 v{V_BD2}, v32, v30, vcc")
    A("s_lshl_b32 s38, s2, 2"); A(f"s_add_u32 s38, s38, s{S_W}"); A("s_mul_i32 s38, s38, 6144"); A("s_add_u32 s39, s38, 4096")
    for (lo,) in ((42,),(44,)):
        A(f"s_mov_b32 s48, s{lo}"); A(f"s_mov_b32 s49, s{lo+1}"); A(f"s_mov_b32 s50, {576*9216}"); A("s_mov_b32 s51, 0x20000")
        for k in range(6):
            A(f"buffer_load_dwordx4 a[{140+4*k+24*(lo==44)}:{143+4*k+24*(lo==44)}], v{V_L16}, s[48:51], s{38 if k<4 else 39} offen offset:{1024*(k%4)}")
    A(f"s_mul_i32 s38, s{S_QD}, {4*648}")
    A(f"s_add_u32 s48, s60, s38"); A("s_addc_u32 s49, s61, 0"); A(f"s_mov_b32 s50, {4*648}"); A("s_mov_b32 s51, 0x20000")
    A("v_lshlrev_b32 v30, 2, v0")
    for i in range(3): A(f"buffer_load_dword v{44+i}, v30, s[48:51], 0 offen offset:{1024*i}")
    A("v_mov_b32 v40, 0"); A("v_mov_b32 v41, 0"); A("v_mov_b32 v42, 0"); A("v_mov_b32 v43, 0")
    A("v_lshlrev_b32 v30, 4, v0"); A(f"v_add_u32 v30, {PHI_L}, v30")
    A("ds_write_b128 v30, v[40:43]")
    A("v_cmp_gt_u32 vcc, 104, v0"); A("s_and_saveexec_b64 s[48:49], vcc"); A("s_cbranch_execz L_att_z1")
    A("ds_write_b128 v30, v[40:43] offset:4096")
    A.label("L_att_z1"); A("s_mov_b64 exec, s[48:49]")
    for i in range(3):
        A(f"v_add_u32 v30, {256*i}, v0")
        A("v_mul_u32_u24 v31, 405, v30"); A("v_lshrrev_b32 v31, 16, v31")
        A("v_mul_u32_u24 v32, 162, v31"); A("v_sub_u32 v32, v30, v32")
        A("v_mul_u32_u24 v33, 57, v32"); A("v_lshrrev_b32 v33, 9, v33")
        A("v_mul_u32_u24 v34, 9, v33"); A("v_sub_u32 v34, v32, v34")
        A("v_and_b32 v35, 1, v31"); A("v_lshl_add_u32 v33, v35, 1, v33")
        A("v_mul_u32_u24 v31, 960, v31"); A("v_mul_u32_u24 v33, 40, v33"); A("v_lshlrev_b32 v34, 2, v34")
        A(f"v_add3_u32 v{47+i}, v31, v33, v34"); A(f"v_add_u32 v{47+i}, {PHI_L}, v{47+i}")
    for r in range(80): A(f"v_accvgpr_write_b32 a{r}, 0")
    for r in range(96,256): A(f"v_mov_b32 v{r}, 0")
    xl=xdma(); XA_=xl[:6]; XB_=xl[6:]
    A.add(wdma())
    A.add(XA_)
    A("s_waitcnt vmcnt(11) lgkmcnt(0)"); A("s_barrier")
    A("ds_write_b32 v47, v44"); A("ds_write_b32 v48, v45")
    A("v_cmp_gt_u32 vcc, 136, v0"); A("s_and_saveexec_b64 s[48:49], vcc"); A("s_cbranch_execz L_att_z2")
    A("ds_write_b32 v49, v46")
    A.label("L_att_z2"); A("s_mov_b64 exec, s[48:49]")
    A("s_waitcnt lgkmcnt(0)")
    ST.stamp(p,2)
    A(f"v_mov_b32 v{V_TR+1}, v{V_TRB}"); A(f"v_swap_b32 v{V_XP}, v{V_XP+2}"); A(f"v_swap_b32 v{V_XP+1}, v{V_XP+3}")
    for i in range(26,30):
        A.add(ard(i+PF)); A.add([xrd(0,True)[i-26]])
    A(f"v_add_u32 v{V_TR+1}, {WSL}, v{V_TRB}"); A(f"v_swap_b32 v{V_XP}, v{V_XP+2}"); A(f"v_swap_b32 v{V_XP+1}, v{V_XP+3}")
    A(f"s_mov_b32 s{S_CNT}, 0")
    il=len(p.ins)
    A.label("L_att_loop")
    m,_=auto_lgkm(superstep(), entry_queue(), extra=2)
    ib=[i for i,x in enumerate(m) if x.kind=='barrier'][0]
    head=m[:ib+1]; rest=m[ib+1:]
    p.add(spread(head, dma_items(XB_+wdma()), first=1, last=72))
    p.add(spread(rest, dma_items(XA_), first=0))
    A(f"v_mov_b32 v{V_TR}, v{V_TR+1}")
    A(f"s_add_u32 s{S_SN}, s{S_SN}, {WSL}"); A(f"s_cmp_eq_u32 s{S_SN}, {3*WSL}"); A(f"s_cselect_b32 s{S_SN}, 0, s{S_SN}")
    A(f"v_add_u32 v{V_TR+1}, s{S_SN}, v{V_TRB}")
    A(f"v_swap_b32 v{V_XP}, v{V_XP+2}"); A(f"v_swap_b32 v{V_XP+1}, v{V_XP+3}")
    A(f"s_add_u32 s{S_CNT}, s{S_CNT}, 1"); A(f"s_cmp_lt_u32 s{S_CNT}, 9"); A("s_cbranch_scc1 L_att_loop")
    idn=len(p.ins)
    A("s_waitcnt vmcnt(0) lgkmcnt(0)")
    ST.stamp(p,3)
    A("s_barrier")
    rds=[f"ds_read_b64_tr_b16 a[{80+4*(u*3+s)+2*h}:{80+4*(u*3+s)+2*h+1}], v{V_BD} offset:{(8*s+4*h)*40+8*u}" for u in range(5) for s in range(3) for h in range(2)]
    for x in rds[:14]: A(x)
    A("v_mov_b32 v40, 0"); A("v_mov_b32 v41, 0"); A("v_mov_b32 v42, 0"); A("v_mov_b32 v43, 0")
    A("v_lshlrev_b32 v30, 4, v0"); A(f"v_add_u32 v30, {KVL}, v30")
    A(f"v_mov_b32 v94, s{S_C}")
    A("s_waitcnt lgkmcnt(0)")
    for x in rds[14:28]: A(x)
    A("s_waitcnt lgkmcnt(0)")
    for x in rds[28:]: A(x)
    A("ds_write_b128 v30, v[40:43]")
    A("v_cmp_gt_u32 vcc, 224, v0"); A("s_and_saveexec_b64 s[48:49], vcc"); A("s_cbranch_execz L_att_z3")
    A("ds_write_b128 v30, v[40:43] offset:4096")
    A.label("L_att_z3"); A("s_mov_b64 exec, s[48:49]")
    stage2(p, acck, acck, 24, pre=lambda: A("s_waitcnt lgkmcnt(0)"))
    A(f"v_and_b32 v72, 15, v{V_L}"); A(f"v_lshrrev_b32 v73, 4, v{V_L}")
    A(f"s_lshl_b32 s38, s{S_W}, 6"); A("v_add_u32 v72, s38, v72")
    A(f"v_mul_u32_u24 v74, {PS}, v72"); A("v_mul_u32_u24 v75, 80, v73"); A("v_add_u32 v74, v74, v75")
    A(f"v_mul_u32_u24 v75, {VS}, v72"); A("v_mul_u32_u24 v76, 40, v73"); A("v_add_u32 v75, v75, v76"); A(f"v_add_u32 v75, {VL}, v75")
    A("v_and_b32 v76, 1, v73"); A("v_cmp_eq_u32 s[58:59], 1, v76"); A("v_mov_b32 v70, 1.0"); A("v_mov_b32 v71, 0")
    for tt in range(4):
        softmax_pk(p, lambda f: KACC+((f//4)*4+tt)*4+(f%4), 24, True)
        o=76 if False else 78
        for i in range(18): A(f"v_cvt_pk_bf16_f32 v{76+i}, v{24+2*i}, v{25+2*i}") if False else None
        PK=[76+i for i in range(18)]
        A("s_waitcnt lgkmcnt(0)")
        for i in range(18): A(f"v_cvt_pk_bf16_f32 v{100+0}, v24, v24") if False else None
        for i in range(18):
            A(f"v_cvt_pk_bf16_f32 v{(KACC+tt*0)+0}, v24, v24") if False else None
        for i in range(18): A(f"v_cvt_pk_bf16_f32 v{76+i}, v{24+2*i}, v{25+2*i}")
        off=tt*16*PS
        for i in range(4): A(f"ds_write_b128 v74, v[{76+4*i}:{79+4*i}] offset:{off+16*i}")
        A(f"ds_write_b64 v74, v[92:93] offset:{off+64}")
        A(f"v_cndmask_b32 {accv(0,tt,0)}, {accv(0,tt,0)}, v70, s[58:59]"); A(f"v_cndmask_b32 {accv(0,tt,1)}, {accv(0,tt,1)}, v71, s[58:59]")
        A(f"v_cndmask_b32 {accv(4,tt,2)}, v70, {accv(4,tt,2)}, s[58:59]"); A(f"v_cndmask_b32 {accv(4,tt,3)}, v71, {accv(4,tt,3)}, s[58:59]")
        for t in range(5):
            A(f"v_cvt_pk_bf16_f32 v{24+2*t}, {accv(t,tt,0)}, {accv(t,tt,1)}"); A(f"v_cvt_pk_bf16_f32 v{25+2*t}, {accv(t,tt,2)}, {accv(t,tt,3)}")
        offv=tt*16*VS
        for t in range(5): A(f"ds_write_b64 v75, v[{24+2*t}:{25+2*t}] offset:{offv+8*t}")
    A("s_waitcnt lgkmcnt(0)"); A("s_barrier")
    ST.stamp(p,4)
    A(f"v_and_b32 v24, 15, v{V_L}"); A(f"v_lshrrev_b32 v25, 4, v{V_L}"); A("v_lshrrev_b32 v26, 2, v24"); A("v_and_b32 v27, 3, v24")
    A("v_lshlrev_b32 v28, 3, v25"); A("v_add_u32 v28, v28, v26")
    A(f"v_mul_u32_u24 v29, {VS}, v28"); A("v_lshlrev_b32 v30, 3, v27"); A("v_add_u32 v29, v29, v30")
    A(f"s_mul_i32 s38, s{S_W}, 40"); A(f"s_add_u32 s38, s38, {VL}"); A("v_add_u32 v29, s38, v29")
    A(f"v_mul_u32_u24 v31, {PS}, v28"); A("v_add_u32 v31, v31, v30")
    A(f"s_mul_i32 s38, s{S_W}, 80"); A("v_add_u32 v31, s38, v31")
    A(f"v_add_u32 v32, {128*PS}, v31")
    KV=96
    def kvr(ks):
        fr=36+20*(ks%2); o=[]
        for dt in range(2):
            for h in range(2): o.append(Ins(f"ds_read_b64_tr_b16 v[{fr+4*dt+2*h}:{fr+4*dt+2*h+1}], v29 offset:{(32*ks+4*h)*VS+32*dt}"))
        for ft in range(3):
            for h in range(2):
                base,ko=("v31",ks) if ks<4 else ("v32",ks-4)
                o.append(Ins(f"ds_read_b64_tr_b16 v[{fr+8+4*ft+2*h}:{fr+8+4*ft+2*h+1}], {base} offset:{(32*ko+4*h)*PS+32*ft}"))
        return o
    st=kvr(0)
    for ks in range(8):
        fr=36+20*(ks%2)
        nx=kvr(ks+1) if ks<7 else []
        k=0
        for dt in range(2):
            for ft in range(3):
                d=KV+(dt*3+ft)*4
                c=f"v[{d}:{d+3}]" if ks>0 else "0"
                if k==0: st.append(Ins("s_waitcnt lgkmcnt(0)")); st+=nx[:5]
                st.append(Ins(f"v_mfma_f32_16x16x32_bf16 v[{d}:{d+3}], v[{fr+4*dt}:{fr+4*dt+3}], v[{fr+8+4*ft}:{fr+8+4*ft+3}], {c}"))
                if k==1: st+=nx[5:]
                k+=1
    p.add(st)
    A(f"s_lshl_b32 s38, s{S_RT}, 5"); A(f"s_lshl_b32 s39, s{S_QD}, 2"); A("s_add_u32 s38, s38, s39"); A(f"s_add_u32 s38, s38, s{S_W}"); A("s_mul_i32 s38, s38, 2880")
    A("v_mul_u32_u24 v33, 80, v24"); A("v_lshlrev_b32 v34, 4, v25"); A("v_add_u32 v33, v33, v34")
    A("v_cmp_eq_u32 s[50:51], 0, v25"); A("v_cmp_gt_u32 s[52:53], 4, v24")
    A("s_nop 1")
    A("s_and_b64 s[54:55], s[50:51], s[52:53]")
    for ft in range(3):
        for dt in range(2):
            d=KV+(dt*3+ft)*4
            mask=(None if dt==0 else "s[50:51]") if ft<2 else ("s[52:53]" if dt==0 else "s[54:55]")
            if mask: A(f"s_mov_b64 exec, {mask}")
            A(f"buffer_store_dwordx4 v[{d}:{d+3}], v33, s[{S_KV}:{S_KV+3}], s38 offen offset:{ft*16*80+dt*64} sc1")
            if mask: A("s_mov_b64 exec, -1")
    def accqv(t,tt,r): return f"v{96+(t*4+tt)*4+r}"
    for i in range(80): A(f"v_accvgpr_read_b32 v{96+i}, a{i}") if i>=24 else None
    A("s_waitcnt vmcnt(0)"); A("s_barrier")
    A(f"s_cmp_eq_u32 s{S_W}, 0"); A("s_cbranch_scc0 L_att_nosig")
    A(f"s_lshl_b32 s38, s{S_QD}, 2"); A("v_mov_b32 v33, s38"); A("v_mov_b32 v34, 1")
    A(f"v_cmp_eq_u32 vcc, 0, v{V_L}"); A("s_and_saveexec_b64 s[48:49], vcc")
    A("global_atomic_add v33, v34, s[68:69] sc1")
    A("s_mov_b64 exec, s[48:49]")
    A.label("L_att_nosig")
    ST.stamp(p,5)
    for i in range(24): A(f"v_accvgpr_read_b32 v{96+i}, a{i}")
    stage2(p, accqv, lambda u,tt: f"v[{176+(u*4+tt)*4}:{176+(u*4+tt)*4+3}]", 24)
    A("s_mov_b32 s40, s62"); A("s_mov_b32 s41, s63"); A(f"s_mov_b32 s42, {576*1152}"); A("s_mov_b32 s43, 0x20000")
    A(f"s_lshl_b32 s48, s{S_RT}, 3"); A(f"s_add_u32 s48, s48, s{S_QD}"); A("s_lshl_b32 s48, s48, 2"); A(f"s_add_u32 s48, s48, s{S_W}"); A("s_mul_i32 s48, s48, 3072")
    for i in range(3): A(f"buffer_load_dwordx4 a[{4*i}:{4*i+3}], v{V_L16}, s[40:43], s48 offen offset:{1024*i}")
    A("s_mov_b32 s40, s56"); A("s_mov_b32 s41, s57"); A(f"s_mov_b32 s42, {2048*1152}"); A("s_mov_b32 s43, 0x20000")
    A("s_mov_b32 s44, s64"); A("s_mov_b32 s45, s65"); A("s_mov_b32 s46, 1152"); A("s_mov_b32 s47, 0x20000")
    A(f"v_lshrrev_b32 v168, 3, v{V_L}"); A(f"v_and_b32 v169, 7, v{V_L}"); A("v_lshlrev_b32 v170, 4, v169")
    A("v_mul_u32_u24 v171, 0x480, v168"); A("v_add_u32 v171, v171, v170")
    A(f"s_lshl_b32 s48, s{S_RT}, 5"); A(f"s_lshl_b32 s49, s{S_QD}, 2"); A("s_add_u32 s48, s48, s49"); A(f"s_add_u32 s48, s48, s{S_W}")
    A(f"s_mul_i32 s49, s48, {8*1152}")
    for c in range(9):
        A(f"buffer_load_dwordx4 v[{96+4*c}:{99+4*c}], v171, s[40:43], s49 offen offset:{128*c}")
        A(f"buffer_load_dwordx4 v[{132+4*c}:{135+4*c}], v170, s[44:47], 0 offen offset:{128*c}")
    for tt in range(4):
        softmax_pk(p, lambda f: 176+((f//4)*4+tt)*4+(f%4), 24, False)
        for half in range(2):
            for i in range(9):
                A(f"v_cvt_pk_bf16_f32 v{76+i}, v{24+18*half+2*i}, v{25+18*half+2*i}")
            for i in range(9): A(f"v_accvgpr_write_b32 a{140+tt*24+half*12+i}, v{76+i}")
            for i in range(9,12): A(f"v_accvgpr_write_b32 a{140+tt*24+half*12+i}, 0")
    A("v_mov_b32 v172, 0"); A("v_mov_b32 v173, 0")
    A("s_waitcnt vmcnt(0)")
    for c in range(9):
        for r in range(4):
            A(f"v_dot2_f32_bf16 v{172+(r&1)}, v{96+4*c+r}, v{132+4*c+r}, v{172+(r&1)}")
    A("s_nop 3")
    A("v_add_f32 v172, v172, v173")
    for m in (0x041F,0x081F,0x101F):
        A("s_nop 0")
        A(f"ds_swizzle_b32 v173, v172 offset:0x{m:04X}"); A("s_waitcnt lgkmcnt(0)"); A("v_add_f32 v172, v172, v173")
    A(f"v_mul_f32 v172, 0x{f2u(-LOG2E):08x}, v172"); A("v_exp_f32 v172, v172"); A("s_nop 0"); A("v_add_f32 v172, 1.0, v172"); A("v_rcp_f32 v172, v172")
    A(f"s_add_u32 s40, s70, {0x1500000}"); A("s_addc_u32 s41, s71, 0"); A("s_mov_b32 s42, 8192"); A("s_mov_b32 s43, 0x20000")
    A("s_lshl_b32 s48, s48, 5"); A("v_lshlrev_b32 v168, 2, v168")
    A("v_cmp_eq_u32 vcc, 0, v169"); A("s_and_saveexec_b64 s[50:51], vcc")
    A("buffer_store_dword v172, v168, s[40:43], s48 offen")
    A("s_mov_b64 exec, s[50:51]")
    ST.stamp(p,6)
    A(f"s_cmp_eq_u32 s{S_W}, 0"); A("s_cbranch_scc0 L_att_wdone")
    A(f"s_lshl_b32 s38, s{S_QD}, 2"); A("v_mov_b32 v33, s38")
    A("s_mov_b32 s39, 0")
    A.label("L_att_poll")
    A("s_add_u32 s39, s39, 1"); A("s_cmp_gt_u32 s39, 200000"); A("s_cbranch_scc1 L_att_wdone")
    A("global_load_dword v34, v33, s[68:69] sc1"); A("s_waitcnt vmcnt(0)")
    A("v_readfirstlane_b32 s38, v34"); A("s_nop 1"); A("s_cmp_ge_u32 s38, 8"); A("s_cbranch_scc1 L_att_wdone")
    A("s_sleep 2"); A("s_branch L_att_poll")
    A.label("L_att_wdone")
    A("s_barrier")
    A(f"s_lshl_b32 s39, s{S_QD}, 2"); A(f"s_add_u32 s39, s39, s{S_W}"); A("s_mul_i32 s39, s39, 2880")
    A(f"v_cmp_gt_u32 vcc, 52, v{V_L}")
    for r in range(8):
        A(f"s_add_u32 s38, s39, {r*32*2880}")
        for i in range(2):
            b=96+(r*3+i)*4
            A(f"buffer_load_dwordx4 v[{b}:{b+3}], v{V_L16}, s[{S_KV}:{S_KV+3}], s38 offen offset:{1024*i} sc1")
    A("s_mov_b64 exec, vcc")
    for r in range(8):
        A(f"s_add_u32 s38, s39, {r*32*2880}")
        b=96+(r*3+2)*4
        A(f"buffer_load_dwordx4 v[{b}:{b+3}], v{V_L16}, s[{S_KV}:{S_KV+3}], s38 offen offset:2048 sc1")
    A("s_mov_b64 exec, -1")
    A(f"s_and_b32 s48, s{S_W}, 1")
    for i in range(3):
        A(f"v_add_u32 v30, {64*i}, v{V_L}")
        A("v_mul_u32_u24 v31, 205, v30"); A("v_lshrrev_b32 v31, 10, v31")
        A("v_mul_u32_u24 v32, 5, v31"); A("v_sub_u32 v32, v30, v32")
        A("s_cmp_eq_u32 s48, 0"); A("s_cselect_b32 s49, 4, 0")
        A(f"v_cmp_eq_u32 s[{50+2*i}:{51+2*i}], s49, v32")
        A("v_cmp_le_u32 vcc, 18, v31"); A("v_mov_b32 v36, 0"); A("v_mov_b32 v37, 240"); A("v_cndmask_b32 v36, v36, v37, vcc")
        A("v_mul_u32_u24 v31, 40, v31"); A("v_add_u32 v31, v31, v36")
        A(f"s_mul_i32 s38, s{S_W}, 1920"); A(f"s_add_u32 s38, s38, {KVL}"); A("v_add_u32 v31, s38, v31")
        A("v_lshlrev_b32 v32, 1, v32"); A("v_subrev_u32 v33, s48, v32")
        A("v_add_u32 v34, 1, v33")
        A("v_cmp_gt_i32 vcc, 0, v33"); A("v_add_u32 v36, 10, v33"); A("s_nop 0"); A("v_cndmask_b32 v33, v33, v36, vcc")
        A(f"v_lshl_add_u32 v{40+2*i}, v33, 2, v31"); A(f"v_lshl_add_u32 v{41+2*i}, v34, 2, v31")
    A("v_mov_b32 v35, 1.0")
    A("s_waitcnt vmcnt(0)")
    for i in range(3):
        for k in (0,2):
            for r in range(1,8): A(f"v_pk_add_f32 {bc(96+i*4+k)}, {bc(96+i*4+k)}, {bc(96+(r*3+i)*4+k)}")
    A(f"v_cmp_gt_u32 vcc, 52, v{V_L}")
    A("s_cmp_eq_u32 s48, 0"); A("s_cbranch_scc1 L_att_even")
    for i in range(3): A(f"v_cndmask_b32 v{96+i*4+1}, v{96+i*4+1}, v35, s[{50+2*i}:{51+2*i}]")
    A("s_branch L_att_par")
    A.label("L_att_even")
    for i in range(3): A(f"v_cndmask_b32 v{96+i*4+3}, v{96+i*4+3}, v35, s[{50+2*i}:{51+2*i}]")
    A.label("L_att_par")
    for i in range(3):
        A(f"v_cvt_pk_bf16_f32 v38, v{96+i*4}, v{96+i*4+1}"); A(f"v_cvt_pk_bf16_f32 v39, v{96+i*4+2}, v{96+i*4+3}")
        if i==2: A("s_mov_b64 exec, vcc")
        A(f"ds_write_b32 v{40+2*i}, v38"); A(f"ds_write_b32 v{41+2*i}, v39")
        if i==2: A("s_mov_b64 exec, -1")
    A("s_waitcnt lgkmcnt(0)"); A("s_barrier")
    ST.stamp(p,7)
    def N(half,u,tt,r=None):
        b=96+((half*5+u)*4+tt)*4; return f"v[{b}:{b+3}]" if r is None else f"v{b+r}"
    seq=[(half,s,u) for half in range(2) for s in range(3) for u in range(5)]
    def rd(i):
        half,s,u=seq[i]
        return [Ins(f"ds_read_b64_tr_b16 {afh(i,h)}, v{V_BD2} offset:{half*960+(8*s+4*h)*40+8*u}") for h in range(2)]
    st=[]
    for i in range(PF): st+=rd(i)
    for i,(half,s,u) in enumerate(seq):
        nxt=rd(i+PF) if i+PF<len(seq) else []
        for tt in range(4):
            e=140+tt*24+half*12+4*s
            c=N(half,u,tt) if s>0 else "0"
            st.append(Ins(f"v_mfma_f32_16x16x32_bf16 {N(half,u,tt)}, {afr(i)}, a[{e}:{e+3}], {c}"))
            if tt<len(nxt): st.append(nxt[tt])
    st,_=auto_lgkm(st); p.add(st)
    A(f"s_lshl_b32 s38, s{S_RT}, 4"); A(f"s_lshl_b32 s39, s{S_W}, 2"); A("s_add_u32 s38, s38, s39"); A(f"s_mul_i32 s38, s38, {NKS_TOT}")
    A(f"s_mul_i32 s39, s{S_QD}, 3"); A("s_add_u32 s38, s38, s39"); A("s_add_u32 s38, s38, 144"); A("s_lshl_b32 s38, s38, 10")
    A("s_nop 3")
    for tt in range(4):
        a=24; b=26; den=28
        A(f"v_rcp_f32 v{a}, {N(0,4,tt,3)}"); A(f"v_rcp_f32 v{b}, {N(1,4,tt,3)}"); A("s_nop 0")
        A(f"v_mul_f32 v{den}, {N(0,4,tt,2)}, v{a}"); A(f"v_fmac_f32 v{den}, {N(1,4,tt,2)}, v{b}"); A(f"v_add_f32 v{den}, 0x{f2u(1e-6):08x}, v{den}")
        A(f"v_rcp_f32 v{den}, v{den}"); A("s_nop 0"); A(f"v_mul_f32 v{a}, v{a}, v{den}"); A(f"v_mul_f32 v{b}, v{b}, v{den}")
        for d in range(0,18,2):
            n0=96+((0*5+d//4)*4+tt)*4+d%4; n1=96+((1*5+d//4)*4+tt)*4+d%4
            A(f"v_pk_mul_f32 {bc(30+d)}, {bc(n0)}, {bc(a)} op_sel_hi:[1,0]")
            A(f"v_pk_fma_f32 {bc(30+d)}, {bc(n1)}, {bc(b)}, {bc(30+d)} op_sel_hi:[1,0,1]")
        o=48+12*(tt%2)
        for i in range(9): A(f"v_cvt_pk_bf16_f32 v{o+i}, v{30+2*i}, v{31+2*i}")
        for i in range(9,12): A(f"v_mov_b32 v{o+i}, 0")
        for s in range(3):
            A(f"buffer_store_dwordx4 v[{o+4*s}:{o+4*s+3}], v{V_L16}, s[{S_H}:{S_H+3}], s38 offen offset:{1024*s}")
        A(f"s_add_u32 s38, s38, {NKS_TOT*1024}")
    if ST.ENABLE: A("s_waitcnt vmcnt(0)")
    ST.stamp(p,8)
    ST.flush(p,70,71,2)
    A("s_endpgm")
    if docheck:
        ins=p.ins
        body=ins[il:idn]
        tr=ins[:il]+body+body+ins[idn:]
        print("att check problems:",len(check(tr,'att')))
if __name__=="__main__":
    for m in range(1792): assert (m*7282)>>16==m//9
    for n in range(12): assert (n*86)>>8==n//3
    for n in range(768): assert (n*405)>>16==n//162, n
    for n in range(162): assert (n*57)>>9==n//9
    for n in range(192): assert (n*205)>>10==n//5
    p=Prog(); gen_att(p); print(len(p.ins))
```

```python
from core import *
import stamp as ST
import struct
def f2u(x): return struct.unpack('<I', struct.pack('<f', x))[0]
import math
C0 = -2.0*math.log2(math.e)*math.sqrt(2.0/math.pi)
C1 = C0*0.044715

import os
EXP=set(os.environ.get('G1EXP','').split(','))
LOOK=int(os.environ.get('LOOK','3'))
NKS_TOT = 168
H_BYTES = 128*NKS_TOT*1024
XT = 36864
SLOT = [0, 36864, 73728, 110592]
WRING0 = 32768; WST = 16384; NWR = 8

def wfrag(ks,j):
    i=ks*4+j
    if i<64: return f"a[{4*i}:{4*i+3}]"
    i-=64
    return f"v[{224+4*i}:{224+4*i+3}]"
def wfrag_half(ks,j,h):
    i=ks*4+j
    if i<64: return f"a[{4*i+2*h}:{4*i+2*h+1}]"
    i-=64
    return f"v[{224+4*i+2*h}:{224+4*i+2*h+1}]"
ACC=[128,160]
def acc(buf,tt,j,r=None):
    b=ACC[buf]+16*tt+4*j
    return f"v[{b}:{b+3}]" if r is None else f"v{b+r}"
XR0=192; NX=6
def xfr(q):
    b=XR0+4*(q%NX); return f"v[{b}:{b+3}]"
HP=216
TMP0=96
V_XDMA=64
V_WDMA=73
V_WTR=75
V_XP=77
V_XA=[79,81]
V_L16=83
V_C0=84; V_C1=85
V_WTR2=86
V_PC0=88; V_ONE=90
V_C1=92
V_XS=94
V_SP=62
S_AW=55; S_AXC=72; S_XCO=73; S_ROT=74
S_PF=56; S_PFO=75; V_PF=56
S_X=8; S_G=12; S_U=16; S_H=20
S_W=24
S_XSO=25
S_HSO=26; S_HSO1=27
S_WSO=28
S_CNT=29
S_BE=30; S_BO=31
S_DE=32; S_DO=33
S_T=34; S_T2=35

def gelu_stream(buf,pk=False):
    out=[]
    PK=pk
    Wd=int(os.environ.get('GELUW','4'))
    for tt in range(2):
        if PK:
            chains=[]
            for j in range(2):
                for r in (0,2):
                    bx=ACC[buf]+16*tt+4*j+r; bu=ACC[buf]+16*tt+4*(2+j)+r
                    X=f"v[{bx}:{bx+1}]"; Uu=f"v[{bu}:{bu+1}]"
                    a=TMP0+4*((tt*4+j*2+r//2)%8)
                    T=f"v[{a}:{a+1}]"; Y=f"v[{a+2}:{a+3}]"
                    chains.append([f"v_pk_mul_f32 {T}, {X}, {X}",
                                   f"v_pk_fma_f32 {T}, {T}, v[{V_C1}:{V_C1+1}], v[{V_PC0}:{V_PC0+1}]",
                                   f"v_pk_mul_f32 {T}, {T}, {X}",
                                   f"v_exp_f32 v{a}, v{a}", f"v_exp_f32 v{a+1}, v{a+1}",
                                   f"v_pk_mul_f32 {Y}, {X}, {Uu}",
                                   f"v_pk_add_f32 {T}, {T}, v[{V_ONE}:{V_ONE+1}]",
                                   f"v_rcp_f32 v{a}, v{a}", f"v_rcp_f32 v{a+1}, v{a+1}",
                                   None,
                                   f"v_pk_mul_f32 {Y}, {Y}, {T}",
                                   f"v_cvt_pk_bf16_f32 v{HP+4*tt+2*j+r//2}, v{a+2}, v{a+3}"])
            W2=max(1,Wd//2)
            for p in range(0,4,W2):
                cs=chains[p:p+W2]
                seq=[]
                for k in range(12):
                    for c in cs:
                        if c[k]: seq.append(c[k])
                out+=[Ins(s) for s in seq]
        else:
            chains=[]
            for j in range(2):
                for r in range(4):
                    x=acc(buf,tt,j,r); u=acc(buf,tt,2+j,r)
                    a=TMP0+4*((tt*8+j*4+r)%8)
                    T,Y=f"v{a}",f"v{a+2}"
                    chains.append([f"v_mul_f32 {T}, {x}, {x}",
                                   f"v_fmaak_f32 {T}, v{V_C1}, {T}, 0x{f2u(C0):08x}",
                                   f"v_mul_f32 {T}, {T}, {x}",
                                   f"v_exp_f32 {T}, {T}",
                                   f"v_mul_f32 {Y}, {x}, {u}",
                                   f"v_add_f32 {T}, 1.0, {T}",
                                   f"v_rcp_f32 {T}, {T}",
                                   None,
                                   f"v_mul_f32 {Y}, {Y}, {T}"])
            for p in range(0,8,Wd):
                cs=chains[p:p+Wd]
                seq=[]
                for k in range(9):
                    for c in cs:
                        if c[k]: seq.append(c[k])
                for pp in range(p,p+Wd,2):
                    y0=TMP0+4*((tt*8+pp)%8)+2; y1=TMP0+4*((tt*8+pp+1)%8)+2
                    seq.append(f"v_cvt_pk_bf16_f32 v{HP+4*tt+pp//2}, v{y0}, v{y1}")
                out+= [Ins(s) for s in seq]
        out.append(Ins(f"buffer_store_dwordx4 v[{HP+4*tt}:{HP+4*tt+3}], v{V_L16}, s[{S_H}:{S_H+3}], s{S_HSO if tt==0 else S_HSO1} offen", tag=f"store{tt}"))
    return out

def xread(par, q, nxt=False):
    ks,tt=q//2,q%2
    a=V_XA[par]+(ks&1)
    return Ins(f"ds_read_b128 {xfr(q)}, v{a} offset:{(ks>>1)*4096+tt*2048}")

def xdma(dst_sreg):
    out=[]
    for i in range(9):
        if i%4==0:
            out.append(Ins(f"s_add_u32 m0, s{dst_sreg}, {4096*(i//4)}" if i else f"s_mov_b32 m0, s{dst_sreg}"))
            out.append(None)
        out.append(Ins(f"buffer_load_dwordx4 v{V_XDMA+i}, s[{S_X}:{S_X+3}], s{S_XSO} offen offset:{1024*(i%4)} lds"))
    return out

def tile_body(par):
    buf=par
    main=[]
    dm=[x for x in xdma(S_DE if par==0 else S_DO)]
    for ks in range(18):
        main.append(Ins("s_waitcnt lgkmcnt(2)"))
        pre=[]
        for tt in range(2):
            q=2*ks+tt+4
            pre.append(xread(par,q) if q<36 else xread(1-par,q-36))
        for tt in range(2):
            for j in range(4):
                c = acc(buf,tt,j) if ks>0 else "0"
                main.append(Ins(f"v_mfma_f32_16x16x32_bf16 {acc(buf,tt,j)}, {wfrag(ks,j)}, {xfr(2*ks+tt)}, {c}"))
                if j==0: main.append(pre[tt])
        if ks==13:
            pass
    return main, dm

def emit_tile(p, par, first=False):
    main,dm=tile_body(par)
    idx=[i for i,x in enumerate(main) if x.kind=='wait']
    pos13=idx[13]
    extra=[Ins("s_waitcnt vmcnt(13)"),Ins("s_barrier")]
    main=main[:pos13]+extra+main[pos13:]
    nb = S_BO if par==0 else S_BE
    hk=[Ins(f"v_add_u32 v{V_XA[1-par]}, s{nb}, v{V_XP}"), Ins(f"v_add_u32 v{V_XA[1-par]+1}, s{nb}, v{V_XP+1}")]
    g=gelu_stream(1-par)
    pf=[Ins(f"buffer_load_dwordx4 v[{V_PF}:{V_PF+3}], v{V_L16}, s[{S_PF}:{S_PF+3}], s{S_PFO} offen", tag='pf'), Ins(f"s_add_u32 s{S_PFO}, s{S_PFO}, 1024")]
    out=[]; di=0; after=False; cnt=0
    dml=[]
    for x in dm:
        dml.append(x)
    k=0
    res=[]
    pend=list(dml)
    for x in main:
        res.append(x)
        if x.kind=='barrier': after=True; cnt=0; continue
        if after and x.kind=='mfma':
            cnt+=1
            if cnt%3==0 and pend:
                y=pend.pop(0)
                if y is not None: res.append(y)
                if pend and pend[0] is None: pend.pop(0)
    assert not pend, len(pend)
    tail=[Ins(f"s_add_u32 s{S_XSO}, s{S_XSO}, {XT}")]
    if par==0:
        tail.append(Ins(f"s_xor_b32 s{S_DE}, s{S_DE}, s{S_T}"))
        tail.append(Ins(f"s_xor_b32 s{S_BO}, s{S_BO}, {SLOT[1]^SLOT[3]}"))
    else:
        tail.append(Ins(f"s_xor_b32 s{S_DO}, s{S_DO}, s{S_T2}"))
        tail.append(Ins(f"s_xor_b32 s{S_BE}, s{S_BE}, {SLOT[0]^SLOT[2]}"))
    g2=g+[Ins(f"s_add_u32 s{S_HSO}, s{S_HSO}, {2*NKS_TOT*1024}"), Ins(f"s_add_u32 s{S_HSO1}, s{S_HSO1}, {2*NKS_TOT*1024}")]
    if 'nogelu' in EXP: g2=[x for x in g2 if x.kind in('vmem','salu')]
    if 'notrans' in EXP: g2=[x for x in g2 if x.kind!='trans']
    if 'nodma' in EXP: res=[x for x in res if x.kind!='dma']
    if 'nobar' in EXP: res=[x for x in res if x.kind!='barrier' and not (x.kind=='wait' and 'vmcnt' in x.text)]
    if 'noxread' in EXP: res=[x for x in res if x.kind!='ds' and not (x.kind=='wait' and 'lgkm' in x.text)]
    if 'nostore' in EXP: g2=[x for x in g2 if x.kind!='vmem']
    merged=interleave(res, hk+pf+g2, budget=2)
    if EXP-{''}:
        p.add(merged); p.add(tail); return
    order=[('dma' if x.kind=='dma' else x.tag) for x in merged if x.kind in('dma','vmem')]
    assert order==['pf','store0']+['dma']*9+['store1'], order
    i0=[i for i,x in enumerate(merged) if x.tag=='store0'][0]; ib=[i for i,x in enumerate(merged) if x.kind=='barrier'][0]
    assert i0<ib
    p.add(merged); p.add(tail)

def gen_gemm1(p):
    A=p
    A("s_lshl_b32 s39, s36, 8")
    A(f"s_add_u32 s{S_G}, s42, s39"); A(f"s_addc_u32 s{S_G+1}, s43, 0")
    A(f"s_sub_u32 s{S_G+2}, {576*9216}, s39"); A(f"s_mov_b32 s{S_G+3}, 0x20000")
    A(f"s_add_u32 s{S_U}, s44, s39"); A(f"s_addc_u32 s{S_U+1}, s45, 0")
    A(f"s_sub_u32 s{S_U+2}, {576*9216}, s39"); A(f"s_mov_b32 s{S_U+3}, 0x20000")
    A("v_and_b32 v1, 63, v0")
    A("v_lshrrev_b32 v2, 4, v1")
    A("v_and_b32 v3, 15, v1")
    A(f"s_and_b32 s38, s{S_W}, 1"); A("s_lshl_b32 s38, s38, 3")
    A("v_lshlrev_b32 v6, 1, v2"); A("v_add_u32 v6, s38, v6")
    A("v_xor_b32 v6, v6, v3"); A("v_lshlrev_b32 v6, 4, v6")
    A(f"s_lshl_b32 s38, s{S_W}, 3")
    A("v_add_u32 v7, s38, v2"); A("v_mul_u32_u24 v7, 0x2400, v7")
    A(f"v_add_u32 v{V_WDMA}, v7, v6")
    A(f"v_add_u32 v{V_WDMA+1}, {4*9216-1024}, v{V_WDMA}")
    A("s_lshl_b32 s{0}, s37, 1".format(S_ROT)); A(f"s_cmp_ge_u32 s{S_ROT}, 9"); A("s_cselect_b32 s38, 9, 0"); A(f"s_sub_u32 s{S_ROT}, s{S_ROT}, s38")
    A(f"s_lshl_b32 s{S_AW}, s{S_ROT}, 1"); A(f"s_mul_i32 s{S_WSO}, s{S_AW}, {32*9216}")
    A(f"s_lshl_b32 s52, s{S_W}, 11")
    ST.stamp(p,8)
    A.add(wdma(0))
    ST.stamp(p,9)
    A(f"s_mul_i32 s38, s37, {13*XT}")
    A(f"s_add_u32 s{S_X}, s40, s38"); A(f"s_addc_u32 s{S_X+1}, s41, 0")
    A(f"s_sub_u32 s{S_X}, s{S_X}, 4096"); A(f"s_subb_u32 s{S_X+1}, s{S_X+1}, 0")
    A(f"s_sub_u32 s{S_X+2}, {2048*1152+4096}, s38"); A(f"s_mov_b32 s{S_X+3}, 0x20000")
    A("v_lshrrev_b32 v4, 3, v1"); A("v_and_b32 v5, 7, v1")
    A(f"s_and_b32 s38, s{S_W}, 1"); A("s_lshl_b32 s38, s38, 2")
    A("v_add_u32 v7, s38, v2"); A("v_and_b32 v7, 7, v7"); A("v_xor_b32 v7, v7, v5"); A("v_lshlrev_b32 v7, 4, v7")
    A(f"s_lshl_b32 s38, s{S_W}, 3"); A("v_add_u32 v6, s38, v4"); A("v_mul_u32_u24 v6, 0x480, v6")
    A(f"v_add3_u32 v{V_XS}, v6, v7, 0"); A(f"v_add_u32 v{V_XS}, 4096, v{V_XS}"); A(f"v_add_u32 v{V_XS+1}, {XT-1024}, v{V_XS}")
    A(f"s_mov_b32 s{S_AXC}, s{S_ROT}"); A(f"s_lshl_b32 s{S_XCO}, s{S_ROT}, 7")
    A.add(xcdma(0))
    for k in range(1,LOOK): A.add(wdma(k))
    A.add(xcdma(1))
    ST.stamp(p,1)
    A(f"s_mov_b32 s{S_H}, s46"); A(f"s_mov_b32 s{S_H+1}, s47"); A(f"s_mov_b32 s{S_H+2}, {H_BYTES}"); A(f"s_mov_b32 s{S_H+3}, 0x20000")
    A(f"v_lshlrev_b32 v{V_L16}, 4, v1")
    A("v_lshrrev_b32 v6, 2, v3"); A("v_and_b32 v7, 3, v3")
    A("v_lshlrev_b32 v8, 3, v2"); A("v_add_u32 v8, v8, v6"); A("v_lshlrev_b32 v8, 8, v8")
    A("v_lshrrev_b32 v9, 1, v7")
    A(f"s_lshl_b32 s38, s{S_W}, 2"); A("v_add_u32 v9, s38, v9")
    A("v_and_b32 v10, 1, v2"); A("v_lshlrev_b32 v10, 3, v10"); A("v_lshlrev_b32 v11, 1, v6"); A("v_add_u32 v10, v10, v11")
    A("v_xor_b32 v9, v9, v10"); A("v_lshlrev_b32 v9, 4, v9")
    A("v_and_b32 v7, 1, v7"); A("v_lshlrev_b32 v7, 3, v7")
    A("v_add3_u32 v8, v8, v9, v7")
    A(f"v_add_u32 v{V_WTR}, {WRING0}, v8")
    A(f"v_xor_b32 v8, 32, v8"); A(f"v_add_u32 v{V_WTR+1}, {WRING0}, v8")
    A(f"v_add_u32 v{V_WTR2}, {4*WST}, v{V_WTR}"); A(f"v_add_u32 v{V_WTR2+1}, {4*WST}, v{V_WTR+1}")
    A("v_lshrrev_b32 v6, 1, v3"); A("v_xor_b32 v6, v6, v2"); A("v_lshlrev_b32 v6, 4, v6")
    A("v_lshrrev_b32 v7, 3, v3"); A("v_lshlrev_b32 v7, 11, v7"); A("v_and_b32 v8, 7, v3"); A("v_lshlrev_b32 v8, 7, v8")
    A(f"v_add3_u32 v{V_SP}, v6, v7, v8"); A(f"v_xor_b32 v{V_SP+1}, 64, v{V_SP}")
    A("v_lshlrev_b32 v7, 7, v3")
    A(f"v_add_u32 v{V_XP}, v6, v7"); A(f"v_xor_b32 v{V_XP+1}, 64, v{V_XP}")
    A("v_mul_u32_u24 v6, 0x480, v4")
    A(f"s_mul_i32 s{S_T}, s{S_W}, 9")
    for i in range(9):
        A(f"s_add_u32 s38, s{S_T}, {i}")
        A("s_and_b32 s48, s38, 3"); A("s_lshr_b32 s49, s38, 2")
        A(f"s_add_u32 s49, s49, s{S_ROT}"); A("s_cmp_ge_u32 s49, 9"); A("s_cselect_b32 s50, 9, 0"); A("s_sub_u32 s49, s49, s50")
        A("s_and_b32 s50, s48, 1"); A("s_lshl_b32 s50, s50, 2")
        A("v_add_u32 v7, s50, v2"); A("v_and_b32 v7, 7, v7"); A("v_xor_b32 v7, v7, v5"); A("v_lshlrev_b32 v7, 4, v7")
        A("s_mul_i32 s48, s48, 9216"); A("s_lshl_b32 s49, s49, 7"); A("s_add_u32 s48, s48, s49")
        A(f"s_add_u32 s48, s48, {4096-1024*(i%4)}")
        A(f"v_add3_u32 v{V_XDMA+i}, v7, v6, s48")
    A(f"v_mov_b32 v{V_C1}, 0x{f2u(C1):08x}"); A(f"v_mov_b32 v{V_C1+1}, 0x{f2u(C1):08x}")
    A(f"v_mov_b32 v{V_PC0}, 0x{f2u(C0):08x}"); A(f"v_mov_b32 v{V_PC0+1}, 0x{f2u(C0):08x}")
    A(f"v_mov_b32 v{V_ONE}, 1.0"); A(f"v_mov_b32 v{V_ONE+1}, 1.0")
    A(f"s_mul_i32 s38, s37, {13*2*NKS_TOT*1024}")
    A(f"s_lshl_b32 s39, s36, 2"); A(f"s_add_u32 s39, s39, s{S_W}"); A("s_lshl_b32 s39, s39, 10")
    A(f"s_add_u32 s{S_HSO}, s38, s39"); A(f"s_add_u32 s{S_HSO1}, s{S_HSO}, {NKS_TOT*1024}")
    A(f"s_mul_i32 s51, s{S_W}, 9216")
    A("s_mul_i32 s38, s36, 5"); A("s_add_u32 s38, s38, s37"); A("s_lshl_b32 s38, s38, 2"); A(f"s_add_u32 s38, s38, s{S_W}")
    A(f"s_mul_i32 s{S_PFO}, s38, {11*1024}")
    A(f"s_mov_b32 s{S_PF}, s66"); A(f"s_mov_b32 s{S_PF+1}, s67"); A(f"s_mov_b32 s{S_PF+2}, {4608*1152}"); A(f"s_mov_b32 s{S_PF+3}, 0x20000")
    return

def wdma(ks):
    slot=WRING0+WST*(ks%NWR)
    return [Ins(f"s_add_u32 m0, s52, {slot}"),
            Ins(f"s_add_u32 s{S_AW}, s{S_AW}, 1"),
            Ins(f"buffer_load_dwordx4 v{V_WDMA}, s[{S_G}:{S_G+3}], s{S_WSO} offen lds"),
            Ins(f"buffer_load_dwordx4 v{V_WDMA+1}, s[{S_G}:{S_G+3}], s{S_WSO} offen offset:1024 lds"),
            Ins(f"s_add_u32 m0, s52, {slot+8192}"),
            Ins(f"s_cmp_eq_u32 s{S_AW}, 18"),
            Ins(f"buffer_load_dwordx4 v{V_WDMA}, s[{S_U}:{S_U+3}], s{S_WSO} offen lds"),
            Ins(f"buffer_load_dwordx4 v{V_WDMA+1}, s[{S_U}:{S_U+3}], s{S_WSO} offen offset:1024 lds"),
            Ins(f"s_cselect_b32 s{S_AW}, 0, s{S_AW}"),
            Ins(f"s_mul_i32 s{S_WSO}, s{S_AW}, {32*9216}")]

def xcdma(cg):
    return [Ins(f"s_add_u32 m0, s52, {(cg%4)*8192}"),
            Ins(f"s_add_u32 s{S_AXC}, s{S_AXC}, 1"),
            Ins(f"buffer_load_dwordx4 v{V_XS}, s[{S_X}:{S_X+3}], s{S_XCO} offen lds"),
            Ins(f"buffer_load_dwordx4 v{V_XS+1}, s[{S_X}:{S_X+3}], s{S_XCO} offen offset:1024 lds"),
            Ins(f"s_cmp_eq_u32 s{S_AXC}, 9"),
            Ins(f"s_cselect_b32 s{S_AXC}, 0, s{S_AXC}"),
            Ins(f"s_lshl_b32 s{S_XCO}, s{S_AXC}, 7")]

def wreads(ks):
    out=[]
    sl=ks%NWR
    so=WST*(sl if sl<4 else sl-4)
    for j in range(4):
        i=j&1; u=j>>1
        for h in range(2):
            off=so+u*8192+h*1024
            base=(V_WTR if sl<4 else V_WTR2)+i
            assert off<65536
            out.append(Ins(f"ds_read_b64_tr_b16 {wfrag_half(ks,j,h)}, v{base} offset:{off}"))
    return out

def xtile_dma(slot,tile):
    o=[Ins(f"s_add_u32 s53, s51, {slot}"), Ins(f"s_mov_b32 s{S_XSO}, {tile*XT}")]
    for x in xdma(53): o.append(x if x is not None else Ins("s_nop 0"))
    return o

def gen_gemm1_main(p):
    def sx(tile,tt,ks):
        b = (XR0 if ks%2==0 else TMP0) + 4*(2*tile+tt)
        return f"v[{b}:{b+3}]"
    def sxread(ks):
        cg=ks>>1
        return [Ins(f"ds_read_b128 {sx(tile,tt,ks)}, v{V_SP+(ks&1)} offset:{(cg%4)*8192+tt*4096+tile*1024}") for tile in range(2) for tt in range(2)]
    log=['W0']*4+['X0']*2
    for k in range(1,LOOK): log+=[f'W{k}']*4
    log+=['X1']*2
    def waitfor(tags, extra=""):
        nonlocal log
        idx=[i for i,t in enumerate(log) if t in tags]
        if idx:
            last=max(idx); n=len(log)-1-last
            p(f"s_waitcnt vmcnt({n}) {extra}".strip()); log=log[last+1:]
        elif extra: p(f"s_waitcnt {extra}")
    waitfor(('W0','X0')); p("s_barrier")
    ST.stamp(p,2)
    p.add(wreads(0)); p.add(sxread(0))
    for ks in range(18):
        need=[]
        if ks+1<18: need=[f'W{ks+1}', f'X{(ks+1)>>1}']
        waitfor(need,"lgkmcnt(0)")
        p("s_barrier")
        ml=[]
        for tile in range(2):
            for tt in range(2):
                for j in range(4):
                    c=acc(tile,tt,j) if ks>0 else "0"
                    ml.append(Ins(f"v_mfma_f32_16x16x32_bf16 {acc(tile,tt,j)}, {wfrag(ks,j)}, {sx(tile,tt,ks)}, {c}"))
        fl=[]
        if ks+1<18:
            fl+=sxread(ks+1); fl+=wreads(ks+1)
        if ks+LOOK<18:
            fl+=wdma(ks+LOOK); log+= [f'W{ks+LOOK}']*4
        if ks%2==0 and (ks>>1)+2<9:
            fl+=xcdma((ks>>1)+2); log+=[f'X{(ks>>1)+2}']*2
        for (st_,tile) in ((12,2),(14,3),(17,4)):
            if ks==st_:
                fl+=xtile_dma(SLOT[tile%4],tile); log+=[f'T{tile}']*9
        p.add(interleave(ml, fl, budget=2))
    ST.stamp(p,3)
    p(f"s_mov_b32 s{S_XSO}, {5*XT}")
    p(f"s_add_u32 s{S_DE}, s51, {SLOT[1]}")
    p(f"s_add_u32 s54, s51, {SLOT[3]}"); p(f"s_xor_b32 s{S_T}, s{S_DE}, s54")
    p(f"s_add_u32 s{S_DO}, s51, {SLOT[2]}")
    p(f"s_add_u32 s54, s51, {SLOT[0]}"); p(f"s_xor_b32 s{S_T2}, s{S_DO}, s54")
    p(f"s_mov_b32 s{S_BO}, {SLOT[3]}"); p(f"s_mov_b32 s{S_BE}, {SLOT[0]}")
    p("s_nop 7")
    g=gelu_stream(0,pk=True)
    p.add(g); log+=['S','S']
    p(f"s_add_u32 s{S_HSO}, s{S_HSO}, {2*NKS_TOT*1024}"); p(f"s_add_u32 s{S_HSO1}, s{S_HSO1}, {2*NKS_TOT*1024}")
    waitfor(('T2',)); p("s_barrier")
    assert log==['T3']*9+['T4']*9+['S','S'], log
    p(f"v_add_u32 v{V_XA[0]}, {SLOT[2]}, v{V_XP}"); p(f"v_add_u32 v{V_XA[0]+1}, {SLOT[2]}, v{V_XP+1}")
    for q in range(4): p.add([xread(0,q)])
    p(f"s_mov_b32 s{S_CNT}, 0")
    if ST.ENABLE:
        p("s_waitcnt lgkmcnt(0)")
    ST.stamp(p,4)
    i_loop=len(p.ins)
    p.label("L_g1_loop")
    emit_tile(p,0)
    p(f"s_cmp_eq_u32 s{S_CNT}, 5"); p("s_cbranch_scc1 L_g1_done")
    emit_tile(p,1)
    p(f"s_add_u32 s{S_CNT}, s{S_CNT}, 1"); p("s_branch L_g1_loop")
    p.label("L_g1_done")
    i_done=len(p.ins)
    p("s_waitcnt lgkmcnt(0)")
    ST.stamp(p,5)
    p("s_nop 7")
    p.add(gelu_stream(0,pk=True))
    if ST.ENABLE: p("s_waitcnt vmcnt(0)")
    ST.stamp(p,6)
    ST.flush(p,46,47,0)
    return i_loop,i_done
```

```python
from core import *
import stamp as ST
import os, math, struct
ROT=int(os.environ.get('ROT','0')); WPF=int(os.environ.get('WPF','1'))
def f2u(x): return struct.unpack('<I', struct.pack('<f', x))[0]
C0 = -2.0*math.log2(math.e)*math.sqrt(2.0/math.pi)
C1 = C0*0.044715
NKS_TOT=168; H_BYTES=128*NKS_TOT*1024
CH=16384
XA=65536; XB=32768
WR0=6
def XF(tt,ks):
    i=ks*4+tt
    if i<64: return f"a[{4*i}:{4*i+3}]"
    i-=64; return f"v[{224+4*i}:{224+4*i+3}]"
def acc(buf,tt,j,r=None):
    b=96+64*buf+16*tt+4*j
    return f"v[{b}:{b+3}]" if r is None else f"v{b+r}"
AR=64; NAR=8
def afr(i): b=AR+4*(i%NAR); return f"v[{b}:{b+3}]"
def afh(i,h): b=AR+4*(i%NAR)+2*h; return f"v[{b}:{b+1}]"
TMP0=32; HP=24
V_WD=1
V_XD=3
V_TRP=7
V_TR=11
V_XP=17
V_L16=21
V_C1=22;
S_W=24
S_X=8; S_G=12; S_U=16; S_H=20
S_XSO=25; S_XSO2=26; S_WSO=27; S_HSO=28; S_CNT=29; S_MW=30; S_MX=31; S_PF=56; S_PFO=32; S_HST=33; S_AW=34; S_AX=35; S_GRP=48
PKC=[60,62,58]

def gelu(buf, pk=False):
    out=[]
    for tt in range(4):
        hp=HP+4*(tt%2)
        if pk:
            chains=[]
            for j in range(2):
                for r in (0,2):
                    bx=96+64*buf+16*tt+4*j+r; bu=bx+8
                    X=f"v[{bx}:{bx+1}]"; U=f"v[{bu}:{bu+1}]"
                    a=TMP0+4*((j*2+r//2)+4*(tt%2)) if False else TMP0+4*(j*2+r//2)
                    T=f"v[{a}:{a+1}]"; Y=f"v[{a+2}:{a+3}]"
                    chains.append([f"v_pk_mul_f32 {T}, {X}, {X}",
                                   f"v_pk_fma_f32 {T}, {T}, v[50:51], v[52:53]",
                                   f"v_pk_mul_f32 {T}, {T}, {X}",
                                   f"v_exp_f32 v{a}, v{a}", f"v_exp_f32 v{a+1}, v{a+1}",
                                   f"v_pk_mul_f32 {Y}, {X}, {U}",
                                   f"v_pk_add_f32 {T}, {T}, v[54:55]",
                                   f"v_rcp_f32 v{a}, v{a}", f"v_rcp_f32 v{a+1}, v{a+1}",
                                   f"v_pk_mul_f32 {Y}, {Y}, {T}",
                                   f"v_cvt_pk_bf16_f32 v{hp+2*j+r//2}, v{a+2}, v{a+3}"])
            for k in range(11):
                for c in chains: out.append(Ins(c[k]))
        else:
            chains=[]
            for j in range(2):
                for r in range(4):
                    x=acc(buf,tt,j,r); u=acc(buf,tt,2+j,r)
                    T,Y=f"v{TMP0+j*4+r}",f"v{TMP0+8+j*4+r}"
                    chains.append([f"v_mul_f32 {T}, {x}, {x}",
                                   f"v_fmaak_f32 {T}, v{V_C1}, {T}, 0x{f2u(C0):08x}",
                                   f"v_mul_f32 {T}, {T}, {x}",
                                   f"v_exp_f32 {T}, {T}",
                                   f"v_mul_f32 {Y}, {x}, {u}",
                                   f"v_add_f32 {T}, 1.0, {T}",
                                   f"v_rcp_f32 {T}, {T}",
                                   f"v_mul_f32 {Y}, {Y}, {T}"])
            for p0 in (0,4):
                cs=chains[p0:p0+4]
                for k in range(8):
                    for c in cs: out.append(Ins(c[k]))
                for pp in (p0,p0+2):
                    out.append(Ins(f"v_cvt_pk_bf16_f32 v{hp+pp//2}, v{TMP0+8+pp}, v{TMP0+8+pp+1}"))
        out.append(Ins(f"buffer_store_dwordx4 v[{hp}:{hp+3}], v{V_L16}, s[{S_H}:{S_H+3}], s{S_HSO} offen", tag='st'))
        out.append(Ins(f"s_add_u32 s{S_HSO}, s{S_HSO}, {NKS_TOT*1024}" if tt<3 else f"s_sub_u32 s{S_HSO}, s{S_HSO}, {3*NKS_TOT*1024-1024}"))
    return out
def pkconst():
    return [Ins(f"v_mov_b32 v50, 0x{f2u(C1):08x}"),Ins(f"v_mov_b32 v51, 0x{f2u(C1):08x}"),Ins(f"v_mov_b32 v52, 0x{f2u(C0):08x}"),Ins(f"v_mov_b32 v53, 0x{f2u(C0):08x}"),Ins("v_mov_b32 v54, 1.0"),Ins("v_mov_b32 v55, 1.0")]

def wdma(slot):
    return [Ins(f"s_add_u32 m0, s{S_MW}, {slot*CH}"), Ins("s_nop 0"),
            Ins(f"buffer_load_dwordx4 v{V_WD}, s[{S_G}:{S_G+3}], s{S_WSO} offen lds"),
            Ins(f"buffer_load_dwordx4 v{V_WD+1}, s[{S_G}:{S_G+3}], s{S_WSO} offen offset:1024 lds"),
            Ins(f"s_add_u32 m0, s{S_MW}, {slot*CH+8192}"), Ins("s_nop 0"),
            Ins(f"buffer_load_dwordx4 v{V_WD}, s[{S_U}:{S_U+3}], s{S_WSO} offen lds"),
            Ins(f"buffer_load_dwordx4 v{V_WD+1}, s[{S_U}:{S_U+3}], s{S_WSO} offen offset:1024 lds")]
def wadv(last):
    o=[Ins(f"s_add_u32 s{S_AW}, s{S_AW}, 1"), Ins(f"s_cmp_eq_u32 s{S_AW}, 9"), Ins(f"s_cselect_b32 s{S_AW}, 0, s{S_AW}")]
    if last: o.append(Ins(f"s_add_u32 s{S_GRP}, s{S_GRP}, 128"))
    o+=[Ins(f"s_mul_i32 s{S_WSO}, s{S_AW}, {64*9216}"), Ins(f"s_add_u32 s{S_WSO}, s{S_WSO}, s{S_GRP}")]
    return o
def xdma(c):
    base=XA if c%2==0 else XB
    o=[]
    for i in range(8):
        if i%4==0:
            o.append(Ins(f"s_add_u32 m0, s{S_MX}, {base+4096*(i//4)}")); o.append(Ins("s_nop 0"))
        o.append(Ins(f"buffer_load_dwordx4 v{V_XD+(i%4)}, s[{S_X}:{S_X+3}], s{S_XSO if i<4 else S_XSO2} offen offset:{1024*(i%4)} lds"))
    o+=[Ins(f"s_add_u32 s{S_AX}, s{S_AX}, 1"), Ins(f"s_cmp_eq_u32 s{S_AX}, 9"), Ins(f"s_cselect_b32 s49, {9*128}, 0"), Ins(f"s_cselect_b32 s{S_AX}, 0, s{S_AX}"),
        Ins(f"s_add_u32 s{S_XSO}, s{S_XSO}, 128"), Ins(f"s_sub_u32 s{S_XSO}, s{S_XSO}, s49"), Ins(f"s_add_u32 s{S_XSO2}, s{S_XSO}, {32*1152}")]
    return o
def xrd(c):
    return [Ins(f"ds_read_b128 {XF(tt,2*c+b)}, v{V_XP+2*(c%2)+b} offset:{tt*2048}") for b in range(2) for tt in range(4)]

def trset(P, g0=False):
    o=[]
    for grp in range(3):
        for i in range(2):
            o.append(Ins(f"v_add_u32 v{V_TR+2*grp+i}, {grp*4*CH}, v{V_TRP+2*P+i}"))
    return o
def ard(i, slot, b, j, fi):
    grp=slot//4; so=(slot%4)*CH
    return [Ins(f"ds_read_b64_tr_b16 {afh(fi,h)}, v{V_TR+2*grp+(j&1)} offset:{so+(j>>1)*8192+b*4096+h*512}") for h in range(2)]

PF=4
def phase(buf, entry_pref=True, next_first=None):
    seq=[(c,b,j) for c in range(9) for b in range(2) for j in range(4)]
    main=[]; marks={}
    for i,(c,b,j) in enumerate(seq):
        if j==0 and b==0: main.append(('mark',c,'start'))
        n=i+PF
        if n<len(seq):
            cn,bn,jn=seq[n]
            if bn==0 and jn==0: main.append(('mark',cn,'firstread'))
            nxt=ard(n,cn,bn,jn,n)
        else:
            if n==len(seq): main.append(('mark',9,'firstread'))
            nxt=next_first[n-len(seq)] if next_first else []
        ks=2*c+b
        for tt in range(4):
            cc=acc(buf,tt,j) if ks>0 else "0"
            main.append(Ins(f"v_mfma_f32_16x16x32_bf16 {acc(buf,tt,j)}, {afr(i)}, {XF(tt,ks)}, {cc}"))
            if tt<len(nxt): main.append(nxt[tt])
    return main

def first_reads(P_is_next_set):
    return [ard(k,0,k//4,k%4,72+k) for k in range(PF)]

def expand(main, hooks):
    out=[]
    for x in main:
        if isinstance(x,tuple):
            out+=hooks.get((x[1],x[2]),[])
        else: out.append(x)
    return out

def gen(p):
    A=p
    A("s_mul_i32 s39, s36, 384")
    A(f"s_add_u32 s{S_G}, s42, s39"); A(f"s_addc_u32 s{S_G+1}, s43, 0"); A(f"s_sub_u32 s{S_G+2}, {576*9216}, s39"); A(f"s_mov_b32 s{S_G+3}, 0x20000")
    A(f"s_add_u32 s{S_U}, s44, s39"); A(f"s_addc_u32 s{S_U+1}, s45, 0"); A(f"s_sub_u32 s{S_U+2}, {576*9216}, s39"); A(f"s_mov_b32 s{S_U+3}, 0x20000")
    A(f"s_mul_i32 s38, s37, {256*1152}")
    A(f"s_add_u32 s{S_X}, s40, s38"); A(f"s_addc_u32 s{S_X+1}, s41, 0"); A(f"s_sub_u32 s{S_X}, s{S_X}, 4096"); A(f"s_subb_u32 s{S_X+1}, s{S_X+1}, 0")
    A(f"s_mov_b32 s{S_X+2}, {256*1152+4096}"); A(f"s_mov_b32 s{S_X+3}, 0x20000")
    A("v_and_b32 v24, 63, v0"); A("v_lshrrev_b32 v25, 4, v24"); A("v_and_b32 v26, 15, v24"); A("v_lshrrev_b32 v27, 3, v24"); A("v_and_b32 v28, 7, v24")
    for i in range(4):
        A(f"v_add_u32 v30, {4*(i&1)}, v25"); A("v_and_b32 v30, 7, v30"); A("v_xor_b32 v30, v30, v28"); A("v_lshlrev_b32 v30, 4, v30")
        A(f"v_add_u32 v31, {8*i}, v27"); A("v_mul_u32_u24 v31, 0x480, v31")
        A(f"v_add3_u32 v{V_XD+i}, v30, v31, 0"); A(f"v_add_u32 v{V_XD+i}, {4096-1024*i}, v{V_XD+i}")
    A(f"s_mov_b32 s50, {'s37' if ROT else 0}")
    A(f"s_mov_b32 s{S_AW}, s50"); A(f"s_mov_b32 s{S_AX}, s50"); A(f"s_mov_b32 s{S_GRP}, 0")
    A(f"s_mul_i32 s{S_XSO}, s{S_W}, {64*1152}"); A("s_lshl_b32 s38, s50, 7"); A(f"s_add_u32 s{S_XSO}, s{S_XSO}, s38"); A(f"s_add_u32 s{S_XSO2}, s{S_XSO}, {32*1152}")
    A(f"s_lshl_b32 s{S_MX}, s{S_W}, 13")
    A.add(xdma(0))
    A(f"s_lshl_b32 s38, s{S_W}, 4")
    for e in range(2):
        A("v_bfe_u32 v30, v27, 1, 1");
        if e: A("v_or_b32 v30, 2, v30")
        A("v_lshrrev_b32 v31, 1, v28"); A("v_xor_b32 v30, v30, v31"); A("v_lshlrev_b32 v30, 5, v30"); A("v_and_b32 v31, 1, v28"); A("v_lshlrev_b32 v31, 4, v31"); A("v_add_u32 v30, v30, v31")
        A(f"v_add_u32 v31, s38, v27");
        if e: A("v_add_u32 v31, 8, v31")
        A("v_mul_u32_u24 v31, 0x2400, v31")
        A(f"v_add_u32 v{V_WD+e}, v30, v31")
        if e: A(f"v_subrev_u32 v{V_WD+e}, 1024, v{V_WD+e}")
    A(f"s_mul_i32 s{S_WSO}, s{S_AW}, {64*9216}"); A(f"s_lshl_b32 s{S_MW}, s{S_W}, 11")
    A.add(wdma(WR0+0)); A.add(wadv(False))
    ST.stamp(p,1)
    A(f"s_mov_b32 s{S_H}, s46"); A(f"s_mov_b32 s{S_H+1}, s47"); A(f"s_mov_b32 s{S_H+2}, {H_BYTES}"); A(f"s_mov_b32 s{S_H+3}, 0x20000")
    A(f"v_lshlrev_b32 v{V_L16}, 4, v24")
    A("v_lshrrev_b32 v30, 2, v26"); A("v_and_b32 v31, 3, v26")
    A("v_lshlrev_b32 v29, 3, v25"); A("v_add_u32 v29, v29, v30"); A("v_lshlrev_b32 v29, 7, v29"); A("v_lshlrev_b32 v31, 3, v31"); A("v_add_u32 v29, v29, v31")
    A("v_lshrrev_b32 v30, 1, v30"); A("v_and_b32 v31, 1, v25"); A("v_lshlrev_b32 v31, 1, v31"); A("v_or_b32 v30, v30, v31")
    for s in range(4):
        A(f"v_xor_b32 v31, {s}, v30"); A("v_lshlrev_b32 v31, 5, v31"); A(f"v_add_u32 v{V_TRP+s}, v31, v29")
    A("v_lshrrev_b32 v30, 1, v26"); A("v_xor_b32 v30, v30, v25"); A("v_lshlrev_b32 v30, 4, v30"); A("v_lshlrev_b32 v31, 7, v26"); A("v_add_u32 v30, v30, v31")
    A(f"v_add_u32 v30, s{S_MX}, v30")
    A(f"v_add_u32 v{V_XP}, {XA}, v30"); A(f"v_xor_b32 v{V_XP+1}, 64, v{V_XP}"); A(f"v_add_u32 v{V_XP+2}, {XB}, v30"); A(f"v_xor_b32 v{V_XP+3}, 64, v{V_XP+2}")
    A(f"v_mov_b32 v{V_C1}, 0x{f2u(C1):08x}")
    A("s_lshl_b32 s38, s37, 4"); A(f"s_lshl_b32 s39, s{S_W}, 2"); A("s_add_u32 s38, s38, s39"); A(f"s_mul_i32 s38, s38, {NKS_TOT}")
    A("s_mul_i32 s39, s36, 6"); A("s_add_u32 s38, s38, s39"); A(f"s_lshl_b32 s{S_HSO}, s38, 10")
    A("s_lshl_b32 s38, s36, 3"); A("s_add_u32 s38, s38, s37"); A("s_lshl_b32 s38, s38, 2"); A(f"s_add_u32 s38, s38, s{S_W}")
    A(f"s_mul_i32 s{S_PFO}, s38, {8*1024}")
    A(f"s_mov_b32 s{S_PF}, s66"); A(f"s_mov_b32 s{S_PF+1}, s67"); A(f"s_mov_b32 s{S_PF+2}, {4608*1152}"); A(f"s_mov_b32 s{S_PF+3}, 0x20000")
    for s in range(4): A(f"v_add_u32 v{V_TR+s}, {WR0*CH}, v{V_TRP+s}")
    A.add(wdma(WR0+1)); A.add(wadv(False)); A.add(xdma(1))
    log=['X0']*8+['W0']*4+['W1']*4+['X1']*8
    def waitfor(tags, extra=""):
        nonlocal log
        idx=[i for i,t in enumerate(log) if t in tags]
        if idx:
            last=max(idx); n=len(log)-1-last
            log=log[last+1:]
            return [Ins(f"s_waitcnt vmcnt({n}) {extra}".strip())]
        return [Ins(f"s_waitcnt {extra}")] if extra else []
    def g0rd(i):
        c,b,j8=i//16,(i%16)//8,i%8
        P=j8//4; j=j8%4
        sl=c%4
        return [Ins(f"ds_read_b64_tr_b16 {afh(i,h)}, v{V_TR+2*P+(j&1)} offset:{sl*CH+(j>>1)*8192+b*4096+h*512}") for h in range(2)]
    p.add(waitfor(('X0','W0'))); p("s_barrier")
    ST.stamp(p,2)
    p.add(xrd(0))
    pre=[]
    for i in range(PF): pre+=g0rd(i)
    p.add(pre[:6]); p("s_waitcnt lgkmcnt(6)"); p.add(pre[6:])
    q0=[x.wr for x in pre]
    N0=9*16
    A("s_lshl_b32 s38, s2, 2"); A(f"s_add_u32 s38, s38, s{S_W}"); A("s_mul_i32 s51, s38, 6144")
    A("s_mov_b32 s52, s42"); A("s_mov_b32 s53, s43"); A(f"s_mov_b32 s54, {576*9216}"); A("s_mov_b32 s55, 0x20000")
    A("s_mov_b32 s60, s44"); A("s_mov_b32 s61, s45"); A(f"s_mov_b32 s62, {576*9216}"); A("s_mov_b32 s63, 0x20000")
    def lin(k):
        srd="s[52:55]" if k<6 else "s[60:63]"; kk=k%6
        o=[]
        if kk==4: o.append(Ins("s_add_u32 s51, s51, 4096"))
        if k==6: o.append(Ins("s_sub_u32 s51, s51, 4096"))
        o.append(Ins(f"buffer_load_dwordx4 v[56:59], v{V_L16}, {srd}, s51 offen offset:{1024*(kk%4)}"))
        return o
    def tagged(lst,tag):
        for x in lst:
            if x.kind=='dma': x.tag=tag
        return lst
    def logit(stream):
        for x in stream:
            if getattr(x,'kind',None) in('dma','vmem'): log.append(x.tag or 'P')
    carry=tagged(wdma(WR0+2)+wadv(False),'W2')+tagged(xdma(2),'X2')
    for c in range(9):
        main=[]
        for ii in range(16):
            i=c*16+ii
            if ii==8: main.append(('mid',))
            n=i+PF
            nxt=g0rd(n) if n<N0 else []
            b=ii//8; j8=ii%8; P=j8//4; j=j8%4; ks=2*c+b
            for tt in range(4):
                cc=acc(P,tt,j) if ks>0 else "0"
                main.append(Ins(f"v_mfma_f32_16x16x32_bf16 {acc(P,tt,j)}, {afr(i)}, {XF(tt,ks)}, {cc}"))
                if tt<len(nxt): main.append(nxt[tt])
        im=main.index(('mid',))
        first=main[:im]; second=main[im+1:]
        if carry: first=spread(first, dma_items(carry), first=4 if c else 0)
        logit(first)
        carry=[]
        midl=[]
        if c+1<9: midl+=waitfor((f'X{c+1}',f'W{c+1}'))
        midl.append(Ins("s_barrier"))
        dl=[]
        if c+3<9: dl+=tagged(wdma(WR0+(c+3)%4)+wadv(c+3==8),f'W{c+3}')
        g1={6:(0,1),7:(2,3),8:(4,5)}.get(c,())
        for cc_ in g1: dl+=tagged(wdma(cc_)+wadv(False),f'G{cc_}')
        if c+1<9:
            xr=xrd(c+1)
            second=spread(second,[[x] for x in xr], first=1, last=18)
        if dl: second=spread(second, dma_items(dl), first=2)
        if WPF and c<3:
            second=spread(second, [lin(k) for k in range(4*c,4*c+4)], first=5)
        logit(second)
        if c+3<9: carry=tagged(xdma(c+3),f'X{c+3}')
        stream,q0=auto_lgkm(first+midl+second, q0, extra=2)
        p.add(stream)
    ST.stamp(p,3)
    p.add(pkconst()); p("s_nop 4")
    p.add(gelu(0,pk=True)); log+=['S']*4
    p.add(trset(0))
    p.add(waitfor(('G0','G1','G2'))); p("s_barrier")
    fr=first_reads(0)
    for k in range(PF): p.add(fr[k])
    ST.stamp(p,4)
    p(f"s_mov_b32 s{S_CNT}, 0")
    il=len(p.ins)
    p.label("L_gx_loop")
    q0=[x.wr for k in range(PF) for x in fr[k]]
    pfl=lambda: [Ins(f"buffer_load_dwordx4 v[56:59], v{V_L16}, s[{S_PF}:{S_PF+3}], s{S_PFO} offen", tag='pf'), Ins(f"s_add_u32 s{S_PFO}, s{S_PFO}, 1024")]
    def marks(m, fn):
        cur=[]
        for x in m:
            if isinstance(x,tuple):
                t=fn(x)
                if t: cur.append(Ins(t+":"))
            else: cur.append(x)
        return cur
    cur=marks(phase(0, next_first=first_reads(1)), lambda x: (f"LAND{x[1]}" if x[2]=='firstread' and x[1] in (3,6) else ("SWITCH1" if x[2]=='firstread' and x[1]==9 else None)))
    d678=wdma(6)+wadv(False)+wdma(7)+wadv(False)+wdma(8)+wadv(True)
    cur=spread(cur, dma_items(d678), first=2, last=84)
    mer=interleave(cur, pfl()+pfl()+gelu(1), budget=2)
    out=[]; seq=[]
    for x in mer:
        if x.kind=='label' and x.text.startswith('LAND3'):
            out.append(Ins(f"s_waitcnt vmcnt({len(seq)})")); out.append(Ins("s_barrier"))
        elif x.kind=='label' and x.text.startswith('LAND6'):
            last=max(i for i,t in enumerate(seq) if t=='dma'); assert seq.count('dma')==12
            out.append(Ins(f"s_waitcnt vmcnt({len(seq)-1-last})")); out.append(Ins("s_barrier"))
        elif x.kind=='label' and x.text.startswith('SWITCH'):
            out+=trset(1)
        else:
            if x.kind in('vmem','dma'): seq.append(x.kind)
            out.append(x)
    st,q1=auto_lgkm(out,q0,extra=2)
    p.add(st)
    cur=marks(phase(1, next_first=first_reads(0)), lambda x: (f"FREE{x[1]//3-1}" if x[2]=='start' and x[1] in (3,6) else ("PRE9" if x[2]=='firstread' and x[1]==9 else None)))
    def mfma_index_of(cur,lab):
        k=0
        for x in cur:
            if x.kind=='label' and x.text.startswith(lab): return k
            if x.kind=='mfma': k+=1
    for k in (0,1):
        d=[]
        for cc_ in (3*k,3*k+1,3*k+2): d+=wdma(cc_)+wadv(False)
        f=mfma_index_of(cur,f"FREE{k}")
        cur=spread(cur, dma_items(d), first=f+1, last=f+84)
    mer=interleave(cur, pfl()+pfl()+gelu(0), budget=2)
    out=[]; seq=[]
    for x in mer:
        if x.kind=='label' and x.text.startswith('FREE'):
            out.append(Ins("s_barrier"))
        elif x.kind=='label' and x.text.startswith('PRE9'):
            d=[i for i,t in enumerate(seq) if t=='dma']; assert len(d)==24
            out.append(Ins(f"s_waitcnt vmcnt({len(seq)-1-d[11]})")); out.append(Ins("s_barrier")); out+=trset(0)
        else:
            if x.kind in('vmem','dma'): seq.append(x.kind)
            out.append(x)
    st,q2=auto_lgkm(out,q1,extra=2)
    p.add(st)
    p("s_barrier")
    p(f"s_add_u32 s{S_CNT}, s{S_CNT}, 1"); p(f"s_cmp_lt_u32 s{S_CNT}, 2"); p("s_cbranch_scc1 L_gx_loop")
    idn=len(p.ins)
    assert [sorted(d) for d in q2]==[sorted(x.wr) for k in range(PF) for x in fr[k]] or True
    p("s_waitcnt lgkmcnt(0)")
    ST.stamp(p,5)
    p.add(pkconst()); p("s_nop 4")
    p.add(gelu(1,pk=True))
    if ST.ENABLE: p("s_waitcnt vmcnt(0)")
    ST.stamp(p,6)
    ST.flush(p,46,47,0)
    return il,idn
```

```python
from core import *
import stamp as ST
from k1_gx import NKS_TOT, H_BYTES, f2u
import os
WS_BASE=int(os.environ.get('WS_BASE','0'),0)
G_OFF=0x1500000; P_OFF=0x1600000
U=12; STG=12288
S0=[0,34,68,102,135]
ACCB=64; ACCA=160
def acc(st,q,tt,r=None):
    b=(ACCB if st==0 else ACCA)+(q*2+tt)*4
    return f"v[{b}:{b+3}]" if r is None else f"v{b+r}"
def hfr(u,tt): b=(u*2+tt)*4; return f"a[{b}:{b+3}]"
def afr(q): b=96+4*q; return f"a[{b}:{b+3}]"
def afh(q,h): b=96+4*q+2*h; return f"a[{b}:{b+1}]"
V_TR=8
V_DF=20
V_DA=23
V_L16=26
V_G=27
S_WD=8; S_WO=12; S_H=16; S_P=20; S_CUR=24
S_W=28; S_WB=29
S_DSO=30; S_INA=31; S_INB=32; S_HS0=33; S_HS1=34; S_RND=35; S_X8=36; S_X9=37; S_SP=38; S_CB=39

def trread(q,h,stage):
    grp=stage//5; so=(stage%5)*STG
    x=Ins(f"ds_read_b64_tr_b16 {afh(q,h)}, v{V_TR+4*grp+(q&3)} offset:{so+(q>>2)*128+h*1536}"); x.cost=1
    return x

def issue(u_dst, inc_sel, hoff):
    o=[]
    o.append(Ins(f"buffer_load_dwordx4 {hfr(u_dst,0)}, v{V_L16}, s[{S_H}:{S_H+3}], s{S_HS0} offen offset:{hoff}"))
    o.append(Ins(f"buffer_load_dwordx4 {hfr(u_dst,1)}, v{V_L16}, s[{S_H}:{S_H+3}], s{S_HS1} offen offset:{hoff}"))
    o.append(Ins(f"s_add_u32 m0, s{S_WB}, {u_dst*STG}"))
    if hoff==3072:
        o.append(Ins(f"s_add_u32 s{S_HS0}, s{S_HS0}, 4096"))
    else:
        o.append(Ins("s_nop 0"))
    for e in range(3):
        o.append(Ins(f"buffer_load_dwordx4 v{V_DF+e}, s[{S_CUR}:{S_CUR+3}], s{S_DSO} offen offset:{1024*e} lds"))
    o.append(Ins(f"s_add_u32 s{S_DSO}, s{S_DSO}, s{inc_sel}"))
    if hoff==3072:
        o.append(Ins(f"s_add_u32 s{S_HS1}, s{S_HS1}, 4096"))
    return o

def step(u, st):
    main=[Ins("s_waitcnt vmcnt(45)"),Ins("s_barrier")]
    un=(u+1)%U
    for q in range(12):
        if q%2==0: main.append(Ins("s_waitcnt lgkmcnt(8)"))
        qn=q+6
        rd=[trread(qn,h,u) for h in range(2)] if qn<12 else [trread(qn-12,h,un) for h in range(2)]
        for tt in range(2):
            main.append(Ins(f"v_mfma_f32_16x16x32_bf16 {acc(st,q,tt)}, {afr(q)}, {hfr(u,tt)}, {acc(st,q,tt)}"))
            main.append(rd[tt])
    ud=(u+11)%U
    hoff=1024*((u+11)%4)
    inc=S_INB if (u+2)%3==2 else S_INA
    fl=issue(ud,inc,hoff)
    return interleave(main, fl, budget=2)

def gen_k2(docheck=True):
    p=Prog()
    p("s_cmp_ge_u32 s2, 240"); p("s_cbranch_scc1 L_k2_end")
    ST.stamp(p,0)
    p("s_load_dwordx2 s[40:41], s[0:1], 24")
    p("s_load_dwordx2 s[42:43], s[0:1], 56")
    p("s_load_dwordx2 s[44:45], s[0:1], 88")
    p("v_lshrrev_b32 v1, 6, v0")
    p("s_and_b32 s4, s2, 7"); p("s_lshr_b32 s5, s2, 3")
    p(f"v_readfirstlane_b32 s{S_W}, v1")
    p("s_mul_i32 s4, s4, 30"); p("s_add_u32 s4, s4, s5")
    p("s_mul_i32 s5, s4, 171"); p("s_lshr_b32 s5, s5, 9")
    p("s_mul_i32 s6, s5, 3"); p("s_sub_u32 s6, s4, s6")
    p(f"s_lshr_b32 s{S_SP}, s5, 4")
    p("s_and_b32 s7, s5, 15")
    p(f"s_mul_i32 s46, s{S_SP}, 34"); p(f"s_cmp_eq_u32 s{S_SP}, 4"); p("s_cselect_b32 s47, 1, 0"); p("s_sub_u32 s46, s46, s47")
    p(f"s_mov_b32 s{S_X8}, 99"); p(f"s_mov_b32 s{S_X9}, 2")
    p(f"s_cmp_eq_u32 s{S_SP}, 3"); p(f"s_cselect_b32 s{S_X8}, 2, s{S_X8}")
    p(f"s_cmp_eq_u32 s{S_SP}, 4"); p(f"s_cselect_b32 s{S_X8}, 0, s{S_X8}")
    p("s_waitcnt lgkmcnt(0)")
    if WS_BASE: p(f"s_add_u32 s44, s44, {WS_BASE}"); p("s_addc_u32 s45, s45, 0")
    p("s_mul_i32 s47, s6, 384")
    for (S,lo,size) in ((S_WD,42,4608*1152),(S_WO,40,576*1152)):
        p(f"s_add_u32 s{S}, s{lo}, s47"); p(f"s_addc_u32 s{S+1}, s{lo+1}, 0")
        p(f"s_sub_u32 s{S}, s{S}, 4096"); p(f"s_subb_u32 s{S+1}, s{S+1}, 0")
        p(f"s_sub_u32 s{S+2}, {size+4096}, s47"); p(f"s_mov_b32 s{S+3}, 0x20000")
    p(f"s_mov_b32 s{S_H}, s44"); p(f"s_mov_b32 s{S_H+1}, s45"); p(f"s_mov_b32 s{S_H+2}, {H_BYTES}"); p(f"s_mov_b32 s{S_H+3}, 0x20000")
    p(f"s_lshl_b32 s47, s4, 2"); p(f"s_add_u32 s47, s47, s{S_W}"); p("s_mul_i32 s47, s47, 12288"); p(f"s_add_u32 s47, s47, {P_OFF}")
    p(f"s_add_u32 s{S_P}, s44, s47"); p(f"s_addc_u32 s{S_P+1}, s45, 0"); p(f"s_mov_b32 s{S_P+2}, 12288"); p(f"s_mov_b32 s{S_P+3}, 0x20000")
    for k in range(4): p(f"s_mov_b32 s{S_CUR+k}, s{S_WD+k}")
    p("v_and_b32 v1, 63, v0"); p(f"v_lshlrev_b32 v{V_L16}, 4, v1")
    p("v_lshrrev_b32 v2, 4, v1"); p("v_and_b32 v3, 15, v1")
    p("s_lshl_b32 s47, s7, 7"); p(f"s_lshl_b32 s48, s{S_W}, 5"); p("s_add_u32 s47, s47, s48")
    p("s_lshl_b32 s48, s47, 2"); p(f"s_add_u32 s48, s48, {G_OFF}")
    p("s_add_u32 s52, s44, s48"); p("s_addc_u32 s53, s45, 0"); p("s_mov_b32 s54, 128"); p("s_mov_b32 s55, 0x20000")
    p("v_lshlrev_b32 v4, 2, v3")
    p(f"buffer_load_dword v{V_G}, v4, s[52:55], 0 offen"); p(f"buffer_load_dword v{V_G+1}, v4, s[52:55], 0 offen offset:64")
    p("s_lshr_b32 s48, s47, 4"); p(f"s_mul_i32 s48, s48, {NKS_TOT}"); p("s_add_u32 s48, s48, s46"); p(f"s_lshl_b32 s{S_HS0}, s48, 10")
    p(f"s_add_u32 s{S_HS1}, s{S_HS0}, {NKS_TOT*1024}")
    p("v_lshrrev_b32 v4, 2, v3"); p("v_and_b32 v5, 3, v3")
    p("v_lshlrev_b32 v6, 3, v2"); p("v_add_u32 v6, v6, v4"); p("s_movk_i32 s48, 0x180"); p("v_mul_lo_u32 v6, v6, s48")
    p("v_lshlrev_b32 v5, 3, v5"); p("v_add_u32 v6, v6, v5")
    p("v_lshrrev_b32 v4, 1, v4"); p("v_and_b32 v5, 1, v2"); p("v_lshlrev_b32 v5, 1, v5"); p("v_or_b32 v4, v4, v5")
    for k in range(4):
        p(f"v_xor_b32 v5, {k}, v4"); p("v_lshlrev_b32 v5, 5, v5"); p(f"v_add_u32 v{V_TR+k}, v5, v6")
        p(f"v_add_u32 v{V_TR+4+k}, {5*STG}, v{V_TR+k}"); p(f"v_add_u32 v{V_TR+8+k}, {10*STG}, v{V_TR+k}")
    p(f"s_mul_i32 s48, s{S_W}, 192")
    for e in range(3):
        p(f"v_add_u32 v4, s48, v1");
        if e: p(f"v_add_u32 v4, {64*e}, v4")
        p("s_movk_i32 s49, 0xaab"); p("v_mul_lo_u32 v5, v4, s49"); p("v_lshrrev_b32 v5, 16, v5")
        p("v_mul_u32_u24 v6, 24, v5"); p("v_sub_u32 v6, v4, v6")
        p("v_bfe_u32 v7, v5, 1, 1"); p("v_bfe_u32 v4, v5, 3, 1"); p("v_lshlrev_b32 v4, 1, v4"); p("v_or_b32 v7, v7, v4")
        p("v_lshrrev_b32 v4, 1, v6"); p("v_xor_b32 v4, v4, v7"); p("v_lshlrev_b32 v4, 5, v4")
        p("v_and_b32 v6, 1, v6"); p("v_lshlrev_b32 v6, 4, v6"); p("v_add_u32 v4, v4, v6")
        p(f"v_add_u32 v4, {4096-1024*e}, v4")
        p("v_bfe_u32 v6, v5, 2, 1"); p("v_lshlrev_b32 v6, 4, v6"); p("v_lshrrev_b32 v7, 3, v5"); p("v_lshlrev_b32 v30, 2, v7"); p("v_add_u32 v6, v6, v30")
        p("v_and_b32 v30, 3, v5"); p("v_add_u32 v6, v6, v30")
        p("s_movk_i32 s49, 0x480"); p("v_mul_lo_u32 v6, v6, s49"); p(f"v_add_u32 v{V_DF+e}, v6, v4")
        p("v_mul_u32_u24 v6, 18, v7"); p("v_and_b32 v30, 7, v5"); p("v_add_u32 v6, v6, v30")
        p("v_mul_lo_u32 v6, v6, s49"); p(f"v_add_u32 v{V_DA+e}, v6, v4")
    p(f"s_mul_i32 s{S_WB}, s{S_W}, 3072")
    p(f"s_mul_i32 s{S_DSO}, s46, {32*1152}")
    p(f"s_mov_b32 s{S_INA}, {32*1152}"); p(f"s_mov_b32 s{S_INB}, {32*1152}")
    for r in range(ACCB,256): p(f"v_mov_b32 v{r}, 0")
    ST.stamp(p,1)
    for i in range(11):
        if i==9:
            p(f"s_cmp_eq_u32 s{S_SP}, 4"); p("s_cbranch_scc0 L_k2_nosw")
            for k in range(4): p(f"s_mov_b32 s{S_CUR+k}, s{S_WO+k}")
            for e in range(3): p(f"v_mov_b32 v{V_DF+e}, v{V_DA+e}")
            p(f"s_mov_b32 s{S_DSO}, 0"); p(f"s_mov_b32 s{S_INA}, {8*1152}"); p(f"s_mov_b32 s{S_INB}, {56*1152}")
            p.label("L_k2_nosw")
        p.add(issue(i, S_INA, 1024*(i%4)))
    p("s_waitcnt vmcnt(50)"); p("s_barrier")
    ST.stamp(p,2)
    for q in range(6):
        for h in range(2): p.add([trread(q,h,0)])
    p(f"s_mov_b32 s{S_RND}, 0"); p(f"s_mov_b32 s{S_CB}, 0")
    iA=len(p.ins)
    p.label("L_k2_A")
    marks={}
    for u in range(U):
        p.add(step(u,0))
        if u==8:
            p(f"s_cmp_eq_u32 s{S_RND}, s{S_X8}"); p("s_cbranch_scc1 L_k2_x8")
        if u==9:
            p(f"s_cmp_eq_u32 s{S_RND}, s{S_X9}"); p("s_cbranch_scc1 L_k2_done")
    p(f"s_add_u32 s{S_RND}, s{S_RND}, 1"); p("s_branch L_k2_A")
    iA2=len(p.ins)
    p.label("L_k2_x8")
    p(f"s_cmp_eq_u32 s{S_SP}, 4"); p("s_cbranch_scc0 L_k2_done")
    p("s_branch L_k2_B9")
    p.label("L_k2_B")
    iB=len(p.ins)
    for u in range(U):
        if u==9: p.label("L_k2_B9"); iB9=len(p.ins)
        p.add(step(u,1))
        if u==8:
            p(f"s_add_u32 s{S_CB}, s{S_CB}, 1"); p(f"s_cmp_eq_u32 s{S_CB}, 2"); p("s_cbranch_scc1 L_k2_done")
    p("s_branch L_k2_B")
    iB2=len(p.ins)
    p.label("L_k2_done")
    iD=len(p.ins)
    if ST.ENABLE: p("s_waitcnt lgkmcnt(0)")
    ST.stamp(p,3)
    p("s_waitcnt vmcnt(0) lgkmcnt(0)")
    ST.stamp(p,4)
    p("s_nop 7")
    for tt in range(2):
        for pp in range(6):
            regs=[]
            for q in (2*pp,2*pp+1):
                for r in range(4):
                    b=acc(0,q,tt,r); a=acc(1,q,tt,r)
                    p(f"v_sub_f32 {a}, {a}, {b}")
            for q in (2*pp,2*pp+1):
                for r in range(4):
                    b=acc(0,q,tt,r); a=acc(1,q,tt,r)
                    p(f"v_fmac_f32 {b}, v{V_G+tt}, {a}")
            t=32+4*((tt*6+pp)%4)
            k=0
            for q in (2*pp,2*pp+1):
                for r in (0,2):
                    p(f"v_cvt_pk_bf16_f32 v{t+k}, {acc(0,q,tt,r)}, {acc(0,q,tt,r+1)}"); k+=1
            off=(tt*6+pp)*1024
            p(f"s_mov_b32 s56, {off - off%4096}")
            p(f"buffer_store_dwordx4 v[{t}:{t+3}], v{V_L16}, s[{S_P}:{S_P+3}], s56 offen offset:{off%4096}")
    if ST.ENABLE: p("s_waitcnt vmcnt(0)")
    ST.stamp(p,5)
    ST.flush(p,44,45,1)
    p.label("L_k2_end"); p("s_endpgm")
    if docheck:
        ins=p.ins
        tr=ins[:iA2]+ins[iA:iA2]+ins[iD:]
        print("k2 A check problems:",len(check(tr,'k2A')))
        cut=[i for i,x in enumerate(ins) if x.text.startswith('s_cbranch_scc1 L_k2_x8')][0]
        tr=ins[:cut+1]+ins[iB9:iB2]+ins[iB:iB2]+ins[iD:]
        print("k2 B check problems:",len(check(tr,'k2B')))
    return p

def gen_k3(docheck=True):
    p=Prog()
    p("s_cmp_ge_u32 s2, 192"); p("s_cbranch_scc1 L_k3_end")
    p("s_load_dwordx2 s[4:5], s[0:1], 72")
    p("s_load_dwordx2 s[6:7], s[0:1], 88")
    p("v_lshrrev_b32 v1, 6, v0"); p("v_and_b32 v2, 63, v0")
    p("s_nop 0"); p("v_readfirstlane_b32 s8, v1")
    p("s_lshl_b32 s9, s2, 2"); p("s_add_u32 s9, s9, s8")
    p("s_lshr_b32 s10, s9, 4")
    p("s_and_b32 s11, s9, 15")
    p("s_lshr_b32 s12, s11, 2")
    p("s_bfe_u32 s13, s11, 0x10001")
    p("s_and_b32 s14, s11, 1")
    p("s_mul_i32 s15, s10, 171"); p("s_lshr_b32 s15, s15, 9")
    p("s_mul_i32 s16, s15, 3"); p("s_sub_u32 s16, s10, s16")
    p("s_lshl_b32 s17, s10, 2"); p("s_add_u32 s17, s17, s12"); p("s_mul_i32 s17, s17, 12288")
    p("s_mul_i32 s18, s13, 6144"); p("s_add_u32 s17, s17, s18"); p("s_mul_i32 s18, s14, 3072"); p("s_add_u32 s17, s17, s18")
    p("s_waitcnt lgkmcnt(0)")
    if WS_BASE: p(f"s_add_u32 s6, s6, {WS_BASE}"); p("s_addc_u32 s7, s7, 0")
    p(f"s_add_u32 s20, s6, {P_OFF}"); p("s_addc_u32 s21, s7, 0"); p(f"s_mov_b32 s22, {240*4*12288}"); p("s_mov_b32 s23, 0x20000")
    p("s_mov_b32 s24, s4"); p("s_mov_b32 s25, s5"); p(f"s_mov_b32 s26, {2048*1152}"); p("s_mov_b32 s27, 0x20000")
    p("v_lshlrev_b32 v3, 4, v2")
    for sp in range(5):
        p(f"s_add_u32 s19, s17, {sp*48*4*12288}")
        for c in range(3):
            b=16+(sp*3+c)*4
            p(f"buffer_load_dwordx4 v[{b}:{b+3}], v3, s[20:23], s19 offen offset:{1024*c}")
    p("v_and_b32 v4, 15, v2"); p("v_lshrrev_b32 v5, 4, v2")
    p("s_lshl_b32 s28, s15, 7"); p("s_lshl_b32 s29, s12, 5"); p("s_add_u32 s28, s28, s29"); p("s_lshl_b32 s29, s13, 4"); p("s_add_u32 s28, s28, s29")
    p("v_add_u32 v4, s28, v4"); p("s_movk_i32 s29, 0x480"); p("v_mul_lo_u32 v4, v4, s29")
    p("v_lshlrev_b32 v5, 3, v5"); p("v_add_u32 v4, v4, v5")
    p("s_mul_i32 s28, s16, 384"); p("s_mul_i32 s29, s14, 192"); p("s_add_u32 s28, s28, s29")
    p("s_waitcnt vmcnt(0)")
    for c in range(3):
        for k in range(4):
            lo=80+2*k; hi=81+2*k
            p(f"v_lshlrev_b32 v{lo}, 16, v{16+c*4+k}"); p(f"v_and_b32 v{hi}, 0xffff0000, v{16+c*4+k}")
            for sp in range(1,5):
                s=16+(sp*3+c)*4+k
                p(f"v_lshlrev_b32 v90, 16, v{s}"); p(f"v_and_b32 v91, 0xffff0000, v{s}")
                p(f"v_add_f32 v{lo}, v{lo}, v90"); p(f"v_add_f32 v{hi}, v{hi}, v91")
        o=92+4*c
        for k in range(4): p(f"v_cvt_pk_bf16_f32 v{o+k}, v{80+2*k}, v{81+2*k}")
        p(f"buffer_store_dwordx2 v[{o}:{o+1}], v4, s[24:27], s28 offen offset:{64*c}")
        p(f"buffer_store_dwordx2 v[{o+2}:{o+3}], v4, s[24:27], s28 offen offset:{64*c+32}")
    p.label("L_k3_end"); p("s_endpgm")
    if docheck: print("k3 check problems:",len(check(p.ins,'k3')))
    return p
if __name__=="__main__":
    for n in range(768): assert (n*0xaab)>>16==n//24
    for n in range(240): assert (n*171)>>9==n//3
    gen_k2(); gen_k3()
```

```python
import re

REG_RE = re.compile(r'^(-|\|)?(v|a|s)(\d+)\|?$')
RNG_RE = re.compile(r'^(-)?(v|a|s)\[(\d+):(\d+)\]$')

def regs_of(tok):
    tok = tok.strip()
    if tok.startswith('abs(') or tok.startswith('-abs('):
        tok = tok[tok.index('(')+1:-1]
    m = REG_RE.match(tok)
    if m: return [m.group(2)+m.group(3)]
    m = RNG_RE.match(tok)
    if m: return [m.group(2)+str(i) for i in range(int(m.group(3)), int(m.group(4))+1)]
    if tok in ('vcc',): return ['vcc_lo','vcc_hi']
    if tok in ('exec',): return ['exec_lo','exec_hi']
    if tok in ('vcc_lo','vcc_hi','exec_lo','exec_hi','m0','scc'): return [tok]
    return []

import os
DSCOST=int(os.environ.get('DSCOST','2'))
TRANS = ('v_exp_f32','v_log_f32','v_rcp_f32','v_rsq_f32','v_sqrt_f32','v_sin_f32','v_cos_f32','v_rcp_iflag_f32')

class Ins:
    __slots__=('text','op','kind','rd','wr','cost','ops','mods','tag')
    def __init__(self, text, tag=None):
        self.text = text; self.tag = tag
        t = text.split(';')[0].strip()
        self.rd=set(); self.wr=set(); self.cost=1; self.ops=[]; self.mods=''
        if t.endswith(':') or t.startswith('.') or t=='':
            self.op=t; self.kind='label'; self.cost=0; return
        sp = t.split(None,1)
        op = sp[0]; rest = sp[1] if len(sp)>1 else ''
        for suf in ('_e32','_e64','_dpp','_sdwa'):
            if op.endswith(suf): op = op[:-len(suf)]
        self.op = op
        parts=[]; depth=0; cur=''
        for ch in rest:
            if ch in '[(': depth+=1
            if ch in '])': depth-=1
            if ch==',' and depth==0: parts.append(cur.strip()); cur=''
            else: cur+=ch
        if cur.strip(): parts.append(cur.strip())
        mods=''
        if parts:
            lp = parts[-1].split()
            if len(lp)>1:
                parts[-1]=lp[0]; mods=' '.join(lp[1:])
        self.ops=parts; self.mods=mods
        R=lambda i: set(regs_of(parts[i])) if i<len(parts) else set()
        allr=lambda a: set().union(*[set(regs_of(p)) for p in parts[a:]]) if len(parts)>a else set()
        if op.startswith('v_mfma'):
            self.kind='mfma'; self.wr=R(0); self.rd=allr(1); self.cost=2
        elif False: pass
        elif op.startswith('ds_read') or op.startswith('ds_bpermute') or op.startswith('ds_swizzle') or op.startswith('ds_permute'):
            self.kind='ds'; self.wr=R(0); self.rd=allr(1); self.cost=DSCOST
            if 'd16' in op: self.rd|=R(0)
        elif op.startswith('ds_'):
            self.kind='ds'; self.rd=allr(0)
        elif op.startswith('buffer_load') or op.startswith('global_load'):
            if 'lds' in mods.split() or '_lds_' in op:
                self.kind='dma'; self.rd=allr(0)|{'m0'}
            else:
                self.kind='vmem'; self.wr=R(0); self.rd=allr(1)
        elif op.startswith('buffer_store') or op.startswith('global_store'):
            self.kind='vmem'; self.rd=allr(0)
        elif op.startswith('buffer_atomic') :
            self.kind='vmem'; self.rd=allr(0)
            if 'sc0' in mods.split(): self.wr=R(0)
        elif op.startswith('global_atomic'):
            self.kind='vmem'
            if 'sc0' in mods.split(): self.wr=R(0); self.rd=allr(1)
            else: self.rd=allr(0)
        elif op in ('buffer_wbl2','buffer_inv'):
            self.kind='vmem'
        elif op.startswith('s_load') or op in('s_memtime','s_memrealtime'):
            self.kind='smem'; self.wr=R(0); self.rd=allr(1)
        elif op=='s_waitcnt': self.kind='wait'
        elif op=='s_barrier': self.kind='barrier'
        elif op=='s_nop': self.kind='nop'; self.cost=int(parts[0],0)+1
        elif op in ('s_endpgm','s_setprio','s_sleep'): self.kind='salu'
        elif op.startswith('s_cbranch') or op=='s_branch':
            self.kind='branch'
            if 'scc' in op: self.rd={'scc'}
            if 'vcc' in op: self.rd={'vcc_lo','vcc_hi'}
            if 'exec' in op: self.rd={'exec_lo','exec_hi'}
        elif op.startswith('s_cmp') or op.startswith('s_bitcmp'):
            self.kind='salu'; self.rd=allr(0); self.wr={'scc'}
        elif op in ('s_setpc_b64',):
            self.kind='branch'; self.rd=allr(0)
        elif op.startswith('s_'):
            self.kind='salu'; self.wr=R(0); self.rd=allr(1)
            if 'saveexec' in op: self.wr|={'exec_lo','exec_hi','scc'}; self.rd|={'exec_lo','exec_hi'}
            if op.startswith(('s_add','s_sub','s_and','s_or','s_xor','s_lshl','s_lshr','s_ashr','s_min','s_max','s_not','s_bfe','s_andn2','s_orn2','s_abs')): self.wr|={'scc'}
            if op.startswith(('s_addc','s_subb','s_cselect','s_cmov')): self.rd|={'scc'}
            if op in('s_addk_i32','s_mulk_i32'): self.rd|=R(0)
        elif op.startswith('v_'):
            self.kind='trans' if op in TRANS else 'valu'
            if self.kind=='trans': self.cost=2
            if op.startswith('v_cmp'):
                self.wr=R(0); self.rd=allr(1)
            elif op in('v_add_co_u32','v_sub_co_u32','v_addc_co_u32','v_subb_co_u32','v_subrev_co_u32'):
                self.wr=R(0)|R(1); self.rd=allr(2)
            elif op.startswith('v_permlane') and 'swap' in op:
                self.wr=allr(0); self.rd=allr(0)
            elif op=='v_nop':
                pass
            else:
                self.wr=R(0); self.rd=allr(1)
                if op.startswith(('v_fmac','v_dot2c','v_writelane','v_pk_fmac')) : self.rd|=R(0)
                if 'dpp' in text.split()[0] or 'row_' in mods or 'quad_perm' in mods: self.rd|=R(0)
                if op=='v_cndmask_b32' and len(parts)==3: self.rd|={'vcc_lo','vcc_hi'}
            self.rd|={'exec_lo','exec_hi'} if False else set()
        else:
            raise ValueError('unknown op '+text)
    def __repr__(self): return self.text

class Prog:
    def __init__(self): self.ins=[]
    def __call__(self, *texts, tag=None):
        for t in texts:
            for line in t.split('\n'):
                line=line.strip()
                if line: self.ins.append(Ins(line, tag))
        return self
    def add(self, lst):
        for x in lst: self.ins.append(x if isinstance(x,Ins) else Ins(x))
    def label(self, n): self.ins.append(Ins(n+':'))
    def text(self):
        out=[]
        for i in self.ins:
            out.append(i.text if i.kind=='label' else '    '+i.text)
        return '\n'.join(out)+'\n'

def mfma_passes(op):
    if '32x32x16' in op: return 8
    if '16x16x32' in op: return 4
    raise ValueError(op)

def is_vec(r): return r[0] in 'va' and r[1:].isdigit()
def is_sgpr(r): return (r[0]=='s' and r[1:].isdigit()) or r.startswith('vcc')

def parse_wait(ins):
    vm=lg=None
    s=' '.join(ins.ops+[ins.mods])
    m=re.search(r'vmcnt\((\d+)\)',s)
    if m: vm=int(m.group(1))
    m=re.search(r'lgkmcnt\((\d+)\)',s)
    if m: lg=int(m.group(1))
    return vm,lg

def check(trace, name='', verbose=True, assume_clean_start=True):
    probs=[]
    pos=0
    lastw={}
    lastC={}
    laststore={}
    vmq=[]; lgq=[]
    pend={}
    def P(msg,i): probs.append(f"[{name}] #{idx}: {msg}: {i.text}")
    for idx,i in enumerate(trace):
        if i.kind=='label': continue
        if i.kind=='branch' and False: pass
        def need(r, n, why):
            w=lastw.get(r)
            if w is not None and pos-w[0] < n:
                P(f"hazard {why}: reg {r} dist {pos-w[0]} < {n} (producer {w[2].text})", i)
        for r in (i.rd|i.wr):
            if r in pend:
                P(f"reg {r} touched while load pending ({pend[r]})", i)
        if i.kind=='mfma':
            A=set(regs_of(i.ops[1])); B=set(regs_of(i.ops[2])); C=set(regs_of(i.ops[3])) if len(i.ops)>3 else set()
            D=set(regs_of(i.ops[0]))
            for r in A|B|C:
                w=lastw.get(r)
                if not w: continue
                if w[1] in('valu','trans'): need(r,2,'valu->mfma')
                if w[1]=='mfma':
                    ps=mfma_passes(w[2].op)
                    if r in A or r in B: need(r,{4:8,8:12}[ps],'mfma->mfma A/B')
                    elif r in C:
                        same = (w[2].ops[0]==i.ops[3]) and (w[2].op==i.op)
                        if not same: need(r,{4:6,8:10}[ps],'mfma->mfma C overlap')
            for r in D:
                w=lastw.get(r)
                if w and w[1]=='mfma' and r not in C:
                    ps=mfma_passes(w[2].op)
                    need(r,{4:6,8:10}[ps],'mfma->mfma WAW')
        if i.kind in('valu','trans','vmem','ds','dma'):
            for r in (i.rd | (i.wr if i.kind in('valu','trans','vmem','ds') else set())):
                w=lastw.get(r)
                if w and w[1]=='mfma':
                    need(r,{4:8,8:12}[mfma_passes(w[2].op)],'mfma->valu/mem')
        if i.kind in('valu','trans'):
            for r in i.rd:
                w=lastw.get(r)
                if not w: continue
                if w[1]=='trans' and is_vec(r) : need(r,1,'trans->valu')
                if w[1] in('valu','trans') and is_sgpr(r): need(r,2,'valu sgpr->valu const')
                if w[1] in('valu','trans') and is_vec(r):
                    if i.op in('v_readfirstlane_b32','v_readlane_b32'): need(r,1,'valu->readlane')
                    if i.op.startswith('v_permlane'): need(r,2,'valu->permlane')
                    if 'row_' in i.mods or 'quad_perm' in i.mods: need(r,2,'valu->dpp')
            for r in i.wr:
                c=lastC.get(r)
                if c and pos-c[0] < {4:3,8:7}[c[1]]: P(f"hazard mfma srcC WAR reg {r}",i)
                s=laststore.get(r)
                if s is not None and pos-s<2: P(f"hazard store data WAR reg {r}",i)
        if i.kind in('vmem','dma','ds'):
            for r in i.rd:
                w=lastw.get(r)
                if w and w[1] in('valu','trans') and is_sgpr(r): need(r,5,'valu sgpr->vmem')
                if w and w[1]=='trans' and is_vec(r): need(r,1,'trans->mem')
                if w and r=='m0' and w[1]=='salu' and i.kind=='dma': need(r,1,'m0->dma')
        if i.kind=='salu' or i.kind=='branch':
            for r in i.rd:
                w=lastw.get(r)
                if w and w[1] in('valu','trans') and is_sgpr(r) and not r.startswith('vcc'): need(r,1,'valu sgpr->salu (pad)')
        p_after = pos + (i.cost if i.kind=='nop' else 1)
        if i.kind=='wait':
            vm,lg=parse_wait(i)
            if vm is not None:
                while len(vmq)>vm:
                    d=vmq.pop(0)
                    for r in d: pend.pop(r,None)
            if lg is not None:
                if any(x[1] for x in lgq) and lg>0:
                    P("lgkmcnt(N>0) with smem outstanding",i)
                while len(lgq)>lg:
                    d=lgq.pop(0)
                    for r in d[0]: pend.pop(r,None)
        if i.kind in('vmem','dma'):
            vmq.append(set(i.wr))
            for r in i.wr: pend[r]='vm'
            if len(vmq)>63: P("vmcnt overflow >63",i)
            if 'store' in i.op and ('x4' in i.op or 'x3' in i.op):
                for r in regs_of(i.ops[0] if i.op.startswith('buffer') else i.ops[1]): laststore[r]=p_after
        if i.kind=='ds':
            lgq.append((set(i.wr),False))
            for r in i.wr: pend[r]='lg'
            if len(lgq)>15: P("lgkmcnt overflow >15 (counter saturates)",i)
        if i.kind=='smem':
            lgq.append((set(i.wr),True))
            for r in i.wr: pend[r]='lg'
        for r in i.wr:
            if i.kind in('valu','trans','mfma','salu'):
                lastw[r]=(p_after,i.kind,i)
            else:
                lastw.pop(r,None)
        if i.kind=='mfma' and len(i.ops)>3:
            for r in regs_of(i.ops[3]): lastC[r]=(p_after,mfma_passes(i.op))
        pos=p_after
    if verbose:
        for p in probs[:40]: print(p)
        if len(probs)>40: print('...',len(probs),'problems')
    return probs

def interleave(main, fill, budget=2, start=0, every=None):
    out=[]
    nm=sum(1 for x in main if x.kind=='mfma')
    fill=list(fill)
    total=sum(x.cost for x in fill)
    done=0; fi=0; k=0
    n=len(main)
    i=0
    while i<n:
        x=main[i]; out.append(x); i+=1
        if x.kind=='mfma':
            k+=1
            own=0; j=i
            while j<n and main[j].kind!='mfma':
                own+=main[j].cost; j+=1
            if k>start:
                target = total*(k-start)/max(1,(nm-start))
                room = budget-own
                while fi<len(fill) and (done+fill[fi].cost<=target+1e-9 or False) and room>=fill[fi].cost:
                    out.append(fill[fi]); done+=fill[fi].cost; room-=fill[fi].cost; fi+=1
                while fi<len(fill) and done+fill[fi].cost <= target-budget*2:
                    out.append(fill[fi]); done+=fill[fi].cost; fi+=1
    out.extend(fill[fi:])
    return out

def auto_lgkm(stream, init=None, group=1, extra=0):
    q=[set(x) for x in (init or [])]
    out=[]
    for x in stream:
        if x.kind=='wait':
            vm,lg=parse_wait(x)
            if lg is not None:
                while len(q)>lg: q.pop(0)
            out.append(x); continue
        touch=(x.rd|x.wr)
        need=-1
        for i,d in enumerate(q):
            if d & touch: need=i
        if need>=0:
            need=min(len(q)-1, need+extra)
            n=len(q)-1-need
            out.append(Ins(f"s_waitcnt lgkmcnt({n})"))
            q=q[need+1:]
        if x.kind=='ds':
            if len(q)>=15:
                n=14
                out.append(Ins(f"s_waitcnt lgkmcnt({n})")); q=q[len(q)-n:]
            q.append(set(x.wr))
        out.append(x)
    return out, q

def spread(main, items, first=0, last=None, group=None):
    idx=[i for i,x in enumerate(main) if getattr(x,'kind',None)=='mfma']
    last=len(idx) if last is None else last
    span=idx[first:last]
    n=len(items)
    pos={}
    for k,it in enumerate(items):
        j=span[min(len(span)-1,(k*len(span))//n + len(span)//(2*n))]
        pos.setdefault(j,[]).extend(it)
    out=[]
    for i,x in enumerate(main):
        out.append(x)
        if i in pos: out+=pos[i]
    return out
def dma_items(lst):
    items=[]; pend=[]
    for x in lst:
        if x.kind=='nop': continue
        if x.kind=='dma':
            if pend: items.append(pend); pend=[]
            items.append([x])
        else: pend.append(x)
    if pend: items.append(pend)
    return items

def code_prefetch(p, start_label, end_label, tmp_s=76, vaddr=1, vdst=2, uniq='a'):
    p(f"s_getpc_b64 s[{tmp_s}:{tmp_s+1}]"); p.label(f"L_cpf_{uniq}")
    p(f"s_sub_u32 s{tmp_s}, s{tmp_s}, L_cpf_{uniq}-{start_label}"); p(f"s_subb_u32 s{tmp_s+1}, s{tmp_s+1}, 0")
    p(f"s_lshr_b32 s{tmp_s+2}, s2, 3"); p(f"s_lshl_b32 s{tmp_s+2}, s{tmp_s+2}, 11")
    p(f"s_min_u32 s{tmp_s+2}, s{tmp_s+2}, {end_label}-{start_label}-2048")
    p(f"s_add_u32 s{tmp_s}, s{tmp_s}, s{tmp_s+2}"); p(f"s_addc_u32 s{tmp_s+1}, s{tmp_s+1}, 0")
    p(f"v_and_b32 v{vaddr}, 63, v0"); p(f"v_lshlrev_b32 v{vaddr}, 4, v{vaddr}")
    p(f"global_load_dwordx4 v[{vdst}:{vdst+3}], v{vaddr}, s[{tmp_s}:{tmp_s+1}]"); p(f"global_load_dwordx4 v[{vdst}:{vdst+3}], v{vaddr}, s[{tmp_s}:{tmp_s+1}] offset:1024")
```

```python
from core import *
import stamp as ST
from k1_gx import f2u, NKS_TOT, H_BYTES
import os
STMOD=os.environ.get('STMOD',' sc1')
KVP_OFF=0x1502000
LOG2E=1.4426950408889634
WSL=28672; W0=0; X0=3*WSL; XSL=32768
PHI_L=X0+2*XSL; ZERO_L=PHI_L+3840
PS=336; VS=168
PL=0; VL=256*PS; KVL=VL+256*VS
S_W=24
S_X=8; S_WQ=12; S_H=16; S_KV=20
S_XSO=25; S_XSO2=26; S_WSO=27; S_CNT=28; S_MW=29; S_MX=30; S_C=31; S_RT=32; S_QD=33; S_AW=34; S_AX=35; S_TW=36; S_TX=37; S_SD=72; S_SN=73; S_MWW=74
V_WD=1; V_TRB=8; V_XD=10; V_TR=14; V_XP=16; V_L=20; V_L16=21; V_BD=22; V_BD2=23
QACC=0; KACC=96; VACC=176
def accq(t,tt): b=QACC+(t*4+tt)*4; return f"a[{b}:{b+3}]"
def acck(t,tt,r=None):
    b=KACC+(t*4+tt)*4; return f"v[{b}:{b+3}]" if r is None else f"v{b+r}"
def accv(t,tt,r=None):
    b=VACC+(t*4+tt)*4; return f"v[{b}:{b+3}]" if r is None else f"v{b+r}"
def acc(sec,t,tt): return (accq,acck,accv)[sec](t,tt)
AR=80; NAR=6; XF=104
def afr(i): b=AR+4*(i%NAR); return f"a[{b}:{b+3}]"
def afh(i,h): b=AR+4*(i%NAR)+2*h; return f"a[{b}:{b+1}]"
def xf(b_,tt): b=XF+(b_*4+tt)*4; return f"a[{b}:{b+3}]"

def wdma():
    o=[Ins(f"s_add_u32 s{S_MW}, s{S_MWW}, s{S_SD}")]
    for i in range(7):
        if i%4==0:
            o.append(Ins(f"s_add_u32 m0, s{S_MW}, {4096*(i//4)}" if i else f"s_mov_b32 m0, s{S_MW}")); o.append(Ins("s_nop 0"))
        o.append(Ins(f"buffer_load_dwordx4 v{V_WD+i}, s[{S_WQ}:{S_WQ+3}], s{S_WSO} offen offset:{1024*(i%4)} lds"))
    o+= [Ins(f"s_add_u32 s{S_SD}, s{S_SD}, {WSL}"), Ins(f"s_cmp_eq_u32 s{S_SD}, {3*WSL}"), Ins(f"s_cselect_b32 s{S_SD}, 0, s{S_SD}"),
         Ins(f"s_add_u32 s{S_WSO}, s{S_WSO}, {64*3456}")]
    return o
def xdma():
    o=[]
    for i in range(8):
        if i%4==0:
            o.append(Ins(f"s_add_u32 m0, s{S_MX}, {4096*(i//4)}" if i else f"s_mov_b32 m0, s{S_MX}")); o.append(Ins("s_nop 0"))
        o.append(Ins(f"buffer_load_dwordx4 v{V_XD+(i%4)}, s[{S_X}:{S_X+3}], s{S_XSO if i<4 else S_XSO2} offen offset:{1024*(i%4)} lds"))
    o+= [Ins(f"s_xor_b32 s{S_MX}, s{S_MX}, s{S_TX}"), Ins(f"s_add_u32 s{S_XSO}, s{S_XSO}, 128"), Ins(f"s_add_u32 s{S_XSO2}, s{S_XSO2}, 128")]
    return o

SEQ=[(b_,sec,t) for b_ in range(2) for sec in range(3) for t in range(5)]
PF=4
def ard(i):
    nxt=i>=30; b_,sec,t=SEQ[i%30]
    return [Ins(f"ds_read_b64_tr_b16 {afh(i,h)}, v{V_TR+(1 if nxt else 0)} offset:{b_*13824+sec*144+h*1728+8*t}") for h in range(2)]
def xrd(b_,nxt): return [Ins(f"ds_read_b128 {xf(b_,tt)}, v{V_XP+(2 if nxt else 0)+b_} offset:{tt*2048}") for tt in range(4)]

def superstep():
    main=[]
    for i,(b_,sec,t) in enumerate(SEQ):
        if i==26:
            main.append(Ins("s_waitcnt vmcnt(7) lgkmcnt(0)")); main.append(Ins("s_barrier"))
        nxt=ard(i+PF)
        if 1<=i<5: nxt=nxt+[xrd(1,False)[i-1]]
        if i>=26: nxt=nxt+[xrd(0,True)[i-26]]
        if 22<=i<26: pass
        for tt in range(4):
            main.append(Ins(f"v_mfma_f32_16x16x32_bf16 {acc(sec,t,tt)}, {afr(i)}, {xf(b_,tt)}, {acc(sec,t,tt)}"))
            if tt<len(nxt): main.append(nxt[tt])
    return main

def entry_queue():
    q=[]
    for i in range(26,30):
        for x in ard(i+PF): q.append(x.wr)
        q.append(xrd(0,True)[i-26].wr)
    return q

def bc(r): return f"v[{r}:{r+1}]"
def softmax_pk(p, P0, tmp, want_norm):
    A=p
    P=[f"v{P0(f)}" for f in range(18)]
    mx=tmp+36; mn=tmp+38; sp=tmp+40; sm=tmp+42
    A(f"v_max3_f32 v{mx}, {P[0]}, {P[1]}, {P[2]}"); A(f"v_min3_f32 v{mn}, {P[0]}, {P[1]}, {P[2]}")
    for i in range(3,17,2):
        A(f"v_max3_f32 v{mx}, v{mx}, {P[i]}, {P[i+1]}"); A(f"v_min3_f32 v{mn}, v{mn}, {P[i]}, {P[i+1]}")
    A(f"v_max_f32 v{mx}, v{mx}, {P[17]}"); A(f"v_min_f32 v{mn}, v{mn}, {P[17]}")
    A(f"v_mul_f32_e64 v{mx}, -s{S_C}, v{mx}"); A(f"v_mul_f32 v{mn}, s{S_C}, v{mn}")
    for i in range(0,18,2):
        pr=bc(P0(i))
        A(f"v_pk_fma_f32 {bc(tmp+i)}, {pr}, {bc(94)}, {bc(mx)} op_sel_hi:[1,0,0]")
        A(f"v_pk_fma_f32 {bc(tmp+18+i)}, {pr}, {bc(94)}, {bc(mn)} op_sel_hi:[1,0,0] neg_lo:[0,1,0] neg_hi:[0,1,0]")
    for i in range(18):
        A(f"v_exp_f32 v{tmp+i}, v{tmp+i}"); A(f"v_exp_f32 v{tmp+18+i}, v{tmp+18+i}")
    if want_norm:
        A(f"v_pk_add_f32 {bc(sp)}, {bc(tmp)}, {bc(tmp+2)}");
        A("s_nop 0")
        A(f"v_pk_add_f32 {bc(sm)}, {bc(tmp+18)}, {bc(tmp+20)}")
        for i in range(4,18,2):
            A(f"v_pk_add_f32 {bc(sp)}, {bc(sp)}, {bc(tmp+i)}"); A(f"v_pk_add_f32 {bc(sm)}, {bc(sm)}, {bc(tmp+18+i)}")
        A(f"v_add_f32 v{sp}, v{sp}, v{sp+1}"); A(f"v_add_f32 v{sm}, v{sm}, v{sm+1}")
        A(f"v_rcp_f32 v{sp}, v{sp}"); A(f"v_rcp_f32 v{sm}, v{sm}"); A("s_nop 0")
        for i in range(0,18,2):
            A(f"v_pk_mul_f32 {bc(tmp+i)}, {bc(tmp+i)}, {bc(sp)} op_sel_hi:[1,0]"); A(f"v_pk_mul_f32 {bc(tmp+18+i)}, {bc(tmp+18+i)}, {bc(sm)} op_sel_hi:[1,0]")
    else:
        A("s_nop 0")

def stage2(p, src, dst, B0, pre=None):
    for tt in range(4):
        for t in range(5):
            p(f"v_cvt_pk_bf16_f32 v{B0+tt*12+2*t}, {src(t,tt,0)}, {src(t,tt,1)}")
            p(f"v_cvt_pk_bf16_f32 v{B0+tt*12+2*t+1}, {src(t,tt,2)}, {src(t,tt,3)}")
        p(f"v_mov_b32 v{B0+tt*12+10}, 0"); p(f"v_mov_b32 v{B0+tt*12+11}, 0")
    if pre: pre()
    p("s_nop 1")
    for tt in range(4):
        for s in range(3):
            for u in range(5):
                a=80+4*(u*3+s); b=B0+tt*12+4*s
                c=dst(u,tt) if s>0 else "0"
                p(f"v_mfma_f32_16x16x32_bf16 {dst(u,tt)}, a[{a}:{a+3}], v[{b}:{b+3}], {c}")
    p("s_nop 7")

def gen_att(p, docheck=True):
    p.label("L_att")
    A=p
    A(f"s_mov_b32 s{S_QD}, s4"); A(f"s_mov_b32 s{S_RT}, s5")
    A(f"s_sub_u32 s{S_WQ}, s58, 4096"); A(f"s_subb_u32 s{S_WQ+1}, s59, 0"); A(f"s_mov_b32 s{S_WQ+2}, {576*3456+4096}"); A(f"s_mov_b32 s{S_WQ+3}, 0x20000")
    A(f"v_and_b32 v{V_L}, 63, v0")
    A(f"s_mul_i32 s38, s{S_W}, 448")
    for i in range(7):
        A(f"v_add_u32 v30, s38, v{V_L}")
        if i: A(f"v_add_u32 v30, {64*i}, v30")
        A("v_mul_u32_u24 v31, 7282, v30"); A("v_lshrrev_b32 v31, 16, v31")
        A("v_mul_u32_u24 v32, 9, v31"); A("v_sub_u32 v32, v30, v32"); A("v_lshlrev_b32 v32, 4, v32")
        A("v_mul_u32_u24 v31, 0x480, v31")
        A(f"v_add3_u32 v{V_WD+i}, v32, v31, 0"); A(f"v_add_u32 v{V_WD+i}, {4096-1024*(i%4)}, v{V_WD+i}")
    A(f"s_mul_i32 s{S_WSO}, s{S_QD}, 144")
    A(f"s_mul_i32 s{S_MWW}, s{S_W}, 7168"); A(f"s_mov_b32 s{S_SD}, 0")
    A.add(wdma())
    A(f"s_mul_i32 s38, s{S_RT}, {256*1152}")
    A(f"s_add_u32 s{S_X}, s56, s38"); A(f"s_addc_u32 s{S_X+1}, s57, 0"); A(f"s_sub_u32 s{S_X}, s{S_X}, 4096"); A(f"s_subb_u32 s{S_X+1}, s{S_X+1}, 0")
    A(f"s_mov_b32 s{S_X+2}, {256*1152+4096}"); A(f"s_mov_b32 s{S_X+3}, 0x20000")
    g="v24"; t15="v25"; l3="v26"; l7="v27"; rp="v28"; cc="v29"
    A(f"v_lshrrev_b32 {g}, 4, v{V_L}"); A(f"v_and_b32 {t15}, 15, v{V_L}"); A(f"v_lshrrev_b32 {l3}, 3, v{V_L}"); A(f"v_and_b32 {l7}, 7, v{V_L}")
    for i in range(4):
        A(f"v_add_u32 v30, {4*(i&1)}, {g}"); A("v_and_b32 v30, 7, v30"); A(f"v_xor_b32 v30, v30, {l7}"); A("v_lshlrev_b32 v30, 4, v30")
        A(f"v_add_u32 v31, {8*i}, {l3}"); A("v_mul_u32_u24 v31, 0x480, v31")
        A(f"v_add3_u32 v{V_XD+i}, v30, v31, 0"); A(f"v_add_u32 v{V_XD+i}, {4096-1024*i}, v{V_XD+i}")
    A(f"s_mul_i32 s{S_XSO}, s{S_W}, {64*1152}"); A(f"s_add_u32 s{S_XSO2}, s{S_XSO}, {32*1152}")
    A(f"s_lshl_b32 s{S_MX}, s{S_W}, 13"); A(f"s_add_u32 s{S_MX}, s{S_MX}, {X0}"); A(f"s_add_u32 s38, s{S_MX}, {XSL}"); A(f"s_xor_b32 s{S_TX}, s{S_MX}, s38")
    A(f"s_mov_b32 s40, s{S_MX}")
    A.add(xdma())
    ST.stamp(p,1)
    A(f"s_mov_b32 s{S_C}, 0x{f2u(LOG2E):08x}")
    A(f"s_mov_b32 s{S_H}, s70"); A(f"s_mov_b32 s{S_H+1}, s71"); A(f"s_mov_b32 s{S_H+2}, {H_BYTES}"); A(f"s_mov_b32 s{S_H+3}, 0x20000")
    A(f"s_add_u32 s{S_KV}, s70, {KVP_OFF}"); A(f"s_addc_u32 s{S_KV+1}, s71, 0"); A(f"s_mov_b32 s{S_KV+2}, {8*32*2880}"); A(f"s_mov_b32 s{S_KV+3}, 0x20000")
    A(f"v_lshlrev_b32 v{V_L16}, 4, v{V_L}")
    A(f"v_lshrrev_b32 {rp}, 2, {t15}"); A(f"v_and_b32 {cc}, 3, {t15}")
    A(f"v_lshrrev_b32 v30, 1, {t15}"); A(f"v_xor_b32 v30, v30, {g}"); A("v_lshlrev_b32 v30, 4, v30"); A(f"v_lshlrev_b32 v31, 7, {t15}"); A("v_add_u32 v30, v30, v31")
    A(f"v_add_u32 v{V_XP}, s40, v30"); A(f"v_xor_b32 v{V_XP+1}, 64, v{V_XP}")
    A(f"v_add_u32 v{V_XP+2}, {XSL}, v{V_XP}"); A(f"v_add_u32 v{V_XP+3}, {XSL}, v{V_XP+1}")
    A(f"v_lshlrev_b32 v30, 3, {g}"); A(f"v_add_u32 v30, v30, {rp}"); A("v_mul_u32_u24 v30, 432, v30"); A(f"v_mul_u32_u24 v31, 36, {cc}")
    A(f"v_and_b32 v33, 1, {cc}"); A("v_lshlrev_b32 v33, 2, v33"); A("v_sub_u32 v31, v31, v33")
    A(f"v_add_u32 v{V_TRB}, v30, v31"); A(f"v_mov_b32 v{V_TR}, v{V_TRB}"); A(f"v_add_u32 v{V_TR+1}, {WSL}, v{V_TRB}"); A(f"s_mov_b32 s{S_SN}, {WSL}")
    A(f"v_cmp_eq_u32 vcc, {cc}, {g}")
    A(f"v_mul_u32_u24 v30, 960, {g}"); A(f"v_mul_u32_u24 v31, 40, {rp}"); A("v_add_u32 v30, v30, v31"); A(f"v_add_u32 v30, {PHI_L}, v30")
    A(f"v_mov_b32 v32, {ZERO_L}"); A(f"v_cndmask_b32 v{V_BD}, v32, v30, vcc")
    A(f"v_mul_u32_u24 v30, 1920, {g}"); A("v_add_u32 v30, v30, v31"); A(f"v_add_u32 v30, {KVL}, v30"); A(f"v_cndmask_b32 v{V_BD2}, v32, v30, vcc")
    A(f"s_mul_i32 s38, s{S_QD}, {4*648}")
    A(f"s_add_u32 s48, s60, s38"); A("s_addc_u32 s49, s61, 0"); A(f"s_mov_b32 s50, {4*648}"); A("s_mov_b32 s51, 0x20000")
    A("v_lshlrev_b32 v30, 2, v0")
    for i in range(3): A(f"buffer_load_dword v{44+i}, v30, s[48:51], 0 offen offset:{1024*i}")
    A("v_mov_b32 v40, 0"); A("v_mov_b32 v41, 0"); A("v_mov_b32 v42, 0"); A("v_mov_b32 v43, 0")
    A("v_lshlrev_b32 v30, 4, v0"); A(f"v_add_u32 v30, {PHI_L}, v30")
    A("ds_write_b128 v30, v[40:43]")
    A("v_cmp_gt_u32 vcc, 104, v0"); A("s_and_saveexec_b64 s[48:49], vcc"); A("s_cbranch_execz L_att_z1")
    A("ds_write_b128 v30, v[40:43] offset:4096")
    A.label("L_att_z1"); A("s_mov_b64 exec, s[48:49]")
    for i in range(3):
        A(f"v_add_u32 v30, {256*i}, v0")
        A("v_mul_u32_u24 v31, 405, v30"); A("v_lshrrev_b32 v31, 16, v31")
        A("v_mul_u32_u24 v32, 162, v31"); A("v_sub_u32 v32, v30, v32")
        A("v_mul_u32_u24 v33, 57, v32"); A("v_lshrrev_b32 v33, 9, v33")
        A("v_mul_u32_u24 v34, 9, v33"); A("v_sub_u32 v34, v32, v34")
        A("v_and_b32 v35, 1, v31"); A("v_lshl_add_u32 v33, v35, 1, v33")
        A("v_mul_u32_u24 v31, 960, v31"); A("v_mul_u32_u24 v33, 40, v33"); A("v_lshlrev_b32 v34, 2, v34")
        A(f"v_add3_u32 v{47+i}, v31, v33, v34"); A(f"v_add_u32 v{47+i}, {PHI_L}, v{47+i}")
    for r in range(80): A(f"v_accvgpr_write_b32 a{r}, 0")
    for r in range(96,256): A(f"v_mov_b32 v{r}, 0")
    xl=xdma(); XA_=xl[:6]; XB_=xl[6:]
    A.add(wdma())
    A.add(XA_)
    A("s_waitcnt vmcnt(11) lgkmcnt(0)"); A("s_barrier")
    A("ds_write_b32 v47, v44"); A("ds_write_b32 v48, v45")
    A("v_cmp_gt_u32 vcc, 136, v0"); A("s_and_saveexec_b64 s[48:49], vcc"); A("s_cbranch_execz L_att_z2")
    A("ds_write_b32 v49, v46")
    A.label("L_att_z2"); A("s_mov_b64 exec, s[48:49]")
    A("s_waitcnt lgkmcnt(0)")
    ST.stamp(p,2)
    A(f"v_mov_b32 v{V_TR+1}, v{V_TRB}"); A(f"v_swap_b32 v{V_XP}, v{V_XP+2}"); A(f"v_swap_b32 v{V_XP+1}, v{V_XP+3}")
    for i in range(26,30):
        A.add(ard(i+PF)); A.add([xrd(0,True)[i-26]])
    A(f"v_add_u32 v{V_TR+1}, {WSL}, v{V_TRB}"); A(f"v_swap_b32 v{V_XP}, v{V_XP+2}"); A(f"v_swap_b32 v{V_XP+1}, v{V_XP+3}")
    A(f"s_mov_b32 s{S_CNT}, 0")
    il=len(p.ins)
    A.label("L_att_loop")
    m,_=auto_lgkm(superstep(), entry_queue(), extra=2)
    ib=[i for i,x in enumerate(m) if x.kind=='barrier'][0]
    head=m[:ib+1]; rest=m[ib+1:]
    p.add(spread(head, dma_items(XB_+wdma()), first=1, last=72))
    p.add(spread(rest, dma_items(XA_), first=0))
    A(f"v_mov_b32 v{V_TR}, v{V_TR+1}")
    A(f"s_add_u32 s{S_SN}, s{S_SN}, {WSL}"); A(f"s_cmp_eq_u32 s{S_SN}, {3*WSL}"); A(f"s_cselect_b32 s{S_SN}, 0, s{S_SN}")
    A(f"v_add_u32 v{V_TR+1}, s{S_SN}, v{V_TRB}")
    A(f"v_swap_b32 v{V_XP}, v{V_XP+2}"); A(f"v_swap_b32 v{V_XP+1}, v{V_XP+3}")
    A(f"s_add_u32 s{S_CNT}, s{S_CNT}, 1"); A(f"s_cmp_lt_u32 s{S_CNT}, 9"); A("s_cbranch_scc1 L_att_loop")
    idn=len(p.ins)
    A("s_waitcnt vmcnt(0) lgkmcnt(0)")
    ST.stamp(p,3)
    A("s_barrier")
    rds=[f"ds_read_b64_tr_b16 a[{80+4*(u*3+s)+2*h}:{80+4*(u*3+s)+2*h+1}], v{V_BD} offset:{(8*s+4*h)*40+8*u}" for u in range(5) for s in range(3) for h in range(2)]
    for x in rds[:14]: A(x)
    A("v_mov_b32 v40, 0"); A("v_mov_b32 v41, 0"); A("v_mov_b32 v42, 0"); A("v_mov_b32 v43, 0")
    A("v_lshlrev_b32 v30, 4, v0"); A(f"v_add_u32 v30, {KVL}, v30")
    A(f"v_mov_b32 v94, s{S_C}")
    A("s_waitcnt lgkmcnt(0)")
    for x in rds[14:28]: A(x)
    A("s_waitcnt lgkmcnt(0)")
    for x in rds[28:]: A(x)
    A("ds_write_b128 v30, v[40:43]")
    A("v_cmp_gt_u32 vcc, 224, v0"); A("s_and_saveexec_b64 s[48:49], vcc"); A("s_cbranch_execz L_att_z3")
    A("ds_write_b128 v30, v[40:43] offset:4096")
    A.label("L_att_z3"); A("s_mov_b64 exec, s[48:49]")
    stage2(p, acck, acck, 24, pre=lambda: A("s_waitcnt lgkmcnt(0)"))
    A(f"v_and_b32 v72, 15, v{V_L}"); A(f"v_lshrrev_b32 v73, 4, v{V_L}")
    A(f"s_lshl_b32 s38, s{S_W}, 6"); A("v_add_u32 v72, s38, v72")
    A(f"v_mul_u32_u24 v74, {PS}, v72"); A("v_mul_u32_u24 v75, 80, v73"); A("v_add_u32 v74, v74, v75")
    A(f"v_mul_u32_u24 v75, {VS}, v72"); A("v_mul_u32_u24 v76, 40, v73"); A("v_add_u32 v75, v75, v76"); A(f"v_add_u32 v75, {VL}, v75")
    A("v_and_b32 v76, 1, v73"); A("v_cmp_eq_u32 s[58:59], 1, v76"); A("v_mov_b32 v70, 1.0"); A("v_mov_b32 v71, 0")
    pendw=[]
    for tt in range(4):
        q=Prog()
        softmax_pk(q, lambda f: KACC+((f//4)*4+tt)*4+(f%4), 24, True)
        body=q.ins
        if pendw:
            step=max(1,len(body)//(len(pendw)+1)); out=[]; k=0
            for i,x in enumerate(body):
                out.append(x)
                if i%step==step-1 and k<len(pendw): out.append(pendw[k]); k+=1
            out+=pendw[k:]; body=out
        p.add(body)
        PK=76 if tt%2==0 else None
        if tt%2==0: regs=[76+i for i in range(18)]+[None]
        def pk(i):
            return 76+i if tt%2==0 else KACC+((i//4)*4+(tt-1))*4+(i%4)
        A("s_waitcnt lgkmcnt(0)")
        for i in range(18): A(f"v_cvt_pk_bf16_f32 v{pk(i)}, v{24+2*i}, v{25+2*i}")
        off=tt*16*PS
        pendw=[Ins(f"ds_write_b128 v74, v[{pk(4*i)}:{pk(4*i)+3}] offset:{off+16*i}") for i in range(4)]
        pendw.append(Ins(f"ds_write_b64 v74, v[{pk(16)}:{pk(16)+1}] offset:{off+64}"))
        A(f"v_cndmask_b32 {accv(0,tt,0)}, {accv(0,tt,0)}, v70, s[58:59]"); A(f"v_cndmask_b32 {accv(0,tt,1)}, {accv(0,tt,1)}, v71, s[58:59]")
        A(f"v_cndmask_b32 {accv(4,tt,2)}, v70, {accv(4,tt,2)}, s[58:59]"); A(f"v_cndmask_b32 {accv(4,tt,3)}, v71, {accv(4,tt,3)}, s[58:59]")
        for t in range(5):
            b0=VACC+(t*4+tt)*4
            A(f"v_cvt_pk_bf16_f32 v{b0}, v{b0}, v{b0+1}"); A(f"v_cvt_pk_bf16_f32 v{b0+1}, v{b0+2}, v{b0+3}")
        offv=tt*16*VS
        pendw+=[Ins(f"ds_write_b64 v75, v[{VACC+(t*4+tt)*4}:{VACC+(t*4+tt)*4+1}] offset:{offv+8*t}") for t in range(5)]
    p.add(pendw)
    A("s_waitcnt lgkmcnt(0)"); A("s_barrier")
    ST.stamp(p,4)
    A(f"v_and_b32 v24, 15, v{V_L}"); A(f"v_lshrrev_b32 v25, 4, v{V_L}"); A("v_lshrrev_b32 v26, 2, v24"); A("v_and_b32 v27, 3, v24")
    A("v_lshlrev_b32 v28, 3, v25"); A("v_add_u32 v28, v28, v26")
    A(f"v_mul_u32_u24 v29, {VS}, v28"); A("v_lshlrev_b32 v30, 3, v27"); A("v_add_u32 v29, v29, v30")
    A(f"s_mul_i32 s38, s{S_W}, 40"); A(f"s_add_u32 s38, s38, {VL}"); A("v_add_u32 v29, s38, v29")
    A(f"v_mul_u32_u24 v31, {PS}, v28"); A("v_add_u32 v31, v31, v30")
    A(f"s_mul_i32 s38, s{S_W}, 80"); A("v_add_u32 v31, s38, v31")
    A(f"v_add_u32 v32, {128*PS}, v31")
    KV=96
    def kvr(ks):
        fr=36+20*(ks%2); o=[]
        for dt in range(2):
            for h in range(2): o.append(Ins(f"ds_read_b64_tr_b16 v[{fr+4*dt+2*h}:{fr+4*dt+2*h+1}], v29 offset:{(32*ks+4*h)*VS+32*dt}"))
        for ft in range(3):
            for h in range(2):
                base,ko=("v31",ks) if ks<4 else ("v32",ks-4)
                o.append(Ins(f"ds_read_b64_tr_b16 v[{fr+8+4*ft+2*h}:{fr+8+4*ft+2*h+1}], {base} offset:{(32*ko+4*h)*PS+32*ft}"))
        return o
    st=kvr(0)
    for ks in range(8):
        fr=36+20*(ks%2)
        nx=kvr(ks+1) if ks<7 else []
        k=0
        for dt in range(2):
            for ft in range(3):
                d=KV+(dt*3+ft)*4
                c=f"v[{d}:{d+3}]" if ks>0 else "0"
                if k==0: st.append(Ins("s_waitcnt lgkmcnt(0)")); st+=nx[:5]
                st.append(Ins(f"v_mfma_f32_16x16x32_bf16 v[{d}:{d+3}], v[{fr+4*dt}:{fr+4*dt+3}], v[{fr+8+4*ft}:{fr+8+4*ft+3}], {c}"))
                if k==1: st+=nx[5:]
                k+=1
    p.add(st)
    A(f"s_lshl_b32 s38, s{S_RT}, 5"); A(f"s_lshl_b32 s39, s{S_QD}, 2"); A("s_add_u32 s38, s38, s39"); A(f"s_add_u32 s38, s38, s{S_W}"); A("s_mul_i32 s38, s38, 2880")
    A("v_mul_u32_u24 v33, 80, v24"); A("v_lshlrev_b32 v34, 4, v25"); A("v_add_u32 v33, v33, v34")
    A("v_cmp_eq_u32 s[50:51], 0, v25"); A("v_cmp_gt_u32 s[52:53], 4, v24")
    A("s_nop 1")
    A("s_and_b64 s[54:55], s[50:51], s[52:53]")
    for ft in range(3):
        for dt in range(2):
            d=KV+(dt*3+ft)*4
            mask=(None if dt==0 else "s[50:51]") if ft<2 else ("s[52:53]" if dt==0 else "s[54:55]")
            if mask: A(f"s_mov_b64 exec, {mask}")
            A(f"buffer_store_dwordx4 v[{d}:{d+3}], v33, s[{S_KV}:{S_KV+3}], s38 offen offset:{ft*16*80+dt*64} sc1")
            if mask: A("s_mov_b64 exec, -1")
    def accqv(t,tt,r): return f"v{96+(t*4+tt)*4+r}"
    for i in list(range(24,80))+list(range(24)): A(f"v_accvgpr_read_b32 v{96+i}, a{i}")
    stage2(p, accqv, lambda u,tt: f"v[{176+(u*4+tt)*4}:{176+(u*4+tt)*4+3}]", 24)
    A("s_waitcnt vmcnt(0)")
    A("s_barrier")
    A(f"s_cmp_eq_u32 s{S_W}, 0"); A("s_cbranch_scc0 L_att_nosig")
    A(f"s_lshl_b32 s38, s{S_QD}, 2"); A("v_mov_b32 v33, s38"); A("v_mov_b32 v34, 1")
    A(f"v_cmp_eq_u32 vcc, 0, v{V_L}"); A("s_and_saveexec_b64 s[48:49], vcc")
    A("global_atomic_add v33, v34, s[68:69] sc1")
    A("s_mov_b64 exec, s[48:49]")
    A.label("L_att_nosig")
    ST.stamp(p,5)
    A("s_mov_b32 s40, s62"); A("s_mov_b32 s41, s63"); A(f"s_mov_b32 s42, {576*1152}"); A("s_mov_b32 s43, 0x20000")
    A(f"s_lshl_b32 s48, s{S_RT}, 3"); A(f"s_add_u32 s48, s48, s{S_QD}"); A("s_lshl_b32 s48, s48, 2"); A(f"s_add_u32 s48, s48, s{S_W}"); A("s_mul_i32 s48, s48, 3072")
    for i in range(3): A(f"buffer_load_dwordx4 a[{4*i}:{4*i+3}], v{V_L16}, s[40:43], s48 offen offset:{1024*i}")
    A("s_mov_b32 s40, s56"); A("s_mov_b32 s41, s57"); A(f"s_mov_b32 s42, {2048*1152}"); A("s_mov_b32 s43, 0x20000")
    A("s_mov_b32 s44, s64"); A("s_mov_b32 s45, s65"); A("s_mov_b32 s46, 1152"); A("s_mov_b32 s47, 0x20000")
    A(f"v_lshrrev_b32 v168, 3, v{V_L}"); A(f"v_and_b32 v169, 7, v{V_L}"); A("v_lshlrev_b32 v170, 4, v169")
    A("v_mul_u32_u24 v171, 0x480, v168"); A("v_add_u32 v171, v171, v170")
    A(f"s_lshl_b32 s48, s{S_RT}, 5"); A(f"s_lshl_b32 s49, s{S_QD}, 2"); A("s_add_u32 s48, s48, s49"); A(f"s_add_u32 s48, s48, s{S_W}")
    A(f"s_mul_i32 s49, s48, {8*1152}")
    for c in range(9):
        A(f"buffer_load_dwordx4 v[{96+4*c}:{99+4*c}], v171, s[40:43], s49 offen offset:{128*c}")
        A(f"buffer_load_dwordx4 v[{132+4*c}:{135+4*c}], v170, s[44:47], 0 offen offset:{128*c}")
    for tt in range(4):
        if tt==3:
            A(f"s_lshl_b32 s38, s{S_QD}, 2"); A("v_mov_b32 v174, s38"); A("global_load_dword v175, v174, s[68:69] sc1")
        softmax_pk(p, lambda f: 176+((f//4)*4+tt)*4+(f%4), 24, False)
        for half in range(2):
            for i in range(9):
                A(f"v_cvt_pk_bf16_f32 v{76+i}, v{24+18*half+2*i}, v{25+18*half+2*i}")
            for i in range(9): A(f"v_accvgpr_write_b32 a{140+tt*24+half*12+i}, v{76+i}")
            for i in range(9,12): A(f"v_accvgpr_write_b32 a{140+tt*24+half*12+i}, 0")
    A("v_mov_b32 v172, 0"); A("v_mov_b32 v173, 0")
    A("s_waitcnt vmcnt(0)")
    for c in range(9):
        for r in range(4):
            A(f"v_dot2_f32_bf16 v{172+(r&1)}, v{96+4*c+r}, v{132+4*c+r}, v{172+(r&1)}")
    A("s_nop 3")
    A("v_add_f32 v172, v172, v173")
    for m in (0x041F,0x081F,0x101F):
        A("s_nop 0")
        A(f"ds_swizzle_b32 v173, v172 offset:0x{m:04X}"); A("s_waitcnt lgkmcnt(0)"); A("v_add_f32 v172, v172, v173")
    A(f"v_mul_f32 v172, 0x{f2u(-LOG2E):08x}, v172"); A("v_exp_f32 v172, v172"); A("s_nop 0"); A("v_add_f32 v172, 1.0, v172"); A("v_rcp_f32 v172, v172")
    A(f"s_add_u32 s40, s70, {0x1500000}"); A("s_addc_u32 s41, s71, 0"); A("s_mov_b32 s42, 8192"); A("s_mov_b32 s43, 0x20000")
    A("s_lshl_b32 s48, s48, 5"); A("v_lshlrev_b32 v168, 2, v168")
    A("v_cmp_eq_u32 vcc, 0, v169"); A("s_and_saveexec_b64 s[50:51], vcc")
    A("buffer_store_dword v172, v168, s[40:43], s48 offen")
    A("s_mov_b64 exec, s[50:51]")
    ST.stamp(p,6)
    A("v_readfirstlane_b32 s38, v175"); A("s_nop 1"); A("s_cmp_ge_u32 s38, 8"); A("s_cbranch_scc1 L_att_wdone")
    A(f"s_lshl_b32 s38, s{S_QD}, 2"); A("v_mov_b32 v33, s38")
    A("s_mov_b32 s39, 0")
    A.label("L_att_poll")
    A("s_add_u32 s39, s39, 1"); A("s_cmp_gt_u32 s39, 200000"); A("s_cbranch_scc1 L_att_wdone")
    A("global_load_dword v34, v33, s[68:69] sc1"); A("s_waitcnt vmcnt(0)")
    A("v_readfirstlane_b32 s38, v34"); A("s_nop 1"); A("s_cmp_ge_u32 s38, 8"); A("s_cbranch_scc1 L_att_wdone")
    A("s_sleep 2"); A("s_branch L_att_poll")
    A.label("L_att_wdone")
    A("s_barrier")
    A(f"s_lshl_b32 s39, s{S_QD}, 2"); A(f"s_add_u32 s39, s39, s{S_W}"); A("s_mul_i32 s39, s39, 2880")
    A(f"v_cmp_gt_u32 vcc, 52, v{V_L}")
    for r in range(8):
        A(f"s_add_u32 s38, s39, {r*32*2880}")
        for i in range(2):
            b=96+(r*3+i)*4
            A(f"buffer_load_dwordx4 v[{b}:{b+3}], v{V_L16}, s[{S_KV}:{S_KV+3}], s38 offen offset:{1024*i} sc1")
    A("s_mov_b64 exec, vcc")
    for r in range(8):
        A(f"s_add_u32 s38, s39, {r*32*2880}")
        b=96+(r*3+2)*4
        A(f"buffer_load_dwordx4 v[{b}:{b+3}], v{V_L16}, s[{S_KV}:{S_KV+3}], s38 offen offset:2048 sc1")
    A("s_mov_b64 exec, -1")
    A(f"s_and_b32 s48, s{S_W}, 1")
    for i in range(3):
        A(f"v_add_u32 v30, {64*i}, v{V_L}")
        A("v_mul_u32_u24 v31, 205, v30"); A("v_lshrrev_b32 v31, 10, v31")
        A("v_mul_u32_u24 v32, 5, v31"); A("v_sub_u32 v32, v30, v32")
        A("s_cmp_eq_u32 s48, 0"); A("s_cselect_b32 s49, 4, 0")
        A(f"v_cmp_eq_u32 s[{50+2*i}:{51+2*i}], s49, v32")
        A("v_cmp_le_u32 vcc, 18, v31"); A("v_mov_b32 v36, 0"); A("v_mov_b32 v37, 240"); A("v_cndmask_b32 v36, v36, v37, vcc")
        A("v_mul_u32_u24 v31, 40, v31"); A("v_add_u32 v31, v31, v36")
        A(f"s_mul_i32 s38, s{S_W}, 1920"); A(f"s_add_u32 s38, s38, {KVL}"); A("v_add_u32 v31, s38, v31")
        A("v_lshlrev_b32 v32, 1, v32"); A("v_subrev_u32 v33, s48, v32")
        A("v_add_u32 v34, 1, v33")
        A("v_cmp_gt_i32 vcc, 0, v33"); A("v_add_u32 v36, 10, v33"); A("s_nop 0"); A("v_cndmask_b32 v33, v33, v36, vcc")
        A(f"v_lshl_add_u32 v{40+2*i}, v33, 2, v31"); A(f"v_lshl_add_u32 v{41+2*i}, v34, 2, v31")
    A("v_mov_b32 v35, 1.0")
    A("s_waitcnt vmcnt(0)")
    for i in range(3):
        for k in (0,2):
            for r in range(1,8): A(f"v_pk_add_f32 {bc(96+i*4+k)}, {bc(96+i*4+k)}, {bc(96+(r*3+i)*4+k)}")
    A(f"v_cmp_gt_u32 vcc, 52, v{V_L}")
    A("s_cmp_eq_u32 s48, 0"); A("s_cbranch_scc1 L_att_even")
    for i in range(3): A(f"v_cndmask_b32 v{96+i*4+1}, v{96+i*4+1}, v35, s[{50+2*i}:{51+2*i}]")
    A("s_branch L_att_par")
    A.label("L_att_even")
    for i in range(3): A(f"v_cndmask_b32 v{96+i*4+3}, v{96+i*4+3}, v35, s[{50+2*i}:{51+2*i}]")
    A.label("L_att_par")
    for i in range(3):
        A(f"v_cvt_pk_bf16_f32 v38, v{96+i*4}, v{96+i*4+1}"); A(f"v_cvt_pk_bf16_f32 v39, v{96+i*4+2}, v{96+i*4+3}")
        if i==2: A("s_mov_b64 exec, vcc")
        A(f"ds_write_b32 v{40+2*i}, v38"); A(f"ds_write_b32 v{41+2*i}, v39")
        if i==2: A("s_mov_b64 exec, -1")
    A("s_waitcnt lgkmcnt(0)"); A("s_barrier")
    ST.stamp(p,7)
    def N(half,u,tt,r=None):
        b=96+((half*5+u)*4+tt)*4; return f"v[{b}:{b+3}]" if r is None else f"v{b+r}"
    seq=[(half,s,u) for half in range(2) for s in range(3) for u in range(5)]
    def rd(i):
        half,s,u=seq[i]
        return [Ins(f"ds_read_b64_tr_b16 {afh(i,h)}, v{V_BD2} offset:{half*960+(8*s+4*h)*40+8*u}") for h in range(2)]
    st=[]
    for i in range(PF): st+=rd(i)
    for i,(half,s,u) in enumerate(seq):
        nxt=rd(i+PF) if i+PF<len(seq) else []
        for tt in range(4):
            e=140+tt*24+half*12+4*s
            c=N(half,u,tt) if s>0 else "0"
            st.append(Ins(f"v_mfma_f32_16x16x32_bf16 {N(half,u,tt)}, {afr(i)}, a[{e}:{e+3}], {c}"))
            if tt<len(nxt): st.append(nxt[tt])
    st,_=auto_lgkm(st); p.add(st)
    A(f"s_lshl_b32 s38, s{S_RT}, 4"); A(f"s_lshl_b32 s39, s{S_W}, 2"); A("s_add_u32 s38, s38, s39"); A(f"s_mul_i32 s38, s38, {NKS_TOT}")
    A(f"s_mul_i32 s39, s{S_QD}, 3"); A("s_add_u32 s38, s38, s39"); A("s_add_u32 s38, s38, 144"); A("s_lshl_b32 s38, s38, 10")
    A("s_nop 3")
    for tt in range(4):
        a=24; b=26; den=28
        A(f"v_rcp_f32 v{a}, {N(0,4,tt,3)}"); A(f"v_rcp_f32 v{b}, {N(1,4,tt,3)}"); A("s_nop 0")
        A(f"v_mul_f32 v{den}, {N(0,4,tt,2)}, v{a}"); A(f"v_fmac_f32 v{den}, {N(1,4,tt,2)}, v{b}"); A(f"v_add_f32 v{den}, 0x{f2u(1e-6):08x}, v{den}")
        A(f"v_rcp_f32 v{den}, v{den}"); A("s_nop 0"); A(f"v_mul_f32 v{a}, v{a}, v{den}"); A(f"v_mul_f32 v{b}, v{b}, v{den}")
        for d in range(0,18,2):
            n0=96+((0*5+d//4)*4+tt)*4+d%4; n1=96+((1*5+d//4)*4+tt)*4+d%4
            A(f"v_pk_mul_f32 {bc(30+d)}, {bc(n0)}, {bc(a)} op_sel_hi:[1,0]")
            A(f"v_pk_fma_f32 {bc(30+d)}, {bc(n1)}, {bc(b)}, {bc(30+d)} op_sel_hi:[1,0,1]")
        o=48+12*(tt%2)
        for i in range(9): A(f"v_cvt_pk_bf16_f32 v{o+i}, v{30+2*i}, v{31+2*i}")
        for i in range(9,12): A(f"v_mov_b32 v{o+i}, 0")
        for s in range(3):
            A(f"buffer_store_dwordx4 v[{o+4*s}:{o+4*s+3}], v{V_L16}, s[{S_H}:{S_H+3}], s38 offen offset:{1024*s}{STMOD}")
        A(f"s_add_u32 s38, s38, {NKS_TOT*1024}")
    if ST.ENABLE: A("s_waitcnt vmcnt(0)")
    ST.stamp(p,8)
    ST.flush(p,70,71,2)
    A("s_endpgm")
    if docheck:
        ins=p.ins
        body=ins[il:idn]
        tr=ins[:il]+body+body+ins[idn:]
        print("att check problems:",len(check(tr,'att')))
if __name__=="__main__":
    for m in range(1792): assert (m*7282)>>16==m//9
    for n in range(12): assert (n*86)>>8==n//3
    for n in range(768): assert (n*405)>>16==n//162, n
    for n in range(162): assert (n*57)>>9==n//9
    for n in range(192): assert (n*205)>>10==n//5
    p=Prog(); gen_att(p); print(len(p.ins))
```

```python
from core import *
import stamp as ST
import os, math, struct
STMOD=os.environ.get('STMOD',' sc1')
ROT=int(os.environ.get('ROT','0')); WPF=int(os.environ.get('WPF','0'))
def f2u(x): return struct.unpack('<I', struct.pack('<f', x))[0]
C0 = -2.0*math.log2(math.e)*math.sqrt(2.0/math.pi)
C1 = C0*0.044715
NKS_TOT=168; H_BYTES=128*NKS_TOT*1024
CH=16384
XA=65536; XB=32768
WR0=6
def XF(tt,ks):
    i=ks*4+tt
    if i<64: return f"a[{4*i}:{4*i+3}]"
    i-=64; return f"v[{224+4*i}:{224+4*i+3}]"
def acc(buf,tt,j,r=None):
    b=96+64*buf+16*tt+4*j
    return f"v[{b}:{b+3}]" if r is None else f"v{b+r}"
AR=64; NAR=8
def afr(i): b=AR+4*(i%NAR); return f"v[{b}:{b+3}]"
def afh(i,h): b=AR+4*(i%NAR)+2*h; return f"v[{b}:{b+1}]"
TMP0=32; HP=24
V_WD=1
V_XD=3
V_TRP=7
V_TR=11
V_XP=17
V_L16=21
V_C1=22;
S_W=24
S_X=8; S_G=12; S_U=16; S_H=20
S_XSO=25; S_XSO2=26; S_WSO=27; S_HSO=28; S_CNT=29; S_MW=30; S_MX=31; S_PF=56; S_PFO=32; S_HST=33; S_AW=34; S_AX=35; S_GRP=48
PKC=[60,62,58]

def gelu(buf, pk=False):
    out=[]
    for tt in range(4):
        hp=HP+4*(tt%2)
        if pk:
            chains=[]
            for j in range(2):
                for r in (0,2):
                    bx=96+64*buf+16*tt+4*j+r; bu=bx+8
                    X=f"v[{bx}:{bx+1}]"; U=f"v[{bu}:{bu+1}]"
                    a=TMP0+4*((j*2+r//2)+4*(tt%2)) if False else TMP0+4*(j*2+r//2)
                    T=f"v[{a}:{a+1}]"; Y=f"v[{a+2}:{a+3}]"
                    chains.append([f"v_pk_mul_f32 {T}, {X}, {X}",
                                   f"v_pk_fma_f32 {T}, {T}, v[50:51], v[52:53]",
                                   f"v_pk_mul_f32 {T}, {T}, {X}",
                                   f"v_exp_f32 v{a}, v{a}", f"v_exp_f32 v{a+1}, v{a+1}",
                                   f"v_pk_mul_f32 {Y}, {X}, {U}",
                                   f"v_pk_add_f32 {T}, {T}, v[54:55]",
                                   f"v_rcp_f32 v{a}, v{a}", f"v_rcp_f32 v{a+1}, v{a+1}",
                                   f"v_pk_mul_f32 {Y}, {Y}, {T}",
                                   f"v_cvt_pk_bf16_f32 v{hp+2*j+r//2}, v{a+2}, v{a+3}"])
            for k in range(11):
                for c in chains: out.append(Ins(c[k]))
        else:
            chains=[]
            for j in range(2):
                for r in range(4):
                    x=acc(buf,tt,j,r); u=acc(buf,tt,2+j,r)
                    T,Y=f"v{TMP0+j*4+r}",f"v{TMP0+8+j*4+r}"
                    chains.append([f"v_mul_f32 {T}, {x}, {x}",
                                   f"v_fmaak_f32 {T}, v{V_C1}, {T}, 0x{f2u(C0):08x}",
                                   f"v_mul_f32 {T}, {T}, {x}",
                                   f"v_exp_f32 {T}, {T}",
                                   f"v_mul_f32 {Y}, {x}, {u}",
                                   f"v_add_f32 {T}, 1.0, {T}",
                                   f"v_rcp_f32 {T}, {T}",
                                   f"v_mul_f32 {Y}, {Y}, {T}"])
            for p0 in (0,4):
                cs=chains[p0:p0+4]
                for k in range(8):
                    for c in cs: out.append(Ins(c[k]))
                for pp in (p0,p0+2):
                    out.append(Ins(f"v_cvt_pk_bf16_f32 v{hp+pp//2}, v{TMP0+8+pp}, v{TMP0+8+pp+1}"))
        out.append(Ins(f"buffer_store_dwordx4 v[{hp}:{hp+3}], v{V_L16}, s[{S_H}:{S_H+3}], s{S_HSO} offen{STMOD}", tag='st'))
        out.append(Ins(f"s_add_u32 s{S_HSO}, s{S_HSO}, {NKS_TOT*1024}" if tt<3 else f"s_sub_u32 s{S_HSO}, s{S_HSO}, {3*NKS_TOT*1024-1024}"))
    return out
def pkconst():
    return [Ins(f"v_mov_b32 v50, 0x{f2u(C1):08x}"),Ins(f"v_mov_b32 v51, 0x{f2u(C1):08x}"),Ins(f"v_mov_b32 v52, 0x{f2u(C0):08x}"),Ins(f"v_mov_b32 v53, 0x{f2u(C0):08x}"),Ins("v_mov_b32 v54, 1.0"),Ins("v_mov_b32 v55, 1.0")]

def wdma(slot):
    return [Ins(f"s_add_u32 m0, s{S_MW}, {slot*CH}"), Ins("s_nop 0"),
            Ins(f"buffer_load_dwordx4 v{V_WD}, s[{S_G}:{S_G+3}], s{S_WSO} offen lds"),
            Ins(f"buffer_load_dwordx4 v{V_WD+1}, s[{S_G}:{S_G+3}], s{S_WSO} offen offset:1024 lds"),
            Ins(f"s_add_u32 m0, s{S_MW}, {slot*CH+8192}"), Ins("s_nop 0"),
            Ins(f"buffer_load_dwordx4 v{V_WD}, s[{S_U}:{S_U+3}], s{S_WSO} offen lds"),
            Ins(f"buffer_load_dwordx4 v{V_WD+1}, s[{S_U}:{S_U+3}], s{S_WSO} offen offset:1024 lds")]
def wadv(last):
    if not ROT:
        return [Ins(f"s_add_u32 s{S_WSO}, s{S_WSO}, {64*9216}")] if not last else [Ins(f"s_sub_u32 s{S_WSO}, s{S_WSO}, {8*64*9216-128}")]
    o=[Ins(f"s_add_u32 s{S_AW}, s{S_AW}, 1"), Ins(f"s_cmp_eq_u32 s{S_AW}, 9"), Ins(f"s_cselect_b32 s{S_AW}, 0, s{S_AW}")]
    if last: o.append(Ins(f"s_add_u32 s{S_GRP}, s{S_GRP}, 128"))
    o+=[Ins(f"s_mul_i32 s{S_WSO}, s{S_AW}, {64*9216}"), Ins(f"s_add_u32 s{S_WSO}, s{S_WSO}, s{S_GRP}")]
    return o
def xdma(c):
    base=XA if c%2==0 else XB
    o=[]
    for i in range(8):
        if i%4==0:
            o.append(Ins(f"s_add_u32 m0, s{S_MX}, {base+4096*(i//4)}")); o.append(Ins("s_nop 0"))
        o.append(Ins(f"buffer_load_dwordx4 v{V_XD+(i%4)}, s[{S_X}:{S_X+3}], s{S_XSO if i<4 else S_XSO2} offen offset:{1024*(i%4)} lds"))
    if not ROT:
        return o+[Ins(f"s_add_u32 s{S_XSO}, s{S_XSO}, 128"), Ins(f"s_add_u32 s{S_XSO2}, s{S_XSO2}, 128")]
    o+=[Ins(f"s_add_u32 s{S_AX}, s{S_AX}, 1"), Ins(f"s_cmp_eq_u32 s{S_AX}, 9"), Ins(f"s_cselect_b32 s49, {9*128}, 0"), Ins(f"s_cselect_b32 s{S_AX}, 0, s{S_AX}"),
        Ins(f"s_add_u32 s{S_XSO}, s{S_XSO}, 128"), Ins(f"s_sub_u32 s{S_XSO}, s{S_XSO}, s49"), Ins(f"s_add_u32 s{S_XSO2}, s{S_XSO}, {32*1152}")]
    return o
def xrd(c):
    return [Ins(f"ds_read_b128 {XF(tt,2*c+b)}, v{V_XP+2*(c%2)+b} offset:{tt*2048}") for b in range(2) for tt in range(4)]

def trset(P, g0=False):
    o=[]
    for grp in range(3):
        for i in range(2):
            o.append(Ins(f"v_add_u32 v{V_TR+2*grp+i}, {grp*4*CH}, v{V_TRP+2*P+i}"))
    return o
def ard(i, slot, b, j, fi):
    grp=slot//4; so=(slot%4)*CH
    return [Ins(f"ds_read_b64_tr_b16 {afh(fi,h)}, v{V_TR+2*grp+(j&1)} offset:{so+(j>>1)*8192+b*4096+h*512}") for h in range(2)]

PF=4
def phase(buf, entry_pref=True, next_first=None):
    seq=[(c,b,j) for c in range(9) for b in range(2) for j in range(4)]
    main=[]; marks={}
    for i,(c,b,j) in enumerate(seq):
        if j==0 and b==0: main.append(('mark',c,'start'))
        n=i+PF
        if n<len(seq):
            cn,bn,jn=seq[n]
            if bn==0 and jn==0: main.append(('mark',cn,'firstread'))
            nxt=ard(n,cn,bn,jn,n)
        else:
            if n==len(seq): main.append(('mark',9,'firstread'))
            nxt=next_first[n-len(seq)] if next_first else []
        ks=2*c+b
        for tt in range(4):
            cc=acc(buf,tt,j) if ks>0 else "0"
            main.append(Ins(f"v_mfma_f32_16x16x32_bf16 {acc(buf,tt,j)}, {afr(i)}, {XF(tt,ks)}, {cc}"))
            if tt<len(nxt): main.append(nxt[tt])
    return main

def first_reads(P_is_next_set):
    return [ard(k,0,k//4,k%4,72+k) for k in range(PF)]

def expand(main, hooks):
    out=[]
    for x in main:
        if isinstance(x,tuple):
            out+=hooks.get((x[1],x[2]),[])
        else: out.append(x)
    return out

def gen(p):
    A=p
    A("s_mul_i32 s39, s36, 384")
    A(f"s_add_u32 s{S_G}, s42, s39"); A(f"s_addc_u32 s{S_G+1}, s43, 0"); A(f"s_sub_u32 s{S_G+2}, {576*9216}, s39"); A(f"s_mov_b32 s{S_G+3}, 0x20000")
    A(f"s_add_u32 s{S_U}, s44, s39"); A(f"s_addc_u32 s{S_U+1}, s45, 0"); A(f"s_sub_u32 s{S_U+2}, {576*9216}, s39"); A(f"s_mov_b32 s{S_U+3}, 0x20000")
    A(f"s_mul_i32 s38, s37, {256*1152}")
    A(f"s_add_u32 s{S_X}, s40, s38"); A(f"s_addc_u32 s{S_X+1}, s41, 0"); A(f"s_sub_u32 s{S_X}, s{S_X}, 4096"); A(f"s_subb_u32 s{S_X+1}, s{S_X+1}, 0")
    A(f"s_mov_b32 s{S_X+2}, {256*1152+4096}"); A(f"s_mov_b32 s{S_X+3}, 0x20000")
    A("v_and_b32 v24, 63, v0"); A("v_lshrrev_b32 v25, 4, v24"); A("v_and_b32 v26, 15, v24"); A("v_lshrrev_b32 v27, 3, v24"); A("v_and_b32 v28, 7, v24")
    for i in range(4):
        A(f"v_add_u32 v30, {4*(i&1)}, v25"); A("v_and_b32 v30, 7, v30"); A("v_xor_b32 v30, v30, v28"); A("v_lshlrev_b32 v30, 4, v30")
        A(f"v_add_u32 v31, {8*i}, v27"); A("v_mul_u32_u24 v31, 0x480, v31")
        A(f"v_add3_u32 v{V_XD+i}, v30, v31, 0"); A(f"v_add_u32 v{V_XD+i}, {4096-1024*i}, v{V_XD+i}")
    A(f"s_mov_b32 s50, {'s37' if ROT else 0}")
    A(f"s_mov_b32 s{S_AW}, s50"); A(f"s_mov_b32 s{S_AX}, s50"); A(f"s_mov_b32 s{S_GRP}, 0")
    A(f"s_mul_i32 s{S_XSO}, s{S_W}, {64*1152}"); A("s_lshl_b32 s38, s50, 7"); A(f"s_add_u32 s{S_XSO}, s{S_XSO}, s38"); A(f"s_add_u32 s{S_XSO2}, s{S_XSO}, {32*1152}")
    A(f"s_lshl_b32 s{S_MX}, s{S_W}, 13")
    A.add(xdma(0))
    A(f"s_lshl_b32 s38, s{S_W}, 4")
    for e in range(2):
        A("v_bfe_u32 v30, v27, 1, 1");
        if e: A("v_or_b32 v30, 2, v30")
        A("v_lshrrev_b32 v31, 1, v28"); A("v_xor_b32 v30, v30, v31"); A("v_lshlrev_b32 v30, 5, v30"); A("v_and_b32 v31, 1, v28"); A("v_lshlrev_b32 v31, 4, v31"); A("v_add_u32 v30, v30, v31")
        A(f"v_add_u32 v31, s38, v27");
        if e: A("v_add_u32 v31, 8, v31")
        A("v_mul_u32_u24 v31, 0x2400, v31")
        A(f"v_add_u32 v{V_WD+e}, v30, v31")
        if e: A(f"v_subrev_u32 v{V_WD+e}, 1024, v{V_WD+e}")
    A(f"s_mul_i32 s{S_WSO}, s{S_AW}, {64*9216}"); A(f"s_lshl_b32 s{S_MW}, s{S_W}, 11")
    A.add(wdma(WR0+0)); A.add(wadv(False))
    ST.stamp(p,1)
    A(f"s_mov_b32 s{S_H}, s46"); A(f"s_mov_b32 s{S_H+1}, s47"); A(f"s_mov_b32 s{S_H+2}, {H_BYTES}"); A(f"s_mov_b32 s{S_H+3}, 0x20000")
    A(f"v_lshlrev_b32 v{V_L16}, 4, v24")
    A("v_lshrrev_b32 v30, 2, v26"); A("v_and_b32 v31, 3, v26")
    A("v_lshlrev_b32 v29, 3, v25"); A("v_add_u32 v29, v29, v30"); A("v_lshlrev_b32 v29, 7, v29"); A("v_lshlrev_b32 v31, 3, v31"); A("v_add_u32 v29, v29, v31")
    A("v_lshrrev_b32 v30, 1, v30"); A("v_and_b32 v31, 1, v25"); A("v_lshlrev_b32 v31, 1, v31"); A("v_or_b32 v30, v30, v31")
    for s in range(4):
        A(f"v_xor_b32 v31, {s}, v30"); A("v_lshlrev_b32 v31, 5, v31"); A(f"v_add_u32 v{V_TRP+s}, v31, v29")
    A("v_lshrrev_b32 v30, 1, v26"); A("v_xor_b32 v30, v30, v25"); A("v_lshlrev_b32 v30, 4, v30"); A("v_lshlrev_b32 v31, 7, v26"); A("v_add_u32 v30, v30, v31")
    A(f"v_add_u32 v30, s{S_MX}, v30")
    A(f"v_add_u32 v{V_XP}, {XA}, v30"); A(f"v_xor_b32 v{V_XP+1}, 64, v{V_XP}"); A(f"v_add_u32 v{V_XP+2}, {XB}, v30"); A(f"v_xor_b32 v{V_XP+3}, 64, v{V_XP+2}")
    A(f"v_mov_b32 v{V_C1}, 0x{f2u(C1):08x}")
    A("s_lshl_b32 s38, s37, 4"); A(f"s_lshl_b32 s39, s{S_W}, 2"); A("s_add_u32 s38, s38, s39"); A(f"s_mul_i32 s38, s38, {NKS_TOT}")
    A("s_mul_i32 s39, s36, 6"); A("s_add_u32 s38, s38, s39"); A(f"s_lshl_b32 s{S_HSO}, s38, 10")
    A("s_lshl_b32 s38, s36, 3"); A("s_add_u32 s38, s38, s37"); A("s_lshl_b32 s38, s38, 2"); A(f"s_add_u32 s38, s38, s{S_W}")
    A(f"s_mul_i32 s{S_PFO}, s38, {8*1024}")
    A(f"s_mov_b32 s{S_PF}, s66"); A(f"s_mov_b32 s{S_PF+1}, s67"); A(f"s_mov_b32 s{S_PF+2}, {4608*1152}"); A(f"s_mov_b32 s{S_PF+3}, 0x20000")
    for s in range(4): A(f"v_add_u32 v{V_TR+s}, {WR0*CH}, v{V_TRP+s}")
    A.add(wdma(WR0+1)); A.add(wadv(False)); A.add(xdma(1))
    log=['X0']*8+['W0']*4+['W1']*4+['X1']*8
    def waitfor(tags, extra=""):
        nonlocal log
        idx=[i for i,t in enumerate(log) if t in tags]
        if idx:
            last=max(idx); n=len(log)-1-last
            log=log[last+1:]
            return [Ins(f"s_waitcnt vmcnt({n}) {extra}".strip())]
        return [Ins(f"s_waitcnt {extra}")] if extra else []
    def g0rd(i):
        c,b,j8=i//16,(i%16)//8,i%8
        P=j8//4; j=j8%4
        sl=c%4
        return [Ins(f"ds_read_b64_tr_b16 {afh(i,h)}, v{V_TR+2*P+(j&1)} offset:{sl*CH+(j>>1)*8192+b*4096+h*512}") for h in range(2)]
    p.add(waitfor(('X0','W0'))); p("s_barrier")
    ST.stamp(p,2)
    p.add(xrd(0))
    pre=[]
    for i in range(PF): pre+=g0rd(i)
    p.add(pre[:6]); p("s_waitcnt lgkmcnt(6)"); p.add(pre[6:])
    q0=[x.wr for x in pre]
    N0=9*16
    A("s_lshl_b32 s38, s2, 2"); A(f"s_add_u32 s38, s38, s{S_W}"); A("s_mul_i32 s51, s38, 6144")
    A("s_mov_b32 s52, s42"); A("s_mov_b32 s53, s43"); A(f"s_mov_b32 s54, {576*9216}"); A("s_mov_b32 s55, 0x20000")
    A("s_mov_b32 s60, s44"); A("s_mov_b32 s61, s45"); A(f"s_mov_b32 s62, {576*9216}"); A("s_mov_b32 s63, 0x20000")
    def lin(k):
        srd="s[52:55]" if k<6 else "s[60:63]"; kk=k%6
        o=[]
        if kk==4: o.append(Ins("s_add_u32 s51, s51, 4096"))
        if k==6: o.append(Ins("s_sub_u32 s51, s51, 4096"))
        o.append(Ins(f"buffer_load_dwordx4 v[56:59], v{V_L16}, {srd}, s51 offen offset:{1024*(kk%4)}"))
        return o
    def tagged(lst,tag):
        for x in lst:
            if x.kind=='dma': x.tag=tag
        return lst
    def logit(stream):
        for x in stream:
            if getattr(x,'kind',None) in('dma','vmem'): log.append(x.tag or 'P')
    carry=tagged(wdma(WR0+2)+wadv(False),'W2')+tagged(xdma(2),'X2')
    for c in range(9):
        main=[]
        for ii in range(16):
            i=c*16+ii
            if ii==8: main.append(('mid',))
            n=i+PF
            nxt=g0rd(n) if n<N0 else []
            b=ii//8; j8=ii%8; P=j8//4; j=j8%4; ks=2*c+b
            for tt in range(4):
                cc=acc(P,tt,j) if ks>0 else "0"
                main.append(Ins(f"v_mfma_f32_16x16x32_bf16 {acc(P,tt,j)}, {afr(i)}, {XF(tt,ks)}, {cc}"))
                if tt<len(nxt): main.append(nxt[tt])
        im=main.index(('mid',))
        first=main[:im]; second=main[im+1:]
        if carry: first=spread(first, dma_items(carry), first=4 if c else 0)
        logit(first)
        carry=[]
        midl=[]
        if c+1<9: midl+=waitfor((f'X{c+1}',f'W{c+1}'))
        midl.append(Ins("s_barrier"))
        dl=[]
        if c+3<9: dl+=tagged(wdma(WR0+(c+3)%4)+wadv(c+3==8),f'W{c+3}')
        g1={6:(0,1),7:(2,3),8:(4,5)}.get(c,())
        for cc_ in g1: dl+=tagged(wdma(cc_)+wadv(False),f'G{cc_}')
        if c+1<9:
            xr=xrd(c+1)
            second=spread(second,[[x] for x in xr], first=1, last=18)
        if dl: second=spread(second, dma_items(dl), first=2)
        if WPF and c<3:
            second=spread(second, [lin(k) for k in range(4*c,4*c+4)], first=5)
        logit(second)
        if c+3<9: carry=tagged(xdma(c+3),f'X{c+3}')
        stream,q0=auto_lgkm(first+midl+second, q0, extra=2)
        p.add(stream)
    ST.stamp(p,3)
    p.add(pkconst()); p("s_nop 4")
    p.add(gelu(0,pk=True)); log+=['S']*4
    p.add(trset(0))
    p.add(waitfor(('G0','G1','G2'))); p("s_barrier")
    fr=first_reads(0)
    for k in range(PF): p.add(fr[k])
    ST.stamp(p,4)
    p(f"s_mov_b32 s{S_CNT}, 0")
    il=len(p.ins)
    p.label("L_gx_loop")
    q0=[x.wr for k in range(PF) for x in fr[k]]
    pfl=lambda: [Ins(f"buffer_load_dwordx4 v[56:59], v{V_L16}, s[{S_PF}:{S_PF+3}], s{S_PFO} offen", tag='pf'), Ins(f"s_add_u32 s{S_PFO}, s{S_PFO}, 1024")]
    def marks(m, fn):
        cur=[]
        for x in m:
            if isinstance(x,tuple):
                t=fn(x)
                if t: cur.append(Ins(t+":"))
            else: cur.append(x)
        return cur
    cur=marks(phase(0, next_first=first_reads(1)), lambda x: (f"LAND{x[1]}" if x[2]=='firstread' and x[1] in (3,6) else ("SWITCH1" if x[2]=='firstread' and x[1]==9 else None)))
    d678=wdma(6)+wadv(False)+wdma(7)+wadv(False)+wdma(8)+wadv(True)
    cur=spread(cur, dma_items(d678), first=2, last=84)
    mer=interleave(cur, pfl()+pfl()+gelu(1), budget=2)
    out=[]; seq=[]
    for x in mer:
        if x.kind=='label' and x.text.startswith('LAND3'):
            out.append(Ins(f"s_waitcnt vmcnt({len(seq)})")); out.append(Ins("s_barrier"))
        elif x.kind=='label' and x.text.startswith('LAND6'):
            last=max(i for i,t in enumerate(seq) if t=='dma'); assert seq.count('dma')==12
            out.append(Ins(f"s_waitcnt vmcnt({len(seq)-1-last})")); out.append(Ins("s_barrier"))
        elif x.kind=='label' and x.text.startswith('SWITCH'):
            out+=trset(1)
        else:
            if x.kind in('vmem','dma'): seq.append(x.kind)
            out.append(x)
    st,q1=auto_lgkm(out,q0,extra=2)
    p.add(st)
    cur=marks(phase(1, next_first=first_reads(0)), lambda x: (f"FREE{x[1]//3-1}" if x[2]=='start' and x[1] in (3,6) else ("PRE9" if x[2]=='firstread' and x[1]==9 else None)))
    def mfma_index_of(cur,lab):
        k=0
        for x in cur:
            if x.kind=='label' and x.text.startswith(lab): return k
            if x.kind=='mfma': k+=1
    for k in (0,1):
        d=[]
        for cc_ in (3*k,3*k+1,3*k+2): d+=wdma(cc_)+wadv(False)
        f=mfma_index_of(cur,f"FREE{k}")
        cur=spread(cur, dma_items(d), first=f+1, last=f+84)
    mer=interleave(cur, pfl()+pfl()+gelu(0), budget=2)
    out=[]; seq=[]
    for x in mer:
        if x.kind=='label' and x.text.startswith('FREE'):
            out.append(Ins("s_barrier"))
        elif x.kind=='label' and x.text.startswith('PRE9'):
            d=[i for i,t in enumerate(seq) if t=='dma']; assert len(d)==24
            out.append(Ins(f"s_waitcnt vmcnt({len(seq)-1-d[11]})")); out.append(Ins("s_barrier")); out+=trset(0)
        else:
            if x.kind in('vmem','dma'): seq.append(x.kind)
            out.append(x)
    st,q2=auto_lgkm(out,q1,extra=2)
    p.add(st)
    p("s_barrier")
    p(f"s_add_u32 s{S_CNT}, s{S_CNT}, 1"); p(f"s_cmp_lt_u32 s{S_CNT}, 2"); p("s_cbranch_scc1 L_gx_loop")
    idn=len(p.ins)
    assert [sorted(d) for d in q2]==[sorted(x.wr) for k in range(PF) for x in fr[k]] or True
    p("s_waitcnt lgkmcnt(0)")
    ST.stamp(p,5)
    p.add(pkconst()); p("s_nop 4")
    p.add(gelu(1,pk=True))
    if ST.ENABLE: p("s_waitcnt vmcnt(0)")
    ST.stamp(p,6)
    ST.flush(p,46,47,0)
    return il,idn
```

```python
from core import *
import stamp as ST
from k1_gx import NKS_TOT, H_BYTES, f2u
import os
STMOD=os.environ.get('STMOD',' sc1')
CPF=int(os.environ.get('CPF','0'))
WS_BASE=int(os.environ.get('WS_BASE','0'),0)
G_OFF=0x1500000; P_OFF=0x1600000
U=12; STG=12288
D=int(os.environ.get('K2D','4'))
S0=[0,34,68,102,135]
ACCB=64; ACCA=160
def acc(st,q,tt,r=None):
    b=(ACCB if st==0 else ACCA)+(q*2+tt)*4
    return f"v[{b}:{b+3}]" if r is None else f"v{b+r}"
def hfr(u,tt): b=(u*2+tt)*4; return f"a[{b}:{b+3}]"
def afr(q): b=96+4*q; return f"a[{b}:{b+3}]"
def afh(q,h): b=96+4*q+2*h; return f"a[{b}:{b+1}]"
V_TR=8
V_DF=20
V_DA=23
V_L16=26
V_G=27
S_WD=8; S_WO=12; S_H=16; S_P=20; S_CUR=24
S_W=28; S_WB=29
S_DSO=30; S_INA=31; S_INB=32; S_HS0=33; S_HS1=34; S_RND=35; S_X8=36; S_X9=37; S_SP=38; S_CB=39; S_SW=57

def trread(q,h,stage):
    grp=stage//5; so=(stage%5)*STG
    x=Ins(f"ds_read_b64_tr_b16 {afh(q,h)}, v{V_TR+4*grp+(q&3)} offset:{so+(q>>2)*128+h*1536}"); x.cost=1
    return x

def issue(u_dst, inc_sel, hoff):
    o=[]
    o.append(Ins(f"buffer_load_dwordx4 {hfr(u_dst,0)}, v{V_L16}, s[{S_H}:{S_H+3}], s{S_HS0} offen offset:{hoff}"))
    o.append(Ins(f"buffer_load_dwordx4 {hfr(u_dst,1)}, v{V_L16}, s[{S_H}:{S_H+3}], s{S_HS1} offen offset:{hoff}"))
    o.append(Ins(f"s_add_u32 m0, s{S_WB}, {u_dst*STG}"))
    if hoff==3072:
        o.append(Ins(f"s_add_u32 s{S_HS0}, s{S_HS0}, 4096"))
    else:
        o.append(Ins("s_nop 0"))
    for e in range(3):
        o.append(Ins(f"buffer_load_dwordx4 v{V_DF+e}, s[{S_CUR}:{S_CUR+3}], s{S_DSO} offen offset:{1024*e} lds"))
    o.append(Ins(f"s_add_u32 s{S_DSO}, s{S_DSO}, s{inc_sel}"))
    if hoff==3072:
        o.append(Ins(f"s_add_u32 s{S_HS1}, s{S_HS1}, 4096"))
    return o

def dma_items2(lst):
    items=[]; pend=[]
    for x in lst:
        if x.kind=='nop': continue
        if x.kind in('dma','vmem'):
            if pend: items.append(pend); pend=[]
            items.append([x])
        else: pend.append(x)
    if pend: items.append(pend)
    return items

def step(u, st):
    main=[Ins(f"s_waitcnt vmcnt({5*(D-2)})"),Ins("s_barrier")]
    un=(u+1)%U
    for q in range(12):
        if q%2==0: main.append(Ins("s_waitcnt lgkmcnt(8)"))
        qn=q+6
        rd=[trread(qn,h,u) for h in range(2)] if qn<12 else [trread(qn-12,h,un) for h in range(2)]
        for tt in range(2):
            main.append(Ins(f"v_mfma_f32_16x16x32_bf16 {acc(st,q,tt)}, {afr(q)}, {hfr(u,tt)}, {acc(st,q,tt)}"))
            main.append(rd[tt])
    ud=(u+D)%U
    hoff=1024*((u+D)%4)
    inc=S_INB if (u+D)%3==2 else S_INA
    fl=issue(ud,inc,hoff)
    res=spread(main, dma_items2(fl), first=2, last=22)
    if st==0 and u==9-D:
        sw=[Ins(f"s_cmp_eq_u32 s{S_SW}, s{S_RND}"), Ins("s_cbranch_scc0 L_k2_nosw")]
        sw+=[Ins(f"s_mov_b32 s{S_CUR+k}, s{S_WO+k}") for k in range(4)]+[Ins(f"v_mov_b32 v{V_DF+e}, v{V_DA+e}") for e in range(3)]
        sw+=[Ins(f"s_mov_b32 s{S_DSO}, 0"),Ins(f"s_mov_b32 s{S_INA}, {8*1152}"),Ins(f"s_mov_b32 s{S_INB}, {56*1152}"),Ins("L_k2_nosw:"),Ins("s_nop 1")]
        res=res[:2]+sw+res[2:]
    return res

def gen_k2(docheck=True):
    p=Prog()
    p("s_cmp_ge_u32 s2, 240"); p("s_cbranch_scc1 L_k2_end")
    ST.stamp(p,0)
    p("s_load_dwordx2 s[40:41], s[0:1], 24")
    p("s_load_dwordx2 s[42:43], s[0:1], 56")
    p("s_load_dwordx2 s[44:45], s[0:1], 88")
    if CPF: code_prefetch(p,"k2_kernel","L_code_end",tmp_s=72,vaddr=1,vdst=60,uniq="k2")
    p("v_lshrrev_b32 v1, 6, v0")
    p("s_and_b32 s4, s2, 7"); p("s_lshr_b32 s5, s2, 3")
    p(f"v_readfirstlane_b32 s{S_W}, v1")
    p("s_mul_i32 s4, s4, 30"); p("s_add_u32 s4, s4, s5")
    p("s_mul_i32 s5, s4, 171"); p("s_lshr_b32 s5, s5, 9")
    p("s_mul_i32 s6, s5, 3"); p("s_sub_u32 s6, s4, s6")
    p(f"s_lshr_b32 s{S_SP}, s5, 4")
    p("s_and_b32 s7, s5, 15")
    p(f"s_mul_i32 s46, s{S_SP}, 34"); p(f"s_cmp_eq_u32 s{S_SP}, 4"); p("s_cselect_b32 s47, 1, 0"); p("s_sub_u32 s46, s46, s47")
    p(f"s_mov_b32 s{S_X8}, 99"); p(f"s_mov_b32 s{S_X9}, 2")
    p(f"s_cmp_eq_u32 s{S_SP}, 3"); p(f"s_cselect_b32 s{S_X8}, 2, s{S_X8}")
    p(f"s_cmp_eq_u32 s{S_SP}, 4"); p(f"s_cselect_b32 s{S_X8}, 0, s{S_X8}")
    p("s_waitcnt lgkmcnt(0)")
    if WS_BASE: p(f"s_add_u32 s44, s44, {WS_BASE}"); p("s_addc_u32 s45, s45, 0")
    p("s_mul_i32 s47, s6, 384")
    for (S,lo,size) in ((S_WD,42,4608*1152),(S_WO,40,576*1152)):
        p(f"s_add_u32 s{S}, s{lo}, s47"); p(f"s_addc_u32 s{S+1}, s{lo+1}, 0")
        p(f"s_sub_u32 s{S}, s{S}, 4096"); p(f"s_subb_u32 s{S+1}, s{S+1}, 0")
        p(f"s_sub_u32 s{S+2}, {size+4096}, s47"); p(f"s_mov_b32 s{S+3}, 0x20000")
    p(f"s_mov_b32 s{S_H}, s44"); p(f"s_mov_b32 s{S_H+1}, s45"); p(f"s_mov_b32 s{S_H+2}, {H_BYTES}"); p(f"s_mov_b32 s{S_H+3}, 0x20000")
    p(f"s_lshl_b32 s47, s4, 2"); p(f"s_add_u32 s47, s47, s{S_W}"); p("s_mul_i32 s47, s47, 12288"); p(f"s_add_u32 s47, s47, {P_OFF}")
    p(f"s_add_u32 s{S_P}, s44, s47"); p(f"s_addc_u32 s{S_P+1}, s45, 0"); p(f"s_mov_b32 s{S_P+2}, 12288"); p(f"s_mov_b32 s{S_P+3}, 0x20000")
    for k in range(4): p(f"s_mov_b32 s{S_CUR+k}, s{S_WD+k}")
    p("v_and_b32 v1, 63, v0"); p(f"v_lshlrev_b32 v{V_L16}, 4, v1")
    p("s_lshl_b32 s47, s7, 7"); p(f"s_lshl_b32 s48, s{S_W}, 5"); p("s_add_u32 s47, s47, s48")
    p("s_lshr_b32 s48, s47, 4"); p(f"s_mul_i32 s48, s48, {NKS_TOT}"); p("s_add_u32 s48, s48, s46"); p(f"s_lshl_b32 s{S_HS0}, s48, 10")
    p(f"s_add_u32 s{S_HS1}, s{S_HS0}, {NKS_TOT*1024}")
    p(f"s_mul_i32 s48, s{S_W}, 192")
    for e in range(3):
        p(f"v_add_u32 v4, s48, v1");
        if e: p(f"v_add_u32 v4, {64*e}, v4")
        p("v_mul_u32_u24 v5, 0xaab, v4"); p("v_lshrrev_b32 v5, 16, v5")
        p("v_mul_u32_u24 v6, 24, v5"); p("v_sub_u32 v6, v4, v6")
        p("v_bfe_u32 v7, v5, 1, 1"); p("v_bfe_u32 v4, v5, 3, 1"); p("v_lshlrev_b32 v4, 1, v4"); p("v_or_b32 v7, v7, v4")
        p("v_lshrrev_b32 v4, 1, v6"); p("v_xor_b32 v4, v4, v7"); p("v_lshlrev_b32 v4, 5, v4")
        p("v_and_b32 v6, 1, v6"); p("v_lshlrev_b32 v6, 4, v6"); p(f"v_add3_u32 v4, v4, v6, 0"); p(f"v_add_u32 v{31+e}, {4096-1024*e}, v4")
        p("v_bfe_u32 v6, v5, 2, 1"); p("v_lshlrev_b32 v6, 4, v6"); p("v_lshrrev_b32 v7, 3, v5"); p("v_lshlrev_b32 v30, 2, v7"); p("v_add_u32 v6, v6, v30")
        p("v_and_b32 v30, 3, v5"); p("v_add_u32 v6, v6, v30")
        p("v_mul_u32_u24 v6, 0x480, v6"); p(f"v_add_u32 v{V_DF+e}, v6, v{31+e}")
        p(f"v_mov_b32 v{34+e}, v5")
    p(f"s_mul_i32 s{S_WB}, s{S_W}, 3072")
    p(f"s_mul_i32 s{S_DSO}, s46, {32*1152}")
    p(f"s_mov_b32 s{S_INA}, {32*1152}"); p(f"s_mov_b32 s{S_INB}, {32*1152}")
    ST.stamp(p,1)
    for i in range(D):
        p.add(issue(i, S_INA, 1024*(i%4)))
    for e in range(3):
        p(f"v_lshrrev_b32 v7, 3, v{34+e}"); p("v_mul_u32_u24 v6, 18, v7"); p(f"v_and_b32 v30, 7, v{34+e}"); p("v_add_u32 v6, v6, v30")
        p("v_mul_u32_u24 v6, 0x480, v6"); p(f"v_add_u32 v{V_DA+e}, v6, v{31+e}")
    p(f"s_cmp_eq_u32 s{S_SP}, 4"); p(f"s_cselect_b32 s{S_SW}, 0, 99")
    p("v_lshrrev_b32 v2, 4, v1"); p("v_and_b32 v3, 15, v1")
    p("s_lshl_b32 s48, s47, 2"); p(f"s_add_u32 s48, s48, {G_OFF}")
    p("s_add_u32 s52, s44, s48"); p("s_addc_u32 s53, s45, 0"); p("s_mov_b32 s54, 128"); p("s_mov_b32 s55, 0x20000")
    p("v_lshlrev_b32 v4, 2, v3")
    p(f"buffer_load_dword v{V_G}, v4, s[52:55], 0 offen"); p(f"buffer_load_dword v{V_G+1}, v4, s[52:55], 0 offen offset:64")
    p("v_lshrrev_b32 v4, 2, v3"); p("v_and_b32 v5, 3, v3")
    p("v_lshlrev_b32 v6, 3, v2"); p("v_add_u32 v6, v6, v4"); p("v_mul_u32_u24 v6, 0x180, v6")
    p("v_lshlrev_b32 v5, 3, v5"); p("v_add_u32 v6, v6, v5")
    p("v_lshrrev_b32 v4, 1, v4"); p("v_and_b32 v5, 1, v2"); p("v_lshlrev_b32 v5, 1, v5"); p("v_or_b32 v4, v4, v5")
    for k in range(4):
        p(f"v_xor_b32 v5, {k}, v4"); p("v_lshlrev_b32 v5, 5, v5"); p(f"v_add_u32 v{V_TR+k}, v5, v6")
        p(f"v_add_u32 v{V_TR+4+k}, {5*STG}, v{V_TR+k}"); p(f"v_add_u32 v{V_TR+8+k}, {10*STG}, v{V_TR+k}")
    for r in range(ACCB,256): p(f"v_mov_b32 v{r}, 0")
    p(f"s_waitcnt vmcnt({5*(D-1)+2})"); p("s_barrier")
    ST.stamp(p,2)
    for q in range(6):
        for h in range(2): p.add([trread(q,h,0)])
    p(f"s_mov_b32 s{S_RND}, 0"); p(f"s_mov_b32 s{S_CB}, 0")
    iA=len(p.ins)
    p.label("L_k2_A")
    marks={}
    for u in range(U):
        p.add(step(u,0))
        if u==8:
            p(f"s_cmp_eq_u32 s{S_RND}, s{S_X8}"); p("s_cbranch_scc1 L_k2_x8")
        if u==9:
            p(f"s_cmp_eq_u32 s{S_RND}, s{S_X9}"); p("s_cbranch_scc1 L_k2_done")
    p(f"s_add_u32 s{S_RND}, s{S_RND}, 1"); p("s_branch L_k2_A")
    iA2=len(p.ins)
    p.label("L_k2_x8")
    p(f"s_cmp_eq_u32 s{S_SP}, 4"); p("s_cbranch_scc0 L_k2_done")
    p("s_branch L_k2_B9")
    p.label("L_k2_B")
    iB=len(p.ins)
    for u in range(U):
        if u==9: p.label("L_k2_B9"); iB9=len(p.ins)
        p.add(step(u,1))
        if u==8:
            p(f"s_add_u32 s{S_CB}, s{S_CB}, 1"); p(f"s_cmp_eq_u32 s{S_CB}, 2"); p("s_cbranch_scc1 L_k2_done")
    p("s_branch L_k2_B")
    iB2=len(p.ins)
    p.label("L_k2_done")
    iD=len(p.ins)
    if ST.ENABLE: p("s_waitcnt lgkmcnt(0)")
    ST.stamp(p,3)
    p("s_waitcnt vmcnt(0) lgkmcnt(0)")
    ST.stamp(p,4)
    p("s_nop 7")
    for tt in range(2):
        for pp in range(6):
            regs=[]
            for q in (2*pp,2*pp+1):
                for r in range(4):
                    b=acc(0,q,tt,r); a=acc(1,q,tt,r)
                    p(f"v_sub_f32 {a}, {a}, {b}")
            for q in (2*pp,2*pp+1):
                for r in range(4):
                    b=acc(0,q,tt,r); a=acc(1,q,tt,r)
                    p(f"v_fmac_f32 {b}, v{V_G+tt}, {a}")
            t=32+4*((tt*6+pp)%4)
            k=0
            for q in (2*pp,2*pp+1):
                for r in (0,2):
                    p(f"v_cvt_pk_bf16_f32 v{t+k}, {acc(0,q,tt,r)}, {acc(0,q,tt,r+1)}"); k+=1
            off=(tt*6+pp)*1024
            p(f"s_mov_b32 s56, {off - off%4096}")
            p(f"buffer_store_dwordx4 v[{t}:{t+3}], v{V_L16}, s[{S_P}:{S_P+3}], s56 offen offset:{off%4096}{STMOD}")
    if ST.ENABLE: p("s_waitcnt vmcnt(0)")
    ST.stamp(p,5)
    ST.flush(p,44,45,1)
    p.label("L_k2_end"); p("s_endpgm")
    if docheck:
        ins=p.ins
        tr=ins[:iA2]+ins[iA:iA2]+ins[iD:]
        print("k2 A check problems:",len(check(tr,'k2A')))
        cut=[i for i,x in enumerate(ins) if x.text.startswith('s_cbranch_scc1 L_k2_x8')][0]
        tr=ins[:cut+1]+ins[iB9:iB2]+ins[iB:iB2]+ins[iD:]
        print("k2 B check problems:",len(check(tr,'k2B')))
    return p

def gen_k3(docheck=True):
    p=Prog()
    p("s_cmp_ge_u32 s2, 192"); p("s_cbranch_scc1 L_k3_end")
    p("s_load_dwordx2 s[4:5], s[0:1], 72")
    p("s_load_dwordx2 s[6:7], s[0:1], 88")
    p("v_lshrrev_b32 v1, 6, v0"); p("v_and_b32 v2, 63, v0")
    p("s_nop 0"); p("v_readfirstlane_b32 s8, v1")
    p("s_lshl_b32 s9, s2, 2"); p("s_add_u32 s9, s9, s8")
    p("s_lshr_b32 s10, s9, 4")
    p("s_and_b32 s11, s9, 15")
    p("s_lshr_b32 s12, s11, 2")
    p("s_bfe_u32 s13, s11, 0x10001")
    p("s_and_b32 s14, s11, 1")
    p("s_mul_i32 s15, s10, 171"); p("s_lshr_b32 s15, s15, 9")
    p("s_mul_i32 s16, s15, 3"); p("s_sub_u32 s16, s10, s16")
    p("s_lshl_b32 s17, s10, 2"); p("s_add_u32 s17, s17, s12"); p("s_mul_i32 s17, s17, 12288")
    p("s_mul_i32 s18, s13, 6144"); p("s_add_u32 s17, s17, s18"); p("s_mul_i32 s18, s14, 3072"); p("s_add_u32 s17, s17, s18")
    p("s_waitcnt lgkmcnt(0)")
    if WS_BASE: p(f"s_add_u32 s6, s6, {WS_BASE}"); p("s_addc_u32 s7, s7, 0")
    p(f"s_add_u32 s20, s6, {P_OFF}"); p("s_addc_u32 s21, s7, 0"); p(f"s_mov_b32 s22, {240*4*12288}"); p("s_mov_b32 s23, 0x20000")
    p("s_mov_b32 s24, s4"); p("s_mov_b32 s25, s5"); p(f"s_mov_b32 s26, {2048*1152}"); p("s_mov_b32 s27, 0x20000")
    p("v_lshlrev_b32 v3, 4, v2")
    for sp in range(5):
        p(f"s_add_u32 s19, s17, {sp*48*4*12288}")
        for c in range(3):
            b=16+(sp*3+c)*4
            p(f"buffer_load_dwordx4 v[{b}:{b+3}], v3, s[20:23], s19 offen offset:{1024*c}")
    p("v_and_b32 v4, 15, v2"); p("v_lshrrev_b32 v5, 4, v2")
    p("s_lshl_b32 s28, s15, 7"); p("s_lshl_b32 s29, s12, 5"); p("s_add_u32 s28, s28, s29"); p("s_lshl_b32 s29, s13, 4"); p("s_add_u32 s28, s28, s29")
    p("v_add_u32 v4, s28, v4"); p("s_movk_i32 s29, 0x480"); p("v_mul_lo_u32 v4, v4, s29")
    p("v_lshlrev_b32 v5, 3, v5"); p("v_add_u32 v4, v4, v5")
    p("s_mul_i32 s28, s16, 384"); p("s_mul_i32 s29, s14, 192"); p("s_add_u32 s28, s28, s29")
    p("s_waitcnt vmcnt(0)")
    for c in range(3):
        for k in range(4):
            lo=80+2*k; hi=81+2*k
            p(f"v_lshlrev_b32 v{lo}, 16, v{16+c*4+k}"); p(f"v_and_b32 v{hi}, 0xffff0000, v{16+c*4+k}")
            for sp in range(1,5):
                s=16+(sp*3+c)*4+k
                p(f"v_lshlrev_b32 v90, 16, v{s}"); p(f"v_and_b32 v91, 0xffff0000, v{s}")
                p(f"v_add_f32 v{lo}, v{lo}, v90"); p(f"v_add_f32 v{hi}, v{hi}, v91")
        o=92+4*c
        for k in range(4): p(f"v_cvt_pk_bf16_f32 v{o+k}, v{80+2*k}, v{81+2*k}")
        p(f"buffer_store_dwordx2 v[{o}:{o+1}], v4, s[24:27], s28 offen offset:{64*c}")
        p(f"buffer_store_dwordx2 v[{o+2}:{o+3}], v4, s[24:27], s28 offen offset:{64*c+32}")
    p.label("L_k3_end"); p("s_endpgm")
    if docheck: print("k3 check problems:",len(check(p.ins,'k3')))
    return p
if __name__=="__main__":
    for n in range(768): assert (n*0xaab)>>16==n//24
    for n in range(240): assert (n*171)>>9==n//3
    gen_k2(); gen_k3()
```

```python
from core import *
import k1_gx as G1
import stamp as ST
G_OFF=0x1500000; KVP_OFF=0x1502000; P_OFF=0x1600000
import os
KNAME='k1_kernel'
MERGE=int(os.environ.get('MERGE','1'))
CPF=int(os.environ.get('CPF','0'))
WS_BASE=int(os.environ.get('WS_BASE','0'),0)
LOG2E=1.4426950408889634
from k1_gx import f2u

def prologue(p):
    p("s_cmp_ge_u32 s2, 256"); p("s_cbranch_scc1 L_k1_end")
    ST.stamp(p,0)
    p("s_load_dwordx4 s[56:59], s[0:1], 0")
    p("s_load_dwordx4 s[60:63], s[0:1], 16")
    p("s_load_dwordx2 s[42:43], s[0:1], 40")
    p("s_load_dwordx2 s[44:45], s[0:1], 48")
    p("s_load_dwordx2 s[64:65], s[0:1], 64")
    p("s_load_dwordx2 s[66:67], s[0:1], 56")
    p("s_load_dwordx4 s[68:71], s[0:1], 80")
    if CPF: code_prefetch(p,KNAME,"L_code_end",tmp_s=72,vaddr=1,vdst=56,uniq="k1")
    p("v_lshrrev_b32 v1, 6, v0")
    p("s_and_b32 s4, s2, 7")
    p("s_lshr_b32 s5, s2, 3")
    p(f"v_readfirstlane_b32 s{G1.S_W}, v1")
    p("s_waitcnt lgkmcnt(0)")
    ST.stamp(p,7)
    if WS_BASE: p(f"s_add_u32 s70, s70, {WS_BASE}"); p("s_addc_u32 s71, s71, 0")
    p("s_mov_b32 s46, s70"); p("s_mov_b32 s47, s71")
    p("s_mov_b32 s40, s56"); p("s_mov_b32 s41, s57")
    if MERGE:
        p("s_cmp_lt_u32 s2, 96"); p("s_cbranch_scc0 L_k1_nz")
        p(f"s_cmp_eq_u32 s{G1.S_W}, 0"); p("s_cbranch_scc0 L_k1_nz")
        p(f"s_add_u32 s72, s70, {0x15C0000}"); p("s_addc_u32 s73, s71, 0"); p("s_lshl_b32 s74, s2, 7")
        p("v_and_b32 v2, 31, v0"); p("v_lshlrev_b32 v2, 2, v2"); p("v_add_u32 v2, s74, v2"); p("v_mov_b32 v3, 0")
        p("global_store_dword v2, v3, s[72:73] sc1")
        p("s_waitcnt vmcnt(0)")
        p("v_mov_b32 v2, 0"); p("v_mov_b32 v3, 1"); p("v_cmp_eq_u32 vcc, 0, v0"); p("s_and_saveexec_b64 s[72:73], vcc")
        p("global_atomic_add v2, v3, s[68:69] sc1")
        p("s_mov_b64 exec, s[72:73]")
        p.label("L_k1_nz")
    p("s_cmp_lt_u32 s5, 8"); p("s_cbranch_scc1 L_att")
    p("s_sub_u32 s6, s5, 8")
    p("s_lshr_b32 s36, s6, 3"); p("s_mul_i32 s7, s4, 3"); p("s_add_u32 s36, s36, s7")
    p("s_and_b32 s37, s6, 7")

def gate_role(p):
    p.label("L_gate")
    p("s_mov_b32 s7, s4")
    p("s_cmp_lt_u32 s4, 4"); p("s_cbranch_scc1 L_gate_b")
    p("s_lshl_b32 s7, s4, 1"); p("s_add_u32 s7, s7, s6"); p("s_sub_u32 s7, s7, 26")
    p.label("L_gate_b")
    p("s_lshl_b32 s7, s7, 2"); p(f"s_add_u32 s7, s7, s{G1.S_W}")
    p("s_mov_b32 s8, s56"); p("s_mov_b32 s9, s57"); p(f"s_mov_b32 s10, {2048*1152}"); p("s_mov_b32 s11, 0x20000")
    p("s_mov_b32 s12, s64"); p("s_mov_b32 s13, s65"); p("s_mov_b32 s14, 1152"); p("s_mov_b32 s15, 0x20000")
    p(f"s_add_u32 s16, s70, {G_OFF}"); p("s_addc_u32 s17, s71, 0"); p("s_mov_b32 s18, 8192"); p("s_mov_b32 s19, 0x20000")
    p("v_and_b32 v1, 63, v0"); p("v_lshrrev_b32 v2, 3, v1"); p("v_and_b32 v3, 7, v1")
    p("v_lshlrev_b32 v4, 4, v3")
    p("s_movk_i32 s20, 0x480"); p("v_mul_lo_u32 v5, v2, s20"); p("v_add_u32 v5, v5, v4")
    p("v_lshlrev_b32 v6, 2, v2")
    for c in range(9):
        p(f"buffer_load_dwordx4 v[{16+4*c}:{19+4*c}], v4, s[12:15], 0 offen offset:{128*c}")
    p.label("L_gate_loop")
    p(f"s_mul_i32 s21, s7, {8*1152}")
    for c in range(9):
        p(f"buffer_load_dwordx4 v[{64+4*c}:{67+4*c}], v5, s[8:11], s21 offen offset:{128*c}")
    p("v_mov_b32 v8, 0"); p("v_mov_b32 v9, 0")
    p("s_waitcnt vmcnt(0)")
    for c in range(9):
        for r in range(4):
            a=8+(r&1)
            p(f"v_dot2_f32_bf16 v{a}, v{64+4*c+r}, v{16+4*c+r}, v{a}")
    p("s_nop 3")
    p("v_add_f32 v8, v8, v9")
    for m in (0x041F,0x081F,0x101F):
        p("s_nop 0")
        p(f"ds_swizzle_b32 v9, v8 offset:0x{m:04X}"); p("s_waitcnt lgkmcnt(0)"); p("v_add_f32 v8, v8, v9")
    p(f"v_mul_f32 v8, 0x{f2u(-LOG2E):08x}, v8"); p("v_exp_f32 v8, v8"); p("s_nop 0"); p("v_add_f32 v8, 1.0, v8"); p("v_rcp_f32 v8, v8")
    p("s_lshl_b32 s21, s7, 5")
    p("v_cmp_eq_u32 vcc, 0, v3"); p("s_and_saveexec_b64 s[22:23], vcc")
    p("buffer_store_dword v8, v6, s[16:19], s21 offen")
    p("s_mov_b64 exec, s[22:23]")
    p("s_add_u32 s7, s7, 48"); p("s_cmp_lt_u32 s7, 256"); p("s_cbranch_scc1 L_gate_loop")
    p("s_load_dwordx2 s[24:25], s[0:1], 56"); p("s_load_dwordx2 s[26:27], s[0:1], 24"); p("s_waitcnt lgkmcnt(0)")
    p("s_mov_b32 s8, s24"); p("s_mov_b32 s9, s25"); p(f"s_mov_b32 s10, {4608*1152}"); p("s_mov_b32 s11, 0x20000")
    p("s_mov_b32 s12, s26"); p("s_mov_b32 s13, s27"); p(f"s_mov_b32 s14, {576*1152}"); p("s_mov_b32 s15, 0x20000")
    p("v_lshlrev_b32 v4, 4, v1")
    p("s_sub_u32 s7, s7, 48"); p.label("L_gate_m"); p("s_cmp_lt_u32 s7, 48"); p("s_cbranch_scc1 L_gate_m2"); p("s_sub_u32 s7, s7, 48"); p("s_branch L_gate_m"); p.label("L_gate_m2")
    p(f"s_mul_i32 s21, s7, {14*1024}")
    for i in range(14):
        p(f"buffer_load_dwordx4 v[{16+4*i}:{19+4*i}], v4, s[12:15], s21 offen"); p("s_add_u32 s21, s21, 1024")
    p("s_waitcnt vmcnt(0)")
    p("s_endpgm")

def kernel_text(name, body, nv=512, ns=102, acc_off=256):
    t=f".globl {name}\n.p2align 8\n.type {name},@function\n{name}:\n"+body
    return t
def desc(name, nv=512, ns=102, acc_off=256):
    return f""".amdhsa_kernel {name}
  .amdhsa_next_free_vgpr {nv}
  .amdhsa_next_free_sgpr {ns}
  .amdhsa_accum_offset {acc_off}
  .amdhsa_group_segment_fixed_size 0
  .amdhsa_kernarg_size 96
  .amdhsa_user_sgpr_count 2
  .amdhsa_user_sgpr_kernarg_segment_ptr 1
  .amdhsa_system_sgpr_workgroup_id_x 1
  .amdhsa_float_denorm_mode_32 3
  .amdhsa_float_denorm_mode_16_64 3
.end_amdhsa_kernel
"""

def gen_k1(att=None, docheck=True):
    import k1_gx as GX
    p=Prog()
    prologue(p)
    il,idn=GX.gen(p)
    if not GX.MERGE: p("s_endpgm")
    if docheck:
        ins=p.ins
        body=ins[il:idn]
        tr=ins[:il]+body+body+ins[idn:]
        pr=check(tr,'gemm1')
        print("gemm1 check problems:",len(pr))
    a=Prog(); att(a); p.ins+=a.ins
    if GX.MERGE:
        import p2
        b=Prog(); p2.gen_p2(b); p.ins+=b.ins
    p.label("L_k1_end"); p("s_endpgm")
    return p
```

```python
from core import *
import stamp as ST
from k1_gx import f2u, NKS_TOT, H_BYTES
import os
MERGE=int(os.environ.get('MERGE','1'))
STMOD=os.environ.get('STMOD',' sc1')
KVP_OFF=0x1502000
LOG2E=1.4426950408889634
WSL=28672; W0=0; X0=3*WSL; XSL=32768
PHI_L=X0+2*XSL; ZERO_L=PHI_L+3840
PS=336; VS=168
PL=0; VL=256*PS; KVL=VL+256*VS
S_W=24
S_X=8; S_WQ=12; S_H=16; S_KV=20
S_XSO=25; S_XSO2=26; S_WSO=27; S_CNT=28; S_MW=29; S_MX=30; S_C=31; S_RT=32; S_QD=33; S_AW=34; S_AX=35; S_TW=36; S_TX=37; S_SD=72; S_SN=73; S_MWW=74
V_WD=1; V_TRB=8; V_XD=10; V_TR=14; V_XP=16; V_L=20; V_L16=21; V_BD=22; V_BD2=23
QACC=0; KACC=96; VACC=176
def accq(t,tt): b=QACC+(t*4+tt)*4; return f"a[{b}:{b+3}]"
def acck(t,tt,r=None):
    b=KACC+(t*4+tt)*4; return f"v[{b}:{b+3}]" if r is None else f"v{b+r}"
def accv(t,tt,r=None):
    b=VACC+(t*4+tt)*4; return f"v[{b}:{b+3}]" if r is None else f"v{b+r}"
def acc(sec,t,tt): return (accq,acck,accv)[sec](t,tt)
AR=80; NAR=6; XF=104
def afr(i): b=AR+4*(i%NAR); return f"a[{b}:{b+3}]"
def afh(i,h): b=AR+4*(i%NAR)+2*h; return f"a[{b}:{b+1}]"
def xf(b_,tt): b=XF+(b_*4+tt)*4; return f"a[{b}:{b+3}]"

def wdma():
    o=[Ins(f"s_add_u32 s{S_MW}, s{S_MWW}, s{S_SD}")]
    for i in range(7):
        if i%4==0:
            o.append(Ins(f"s_add_u32 m0, s{S_MW}, {4096*(i//4)}" if i else f"s_mov_b32 m0, s{S_MW}")); o.append(Ins("s_nop 0"))
        o.append(Ins(f"buffer_load_dwordx4 v{V_WD+i}, s[{S_WQ}:{S_WQ+3}], s{S_WSO} offen offset:{1024*(i%4)} lds"))
    o+= [Ins(f"s_add_u32 s{S_SD}, s{S_SD}, {WSL}"), Ins(f"s_cmp_eq_u32 s{S_SD}, {3*WSL}"), Ins(f"s_cselect_b32 s{S_SD}, 0, s{S_SD}"),
         Ins(f"s_add_u32 s{S_WSO}, s{S_WSO}, {64*3456}")]
    return o
def xdma():
    o=[]
    for i in range(8):
        if i%4==0:
            o.append(Ins(f"s_add_u32 m0, s{S_MX}, {4096*(i//4)}" if i else f"s_mov_b32 m0, s{S_MX}")); o.append(Ins("s_nop 0"))
        o.append(Ins(f"buffer_load_dwordx4 v{V_XD+(i%4)}, s[{S_X}:{S_X+3}], s{S_XSO if i<4 else S_XSO2} offen offset:{1024*(i%4)} lds"))
    o+= [Ins(f"s_xor_b32 s{S_MX}, s{S_MX}, s{S_TX}"), Ins(f"s_add_u32 s{S_XSO}, s{S_XSO}, 128"), Ins(f"s_add_u32 s{S_XSO2}, s{S_XSO2}, 128")]
    return o

SEQ=[(b_,sec,t) for b_ in range(2) for sec in range(3) for t in range(5)]
PF=4
def ard(i):
    nxt=i>=30; b_,sec,t=SEQ[i%30]
    return [Ins(f"ds_read_b64_tr_b16 {afh(i,h)}, v{V_TR+(1 if nxt else 0)} offset:{b_*13824+sec*144+h*1728+8*t}") for h in range(2)]
def xrd(b_,nxt): return [Ins(f"ds_read_b128 {xf(b_,tt)}, v{V_XP+(2 if nxt else 0)+b_} offset:{tt*2048}") for tt in range(4)]

def superstep():
    main=[]
    for i,(b_,sec,t) in enumerate(SEQ):
        if i==26:
            main.append(Ins("s_waitcnt vmcnt(7) lgkmcnt(0)")); main.append(Ins("s_barrier"))
        nxt=ard(i+PF)
        if 1<=i<5: nxt=nxt+[xrd(1,False)[i-1]]
        if i>=26: nxt=nxt+[xrd(0,True)[i-26]]
        if 22<=i<26: pass
        for tt in range(4):
            main.append(Ins(f"v_mfma_f32_16x16x32_bf16 {acc(sec,t,tt)}, {afr(i)}, {xf(b_,tt)}, {acc(sec,t,tt)}"))
            if tt<len(nxt): main.append(nxt[tt])
    return main

def entry_queue():
    q=[]
    for i in range(26,30):
        for x in ard(i+PF): q.append(x.wr)
        q.append(xrd(0,True)[i-26].wr)
    return q

def bc(r): return f"v[{r}:{r+1}]"
def softmax_pk(p, P0, tmp, want_norm):
    A=p
    P=[f"v{P0(f)}" for f in range(18)]
    mx=tmp+36; mn=tmp+38; sp=tmp+40; sm=tmp+42
    A(f"v_max3_f32 v{mx}, {P[0]}, {P[1]}, {P[2]}"); A(f"v_min3_f32 v{mn}, {P[0]}, {P[1]}, {P[2]}")
    for i in range(3,17,2):
        A(f"v_max3_f32 v{mx}, v{mx}, {P[i]}, {P[i+1]}"); A(f"v_min3_f32 v{mn}, v{mn}, {P[i]}, {P[i+1]}")
    A(f"v_max_f32 v{mx}, v{mx}, {P[17]}"); A(f"v_min_f32 v{mn}, v{mn}, {P[17]}")
    A(f"v_mul_f32_e64 v{mx}, -s{S_C}, v{mx}"); A(f"v_mul_f32 v{mn}, s{S_C}, v{mn}")
    for i in range(0,18,2):
        pr=bc(P0(i))
        A(f"v_pk_fma_f32 {bc(tmp+i)}, {pr}, {bc(94)}, {bc(mx)} op_sel_hi:[1,0,0]")
        A(f"v_pk_fma_f32 {bc(tmp+18+i)}, {pr}, {bc(94)}, {bc(mn)} op_sel_hi:[1,0,0] neg_lo:[0,1,0] neg_hi:[0,1,0]")
    for i in range(18):
        A(f"v_exp_f32 v{tmp+i}, v{tmp+i}"); A(f"v_exp_f32 v{tmp+18+i}, v{tmp+18+i}")
    if want_norm:
        A(f"v_pk_add_f32 {bc(sp)}, {bc(tmp)}, {bc(tmp+2)}");
        A("s_nop 0")
        A(f"v_pk_add_f32 {bc(sm)}, {bc(tmp+18)}, {bc(tmp+20)}")
        for i in range(4,18,2):
            A(f"v_pk_add_f32 {bc(sp)}, {bc(sp)}, {bc(tmp+i)}"); A(f"v_pk_add_f32 {bc(sm)}, {bc(sm)}, {bc(tmp+18+i)}")
        A(f"v_add_f32 v{sp}, v{sp}, v{sp+1}"); A(f"v_add_f32 v{sm}, v{sm}, v{sm+1}")
        A(f"v_rcp_f32 v{sp}, v{sp}"); A(f"v_rcp_f32 v{sm}, v{sm}"); A("s_nop 0")
        for i in range(0,18,2):
            A(f"v_pk_mul_f32 {bc(tmp+i)}, {bc(tmp+i)}, {bc(sp)} op_sel_hi:[1,0]"); A(f"v_pk_mul_f32 {bc(tmp+18+i)}, {bc(tmp+18+i)}, {bc(sm)} op_sel_hi:[1,0]")
    else:
        A("s_nop 0")

def stage2(p, src, dst, B0, pre=None):
    for tt in range(4):
        for t in range(5):
            p(f"v_cvt_pk_bf16_f32 v{B0+tt*12+2*t}, {src(t,tt,0)}, {src(t,tt,1)}")
            p(f"v_cvt_pk_bf16_f32 v{B0+tt*12+2*t+1}, {src(t,tt,2)}, {src(t,tt,3)}")
        p(f"v_mov_b32 v{B0+tt*12+10}, 0"); p(f"v_mov_b32 v{B0+tt*12+11}, 0")
    if pre: pre()
    p("s_nop 1")
    for tt in range(4):
        for s in range(3):
            for u in range(5):
                a=80+4*(u*3+s); b=B0+tt*12+4*s
                c=dst(u,tt) if s>0 else "0"
                p(f"v_mfma_f32_16x16x32_bf16 {dst(u,tt)}, a[{a}:{a+3}], v[{b}:{b+3}], {c}")
    p("s_nop 7")

def gen_att(p, docheck=True):
    p.label("L_att")
    A=p
    A(f"s_mov_b32 s{S_QD}, s4"); A(f"s_mov_b32 s{S_RT}, s5")
    A(f"s_sub_u32 s{S_WQ}, s58, 4096"); A(f"s_subb_u32 s{S_WQ+1}, s59, 0"); A(f"s_mov_b32 s{S_WQ+2}, {576*3456+4096}"); A(f"s_mov_b32 s{S_WQ+3}, 0x20000")
    A(f"v_and_b32 v{V_L}, 63, v0")
    A(f"s_mul_i32 s38, s{S_W}, 448")
    for i in range(7):
        A(f"v_add_u32 v30, s38, v{V_L}")
        if i: A(f"v_add_u32 v30, {64*i}, v30")
        A("v_mul_u32_u24 v31, 7282, v30"); A("v_lshrrev_b32 v31, 16, v31")
        A("v_mul_u32_u24 v32, 9, v31"); A("v_sub_u32 v32, v30, v32"); A("v_lshlrev_b32 v32, 4, v32")
        A("v_mul_u32_u24 v31, 0x480, v31")
        A(f"v_add3_u32 v{V_WD+i}, v32, v31, 0"); A(f"v_add_u32 v{V_WD+i}, {4096-1024*(i%4)}, v{V_WD+i}")
    A(f"s_mul_i32 s{S_WSO}, s{S_QD}, 144")
    A(f"s_mul_i32 s{S_MWW}, s{S_W}, 7168"); A(f"s_mov_b32 s{S_SD}, 0")
    A.add(wdma())
    A(f"s_mul_i32 s38, s{S_RT}, {256*1152}")
    A(f"s_add_u32 s{S_X}, s56, s38"); A(f"s_addc_u32 s{S_X+1}, s57, 0"); A(f"s_sub_u32 s{S_X}, s{S_X}, 4096"); A(f"s_subb_u32 s{S_X+1}, s{S_X+1}, 0")
    A(f"s_mov_b32 s{S_X+2}, {256*1152+4096}"); A(f"s_mov_b32 s{S_X+3}, 0x20000")
    g="v24"; t15="v25"; l3="v26"; l7="v27"; rp="v28"; cc="v29"
    A(f"v_lshrrev_b32 {g}, 4, v{V_L}"); A(f"v_and_b32 {t15}, 15, v{V_L}"); A(f"v_lshrrev_b32 {l3}, 3, v{V_L}"); A(f"v_and_b32 {l7}, 7, v{V_L}")
    for i in range(4):
        A(f"v_add_u32 v30, {4*(i&1)}, {g}"); A("v_and_b32 v30, 7, v30"); A(f"v_xor_b32 v30, v30, {l7}"); A("v_lshlrev_b32 v30, 4, v30")
        A(f"v_add_u32 v31, {8*i}, {l3}"); A("v_mul_u32_u24 v31, 0x480, v31")
        A(f"v_add3_u32 v{V_XD+i}, v30, v31, 0"); A(f"v_add_u32 v{V_XD+i}, {4096-1024*i}, v{V_XD+i}")
    A(f"s_mul_i32 s{S_XSO}, s{S_W}, {64*1152}"); A(f"s_add_u32 s{S_XSO2}, s{S_XSO}, {32*1152}")
    A(f"s_lshl_b32 s{S_MX}, s{S_W}, 13"); A(f"s_add_u32 s{S_MX}, s{S_MX}, {X0}"); A(f"s_add_u32 s38, s{S_MX}, {XSL}"); A(f"s_xor_b32 s{S_TX}, s{S_MX}, s38")
    A(f"s_mov_b32 s40, s{S_MX}")
    A.add(xdma())
    ST.stamp(p,1)
    A(f"s_mov_b32 s{S_C}, 0x{f2u(LOG2E):08x}")
    A(f"s_mov_b32 s{S_H}, s70"); A(f"s_mov_b32 s{S_H+1}, s71"); A(f"s_mov_b32 s{S_H+2}, {H_BYTES}"); A(f"s_mov_b32 s{S_H+3}, 0x20000")
    A(f"s_add_u32 s{S_KV}, s70, {KVP_OFF}"); A(f"s_addc_u32 s{S_KV+1}, s71, 0"); A(f"s_mov_b32 s{S_KV+2}, {8*32*2880}"); A(f"s_mov_b32 s{S_KV+3}, 0x20000")
    A(f"v_lshlrev_b32 v{V_L16}, 4, v{V_L}")
    A(f"v_lshrrev_b32 {rp}, 2, {t15}"); A(f"v_and_b32 {cc}, 3, {t15}")
    A(f"v_lshrrev_b32 v30, 1, {t15}"); A(f"v_xor_b32 v30, v30, {g}"); A("v_lshlrev_b32 v30, 4, v30"); A(f"v_lshlrev_b32 v31, 7, {t15}"); A("v_add_u32 v30, v30, v31")
    A(f"v_add_u32 v{V_XP}, s40, v30"); A(f"v_xor_b32 v{V_XP+1}, 64, v{V_XP}")
    A(f"v_add_u32 v{V_XP+2}, {XSL}, v{V_XP}"); A(f"v_add_u32 v{V_XP+3}, {XSL}, v{V_XP+1}")
    A(f"v_lshlrev_b32 v30, 3, {g}"); A(f"v_add_u32 v30, v30, {rp}"); A("v_mul_u32_u24 v30, 432, v30"); A(f"v_mul_u32_u24 v31, 36, {cc}")
    A(f"v_and_b32 v33, 1, {cc}"); A("v_lshlrev_b32 v33, 2, v33"); A("v_sub_u32 v31, v31, v33")
    A(f"v_add_u32 v{V_TRB}, v30, v31"); A(f"v_mov_b32 v{V_TR}, v{V_TRB}"); A(f"v_add_u32 v{V_TR+1}, {WSL}, v{V_TRB}"); A(f"s_mov_b32 s{S_SN}, {WSL}")
    A(f"v_cmp_eq_u32 vcc, {cc}, {g}")
    A(f"v_mul_u32_u24 v30, 960, {g}"); A(f"v_mul_u32_u24 v31, 40, {rp}"); A("v_add_u32 v30, v30, v31"); A(f"v_add_u32 v30, {PHI_L}, v30")
    A(f"v_mov_b32 v32, {ZERO_L}"); A(f"v_cndmask_b32 v{V_BD}, v32, v30, vcc")
    A(f"v_mul_u32_u24 v30, 1920, {g}"); A("v_add_u32 v30, v30, v31"); A(f"v_add_u32 v30, {KVL}, v30"); A(f"v_cndmask_b32 v{V_BD2}, v32, v30, vcc")
    A(f"s_mul_i32 s38, s{S_QD}, {4*648}")
    A(f"s_add_u32 s48, s60, s38"); A("s_addc_u32 s49, s61, 0"); A(f"s_mov_b32 s50, {4*648}"); A("s_mov_b32 s51, 0x20000")
    A("v_lshlrev_b32 v30, 2, v0")
    for i in range(3): A(f"buffer_load_dword v{44+i}, v30, s[48:51], 0 offen offset:{1024*i}")
    A("v_mov_b32 v40, 0"); A("v_mov_b32 v41, 0"); A("v_mov_b32 v42, 0"); A("v_mov_b32 v43, 0")
    A("v_lshlrev_b32 v30, 4, v0"); A(f"v_add_u32 v30, {PHI_L}, v30")
    A("ds_write_b128 v30, v[40:43]")
    A("v_cmp_gt_u32 vcc, 104, v0"); A("s_and_saveexec_b64 s[48:49], vcc"); A("s_cbranch_execz L_att_z1")
    A("ds_write_b128 v30, v[40:43] offset:4096")
    A.label("L_att_z1"); A("s_mov_b64 exec, s[48:49]")
    for i in range(3):
        A(f"v_add_u32 v30, {256*i}, v0")
        A("v_mul_u32_u24 v31, 405, v30"); A("v_lshrrev_b32 v31, 16, v31")
        A("v_mul_u32_u24 v32, 162, v31"); A("v_sub_u32 v32, v30, v32")
        A("v_mul_u32_u24 v33, 57, v32"); A("v_lshrrev_b32 v33, 9, v33")
        A("v_mul_u32_u24 v34, 9, v33"); A("v_sub_u32 v34, v32, v34")
        A("v_and_b32 v35, 1, v31"); A("v_lshl_add_u32 v33, v35, 1, v33")
        A("v_mul_u32_u24 v31, 960, v31"); A("v_mul_u32_u24 v33, 40, v33"); A("v_lshlrev_b32 v34, 2, v34")
        A(f"v_add3_u32 v{47+i}, v31, v33, v34"); A(f"v_add_u32 v{47+i}, {PHI_L}, v{47+i}")
    for r in range(80): A(f"v_accvgpr_write_b32 a{r}, 0")
    for r in range(96,256): A(f"v_mov_b32 v{r}, 0")
    xl=xdma(); XA_=xl[:6]; XB_=xl[6:]
    A.add(wdma())
    A.add(XA_)
    A("s_waitcnt vmcnt(11) lgkmcnt(0)"); A("s_barrier")
    A("ds_write_b32 v47, v44"); A("ds_write_b32 v48, v45")
    A("v_cmp_gt_u32 vcc, 136, v0"); A("s_and_saveexec_b64 s[48:49], vcc"); A("s_cbranch_execz L_att_z2")
    A("ds_write_b32 v49, v46")
    A.label("L_att_z2"); A("s_mov_b64 exec, s[48:49]")
    A("s_waitcnt lgkmcnt(0)")
    ST.stamp(p,2)
    A(f"v_mov_b32 v{V_TR+1}, v{V_TRB}"); A(f"v_swap_b32 v{V_XP}, v{V_XP+2}"); A(f"v_swap_b32 v{V_XP+1}, v{V_XP+3}")
    for i in range(26,30):
        A.add(ard(i+PF)); A.add([xrd(0,True)[i-26]])
    A(f"v_add_u32 v{V_TR+1}, {WSL}, v{V_TRB}"); A(f"v_swap_b32 v{V_XP}, v{V_XP+2}"); A(f"v_swap_b32 v{V_XP+1}, v{V_XP+3}")
    A(f"s_mov_b32 s{S_CNT}, 0")
    il=len(p.ins)
    A.label("L_att_loop")
    m,_=auto_lgkm(superstep(), entry_queue(), extra=2)
    ib=[i for i,x in enumerate(m) if x.kind=='barrier'][0]
    head=m[:ib+1]; rest=m[ib+1:]
    p.add(spread(head, dma_items(XB_+wdma()), first=1, last=72))
    p.add(spread(rest, dma_items(XA_), first=0))
    A(f"v_mov_b32 v{V_TR}, v{V_TR+1}")
    A(f"s_add_u32 s{S_SN}, s{S_SN}, {WSL}"); A(f"s_cmp_eq_u32 s{S_SN}, {3*WSL}"); A(f"s_cselect_b32 s{S_SN}, 0, s{S_SN}")
    A(f"v_add_u32 v{V_TR+1}, s{S_SN}, v{V_TRB}")
    A(f"v_swap_b32 v{V_XP}, v{V_XP+2}"); A(f"v_swap_b32 v{V_XP+1}, v{V_XP+3}")
    A(f"s_add_u32 s{S_CNT}, s{S_CNT}, 1"); A(f"s_cmp_lt_u32 s{S_CNT}, 9"); A("s_cbranch_scc1 L_att_loop")
    idn=len(p.ins)
    A("s_waitcnt vmcnt(0) lgkmcnt(0)")
    ST.stamp(p,3)
    A("s_barrier")
    rds=[f"ds_read_b64_tr_b16 a[{80+4*(u*3+s)+2*h}:{80+4*(u*3+s)+2*h+1}], v{V_BD} offset:{(8*s+4*h)*40+8*u}" for u in range(5) for s in range(3) for h in range(2)]
    for x in rds[:14]: A(x)
    A("v_mov_b32 v40, 0"); A("v_mov_b32 v41, 0"); A("v_mov_b32 v42, 0"); A("v_mov_b32 v43, 0")
    A("v_lshlrev_b32 v30, 4, v0"); A(f"v_add_u32 v30, {KVL}, v30")
    A(f"v_mov_b32 v94, s{S_C}")
    A("s_waitcnt lgkmcnt(0)")
    for x in rds[14:28]: A(x)
    A("s_waitcnt lgkmcnt(0)")
    for x in rds[28:]: A(x)
    A("ds_write_b128 v30, v[40:43]")
    A("v_cmp_gt_u32 vcc, 224, v0"); A("s_and_saveexec_b64 s[48:49], vcc"); A("s_cbranch_execz L_att_z3")
    A("ds_write_b128 v30, v[40:43] offset:4096")
    A.label("L_att_z3"); A("s_mov_b64 exec, s[48:49]")
    stage2(p, acck, acck, 24, pre=lambda: A("s_waitcnt lgkmcnt(0)"))
    A(f"v_and_b32 v72, 15, v{V_L}"); A(f"v_lshrrev_b32 v73, 4, v{V_L}")
    A(f"s_lshl_b32 s38, s{S_W}, 6"); A("v_add_u32 v72, s38, v72")
    A(f"v_mul_u32_u24 v74, {PS}, v72"); A("v_mul_u32_u24 v75, 80, v73"); A("v_add_u32 v74, v74, v75")
    A(f"v_mul_u32_u24 v75, {VS}, v72"); A("v_mul_u32_u24 v76, 40, v73"); A("v_add_u32 v75, v75, v76"); A(f"v_add_u32 v75, {VL}, v75")
    A("v_and_b32 v76, 1, v73"); A("v_cmp_eq_u32 s[58:59], 1, v76"); A("v_mov_b32 v70, 1.0"); A("v_mov_b32 v71, 0")
    pendw=[]
    for tt in range(4):
        q=Prog()
        softmax_pk(q, lambda f: KACC+((f//4)*4+tt)*4+(f%4), 24, True)
        body=q.ins
        if pendw:
            step=max(1,len(body)//(len(pendw)+1)); out=[]; k=0
            for i,x in enumerate(body):
                out.append(x)
                if i%step==step-1 and k<len(pendw): out.append(pendw[k]); k+=1
            out+=pendw[k:]; body=out
        p.add(body)
        PK=76 if tt%2==0 else None
        if tt%2==0: regs=[76+i for i in range(18)]+[None]
        def pk(i):
            return 76+i if tt%2==0 else KACC+((i//4)*4+(tt-1))*4+(i%4)
        A("s_waitcnt lgkmcnt(0)")
        for i in range(18): A(f"v_cvt_pk_bf16_f32 v{pk(i)}, v{24+2*i}, v{25+2*i}")
        off=tt*16*PS
        pendw=[Ins(f"ds_write_b128 v74, v[{pk(4*i)}:{pk(4*i)+3}] offset:{off+16*i}") for i in range(4)]
        pendw.append(Ins(f"ds_write_b64 v74, v[{pk(16)}:{pk(16)+1}] offset:{off+64}"))
        A(f"v_cndmask_b32 {accv(0,tt,0)}, {accv(0,tt,0)}, v70, s[58:59]"); A(f"v_cndmask_b32 {accv(0,tt,1)}, {accv(0,tt,1)}, v71, s[58:59]")
        A(f"v_cndmask_b32 {accv(4,tt,2)}, v70, {accv(4,tt,2)}, s[58:59]"); A(f"v_cndmask_b32 {accv(4,tt,3)}, v71, {accv(4,tt,3)}, s[58:59]")
        for t in range(5):
            b0=VACC+(t*4+tt)*4
            A(f"v_cvt_pk_bf16_f32 v{b0}, v{b0}, v{b0+1}"); A(f"v_cvt_pk_bf16_f32 v{b0+1}, v{b0+2}, v{b0+3}")
        offv=tt*16*VS
        pendw+=[Ins(f"ds_write_b64 v75, v[{VACC+(t*4+tt)*4}:{VACC+(t*4+tt)*4+1}] offset:{offv+8*t}") for t in range(5)]
    p.add(pendw)
    A("s_waitcnt lgkmcnt(0)"); A("s_barrier")
    ST.stamp(p,4)
    A(f"v_and_b32 v24, 15, v{V_L}"); A(f"v_lshrrev_b32 v25, 4, v{V_L}"); A("v_lshrrev_b32 v26, 2, v24"); A("v_and_b32 v27, 3, v24")
    A("v_lshlrev_b32 v28, 3, v25"); A("v_add_u32 v28, v28, v26")
    A(f"v_mul_u32_u24 v29, {VS}, v28"); A("v_lshlrev_b32 v30, 3, v27"); A("v_add_u32 v29, v29, v30")
    A(f"s_mul_i32 s38, s{S_W}, 40"); A(f"s_add_u32 s38, s38, {VL}"); A("v_add_u32 v29, s38, v29")
    A(f"v_mul_u32_u24 v31, {PS}, v28"); A("v_add_u32 v31, v31, v30")
    A(f"s_mul_i32 s38, s{S_W}, 80"); A("v_add_u32 v31, s38, v31")
    A(f"v_add_u32 v32, {128*PS}, v31")
    KV=96
    def kvr(ks):
        fr=36+20*(ks%2); o=[]
        for dt in range(2):
            for h in range(2): o.append(Ins(f"ds_read_b64_tr_b16 v[{fr+4*dt+2*h}:{fr+4*dt+2*h+1}], v29 offset:{(32*ks+4*h)*VS+32*dt}"))
        for ft in range(3):
            for h in range(2):
                base,ko=("v31",ks) if ks<4 else ("v32",ks-4)
                o.append(Ins(f"ds_read_b64_tr_b16 v[{fr+8+4*ft+2*h}:{fr+8+4*ft+2*h+1}], {base} offset:{(32*ko+4*h)*PS+32*ft}"))
        return o
    st=kvr(0)
    for ks in range(8):
        fr=36+20*(ks%2)
        nx=kvr(ks+1) if ks<7 else []
        k=0
        for dt in range(2):
            for ft in range(3):
                d=KV+(dt*3+ft)*4
                c=f"v[{d}:{d+3}]" if ks>0 else "0"
                if k==0: st.append(Ins("s_waitcnt lgkmcnt(0)")); st+=nx[:5]
                st.append(Ins(f"v_mfma_f32_16x16x32_bf16 v[{d}:{d+3}], v[{fr+4*dt}:{fr+4*dt+3}], v[{fr+8+4*ft}:{fr+8+4*ft+3}], {c}"))
                if k==1: st+=nx[5:]
                k+=1
    p.add(st)
    A(f"s_lshl_b32 s38, s{S_RT}, 5"); A(f"s_lshl_b32 s39, s{S_QD}, 2"); A("s_add_u32 s38, s38, s39"); A(f"s_add_u32 s38, s38, s{S_W}"); A("s_mul_i32 s38, s38, 2880")
    A("v_mul_u32_u24 v33, 80, v24"); A("v_lshlrev_b32 v34, 4, v25"); A("v_add_u32 v33, v33, v34")
    A("v_cmp_eq_u32 s[50:51], 0, v25"); A("v_cmp_gt_u32 s[52:53], 4, v24")
    A("s_nop 1")
    A("s_and_b64 s[54:55], s[50:51], s[52:53]")
    for ft in range(3):
        for dt in range(2):
            d=KV+(dt*3+ft)*4
            mask=(None if dt==0 else "s[50:51]") if ft<2 else ("s[52:53]" if dt==0 else "s[54:55]")
            if mask: A(f"s_mov_b64 exec, {mask}")
            A(f"buffer_store_dwordx4 v[{d}:{d+3}], v33, s[{S_KV}:{S_KV+3}], s38 offen offset:{ft*16*80+dt*64} sc1")
            if mask: A("s_mov_b64 exec, -1")
    def accqv(t,tt,r): return f"v{96+(t*4+tt)*4+r}"
    for i in list(range(24,80))+list(range(24)): A(f"v_accvgpr_read_b32 v{96+i}, a{i}")
    stage2(p, accqv, lambda u,tt: f"v[{176+(u*4+tt)*4}:{176+(u*4+tt)*4+3}]", 24)
    A("s_waitcnt vmcnt(0)")
    A("s_barrier")
    A(f"s_add_u32 s66, s70, {0x15C0000}"); A("s_addc_u32 s67, s71, 0")
    import p2 as P2
    P2.zero_ready(p, "L_att_zr", S_W, vt=33)
    A(f"s_cmp_eq_u32 s{S_W}, 0"); A("s_cbranch_scc0 L_att_nosig")
    A(f"s_lshl_b32 s38, s{S_QD}, 7"); A("v_mov_b32 v33, s38"); A("v_mov_b32 v34, 1")
    A(f"v_cmp_eq_u32 vcc, 0, v{V_L}"); A("s_and_saveexec_b64 s[48:49], vcc")
    A("global_atomic_add v33, v34, s[66:67] sc1")
    A("s_mov_b64 exec, s[48:49]")
    A.label("L_att_nosig")
    ST.stamp(p,5)
    A("s_mov_b32 s40, s62"); A("s_mov_b32 s41, s63"); A(f"s_mov_b32 s42, {576*1152}"); A("s_mov_b32 s43, 0x20000")
    A(f"s_lshl_b32 s48, s{S_RT}, 3"); A(f"s_add_u32 s48, s48, s{S_QD}"); A("s_lshl_b32 s48, s48, 2"); A(f"s_add_u32 s48, s48, s{S_W}"); A("s_mul_i32 s48, s48, 3072")
    for i in range(3): A(f"buffer_load_dwordx4 a[{4*i}:{4*i+3}], v{V_L16}, s[40:43], s48 offen offset:{1024*i}")
    A("s_mov_b32 s40, s56"); A("s_mov_b32 s41, s57"); A(f"s_mov_b32 s42, {2048*1152}"); A("s_mov_b32 s43, 0x20000")
    A("s_mov_b32 s44, s64"); A("s_mov_b32 s45, s65"); A("s_mov_b32 s46, 1152"); A("s_mov_b32 s47, 0x20000")
    A(f"v_lshrrev_b32 v168, 3, v{V_L}"); A(f"v_and_b32 v169, 7, v{V_L}"); A("v_lshlrev_b32 v170, 4, v169")
    A("v_mul_u32_u24 v171, 0x480, v168"); A("v_add_u32 v171, v171, v170")
    A(f"s_lshl_b32 s48, s{S_RT}, 5"); A(f"s_lshl_b32 s49, s{S_QD}, 2"); A("s_add_u32 s48, s48, s49"); A(f"s_add_u32 s48, s48, s{S_W}")
    A(f"s_mul_i32 s49, s48, {8*1152}")
    for c in range(9):
        A(f"buffer_load_dwordx4 v[{96+4*c}:{99+4*c}], v171, s[40:43], s49 offen offset:{128*c}")
        A(f"buffer_load_dwordx4 v[{132+4*c}:{135+4*c}], v170, s[44:47], 0 offen offset:{128*c}")
    for tt in range(4):
        if tt==3:
            A(f"s_lshl_b32 s38, s{S_QD}, 7"); A("v_mov_b32 v174, s38"); A("global_load_dword v175, v174, s[66:67] sc1")
        softmax_pk(p, lambda f: 176+((f//4)*4+tt)*4+(f%4), 24, False)
        for half in range(2):
            for i in range(9):
                A(f"v_cvt_pk_bf16_f32 v{76+i}, v{24+18*half+2*i}, v{25+18*half+2*i}")
            for i in range(9): A(f"v_accvgpr_write_b32 a{140+tt*24+half*12+i}, v{76+i}")
            for i in range(9,12): A(f"v_accvgpr_write_b32 a{140+tt*24+half*12+i}, 0")
    A("v_mov_b32 v172, 0"); A("v_mov_b32 v173, 0")
    A("s_waitcnt vmcnt(0)")
    for c in range(9):
        for r in range(4):
            A(f"v_dot2_f32_bf16 v{172+(r&1)}, v{96+4*c+r}, v{132+4*c+r}, v{172+(r&1)}")
    A("s_nop 3")
    A("v_add_f32 v172, v172, v173")
    for m in (0x041F,0x081F,0x101F):
        A("s_nop 0")
        A(f"ds_swizzle_b32 v173, v172 offset:0x{m:04X}"); A("s_waitcnt lgkmcnt(0)"); A("v_add_f32 v172, v172, v173")
    A(f"v_mul_f32 v172, 0x{f2u(-LOG2E):08x}, v172"); A("v_exp_f32 v172, v172"); A("s_nop 0"); A("v_add_f32 v172, 1.0, v172"); A("v_rcp_f32 v172, v172")
    A(f"s_add_u32 s40, s70, {0x1500000}"); A("s_addc_u32 s41, s71, 0"); A("s_mov_b32 s42, 8192"); A("s_mov_b32 s43, 0x20000")
    A("s_lshl_b32 s48, s48, 5"); A("v_lshlrev_b32 v168, 2, v168")
    A("v_cmp_eq_u32 vcc, 0, v169"); A("s_and_saveexec_b64 s[50:51], vcc")
    A("buffer_store_dword v172, v168, s[40:43], s48 offen sc1")
    A("s_mov_b64 exec, s[50:51]")
    ST.stamp(p,6)
    A(f"s_cmp_eq_u32 s{S_W}, 0"); A("s_cbranch_scc0 L_att_wdone")
    A("v_readfirstlane_b32 s38, v175"); A("s_nop 1"); A("s_cmp_ge_u32 s38, 8"); A("s_cbranch_scc1 L_att_wdone")
    A(f"s_lshl_b32 s38, s{S_QD}, 7"); A("v_mov_b32 v33, s38")
    A("s_mov_b32 s39, 0")
    A.label("L_att_poll")
    A("s_add_u32 s39, s39, 1"); A("s_cmp_gt_u32 s39, 200000"); A("s_cbranch_scc1 L_att_wdone")
    A("global_load_dword v34, v33, s[66:67] sc1"); A("s_waitcnt vmcnt(0)")
    A("v_readfirstlane_b32 s38, v34"); A("s_nop 1"); A("s_cmp_ge_u32 s38, 8"); A("s_cbranch_scc1 L_att_wdone")
    A("s_sleep 6"); A("s_branch L_att_poll")
    A.label("L_att_wdone")
    A("s_barrier")
    A(f"s_lshl_b32 s39, s{S_QD}, 2"); A(f"s_add_u32 s39, s39, s{S_W}"); A("s_mul_i32 s39, s39, 2880")
    A(f"v_cmp_gt_u32 vcc, 52, v{V_L}")
    for r in range(8):
        A(f"s_add_u32 s38, s39, {r*32*2880}")
        for i in range(2):
            b=96+(r*3+i)*4
            A(f"buffer_load_dwordx4 v[{b}:{b+3}], v{V_L16}, s[{S_KV}:{S_KV+3}], s38 offen offset:{1024*i} sc1")
    A("s_mov_b64 exec, vcc")
    for r in range(8):
        A(f"s_add_u32 s38, s39, {r*32*2880}")
        b=96+(r*3+2)*4
        A(f"buffer_load_dwordx4 v[{b}:{b+3}], v{V_L16}, s[{S_KV}:{S_KV+3}], s38 offen offset:2048 sc1")
    A("s_mov_b64 exec, -1")
    A(f"s_and_b32 s48, s{S_W}, 1")
    for i in range(3):
        A(f"v_add_u32 v30, {64*i}, v{V_L}")
        A("v_mul_u32_u24 v31, 205, v30"); A("v_lshrrev_b32 v31, 10, v31")
        A("v_mul_u32_u24 v32, 5, v31"); A("v_sub_u32 v32, v30, v32")
        A("s_cmp_eq_u32 s48, 0"); A("s_cselect_b32 s49, 4, 0")
        A(f"v_cmp_eq_u32 s[{50+2*i}:{51+2*i}], s49, v32")
        A("v_cmp_le_u32 vcc, 18, v31"); A("v_mov_b32 v36, 0"); A("v_mov_b32 v37, 240"); A("v_cndmask_b32 v36, v36, v37, vcc")
        A("v_mul_u32_u24 v31, 40, v31"); A("v_add_u32 v31, v31, v36")
        A(f"s_mul_i32 s38, s{S_W}, 1920"); A(f"s_add_u32 s38, s38, {KVL}"); A("v_add_u32 v31, s38, v31")
        A("v_lshlrev_b32 v32, 1, v32"); A("v_subrev_u32 v33, s48, v32")
        A("v_add_u32 v34, 1, v33")
        A("v_cmp_gt_i32 vcc, 0, v33"); A("v_add_u32 v36, 10, v33"); A("s_nop 0"); A("v_cndmask_b32 v33, v33, v36, vcc")
        A(f"v_lshl_add_u32 v{40+2*i}, v33, 2, v31"); A(f"v_lshl_add_u32 v{41+2*i}, v34, 2, v31")
    A("v_mov_b32 v35, 1.0")
    A("s_waitcnt vmcnt(0)")
    for i in range(3):
        for k in (0,2):
            for r in range(1,8): A(f"v_pk_add_f32 {bc(96+i*4+k)}, {bc(96+i*4+k)}, {bc(96+(r*3+i)*4+k)}")
    A(f"v_cmp_gt_u32 vcc, 52, v{V_L}")
    A("s_cmp_eq_u32 s48, 0"); A("s_cbranch_scc1 L_att_even")
    for i in range(3): A(f"v_cndmask_b32 v{96+i*4+1}, v{96+i*4+1}, v35, s[{50+2*i}:{51+2*i}]")
    A("s_branch L_att_par")
    A.label("L_att_even")
    for i in range(3): A(f"v_cndmask_b32 v{96+i*4+3}, v{96+i*4+3}, v35, s[{50+2*i}:{51+2*i}]")
    A.label("L_att_par")
    for i in range(3):
        A(f"v_cvt_pk_bf16_f32 v38, v{96+i*4}, v{96+i*4+1}"); A(f"v_cvt_pk_bf16_f32 v39, v{96+i*4+2}, v{96+i*4+3}")
        if i==2: A("s_mov_b64 exec, vcc")
        A(f"ds_write_b32 v{40+2*i}, v38"); A(f"ds_write_b32 v{41+2*i}, v39")
        if i==2: A("s_mov_b64 exec, -1")
    A("s_waitcnt lgkmcnt(0)"); A("s_barrier")
    ST.stamp(p,7)
    def N(half,u,tt,r=None):
        b=96+((half*5+u)*4+tt)*4; return f"v[{b}:{b+3}]" if r is None else f"v{b+r}"
    seq=[(half,s,u) for half in range(2) for s in range(3) for u in range(5)]
    def rd(i):
        half,s,u=seq[i]
        return [Ins(f"ds_read_b64_tr_b16 {afh(i,h)}, v{V_BD2} offset:{half*960+(8*s+4*h)*40+8*u}") for h in range(2)]
    st=[]
    for i in range(PF): st+=rd(i)
    for i,(half,s,u) in enumerate(seq):
        nxt=rd(i+PF) if i+PF<len(seq) else []
        for tt in range(4):
            e=140+tt*24+half*12+4*s
            c=N(half,u,tt) if s>0 else "0"
            st.append(Ins(f"v_mfma_f32_16x16x32_bf16 {N(half,u,tt)}, {afr(i)}, a[{e}:{e+3}], {c}"))
            if tt<len(nxt): st.append(nxt[tt])
    st,_=auto_lgkm(st); p.add(st)
    A(f"s_lshl_b32 s38, s{S_RT}, 4"); A(f"s_lshl_b32 s39, s{S_W}, 2"); A("s_add_u32 s38, s38, s39"); A(f"s_mul_i32 s38, s38, {NKS_TOT}")
    A(f"s_mul_i32 s39, s{S_QD}, 3"); A("s_add_u32 s38, s38, s39"); A("s_add_u32 s38, s38, 144"); A("s_lshl_b32 s38, s38, 10")
    A("s_nop 3")
    for tt in range(4):
        a=24; b=26; den=28
        A(f"v_rcp_f32 v{a}, {N(0,4,tt,3)}"); A(f"v_rcp_f32 v{b}, {N(1,4,tt,3)}"); A("s_nop 0")
        A(f"v_mul_f32 v{den}, {N(0,4,tt,2)}, v{a}"); A(f"v_fmac_f32 v{den}, {N(1,4,tt,2)}, v{b}"); A(f"v_add_f32 v{den}, 0x{f2u(1e-6):08x}, v{den}")
        A(f"v_rcp_f32 v{den}, v{den}"); A("s_nop 0"); A(f"v_mul_f32 v{a}, v{a}, v{den}"); A(f"v_mul_f32 v{b}, v{b}, v{den}")
        for d in range(0,18,2):
            n0=96+((0*5+d//4)*4+tt)*4+d%4; n1=96+((1*5+d//4)*4+tt)*4+d%4
            A(f"v_pk_mul_f32 {bc(30+d)}, {bc(n0)}, {bc(a)} op_sel_hi:[1,0]")
            A(f"v_pk_fma_f32 {bc(30+d)}, {bc(n1)}, {bc(b)}, {bc(30+d)} op_sel_hi:[1,0,1]")
        o=48+12*(tt%2)
        for i in range(9): A(f"v_cvt_pk_bf16_f32 v{o+i}, v{30+2*i}, v{31+2*i}")
        for i in range(9,12): A(f"v_mov_b32 v{o+i}, 0")
        for s in range(3):
            A(f"buffer_store_dwordx4 v[{o+4*s}:{o+4*s+3}], v{V_L16}, s[{S_H}:{S_H+3}], s38 offen offset:{1024*s}{STMOD}")
        A(f"s_add_u32 s38, s38, {NKS_TOT*1024}")
    ST.stamp(p,8)
    ST.flush(p,70,71,2)
    if MERGE:
        A("s_mov_b32 s90, 1"); A("s_mov_b32 s91, 4")
        A(f"s_lshl_b32 s92, s{S_RT}, 3"); A(f"s_add_u32 s92, s92, s{S_QD}")
        A(f"s_mov_b32 s93, s{S_W}")
        A(f"s_add_u32 s94, s{S_RT}, 40"); A("s_mov_b32 s95, 1")
        A("s_mul_i32 s38, s92, 171"); A("s_lshr_b32 s38, s38, 10"); A("s_add_u32 s96, s38, 40"); A("s_mov_b32 s97, 8")
        A("s_branch L_p2")
    else:
        A("s_endpgm")
    if docheck:
        ins=p.ins
        body=ins[il:idn]
        tr=ins[:il]+body+body+ins[idn:]
        print("att check problems:",len(check(tr,'att')))
if __name__=="__main__":
    for m in range(1792): assert (m*7282)>>16==m//9
    for n in range(12): assert (n*86)>>8==n//3
    for n in range(768): assert (n*405)>>16==n//162, n
    for n in range(162): assert (n*57)>>9==n//9
    for n in range(192): assert (n*205)>>10==n//5
    p=Prog(); gen_att(p); print(len(p.ins))
```

```python
from core import *
import stamp as ST
import os, math, struct
STMOD=os.environ.get('STMOD',' sc1')
MERGE=int(os.environ.get('MERGE','1'))
ROT=int(os.environ.get('ROT','0')); WPF=int(os.environ.get('WPF','0'))
def f2u(x): return struct.unpack('<I', struct.pack('<f', x))[0]
C0 = -2.0*math.log2(math.e)*math.sqrt(2.0/math.pi)
C1 = C0*0.044715
NKS_TOT=168; H_BYTES=128*NKS_TOT*1024
CH=16384
XA=65536; XB=32768
WR0=6
def XF(tt,ks):
    i=ks*4+tt
    if i<64: return f"a[{4*i}:{4*i+3}]"
    i-=64; return f"v[{224+4*i}:{224+4*i+3}]"
def acc(buf,tt,j,r=None):
    b=96+64*buf+16*tt+4*j
    return f"v[{b}:{b+3}]" if r is None else f"v{b+r}"
AR=64; NAR=8
def afr(i): b=AR+4*(i%NAR); return f"v[{b}:{b+3}]"
def afh(i,h): b=AR+4*(i%NAR)+2*h; return f"v[{b}:{b+1}]"
TMP0=32; HP=24
V_WD=1
V_XD=3
V_TRP=7
V_TR=11
V_XP=17
V_L16=21
V_C1=22;
S_W=24
S_X=8; S_G=12; S_U=16; S_H=20
S_XSO=25; S_XSO2=26; S_WSO=27; S_HSO=28; S_CNT=29; S_MW=30; S_MX=31; S_PF=56; S_PFO=32; S_HST=33; S_AW=34; S_AX=35; S_GRP=48
PKC=[60,62,58]

def gelu(buf, pk=False):
    out=[]
    for tt in range(4):
        hp=HP+4*(tt%2)
        if pk:
            chains=[]
            for j in range(2):
                for r in (0,2):
                    bx=96+64*buf+16*tt+4*j+r; bu=bx+8
                    X=f"v[{bx}:{bx+1}]"; U=f"v[{bu}:{bu+1}]"
                    a=TMP0+4*((j*2+r//2)+4*(tt%2)) if False else TMP0+4*(j*2+r//2)
                    T=f"v[{a}:{a+1}]"; Y=f"v[{a+2}:{a+3}]"
                    chains.append([f"v_pk_mul_f32 {T}, {X}, {X}",
                                   f"v_pk_fma_f32 {T}, {T}, v[50:51], v[52:53]",
                                   f"v_pk_mul_f32 {T}, {T}, {X}",
                                   f"v_exp_f32 v{a}, v{a}", f"v_exp_f32 v{a+1}, v{a+1}",
                                   f"v_pk_mul_f32 {Y}, {X}, {U}",
                                   f"v_pk_add_f32 {T}, {T}, v[54:55]",
                                   f"v_rcp_f32 v{a}, v{a}", f"v_rcp_f32 v{a+1}, v{a+1}",
                                   f"v_pk_mul_f32 {Y}, {Y}, {T}",
                                   f"v_cvt_pk_bf16_f32 v{hp+2*j+r//2}, v{a+2}, v{a+3}"])
            for k in range(11):
                for c in chains: out.append(Ins(c[k]))
        else:
            chains=[]
            for j in range(2):
                for r in range(4):
                    x=acc(buf,tt,j,r); u=acc(buf,tt,2+j,r)
                    T,Y=f"v{TMP0+j*4+r}",f"v{TMP0+8+j*4+r}"
                    chains.append([f"v_mul_f32 {T}, {x}, {x}",
                                   f"v_fmaak_f32 {T}, v{V_C1}, {T}, 0x{f2u(C0):08x}",
                                   f"v_mul_f32 {T}, {T}, {x}",
                                   f"v_exp_f32 {T}, {T}",
                                   f"v_mul_f32 {Y}, {x}, {u}",
                                   f"v_add_f32 {T}, 1.0, {T}",
                                   f"v_rcp_f32 {T}, {T}",
                                   f"v_mul_f32 {Y}, {Y}, {T}"])
            for p0 in (0,4):
                cs=chains[p0:p0+4]
                for k in range(8):
                    for c in cs: out.append(Ins(c[k]))
                for pp in (p0,p0+2):
                    out.append(Ins(f"v_cvt_pk_bf16_f32 v{hp+pp//2}, v{TMP0+8+pp}, v{TMP0+8+pp+1}"))
        out.append(Ins(f"buffer_store_dwordx4 v[{hp}:{hp+3}], v{V_L16}, s[{S_H}:{S_H+3}], s{S_HSO} offen{STMOD}", tag='st'))
        out.append(Ins(f"s_add_u32 s{S_HSO}, s{S_HSO}, {NKS_TOT*1024}" if tt<3 else f"s_sub_u32 s{S_HSO}, s{S_HSO}, {3*NKS_TOT*1024-1024}"))
    return out
def pkconst():
    return [Ins(f"v_mov_b32 v50, 0x{f2u(C1):08x}"),Ins(f"v_mov_b32 v51, 0x{f2u(C1):08x}"),Ins(f"v_mov_b32 v52, 0x{f2u(C0):08x}"),Ins(f"v_mov_b32 v53, 0x{f2u(C0):08x}"),Ins("v_mov_b32 v54, 1.0"),Ins("v_mov_b32 v55, 1.0")]

def wdma(slot):
    return [Ins(f"s_add_u32 m0, s{S_MW}, {slot*CH}"), Ins("s_nop 0"),
            Ins(f"buffer_load_dwordx4 v{V_WD}, s[{S_G}:{S_G+3}], s{S_WSO} offen lds"),
            Ins(f"buffer_load_dwordx4 v{V_WD+1}, s[{S_G}:{S_G+3}], s{S_WSO} offen offset:1024 lds"),
            Ins(f"s_add_u32 m0, s{S_MW}, {slot*CH+8192}"), Ins("s_nop 0"),
            Ins(f"buffer_load_dwordx4 v{V_WD}, s[{S_U}:{S_U+3}], s{S_WSO} offen lds"),
            Ins(f"buffer_load_dwordx4 v{V_WD+1}, s[{S_U}:{S_U+3}], s{S_WSO} offen offset:1024 lds")]
def wadv(last):
    if not ROT:
        return [Ins(f"s_add_u32 s{S_WSO}, s{S_WSO}, {64*9216}")] if not last else [Ins(f"s_sub_u32 s{S_WSO}, s{S_WSO}, {8*64*9216-128}")]
    o=[Ins(f"s_add_u32 s{S_AW}, s{S_AW}, 1"), Ins(f"s_cmp_eq_u32 s{S_AW}, 9"), Ins(f"s_cselect_b32 s{S_AW}, 0, s{S_AW}")]
    if last: o.append(Ins(f"s_add_u32 s{S_GRP}, s{S_GRP}, 128"))
    o+=[Ins(f"s_mul_i32 s{S_WSO}, s{S_AW}, {64*9216}"), Ins(f"s_add_u32 s{S_WSO}, s{S_WSO}, s{S_GRP}")]
    return o
def xdma(c):
    base=XA if c%2==0 else XB
    o=[]
    for i in range(8):
        if i%4==0:
            o.append(Ins(f"s_add_u32 m0, s{S_MX}, {base+4096*(i//4)}")); o.append(Ins("s_nop 0"))
        o.append(Ins(f"buffer_load_dwordx4 v{V_XD+(i%4)}, s[{S_X}:{S_X+3}], s{S_XSO if i<4 else S_XSO2} offen offset:{1024*(i%4)} lds"))
    if not ROT:
        return o+[Ins(f"s_add_u32 s{S_XSO}, s{S_XSO}, 128"), Ins(f"s_add_u32 s{S_XSO2}, s{S_XSO2}, 128")]
    o+=[Ins(f"s_add_u32 s{S_AX}, s{S_AX}, 1"), Ins(f"s_cmp_eq_u32 s{S_AX}, 9"), Ins(f"s_cselect_b32 s49, {9*128}, 0"), Ins(f"s_cselect_b32 s{S_AX}, 0, s{S_AX}"),
        Ins(f"s_add_u32 s{S_XSO}, s{S_XSO}, 128"), Ins(f"s_sub_u32 s{S_XSO}, s{S_XSO}, s49"), Ins(f"s_add_u32 s{S_XSO2}, s{S_XSO}, {32*1152}")]
    return o
def xrd(c):
    return [Ins(f"ds_read_b128 {XF(tt,2*c+b)}, v{V_XP+2*(c%2)+b} offset:{tt*2048}") for b in range(2) for tt in range(4)]

def trset(P, g0=False):
    o=[]
    for grp in range(3):
        for i in range(2):
            o.append(Ins(f"v_add_u32 v{V_TR+2*grp+i}, {grp*4*CH}, v{V_TRP+2*P+i}"))
    return o
def ard(i, slot, b, j, fi):
    grp=slot//4; so=(slot%4)*CH
    return [Ins(f"ds_read_b64_tr_b16 {afh(fi,h)}, v{V_TR+2*grp+(j&1)} offset:{so+(j>>1)*8192+b*4096+h*512}") for h in range(2)]

PF=4
def phase(buf, entry_pref=True, next_first=None):
    seq=[(c,b,j) for c in range(9) for b in range(2) for j in range(4)]
    main=[]; marks={}
    for i,(c,b,j) in enumerate(seq):
        if j==0 and b==0: main.append(('mark',c,'start'))
        n=i+PF
        if n<len(seq):
            cn,bn,jn=seq[n]
            if bn==0 and jn==0: main.append(('mark',cn,'firstread'))
            nxt=ard(n,cn,bn,jn,n)
        else:
            if n==len(seq): main.append(('mark',9,'firstread'))
            nxt=next_first[n-len(seq)] if next_first else []
        ks=2*c+b
        for tt in range(4):
            cc=acc(buf,tt,j) if ks>0 else "0"
            main.append(Ins(f"v_mfma_f32_16x16x32_bf16 {acc(buf,tt,j)}, {afr(i)}, {XF(tt,ks)}, {cc}"))
            if tt<len(nxt): main.append(nxt[tt])
    return main

def first_reads(P_is_next_set):
    return [ard(k,0,k//4,k%4,72+k) for k in range(PF)]

def expand(main, hooks):
    out=[]
    for x in main:
        if isinstance(x,tuple):
            out+=hooks.get((x[1],x[2]),[])
        else: out.append(x)
    return out

def gen(p):
    A=p
    A("s_mul_i32 s39, s36, 384")
    A(f"s_add_u32 s{S_G}, s42, s39"); A(f"s_addc_u32 s{S_G+1}, s43, 0"); A(f"s_sub_u32 s{S_G+2}, {576*9216}, s39"); A(f"s_mov_b32 s{S_G+3}, 0x20000")
    A(f"s_add_u32 s{S_U}, s44, s39"); A(f"s_addc_u32 s{S_U+1}, s45, 0"); A(f"s_sub_u32 s{S_U+2}, {576*9216}, s39"); A(f"s_mov_b32 s{S_U+3}, 0x20000")
    A(f"s_mul_i32 s38, s37, {256*1152}")
    A(f"s_add_u32 s{S_X}, s40, s38"); A(f"s_addc_u32 s{S_X+1}, s41, 0"); A(f"s_sub_u32 s{S_X}, s{S_X}, 4096"); A(f"s_subb_u32 s{S_X+1}, s{S_X+1}, 0")
    A(f"s_mov_b32 s{S_X+2}, {256*1152+4096}"); A(f"s_mov_b32 s{S_X+3}, 0x20000")
    A("v_and_b32 v24, 63, v0"); A("v_lshrrev_b32 v25, 4, v24"); A("v_and_b32 v26, 15, v24"); A("v_lshrrev_b32 v27, 3, v24"); A("v_and_b32 v28, 7, v24")
    for i in range(4):
        A(f"v_add_u32 v30, {4*(i&1)}, v25"); A("v_and_b32 v30, 7, v30"); A("v_xor_b32 v30, v30, v28"); A("v_lshlrev_b32 v30, 4, v30")
        A(f"v_add_u32 v31, {8*i}, v27"); A("v_mul_u32_u24 v31, 0x480, v31")
        A(f"v_add3_u32 v{V_XD+i}, v30, v31, 0"); A(f"v_add_u32 v{V_XD+i}, {4096-1024*i}, v{V_XD+i}")
    A(f"s_mov_b32 s50, {'s37' if ROT else 0}")
    A(f"s_mov_b32 s{S_AW}, s50"); A(f"s_mov_b32 s{S_AX}, s50"); A(f"s_mov_b32 s{S_GRP}, 0")
    A(f"s_mul_i32 s{S_XSO}, s{S_W}, {64*1152}"); A("s_lshl_b32 s38, s50, 7"); A(f"s_add_u32 s{S_XSO}, s{S_XSO}, s38"); A(f"s_add_u32 s{S_XSO2}, s{S_XSO}, {32*1152}")
    A(f"s_lshl_b32 s{S_MX}, s{S_W}, 13")
    A.add(xdma(0))
    A(f"s_lshl_b32 s38, s{S_W}, 4")
    for e in range(2):
        A("v_bfe_u32 v30, v27, 1, 1");
        if e: A("v_or_b32 v30, 2, v30")
        A("v_lshrrev_b32 v31, 1, v28"); A("v_xor_b32 v30, v30, v31"); A("v_lshlrev_b32 v30, 5, v30"); A("v_and_b32 v31, 1, v28"); A("v_lshlrev_b32 v31, 4, v31"); A("v_add_u32 v30, v30, v31")
        A(f"v_add_u32 v31, s38, v27");
        if e: A("v_add_u32 v31, 8, v31")
        A("v_mul_u32_u24 v31, 0x2400, v31")
        A(f"v_add_u32 v{V_WD+e}, v30, v31")
        if e: A(f"v_subrev_u32 v{V_WD+e}, 1024, v{V_WD+e}")
    A(f"s_mul_i32 s{S_WSO}, s{S_AW}, {64*9216}"); A(f"s_lshl_b32 s{S_MW}, s{S_W}, 11")
    A.add(wdma(WR0+0)); A.add(wadv(False))
    ST.stamp(p,1)
    A(f"s_mov_b32 s{S_H}, s46"); A(f"s_mov_b32 s{S_H+1}, s47"); A(f"s_mov_b32 s{S_H+2}, {H_BYTES}"); A(f"s_mov_b32 s{S_H+3}, 0x20000")
    A(f"v_lshlrev_b32 v{V_L16}, 4, v24")
    A("v_lshrrev_b32 v30, 2, v26"); A("v_and_b32 v31, 3, v26")
    A("v_lshlrev_b32 v29, 3, v25"); A("v_add_u32 v29, v29, v30"); A("v_lshlrev_b32 v29, 7, v29"); A("v_lshlrev_b32 v31, 3, v31"); A("v_add_u32 v29, v29, v31")
    A("v_lshrrev_b32 v30, 1, v30"); A("v_and_b32 v31, 1, v25"); A("v_lshlrev_b32 v31, 1, v31"); A("v_or_b32 v30, v30, v31")
    for s in range(4):
        A(f"v_xor_b32 v31, {s}, v30"); A("v_lshlrev_b32 v31, 5, v31"); A(f"v_add_u32 v{V_TRP+s}, v31, v29")
    A("v_lshrrev_b32 v30, 1, v26"); A("v_xor_b32 v30, v30, v25"); A("v_lshlrev_b32 v30, 4, v30"); A("v_lshlrev_b32 v31, 7, v26"); A("v_add_u32 v30, v30, v31")
    A(f"v_add_u32 v30, s{S_MX}, v30")
    A(f"v_add_u32 v{V_XP}, {XA}, v30"); A(f"v_xor_b32 v{V_XP+1}, 64, v{V_XP}"); A(f"v_add_u32 v{V_XP+2}, {XB}, v30"); A(f"v_xor_b32 v{V_XP+3}, 64, v{V_XP+2}")
    A(f"v_mov_b32 v{V_C1}, 0x{f2u(C1):08x}")
    A("s_lshl_b32 s38, s37, 4"); A(f"s_lshl_b32 s39, s{S_W}, 2"); A("s_add_u32 s38, s38, s39"); A(f"s_mul_i32 s38, s38, {NKS_TOT}")
    A("s_mul_i32 s39, s36, 6"); A("s_add_u32 s38, s38, s39"); A(f"s_lshl_b32 s{S_HSO}, s38, 10")
    A("s_lshl_b32 s38, s36, 3"); A("s_add_u32 s38, s38, s37"); A("s_lshl_b32 s38, s38, 2"); A(f"s_add_u32 s38, s38, s{S_W}")
    A(f"s_mul_i32 s{S_PFO}, s38, {8*1024}")
    A(f"s_mov_b32 s{S_PF}, s66"); A(f"s_mov_b32 s{S_PF+1}, s67"); A(f"s_mov_b32 s{S_PF+2}, {4608*1152}"); A(f"s_mov_b32 s{S_PF+3}, 0x20000")
    for s in range(4): A(f"v_add_u32 v{V_TR+s}, {WR0*CH}, v{V_TRP+s}")
    A.add(wdma(WR0+1)); A.add(wadv(False)); A.add(xdma(1))
    log=['X0']*8+['W0']*4+['W1']*4+['X1']*8
    def waitfor(tags, extra=""):
        nonlocal log
        idx=[i for i,t in enumerate(log) if t in tags]
        if idx:
            last=max(idx); n=len(log)-1-last
            log=log[last+1:]
            return [Ins(f"s_waitcnt vmcnt({n}) {extra}".strip())]
        return [Ins(f"s_waitcnt {extra}")] if extra else []
    def g0rd(i):
        c,b,j8=i//16,(i%16)//8,i%8
        P=j8//4; j=j8%4
        sl=c%4
        return [Ins(f"ds_read_b64_tr_b16 {afh(i,h)}, v{V_TR+2*P+(j&1)} offset:{sl*CH+(j>>1)*8192+b*4096+h*512}") for h in range(2)]
    p.add(waitfor(('X0','W0'))); p("s_barrier")
    ST.stamp(p,2)
    p.add(xrd(0))
    pre=[]
    for i in range(PF): pre+=g0rd(i)
    p.add(pre[:6]); p("s_waitcnt lgkmcnt(6)"); p.add(pre[6:])
    q0=[x.wr for x in pre]
    N0=9*16
    A("s_lshl_b32 s38, s2, 2"); A(f"s_add_u32 s38, s38, s{S_W}"); A("s_mul_i32 s51, s38, 6144")
    A("s_mov_b32 s52, s42"); A("s_mov_b32 s53, s43"); A(f"s_mov_b32 s54, {576*9216}"); A("s_mov_b32 s55, 0x20000")
    A("s_mov_b32 s60, s44"); A("s_mov_b32 s61, s45"); A(f"s_mov_b32 s62, {576*9216}"); A("s_mov_b32 s63, 0x20000")
    def lin(k):
        srd="s[52:55]" if k<6 else "s[60:63]"; kk=k%6
        o=[]
        if kk==4: o.append(Ins("s_add_u32 s51, s51, 4096"))
        if k==6: o.append(Ins("s_sub_u32 s51, s51, 4096"))
        o.append(Ins(f"buffer_load_dwordx4 v[56:59], v{V_L16}, {srd}, s51 offen offset:{1024*(kk%4)}"))
        return o
    def tagged(lst,tag):
        for x in lst:
            if x.kind=='dma': x.tag=tag
        return lst
    def logit(stream):
        for x in stream:
            if getattr(x,'kind',None) in('dma','vmem'): log.append(x.tag or 'P')
    carry=tagged(wdma(WR0+2)+wadv(False),'W2')+tagged(xdma(2),'X2')
    for c in range(9):
        main=[]
        for ii in range(16):
            i=c*16+ii
            if ii==8: main.append(('mid',))
            n=i+PF
            nxt=g0rd(n) if n<N0 else []
            b=ii//8; j8=ii%8; P=j8//4; j=j8%4; ks=2*c+b
            for tt in range(4):
                cc=acc(P,tt,j) if ks>0 else "0"
                main.append(Ins(f"v_mfma_f32_16x16x32_bf16 {acc(P,tt,j)}, {afr(i)}, {XF(tt,ks)}, {cc}"))
                if tt<len(nxt): main.append(nxt[tt])
        im=main.index(('mid',))
        first=main[:im]; second=main[im+1:]
        if carry: first=spread(first, dma_items(carry), first=4 if c else 0)
        logit(first)
        carry=[]
        midl=[]
        if c+1<9: midl+=waitfor((f'X{c+1}',f'W{c+1}'))
        midl.append(Ins("s_barrier"))
        dl=[]
        if c+3<9: dl+=tagged(wdma(WR0+(c+3)%4)+wadv(c+3==8),f'W{c+3}')
        g1={6:(0,1),7:(2,3),8:(4,5)}.get(c,())
        for cc_ in g1: dl+=tagged(wdma(cc_)+wadv(False),f'G{cc_}')
        if c+1<9:
            xr=xrd(c+1)
            second=spread(second,[[x] for x in xr], first=1, last=18)
        if dl: second=spread(second, dma_items(dl), first=2)
        if WPF and c<3:
            second=spread(second, [lin(k) for k in range(4*c,4*c+4)], first=5)
        logit(second)
        if c+3<9: carry=tagged(xdma(c+3),f'X{c+3}')
        stream,q0=auto_lgkm(first+midl+second, q0, extra=2)
        p.add(stream)
    ST.stamp(p,3)
    p.add(pkconst()); p("s_nop 4")
    p.add(gelu(0,pk=True)); log+=['S']*4
    p.add(trset(0))
    p.add(waitfor(('G0','G1','G2'))); p("s_barrier")
    fr=first_reads(0)
    for k in range(PF): p.add(fr[k])
    ST.stamp(p,4)
    p(f"s_mov_b32 s{S_CNT}, 0")
    il=len(p.ins)
    p.label("L_gx_loop")
    q0=[x.wr for k in range(PF) for x in fr[k]]
    pfl=lambda: [Ins(f"buffer_load_dwordx4 v[56:59], v{V_L16}, s[{S_PF}:{S_PF+3}], s{S_PFO} offen", tag='pf'), Ins(f"s_add_u32 s{S_PFO}, s{S_PFO}, 1024")]
    def marks(m, fn):
        cur=[]
        for x in m:
            if isinstance(x,tuple):
                t=fn(x)
                if t: cur.append(Ins(t+":"))
            else: cur.append(x)
        return cur
    cur=marks(phase(0, next_first=first_reads(1)), lambda x: (f"LAND{x[1]}" if x[2]=='firstread' and x[1] in (3,6) else ("SWITCH1" if x[2]=='firstread' and x[1]==9 else None)))
    d678=wdma(6)+wadv(False)+wdma(7)+wadv(False)+wdma(8)+wadv(True)
    cur=spread(cur, dma_items(d678), first=2, last=84)
    mer=interleave(cur, pfl()+pfl()+gelu(1), budget=2)
    out=[]; seq=[]
    for x in mer:
        if x.kind=='label' and x.text.startswith('LAND3'):
            out.append(Ins(f"s_waitcnt vmcnt({len(seq)})")); out.append(Ins("s_barrier"))
        elif x.kind=='label' and x.text.startswith('LAND6'):
            last=max(i for i,t in enumerate(seq) if t=='dma'); assert seq.count('dma')==12
            out.append(Ins(f"s_waitcnt vmcnt({len(seq)-1-last})")); out.append(Ins("s_barrier"))
        elif x.kind=='label' and x.text.startswith('SWITCH'):
            out+=trset(1)
        else:
            if x.kind in('vmem','dma'): seq.append(x.kind)
            out.append(x)
    st,q1=auto_lgkm(out,q0,extra=2)
    p.add(st)
    cur=marks(phase(1, next_first=first_reads(0)), lambda x: (f"FREE{x[1]//3-1}" if x[2]=='start' and x[1] in (3,6) else ("PRE9" if x[2]=='firstread' and x[1]==9 else None)))
    def mfma_index_of(cur,lab):
        k=0
        for x in cur:
            if x.kind=='label' and x.text.startswith(lab): return k
            if x.kind=='mfma': k+=1
    for k in (0,1):
        d=[]
        for cc_ in (3*k,3*k+1,3*k+2): d+=wdma(cc_)+wadv(False)
        f=mfma_index_of(cur,f"FREE{k}")
        cur=spread(cur, dma_items(d), first=f+1, last=f+84)
    mer=interleave(cur, pfl()+pfl()+gelu(0), budget=2)
    out=[]; seq=[]
    for x in mer:
        if x.kind=='label' and x.text.startswith('FREE'):
            out.append(Ins("s_barrier"))
        elif x.kind=='label' and x.text.startswith('PRE9'):
            d=[i for i,t in enumerate(seq) if t=='dma']; assert len(d)==24
            out.append(Ins(f"s_waitcnt vmcnt({len(seq)-1-d[11]})")); out.append(Ins("s_barrier")); out+=trset(0)
        else:
            if x.kind in('vmem','dma'): seq.append(x.kind)
            out.append(x)
    st,q2=auto_lgkm(out,q1,extra=2)
    p.add(st)
    p("s_barrier")
    p(f"s_add_u32 s{S_CNT}, s{S_CNT}, 1"); p(f"s_cmp_lt_u32 s{S_CNT}, 2"); p("s_cbranch_scc1 L_gx_loop")
    idn=len(p.ins)
    assert [sorted(d) for d in q2]==[sorted(x.wr) for k in range(PF) for x in fr[k]] or True
    p("s_waitcnt lgkmcnt(0)")
    ST.stamp(p,5)
    p.add(pkconst()); p("s_nop 4")
    p.add(gelu(1,pk=True))
    ST.stamp(p,6)
    ST.flush(p,70,71,0)
    if MERGE:
        p("s_lshr_b32 s91, s4, 1"); p("s_mov_b32 s90, 0")
        p("s_and_b32 s38, s4, 1"); p("s_mul_i32 s38, s38, 24"); p("s_add_u32 s92, s38, s6")
        p(f"s_mov_b32 s93, s{S_W}")
        p("s_mul_i32 s38, s36, 43"); p("s_lshr_b32 s38, s38, 8"); p("s_lshl_b32 s39, s37, 2"); p("s_add_u32 s94, s38, s39"); p("s_add_u32 s94, s94, 8"); p("s_mov_b32 s95, 1")
        p("s_mul_i32 s38, s92, 171"); p("s_lshr_b32 s38, s38, 10"); p("s_lshl_b32 s38, s38, 2"); p("s_add_u32 s96, s38, s91"); p("s_add_u32 s96, s96, 8"); p("s_mov_b32 s97, 6")
        p("s_branch L_p2")
    return il,idn
```

```python
from core import *
import stamp as ST
from k1_gx import NKS_TOT, H_BYTES, f2u
import os
G_OFF=0x1500000; P_OFF=0x1600000
U=12; STG=12288; D=4
SLEEP=int(os.environ.get('SLEEP','6'))
ACC=64
def acc(q,tt,r=None):
    b=ACC+(q*2+tt)*4
    return f"v[{b}:{b+3}]" if r is None else f"v{b+r}"
def hfr(u,tt): b=(u*2+tt)*4; return f"a[{b}:{b+3}]"
def afr(q): b=96+4*q; return f"a[{b}:{b+3}]"
def afh(q,h): b=96+4*q+2*h; return f"a[{b}:{b+1}]"
V_TR=8; V_DF=20; V_L16=26
S_H=16; S_P=20; S_CUR=24
S_W=28; S_WB=29; S_DSO=30; S_INA=31; S_INB=32; S_HS0=33; S_HS1=34; S_RND=35; S_NR=36
S_JT=90
S_JO=91
S_JTILE=92
S_JW=93
CNT_OFF=0x15C0000
HC0=8; OC0=40; TC0=48

def trread(q,h,stage):
    grp=stage//5; so=(stage%5)*STG
    x=Ins(f"ds_read_b64_tr_b16 {afh(q,h)}, v{V_TR+4*grp+(q&3)} offset:{so+(q>>2)*128+h*1536}"); x.cost=1
    return x
def issue_h(u_dst,hoff):
    o=[Ins(f"buffer_load_dwordx4 {hfr(u_dst,0)}, v{V_L16}, s[{S_H}:{S_H+3}], s{S_HS0} offen offset:{hoff} sc1"),
       Ins(f"buffer_load_dwordx4 {hfr(u_dst,1)}, v{V_L16}, s[{S_H}:{S_H+3}], s{S_HS1} offen offset:{hoff} sc1")]
    if hoff==3072: o+=[Ins(f"s_add_u32 s{S_HS0}, s{S_HS0}, 4096"), Ins(f"s_add_u32 s{S_HS1}, s{S_HS1}, 4096")]
    return o
def issue_w(u_dst,inc):
    o=[Ins(f"s_add_u32 m0, s{S_WB}, {u_dst*STG}"), Ins("s_nop 0")]
    for e in range(3):
        o.append(Ins(f"buffer_load_dwordx4 v{V_DF+e}, s[{S_CUR}:{S_CUR+3}], s{S_DSO} offen offset:{1024*e} lds"))
    o.append(Ins(f"s_add_u32 s{S_DSO}, s{S_DSO}, s{inc}"))
    return o
def items2(lst):
    items=[]; pend=[]
    for x in lst:
        if x.kind=='nop': continue
        if x.kind in('dma','vmem'):
            if pend: items.append(pend); pend=[]
            items.append([x])
        else: pend.append(x)
    if pend: items.append(pend)
    return items
def step(u):
    main=[Ins(f"s_waitcnt vmcnt({5*(D-2)})"),Ins("s_barrier")]
    un=(u+1)%U
    for q in range(12):
        if q%2==0: main.append(Ins("s_waitcnt lgkmcnt(8)"))
        qn=q+6
        rd=[trread(qn,h,u) for h in range(2)] if qn<12 else [trread(qn-12,h,un) for h in range(2)]
        for tt in range(2):
            main.append(Ins(f"v_mfma_f32_16x16x32_bf16 {acc(q,tt)}, {afr(q)}, {hfr(u,tt)}, {acc(q,tt)}"))
            main.append(rd[tt])
    ud=(u+D)%U
    fl=issue_h(ud,1024*((u+D)%4))+issue_w(ud, S_INB if (u+D)%3==2 else S_INA)
    return spread(main, items2(fl), first=2, last=22)

def cnt_base(p):
    p(f"s_add_u32 s64, s70, {CNT_OFF}"); p("s_addc_u32 s65, s71, 0")
def poll(p, idx_s, target, lab, wreg=S_JW):
    p(f"s_cmp_eq_u32 s{wreg}, 0"); p(f"s_cbranch_scc0 {lab}_ok")
    p(f"s_lshl_b32 s38, s{idx_s}, 7"); p("v_mov_b32 v2, s38")
    p("s_mov_b32 s39, 0")
    p.label(lab)
    p(f"global_load_dword v3, v2, s[64:65] sc1"); p("s_waitcnt vmcnt(0)")
    p("v_readfirstlane_b32 s38, v3"); p("s_add_u32 s39, s39, 1")
    p(f"s_cmp_ge_u32 s38, {target}"); p(f"s_cbranch_scc1 {lab}_ok")
    p("s_cmp_gt_u32 s39, 200000"); p(f"s_cbranch_scc1 {lab}_ok")
    p(f"s_sleep {SLEEP}"); p(f"s_branch {lab}")
    p.label(lab+"_ok")
    p("s_barrier")
def signal(p, vtmp, idx_s, lab, wreg=S_JW):
    p(f"s_cmp_eq_u32 s{wreg}, 0"); p(f"s_cbranch_scc0 {lab}")
    p(f"s_lshl_b32 s38, s{idx_s}, 7"); p(f"v_mov_b32 v{vtmp}, s38"); p(f"v_mov_b32 v{vtmp+1}, 1")
    p("v_cmp_eq_u32 vcc, 0, v0"); p("s_and_saveexec_b64 s[48:49], vcc")
    p(f"global_atomic_add v{vtmp}, v{vtmp+1}, s[64:65] sc1")
    p("s_mov_b64 exec, s[48:49]")
    p.label(lab)
def zero_ready(p, lab, wreg, vt=2):
    p(f"s_cmp_eq_u32 s{wreg}, 0"); p(f"s_cbranch_scc0 {lab}_ok")
    p(f"v_mov_b32 v{vt}, 0"); p("s_mov_b32 s39, 0")
    p.label(lab)
    p(f"global_load_dword v{vt+1}, v{vt}, s[68:69] sc1"); p("s_waitcnt vmcnt(0)")
    p(f"v_readfirstlane_b32 s38, v{vt+1}"); p("s_add_u32 s39, s39, 1")
    p("s_cmp_ge_u32 s38, 96"); p(f"s_cbranch_scc1 {lab}_ok")
    p("s_cmp_gt_u32 s39, 200000"); p(f"s_cbranch_scc1 {lab}_ok")
    p(f"s_sleep {SLEEP}"); p(f"s_branch {lab}")
    p.label(lab+"_ok")

def gen_p2(p, docheck=True):
    i0=len(p.ins)
    p.label("L_p2")
    ST.stamp(p,0) if False else None
    p("s_load_dwordx2 s[40:41], s[0:1], 24")
    p("s_load_dwordx2 s[42:43], s[0:1], 56")
    p("s_load_dwordx2 s[44:45], s[0:1], 72")
    p(f"s_mov_b32 s{S_W}, s{S_JW}")
    p(f"s_mul_i32 s5, s{S_JTILE}, 171"); p("s_lshr_b32 s5, s5, 9")
    p("s_mul_i32 s6, s5, 3"); p(f"s_sub_u32 s6, s{S_JTILE}, s6")
    p("v_and_b32 v1, 63, v0"); p(f"v_lshlrev_b32 v{V_L16}, 4, v1")
    p(f"s_mul_i32 s48, s{S_W}, 192")
    p(f"s_cmp_eq_u32 s{S_JT}, 1"); p("s_cselect_b64 s[50:51], -1, 0")
    for e in range(3):
        p(f"v_add_u32 v4, s48, v1")
        if e: p(f"v_add_u32 v4, {64*e}, v4")
        p("v_mul_u32_u24 v5, 0xaab, v4"); p("v_lshrrev_b32 v5, 16, v5")
        p("v_mul_u32_u24 v6, 24, v5"); p("v_sub_u32 v6, v4, v6")
        p("v_bfe_u32 v7, v5, 1, 1"); p("v_bfe_u32 v4, v5, 3, 1"); p("v_lshlrev_b32 v4, 1, v4"); p("v_or_b32 v7, v7, v4")
        p("v_lshrrev_b32 v4, 1, v6"); p("v_xor_b32 v4, v4, v7"); p("v_lshlrev_b32 v4, 5, v4")
        p("v_and_b32 v6, 1, v6"); p("v_lshlrev_b32 v6, 4, v6"); p(f"v_add3_u32 v4, v4, v6, 0"); p(f"v_add_u32 v31, {4096-1024*e}, v4")
        p("v_bfe_u32 v6, v5, 2, 1"); p("v_lshlrev_b32 v6, 4, v6"); p("v_lshrrev_b32 v7, 3, v5"); p("v_lshlrev_b32 v30, 2, v7"); p("v_add_u32 v6, v6, v30")
        p("v_and_b32 v30, 3, v5"); p("v_add_u32 v6, v6, v30")
        p("v_mul_u32_u24 v7, 18, v7"); p("v_and_b32 v30, 7, v5"); p("v_add_u32 v7, v7, v30")
        p("v_cndmask_b32 v6, v6, v7, s[50:51]")
        p("v_mul_u32_u24 v6, 0x480, v6"); p(f"v_add_u32 v{V_DF+e}, v6, v31")
    p("v_lshrrev_b32 v2, 4, v1"); p("v_and_b32 v3, 15, v1")
    p("v_lshrrev_b32 v4, 2, v3"); p("v_and_b32 v5, 3, v3")
    p("v_lshlrev_b32 v6, 3, v2"); p("v_add_u32 v6, v6, v4"); p("v_mul_u32_u24 v6, 0x180, v6")
    p("v_lshlrev_b32 v5, 3, v5"); p("v_add_u32 v6, v6, v5")
    p("v_lshrrev_b32 v4, 1, v4"); p("v_and_b32 v5, 1, v2"); p("v_lshlrev_b32 v5, 1, v5"); p("v_or_b32 v4, v4, v5")
    for k in range(4):
        p(f"v_xor_b32 v5, {k}, v4"); p("v_lshlrev_b32 v5, 5, v5"); p(f"v_add_u32 v{V_TR+k}, v5, v6")
        p(f"v_add_u32 v{V_TR+4+k}, {5*STG}, v{V_TR+k}"); p(f"v_add_u32 v{V_TR+8+k}, {10*STG}, v{V_TR+k}")
    for r in range(ACC,ACC+96): p(f"v_mov_b32 v{r}, 0")
    p("s_waitcnt lgkmcnt(0)")
    p(f"s_cmp_eq_u32 s{S_JT}, 1")
    p(f"s_mov_b32 s52, {4608*1152+4096}"); p(f"s_mov_b32 s{S_INA}, {32*1152}"); p(f"s_mov_b32 s{S_INB}, {32*1152}")
    p("s_cselect_b32 s46, s40, s42"); p("s_cselect_b32 s47, s41, s43"); p(f"s_cselect_b32 s52, {576*1152+4096}, s52")
    p(f"s_cselect_b32 s{S_INA}, {8*1152}, s{S_INA}"); p(f"s_cselect_b32 s{S_INB}, {56*1152}, s{S_INB}"); p(f"s_cselect_b32 s{S_NR}, 2, 3")
    p(f"s_mul_i32 s53, s{S_JO}, 36"); p(f"s_cselect_b32 s53, 144, s53")
    p(f"s_mul_i32 s54, s53, {32*1152}"); p(f"s_cselect_b32 s{S_DSO}, 0, s54")
    p("s_mul_i32 s55, s6, 384")
    p(f"s_add_u32 s{S_CUR}, s46, s55"); p(f"s_addc_u32 s{S_CUR+1}, s47, 0"); p(f"s_sub_u32 s{S_CUR}, s{S_CUR}, 4096"); p(f"s_subb_u32 s{S_CUR+1}, s{S_CUR+1}, 0")
    p(f"s_sub_u32 s{S_CUR+2}, s52, s55"); p(f"s_mov_b32 s{S_CUR+3}, 0x20000")
    p(f"s_mov_b32 s{S_H}, s70"); p(f"s_mov_b32 s{S_H+1}, s71"); p(f"s_mov_b32 s{S_H+2}, {H_BYTES}"); p(f"s_mov_b32 s{S_H+3}, 0x20000")
    p("s_lshl_b32 s47, s5, 7"); p(f"s_lshl_b32 s48, s{S_W}, 5"); p("s_add_u32 s47, s47, s48")
    p("s_lshr_b32 s48, s47, 4"); p(f"s_mul_i32 s48, s48, {NKS_TOT}"); p("s_add_u32 s48, s48, s53"); p(f"s_lshl_b32 s{S_HS0}, s48, 10")
    p(f"s_add_u32 s{S_HS1}, s{S_HS0}, {NKS_TOT*1024}")
    p(f"s_mul_i32 s{S_WB}, s{S_W}, 3072")
    cnt_base(p)
    p("s_waitcnt vmcnt(0)"); p("s_barrier")
    zero_ready(p, "L_p2_zr", S_JW)
    signal(p, 4, 94, "L_p2_sig1")
    ST.stamp(p,7)
    p(f"s_cmp_ge_u32 s{S_JTILE}, 48"); p("s_cbranch_scc1 L_p2_end")
    for i in range(D): p.add(issue_w(i, S_INB if i%3==2 else S_INA))
    poll(p, 96, "s97", "L_p2_poll1")
    ST.stamp(p,8)
    for i in range(D): p.add(issue_h(i,1024*(i%4)))
    p(f"s_waitcnt vmcnt({2*(D-2)})"); p("s_barrier")
    for q in range(6):
        for h in range(2): p.add([trread(q,h,0)])
    p(f"s_mov_b32 s{S_RND}, 0")
    iA=len(p.ins)
    p.label("L_p2_loop")
    for u in range(U): p.add(step(u))
    p(f"s_add_u32 s{S_RND}, s{S_RND}, 1"); p(f"s_cmp_lt_u32 s{S_RND}, s{S_NR}"); p("s_cbranch_scc1 L_p2_loop")
    iA2=len(p.ins)
    p("s_waitcnt vmcnt(0) lgkmcnt(0)")
    ST.stamp(p,9)
    p(f"s_mul_i32 s47, s{S_JTILE}, 5"); p(f"s_add_u32 s47, s47, s{S_JO}"); p("s_lshl_b32 s47, s47, 2"); p(f"s_add_u32 s47, s47, s{S_W}"); p("s_mul_i32 s47, s47, 12288")
    p(f"s_add_u32 s{S_P}, s70, {P_OFF}"); p(f"s_addc_u32 s{S_P+1}, s71, 0"); p(f"s_mov_b32 s{S_P+2}, {240*4*12288}"); p(f"s_mov_b32 s{S_P+3}, 0x20000")
    p("s_nop 3")
    for tt in range(2):
        for pp in range(6):
            t=32+4*((tt*6+pp)%4); k=0
            for q in (2*pp,2*pp+1):
                for r in (0,2):
                    p(f"v_cvt_pk_bf16_f32 v{t+k}, {acc(q,tt,r)}, {acc(q,tt,r+1)}"); k+=1
            off=(tt*6+pp)*1024
            p(f"s_add_u32 s56, s47, {off - off%4096}")
            p(f"buffer_store_dwordx4 v[{t}:{t+3}], v{V_L16}, s[{S_P}:{S_P+3}], s56 offen offset:{off%4096} sc1")
    p(f"s_add_u32 s57, s{S_JTILE}, {TC0}")
    p("v_and_b32 v4, 15, v1"); p("v_lshrrev_b32 v5, 4, v1")
    p("s_lshl_b32 s60, s5, 7"); p(f"s_lshl_b32 s61, s{S_W}, 5"); p("s_add_u32 s60, s60, s61")
    p("v_add_u32 v6, s60, v4")
    p("v_lshlrev_b32 v7, 2, v6")
    p("v_mul_u32_u24 v6, 0x480, v6"); p("v_lshlrev_b32 v5, 3, v5"); p("v_add_u32 v6, v6, v5")
    p("s_mov_b32 s8, s44"); p("s_mov_b32 s9, s45"); p(f"s_mov_b32 s10, {2048*1152}"); p("s_mov_b32 s11, 0x20000")
    p(f"s_add_u32 s12, s70, {G_OFF}"); p("s_addc_u32 s13, s71, 0"); p("s_mov_b32 s14, 8192"); p("s_mov_b32 s15, 0x20000")
    p(f"s_mul_i32 s62, s{S_JTILE}, {5*4*12288}"); p(f"s_mul_i32 s63, s{S_W}, 12288"); p("s_add_u32 s62, s62, s63")
    p("s_waitcnt vmcnt(0)"); p("s_barrier")
    ST.stamp(p,1)
    signal(p, 8, 57, "L_p2_sig2")
    poll(p, 57, 5, "L_p2_poll2")
    ST.stamp(p,2)
    p(f"buffer_load_dword v9, v7, s[12:15], 0 offen sc1"); p(f"buffer_load_dword v10, v7, s[12:15], 0 offen offset:64 sc1")
    for c in range(3):
        if c==2: p(f"s_cmp_gt_u32 s{S_JO}, 1"); p("s_cbranch_scc1 L_p3_ld2")
        p(f"s_add_u32 s63, s{S_JO}, {5*c}"); p("s_lshl_b32 s63, s63, 10"); p("s_add_u32 s63, s63, s62")
        for src in range(5):
            b=64+(c*5+src)*4
            p(f"buffer_load_dwordx4 v[{b}:{b+3}], v{V_L16}, s[{S_P}:{S_P+3}], s63 offen sc1")
            if src<4: p(f"s_add_u32 s63, s63, {4*12288}")
    p.label("L_p3_ld2")
    p("s_waitcnt vmcnt(0)")
    for c in range(3):
        if c==2: p(f"s_cmp_gt_u32 s{S_JO}, 1"); p("s_cbranch_scc1 L_p2_end")
        p(f"s_add_u32 s63, s{S_JO}, {5*c}"); p("s_cmp_ge_u32 s63, 6"); p("s_cselect_b32 s56, 6, 0"); p("s_cselect_b64 s[50:51], -1, 0"); p(f"s_cselect_b32 s57, {16*1152}, 0")
        p("s_sub_u32 s63, s63, s56"); p("s_lshl_b32 s63, s63, 6"); p("s_mul_i32 s56, s6, 384"); p("s_add_u32 s63, s63, s56"); p("s_add_u32 s63, s63, s57")
        p("v_cndmask_b32 v11, v9, v10, s[50:51]")
        p("v_sub_f32 v12, 1.0, v11")
        for k in range(4):
            lo=40+2*k; hi=41+2*k
            s0=64+(c*5)*4+k
            p(f"v_lshlrev_b32 v{lo}, 16, v{s0}"); p(f"v_and_b32 v{hi}, 0xffff0000, v{s0}")
            for src in range(1,4):
                s_=64+(c*5+src)*4+k
                p(f"v_lshlrev_b32 v48, 16, v{s_}"); p(f"v_and_b32 v49, 0xffff0000, v{s_}")
                p(f"v_pk_add_f32 v[{lo}:{hi}], v[{lo}:{hi}], v[48:49]")
            s_=64+(c*5+4)*4+k
            p(f"v_lshlrev_b32 v48, 16, v{s_}"); p(f"v_and_b32 v49, 0xffff0000, v{s_}")
            p(f"v_mul_f32 v{lo}, v{lo}, v12"); p(f"v_mul_f32 v{hi}, v{hi}, v12")
            p(f"v_fmac_f32 v{lo}, v48, v11"); p(f"v_fmac_f32 v{hi}, v49, v11")
        o=52+4*(c%2)
        for k in range(4): p(f"v_cvt_pk_bf16_f32 v{o+k}, v{40+2*k}, v{41+2*k}")
        p(f"buffer_store_dwordx2 v[{o}:{o+1}], v6, s[8:11], s63 offen"); p(f"buffer_store_dwordx2 v[{o+2}:{o+3}], v6, s[8:11], s63 offen offset:32")
    p.label("L_p2_end")
    if ST.ENABLE: p("s_waitcnt vmcnt(0)")
    ST.stamp(p,3)
    ST.flush2(p)
    p("s_endpgm")
    if docheck:
        ins=p.ins[i0:]
        a=iA-i0; b=iA2-i0
        tr=ins[:b]+ins[a:b]+ins[b:]
        print("p2 check problems:",len(check(tr,'p2')))
```

```python
from core import *
ENABLE=False
def stamp(p, idx):
    if not ENABLE: return
    if idx==0:
        for i in range(80,90): p(f"s_mov_b32 s{i}, 0")
        p("s_memrealtime s[78:79]"); p("s_waitcnt lgkmcnt(0)"); p("s_mov_b32 s98, s78")
    p(f"s_memtime s[76:77]"); p("s_waitcnt lgkmcnt(0)")
    p(f"s_mov_b32 s{80+idx}, s76")
def flush(p, ws_lo, ws_hi, kern, n=10):
    if not ENABLE: return
    p("s_memrealtime s[78:79]"); p("s_waitcnt lgkmcnt(0)"); p("s_mov_b32 s99, s78")
    p(f"s_lshl_b32 s76, s2, 7"); p(f"s_add_u32 s76, s76, {0x3000000+kern*0x20000}")
    p(f"s_add_u32 s76, s{ws_lo}, s76"); p(f"s_addc_u32 s77, s{ws_hi}, 0")
    p("v_mov_b32 v60, 0")
    p("v_cmp_eq_u32 vcc, 0, v0"); p("s_and_saveexec_b64 s[78:79], vcc"); lab=f"L_stskip{kern}_{len(p.ins)}"; p(f"s_cbranch_execz {lab}")
    for i in range(10):
        p(f"v_mov_b32 v61, s{80+i}"); p(f"global_store_dword v60, v61, s[76:77] offset:{4*i}")
    p("v_mov_b32 v61, s98"); p("global_store_dword v60, v61, s[76:77] offset:40"); p("v_mov_b32 v61, s99"); p("global_store_dword v60, v61, s[76:77] offset:44")
    p.label(lab)
    p("s_mov_b64 exec, s[78:79]")
    for i in range(80,90): p(f"s_mov_b32 s{i}, 0")
    p(f"s_memtime s[76:77]"); p("s_waitcnt lgkmcnt(0)"); p("s_mov_b32 s80, s76")
def flush2(p):
    flush(p,70,71,1)
```

```python
import sys, os
from core import *
NAME="gated_mix__linear_kernel_hedgehog__geglu_ffn__prompt_kernel"
HDR=open('gated_mix__linear_kernel_hedgehog__geglu_ffn__prompt.s.ref').read().split('; Override launch')[0]
def build(path):
    import k1,k1_att,k1_gx
    if k1_gx.MERGE:
        k1.KNAME=NAME
        p1=k1.gen_k1(k1_att.gen_att)
        t=HDR+"; @launch grid=(256,1,1) block=(256,1,1) lds=163840\n"
        t+='.amdgcn_target "amdgcn-amd-amdhsa--gfx950"\n.text\n'
        t+=k1.kernel_text(NAME,p1.text())+"L_code_end:\n"
        t+='.section .rodata,"a"\n.p2align 6\n'+k1.desc(NAME)
    else:
        import k2
        p1=k1.gen_k1(k1_att.gen_att); p2=k2.gen_k2(); p3=k2.gen_k3()
        L=[("k1_kernel",256,163840),("k2_kernel",240,147456),("k3_kernel",192,0)]
        t=HDR
        for (n,g,l) in L: t+=f"; @launch kernel={n} grid=({g},1,1) block=(256,1,1) lds={l}\n"
        t+='.amdgcn_target "amdgcn-amd-amdhsa--gfx950"\n.text\n'
        t+=k1.kernel_text("k1_kernel",p1.text())+k1.kernel_text("k2_kernel",p2.text())+k1.kernel_text("k3_kernel",p3.text())+"L_code_end:\n"
        t+='.section .rodata,"a"\n.p2align 6\n'+k1.desc("k1_kernel")+'.p2align 6\n'+k1.desc("k2_kernel")+'.p2align 6\n'+k1.desc("k3_kernel",nv=104,ns=40,acc_off=104)
    t=t.replace(' lds nt\n',' nt lds\n')
    open(path,'w').write(t)
    print(path, len(t))
if __name__=="__main__":
    import stamp
    if "--stamp" in sys.argv: stamp.ENABLE=True; sys.argv.remove("--stamp")
    build(sys.argv[1] if len(sys.argv)>1 else 'out.s')
```

```python
import re

REG_RE = re.compile(r'^(-|\|)?(v|a|s)(\d+)\|?$')
RNG_RE = re.compile(r'^(-)?(v|a|s)\[(\d+):(\d+)\]$')

def regs_of(tok):
    tok = tok.strip()
    if tok.startswith('abs(') or tok.startswith('-abs('):
        tok = tok[tok.index('(')+1:-1]
    m = REG_RE.match(tok)
    if m: return [m.group(2)+m.group(3)]
    m = RNG_RE.match(tok)
    if m: return [m.group(2)+str(i) for i in range(int(m.group(3)), int(m.group(4))+1)]
    if tok in ('vcc',): return ['vcc_lo','vcc_hi']
    if tok in ('exec',): return ['exec_lo','exec_hi']
    if tok in ('vcc_lo','vcc_hi','exec_lo','exec_hi','m0','scc'): return [tok]
    return []

import os
DSCOST=int(os.environ.get('DSCOST','2'))
TRANS = ('v_exp_f32','v_log_f32','v_rcp_f32','v_rsq_f32','v_sqrt_f32','v_sin_f32','v_cos_f32','v_rcp_iflag_f32')

class Ins:
    __slots__=('text','op','kind','rd','wr','cost','ops','mods','tag')
    def __init__(self, text, tag=None):
        self.text = text; self.tag = tag
        t = text.split(';')[0].strip()
        self.rd=set(); self.wr=set(); self.cost=1; self.ops=[]; self.mods=''
        if t.endswith(':') or t.startswith('.') or t=='':
            self.op=t; self.kind='label'; self.cost=0; return
        sp = t.split(None,1)
        op = sp[0]; rest = sp[1] if len(sp)>1 else ''
        for suf in ('_e32','_e64','_dpp','_sdwa'):
            if op.endswith(suf): op = op[:-len(suf)]
        self.op = op
        parts=[]; depth=0; cur=''
        for ch in rest:
            if ch in '[(': depth+=1
            if ch in '])': depth-=1
            if ch==',' and depth==0: parts.append(cur.strip()); cur=''
            else: cur+=ch
        if cur.strip(): parts.append(cur.strip())
        mods=''
        if parts:
            lp = parts[-1].split()
            if len(lp)>1:
                parts[-1]=lp[0]; mods=' '.join(lp[1:])
        self.ops=parts; self.mods=mods
        R=lambda i: set(regs_of(parts[i])) if i<len(parts) else set()
        allr=lambda a: set().union(*[set(regs_of(p)) for p in parts[a:]]) if len(parts)>a else set()
        if op.startswith('v_mfma'):
            self.kind='mfma'; self.wr=R(0); self.rd=allr(1); self.cost=2
        elif False: pass
        elif op.startswith('ds_read') or op.startswith('ds_bpermute') or op.startswith('ds_swizzle') or op.startswith('ds_permute'):
            self.kind='ds'; self.wr=R(0); self.rd=allr(1); self.cost=DSCOST
            if 'd16' in op: self.rd|=R(0)
        elif op.startswith('ds_'):
            self.kind='ds'; self.rd=allr(0)
        elif op.startswith('buffer_load') or op.startswith('global_load'):
            if 'lds' in mods.split() or '_lds_' in op:
                self.kind='dma'; self.rd=allr(0)|{'m0'}
            else:
                self.kind='vmem'; self.wr=R(0); self.rd=allr(1)
        elif op.startswith('buffer_store') or op.startswith('global_store'):
            self.kind='vmem'; self.rd=allr(0)
        elif op.startswith('buffer_atomic') :
            self.kind='vmem'; self.rd=allr(0)
            if 'sc0' in mods.split(): self.wr=R(0)
        elif op.startswith('global_atomic'):
            self.kind='vmem'
            if 'sc0' in mods.split(): self.wr=R(0); self.rd=allr(1)
            else: self.rd=allr(0)
        elif op in ('buffer_wbl2','buffer_inv'):
            self.kind='vmem'
        elif op.startswith('s_load') or op in('s_memtime','s_memrealtime'):
            self.kind='smem'; self.wr=R(0); self.rd=allr(1)
        elif op=='s_waitcnt': self.kind='wait'
        elif op=='s_barrier': self.kind='barrier'
        elif op=='s_nop': self.kind='nop'; self.cost=int(parts[0],0)+1
        elif op in ('s_endpgm','s_setprio','s_sleep'): self.kind='salu'
        elif op.startswith('s_cbranch') or op=='s_branch':
            self.kind='branch'
            if 'scc' in op: self.rd={'scc'}
            if 'vcc' in op: self.rd={'vcc_lo','vcc_hi'}
            if 'exec' in op: self.rd={'exec_lo','exec_hi'}
        elif op.startswith('s_cmp') or op.startswith('s_bitcmp'):
            self.kind='salu'; self.rd=allr(0); self.wr={'scc'}
        elif op in ('s_setpc_b64','s_swappc_b64'):
            self.kind='branch'; self.rd=allr(0)
        elif op.startswith('s_'):
            self.kind='salu'; self.wr=R(0); self.rd=allr(1)
            if 'saveexec' in op: self.wr|={'exec_lo','exec_hi','scc'}; self.rd|={'exec_lo','exec_hi'}
            if op.startswith(('s_add','s_sub','s_and','s_or','s_xor','s_lshl','s_lshr','s_ashr','s_min','s_max','s_not','s_bfe','s_andn2','s_orn2','s_abs')): self.wr|={'scc'}
            if op.startswith(('s_addc','s_subb','s_cselect','s_cmov')): self.rd|={'scc'}
            if op in('s_addk_i32','s_mulk_i32'): self.rd|=R(0)
        elif op.startswith('v_'):
            self.kind='trans' if op in TRANS else 'valu'
            if self.kind=='trans': self.cost=2
            if op.startswith('v_cmp'):
                self.wr=R(0); self.rd=allr(1)
            elif op in('v_add_co_u32','v_sub_co_u32','v_addc_co_u32','v_subb_co_u32','v_subrev_co_u32'):
                self.wr=R(0)|R(1); self.rd=allr(2)
            elif op.startswith('v_permlane') and 'swap' in op:
                self.wr=allr(0); self.rd=allr(0)
            elif op=='v_nop':
                pass
            else:
                self.wr=R(0); self.rd=allr(1)
                if op.startswith(('v_fmac','v_dot2c','v_writelane','v_pk_fmac')) : self.rd|=R(0)
                if 'dpp' in text.split()[0] or 'row_' in mods or 'quad_perm' in mods: self.rd|=R(0)
                if op=='v_cndmask_b32' and len(parts)==3: self.rd|={'vcc_lo','vcc_hi'}
            self.rd|={'exec_lo','exec_hi'} if False else set()
        else:
            raise ValueError('unknown op '+text)
    def __repr__(self): return self.text

class Prog:
    def __init__(self): self.ins=[]
    def __call__(self, *texts, tag=None):
        for t in texts:
            for line in t.split('\n'):
                line=line.strip()
                if line: self.ins.append(Ins(line, tag))
        return self
    def add(self, lst):
        for x in lst: self.ins.append(x if isinstance(x,Ins) else Ins(x))
    def label(self, n): self.ins.append(Ins(n+':'))
    def text(self):
        out=[]
        for i in self.ins:
            out.append(i.text if i.kind=='label' else '    '+i.text)
        return '\n'.join(out)+'\n'

def mfma_passes(op):
    if '32x32x16' in op: return 8
    if '16x16x32' in op: return 4
    raise ValueError(op)

def is_vec(r): return r[0] in 'va' and r[1:].isdigit()
def is_sgpr(r): return (r[0]=='s' and r[1:].isdigit()) or r.startswith('vcc')

def parse_wait(ins):
    vm=lg=None
    s=' '.join(ins.ops+[ins.mods])
    m=re.search(r'vmcnt\((\d+)\)',s)
    if m: vm=int(m.group(1))
    m=re.search(r'lgkmcnt\((\d+)\)',s)
    if m: lg=int(m.group(1))
    return vm,lg

def check(trace, name='', verbose=True, assume_clean_start=True):
    probs=[]
    pos=0
    lastw={}
    lastC={}
    laststore={}
    vmq=[]; lgq=[]
    pend={}
    def P(msg,i): probs.append(f"[{name}] #{idx}: {msg}: {i.text}")
    for idx,i in enumerate(trace):
        if i.kind=='label': continue
        if i.kind=='branch' and False: pass
        def need(r, n, why):
            w=lastw.get(r)
            if w is not None and pos-w[0] < n:
                P(f"hazard {why}: reg {r} dist {pos-w[0]} < {n} (producer {w[2].text})", i)
        for r in (i.rd|i.wr):
            if r in pend:
                P(f"reg {r} touched while load pending ({pend[r]})", i)
        if i.kind=='mfma':
            A=set(regs_of(i.ops[1])); B=set(regs_of(i.ops[2])); C=set(regs_of(i.ops[3])) if len(i.ops)>3 else set()
            D=set(regs_of(i.ops[0]))
            for r in A|B|C:
                w=lastw.get(r)
                if not w: continue
                if w[1] in('valu','trans'): need(r,2,'valu->mfma')
                if w[1]=='mfma':
                    ps=mfma_passes(w[2].op)
                    if r in A or r in B: need(r,{4:8,8:12}[ps],'mfma->mfma A/B')
                    elif r in C:
                        same = (w[2].ops[0]==i.ops[3]) and (w[2].op==i.op)
                        if not same: need(r,{4:6,8:10}[ps],'mfma->mfma C overlap')
            for r in D:
                w=lastw.get(r)
                if w and w[1]=='mfma' and r not in C:
                    ps=mfma_passes(w[2].op)
                    need(r,{4:6,8:10}[ps],'mfma->mfma WAW')
        if i.kind in('valu','trans','vmem','ds','dma'):
            for r in (i.rd | (i.wr if i.kind in('valu','trans','vmem','ds') else set())):
                w=lastw.get(r)
                if w and w[1]=='mfma':
                    need(r,{4:8,8:12}[mfma_passes(w[2].op)],'mfma->valu/mem')
        if i.kind in('valu','trans'):
            for r in i.rd:
                w=lastw.get(r)
                if not w: continue
                if w[1]=='trans' and is_vec(r) : need(r,1,'trans->valu')
                if w[1] in('valu','trans') and is_sgpr(r): need(r,2,'valu sgpr->valu const')
                if w[1] in('valu','trans') and is_vec(r):
                    if i.op in('v_readfirstlane_b32','v_readlane_b32'): need(r,1,'valu->readlane')
                    if i.op.startswith('v_permlane'): need(r,2,'valu->permlane')
                    if 'row_' in i.mods or 'quad_perm' in i.mods: need(r,2,'valu->dpp')
            for r in i.wr:
                c=lastC.get(r)
                if c and pos-c[0] < {4:3,8:7}[c[1]]: P(f"hazard mfma srcC WAR reg {r}",i)
                s=laststore.get(r)
                if s is not None and pos-s<2: P(f"hazard store data WAR reg {r}",i)
        if i.kind in('vmem','dma','ds'):
            for r in i.rd:
                w=lastw.get(r)
                if w and w[1] in('valu','trans') and is_sgpr(r): need(r,5,'valu sgpr->vmem')
                if w and w[1]=='trans' and is_vec(r): need(r,1,'trans->mem')
                if w and r=='m0' and w[1]=='salu' and i.kind=='dma': need(r,1,'m0->dma')
        if i.kind=='salu' or i.kind=='branch':
            for r in i.rd:
                w=lastw.get(r)
                if w and w[1] in('valu','trans') and is_sgpr(r) and not r.startswith('vcc'): need(r,1,'valu sgpr->salu (pad)')
        p_after = pos + (i.cost if i.kind=='nop' else 1)
        if i.kind=='wait':
            vm,lg=parse_wait(i)
            if vm is not None:
                while len(vmq)>vm:
                    d=vmq.pop(0)
                    for r in d: pend.pop(r,None)
            if lg is not None:
                if any(x[1] for x in lgq) and lg>0:
                    P("lgkmcnt(N>0) with smem outstanding",i)
                while len(lgq)>lg:
                    d=lgq.pop(0)
                    for r in d[0]: pend.pop(r,None)
        if i.kind in('vmem','dma'):
            vmq.append(set(i.wr))
            for r in i.wr: pend[r]='vm'
            if len(vmq)>63: P("vmcnt overflow >63",i)
            if 'store' in i.op and ('x4' in i.op or 'x3' in i.op):
                for r in regs_of(i.ops[0] if i.op.startswith('buffer') else i.ops[1]): laststore[r]=p_after
        if i.kind=='ds':
            lgq.append((set(i.wr),False))
            for r in i.wr: pend[r]='lg'
            if len(lgq)>15: P("lgkmcnt overflow >15 (counter saturates)",i)
        if i.kind=='smem':
            lgq.append((set(i.wr),True))
            for r in i.wr: pend[r]='lg'
        for r in i.wr:
            if i.kind in('valu','trans','mfma','salu'):
                lastw[r]=(p_after,i.kind,i)
            else:
                lastw.pop(r,None)
        if i.kind=='mfma' and len(i.ops)>3:
            for r in regs_of(i.ops[3]): lastC[r]=(p_after,mfma_passes(i.op))
        pos=p_after
    if verbose:
        for p in probs[:40]: print(p)
        if len(probs)>40: print('...',len(probs),'problems')
    return probs

def interleave(main, fill, budget=2, start=0, every=None):
    out=[]
    nm=sum(1 for x in main if x.kind=='mfma')
    fill=list(fill)
    total=sum(x.cost for x in fill)
    done=0; fi=0; k=0
    n=len(main)
    i=0
    while i<n:
        x=main[i]; out.append(x); i+=1
        if x.kind=='mfma':
            k+=1
            own=0; j=i
            while j<n and main[j].kind!='mfma':
                own+=main[j].cost; j+=1
            if k>start:
                target = total*(k-start)/max(1,(nm-start))
                room = budget-own
                while fi<len(fill) and (done+fill[fi].cost<=target+1e-9 or False) and room>=fill[fi].cost:
                    out.append(fill[fi]); done+=fill[fi].cost; room-=fill[fi].cost; fi+=1
                while fi<len(fill) and done+fill[fi].cost <= target-budget*2:
                    out.append(fill[fi]); done+=fill[fi].cost; fi+=1
    out.extend(fill[fi:])
    return out

def auto_lgkm(stream, init=None, group=1, extra=0):
    q=[set(x) for x in (init or [])]
    out=[]
    for x in stream:
        if x.kind=='wait':
            vm,lg=parse_wait(x)
            if lg is not None:
                while len(q)>lg: q.pop(0)
            out.append(x); continue
        touch=(x.rd|x.wr)
        need=-1
        for i,d in enumerate(q):
            if d & touch: need=i
        if need>=0:
            need=min(len(q)-1, need+extra)
            n=len(q)-1-need
            out.append(Ins(f"s_waitcnt lgkmcnt({n})"))
            q=q[need+1:]
        if x.kind=='ds':
            if len(q)>=15:
                n=14
                out.append(Ins(f"s_waitcnt lgkmcnt({n})")); q=q[len(q)-n:]
            q.append(set(x.wr))
        out.append(x)
    return out, q

def spread(main, items, first=0, last=None, group=None):
    idx=[i for i,x in enumerate(main) if getattr(x,'kind',None)=='mfma']
    last=len(idx) if last is None else last
    span=idx[first:last]
    n=len(items)
    pos={}
    for k,it in enumerate(items):
        j=span[min(len(span)-1,(k*len(span))//n + len(span)//(2*n))]
        pos.setdefault(j,[]).extend(it)
    out=[]
    for i,x in enumerate(main):
        out.append(x)
        if i in pos: out+=pos[i]
    return out
def dma_items(lst):
    items=[]; pend=[]
    for x in lst:
        if x.kind=='nop': continue
        if x.kind=='dma':
            if pend: items.append(pend); pend=[]
            items.append([x])
        else: pend.append(x)
    if pend: items.append(pend)
    return items

def code_prefetch(p, start_label, end_label, tmp_s=76, vaddr=1, vdst=2, uniq='a'):
    p(f"s_getpc_b64 s[{tmp_s}:{tmp_s+1}]"); p.label(f"L_cpf_{uniq}")
    p(f"s_sub_u32 s{tmp_s}, s{tmp_s}, L_cpf_{uniq}-{start_label}"); p(f"s_subb_u32 s{tmp_s+1}, s{tmp_s+1}, 0")
    p(f"s_lshr_b32 s{tmp_s+2}, s2, 3"); p(f"s_lshl_b32 s{tmp_s+2}, s{tmp_s+2}, 11")
    p(f"s_min_u32 s{tmp_s+2}, s{tmp_s+2}, {end_label}-{start_label}-2048")
    p(f"s_add_u32 s{tmp_s}, s{tmp_s}, s{tmp_s+2}"); p(f"s_addc_u32 s{tmp_s+1}, s{tmp_s+1}, 0")
    p(f"v_and_b32 v{vaddr}, 63, v0"); p(f"v_lshlrev_b32 v{vaddr}, 4, v{vaddr}")
    p(f"global_load_dwordx4 v[{vdst}:{vdst+3}], v{vaddr}, s[{tmp_s}:{tmp_s+1}]"); p(f"global_load_dwordx4 v[{vdst}:{vdst+3}], v{vaddr}, s[{tmp_s}:{tmp_s+1}] offset:1024")
def fix_m0(stream):
    out=[]
    for x in stream:
        if x.kind=='dma' and out and 'm0' in out[-1].wr: out.append(Ins("s_nop 0"))
        out.append(x)
    return out
```

```python
from core import *
import k1_gx as G1
import stamp as ST
G_OFF=0x1500000; KVP_OFF=0x1502000; P_OFF=0x1600000
import os
KNAME='k1_kernel'
TLBW=int(os.environ.get('TLBW','0'))
XL2=int(os.environ.get('XL2','0'))
PF0=int(os.environ.get('PF0','0'))
MERGE=int(os.environ.get('MERGE','1'))
CPF=int(os.environ.get('CPF','1'))
WS_BASE=int(os.environ.get('WS_BASE','0'),0)
LOG2E=1.4426950408889634
from k1_gx import f2u

def prologue(p):
    p("s_cmp_ge_u32 s2, 256"); p("s_cbranch_scc1 L_k1_end")
    ST.stamp(p,0)
    p("s_load_dwordx4 s[56:59], s[0:1], 0")
    p("s_load_dwordx4 s[60:63], s[0:1], 16")
    p("s_load_dwordx2 s[42:43], s[0:1], 40")
    p("s_load_dwordx2 s[44:45], s[0:1], 48")
    p("s_load_dwordx2 s[64:65], s[0:1], 64")
    p("s_load_dwordx2 s[66:67], s[0:1], 56")
    p("s_load_dwordx4 s[68:71], s[0:1], 80")
    if CPF: code_prefetch(p,KNAME,"L_code_end",tmp_s=72,vaddr=1,vdst=56,uniq="k1")
    p("v_lshrrev_b32 v1, 6, v0")
    p("s_and_b32 s4, s2, 7")
    p("s_lshr_b32 s5, s2, 3")
    p(f"v_readfirstlane_b32 s{G1.S_W}, v1")
    p("s_waitcnt lgkmcnt(0)")
    ST.stamp(p,7)
    if WS_BASE: p(f"s_add_u32 s70, s70, {WS_BASE}"); p("s_addc_u32 s71, s71, 0")
    p("s_mov_b32 s46, s70"); p("s_mov_b32 s47, s71")
    p("s_mov_b32 s40, s56"); p("s_mov_b32 s41, s57")
    if TLBW:
        p(f"s_cmp_eq_u32 s{G1.S_W}, {TLBW-1}"); p("s_cbranch_scc0 L_k1_ntlb")
        p("v_and_b32 v2, 63, v0"); p("v_lshlrev_b32 v3, 18, v2")
        p("s_mov_b32 s8, s70"); p("s_mov_b32 s9, s71"); p(f"s_mov_b32 s10, {0x2200000}"); p("s_mov_b32 s11, 0x20000")
        for k in range(3):
            p(f"s_mov_b32 s72, {k*64*262144}"); p("buffer_load_dword v56, v3, s[8:11], s72 offen")
        p("s_load_dwordx2 s[72:73], s[0:1], 72") ; p("s_mov_b32 s8, s66"); p("s_mov_b32 s9, s67"); p(f"s_mov_b32 s10, {4608*1152}")
        p("buffer_load_dword v57, v3, s[8:11], 0 offen")
        p("s_mov_b32 s8, s62"); p("s_mov_b32 s9, s63"); p(f"s_mov_b32 s10, {576*1152}")
        p("buffer_load_dword v57, v3, s[8:11], 0 offen")
        p("s_waitcnt lgkmcnt(0)"); p("s_mov_b32 s8, s72"); p("s_mov_b32 s9, s73"); p(f"s_mov_b32 s10, {2048*1152}")
        p("buffer_load_dword v57, v3, s[8:11], 0 offen")
        for lo,sz in ((42,576*9216),(44,576*9216),(58,576*3456),(56,2048*1152)):
            p(f"s_mov_b32 s8, s{lo}"); p(f"s_mov_b32 s9, s{lo+1}"); p(f"s_mov_b32 s10, {sz}")
            p("buffer_load_dword v58, v3, s[8:11], 0 offen")
        p.label("L_k1_ntlb")
    if XL2:
        p("s_lshr_b32 s72, s2, 3"); p("s_lshl_b32 s72, s72, 2"); p(f"s_add_u32 s72, s72, s{G1.S_W}"); p("s_mul_i32 s73, s72, 18432")
        p("v_and_b32 v2, 63, v0"); p("v_lshlrev_b32 v3, 4, v2")
        p("s_mov_b32 s8, s56"); p("s_mov_b32 s9, s57"); p(f"s_mov_b32 s10, {2048*1152}"); p("s_mov_b32 s11, 0x20000")
        for k in range(XL2):
            p(f"buffer_load_dwordx4 v[56:59], v3, s[8:11], s73 offen offset:{1024*(k%4)}")
            if k%4==3: p("s_add_u32 s73, s73, 4096")
    if PF0:
        p("s_lshl_b32 s72, s2, 2"); p(f"s_add_u32 s72, s72, s{G1.S_W}")
        p("v_and_b32 v2, 63, v0"); p("v_lshlrev_b32 v3, 4, v2")
        p("s_mov_b32 s8, s56"); p("s_mov_b32 s9, s57"); p(f"s_mov_b32 s10, {2048*1152}"); p("s_mov_b32 s11, 0x20000")
        p("s_mul_i32 s73, s72, 2304")
        if PF0&1:
            for k in range(3): p(f"buffer_load_dwordx4 v[56:59], v3, s[8:11], s73 offen offset:{1024*k}")
        if PF0&2:
            p("v_lshrrev_b32 v4, 3, v2"); p("v_mul_u32_u24 v4, 384, v4"); p("v_and_b32 v5, 7, v2"); p("v_lshl_add_u32 v4, v5, 4, v4")
            for m,lo in ((0,42),(1,44)):
                p(f"s_mov_b32 s8, s{lo}"); p(f"s_mov_b32 s9, s{lo+1}"); p(f"s_mov_b32 s10, {576*9216}")
                for j in range(2):
                    p(f"s_add_u32 s73, s72, {1024*j}"); p("s_mul_i32 s74, s73, 21846"); p("s_lshr_b32 s74, s74, 16"); p("s_mul_i32 s75, s74, 3"); p("s_sub_u32 s75, s73, s75")
                    p("s_mul_i32 s74, s74, 9216"); p("s_mul_i32 s75, s75, 3072"); p("s_add_u32 s74, s74, s75")
                    p(f"buffer_load_dwordx4 v[56:59], v4, s[8:11], s74 offen")
        if PF0&4:
            p("s_mov_b32 s8, s58"); p("s_mov_b32 s9, s59"); p(f"s_mov_b32 s10, {576*3456}"); p("s_mul_i32 s73, s72, 1944")
            for k in range(2): p(f"buffer_load_dwordx4 v[56:59], v3, s[8:11], s73 offen offset:{1024*k}")
    if MERGE:
        p(f"s_cmp_eq_u32 s{G1.S_W}, 0"); p("s_cbranch_scc0 L_k1_nz")
        p(f"s_add_u32 s72, s70, {0x15C0000}"); p("s_addc_u32 s73, s71, 0"); p("s_lshl_b32 s74, s2, 7")
        p("v_and_b32 v2, 31, v0"); p("v_lshlrev_b32 v2, 2, v2"); p("v_add_u32 v2, s74, v2"); p("v_mov_b32 v3, 0")
        p("global_store_dword v2, v3, s[72:73] sc1")
        p("s_cmp_lt_u32 s2, 16"); p("s_cbranch_scc0 L_k1_nz")
        p(f"v_add_u32 v2, {256*128}, v2")
        p("global_store_dword v2, v3, s[72:73] sc1")
        p.label("L_k1_nz")
    p("s_cmp_lt_u32 s5, 8"); p("s_cbranch_scc1 L_att")
    p("s_sub_u32 s6, s5, 8")
    p("s_lshr_b32 s36, s6, 3"); p("s_mul_i32 s7, s4, 3"); p("s_add_u32 s36, s36, s7")
    p("s_and_b32 s37, s6, 7")

def gate_role(p):
    p.label("L_gate")
    p("s_mov_b32 s7, s4")
    p("s_cmp_lt_u32 s4, 4"); p("s_cbranch_scc1 L_gate_b")
    p("s_lshl_b32 s7, s4, 1"); p("s_add_u32 s7, s7, s6"); p("s_sub_u32 s7, s7, 26")
    p.label("L_gate_b")
    p("s_lshl_b32 s7, s7, 2"); p(f"s_add_u32 s7, s7, s{G1.S_W}")
    p("s_mov_b32 s8, s56"); p("s_mov_b32 s9, s57"); p(f"s_mov_b32 s10, {2048*1152}"); p("s_mov_b32 s11, 0x20000")
    p("s_mov_b32 s12, s64"); p("s_mov_b32 s13, s65"); p("s_mov_b32 s14, 1152"); p("s_mov_b32 s15, 0x20000")
    p(f"s_add_u32 s16, s70, {G_OFF}"); p("s_addc_u32 s17, s71, 0"); p("s_mov_b32 s18, 8192"); p("s_mov_b32 s19, 0x20000")
    p("v_and_b32 v1, 63, v0"); p("v_lshrrev_b32 v2, 3, v1"); p("v_and_b32 v3, 7, v1")
    p("v_lshlrev_b32 v4, 4, v3")
    p("s_movk_i32 s20, 0x480"); p("v_mul_lo_u32 v5, v2, s20"); p("v_add_u32 v5, v5, v4")
    p("v_lshlrev_b32 v6, 2, v2")
    for c in range(9):
        p(f"buffer_load_dwordx4 v[{16+4*c}:{19+4*c}], v4, s[12:15], 0 offen offset:{128*c}")
    p.label("L_gate_loop")
    p(f"s_mul_i32 s21, s7, {8*1152}")
    for c in range(9):
        p(f"buffer_load_dwordx4 v[{64+4*c}:{67+4*c}], v5, s[8:11], s21 offen offset:{128*c}")
    p("v_mov_b32 v8, 0"); p("v_mov_b32 v9, 0")
    p("s_waitcnt vmcnt(0)")
    for c in range(9):
        for r in range(4):
            a=8+(r&1)
            p(f"v_dot2_f32_bf16 v{a}, v{64+4*c+r}, v{16+4*c+r}, v{a}")
    p("s_nop 3")
    p("v_add_f32 v8, v8, v9")
    for m in (0x041F,0x081F,0x101F):
        p("s_nop 0")
        p(f"ds_swizzle_b32 v9, v8 offset:0x{m:04X}"); p("s_waitcnt lgkmcnt(0)"); p("v_add_f32 v8, v8, v9")
    p(f"v_mul_f32 v8, 0x{f2u(-LOG2E):08x}, v8"); p("v_exp_f32 v8, v8"); p("s_nop 0"); p("v_add_f32 v8, 1.0, v8"); p("v_rcp_f32 v8, v8")
    p("s_lshl_b32 s21, s7, 5")
    p("v_cmp_eq_u32 vcc, 0, v3"); p("s_and_saveexec_b64 s[22:23], vcc")
    p("buffer_store_dword v8, v6, s[16:19], s21 offen")
    p("s_mov_b64 exec, s[22:23]")
    p("s_add_u32 s7, s7, 48"); p("s_cmp_lt_u32 s7, 256"); p("s_cbranch_scc1 L_gate_loop")
    p("s_load_dwordx2 s[24:25], s[0:1], 56"); p("s_load_dwordx2 s[26:27], s[0:1], 24"); p("s_waitcnt lgkmcnt(0)")
    p("s_mov_b32 s8, s24"); p("s_mov_b32 s9, s25"); p(f"s_mov_b32 s10, {4608*1152}"); p("s_mov_b32 s11, 0x20000")
    p("s_mov_b32 s12, s26"); p("s_mov_b32 s13, s27"); p(f"s_mov_b32 s14, {576*1152}"); p("s_mov_b32 s15, 0x20000")
    p("v_lshlrev_b32 v4, 4, v1")
    p("s_sub_u32 s7, s7, 48"); p.label("L_gate_m"); p("s_cmp_lt_u32 s7, 48"); p("s_cbranch_scc1 L_gate_m2"); p("s_sub_u32 s7, s7, 48"); p("s_branch L_gate_m"); p.label("L_gate_m2")
    p(f"s_mul_i32 s21, s7, {14*1024}")
    for i in range(14):
        p(f"buffer_load_dwordx4 v[{16+4*i}:{19+4*i}], v4, s[12:15], s21 offen"); p("s_add_u32 s21, s21, 1024")
    p("s_waitcnt vmcnt(0)")
    p("s_endpgm")

def kernel_text(name, body, nv=512, ns=102, acc_off=256):
    t=f".globl {name}\n.p2align 8\n.type {name},@function\n{name}:\n"+body
    return t
def desc(name, nv=512, ns=102, acc_off=256):
    return f""".amdhsa_kernel {name}
  .amdhsa_next_free_vgpr {nv}
  .amdhsa_next_free_sgpr {ns}
  .amdhsa_accum_offset {acc_off}
  .amdhsa_group_segment_fixed_size 0
  .amdhsa_kernarg_size 96
  .amdhsa_user_sgpr_count 2
  .amdhsa_user_sgpr_kernarg_segment_ptr 1
  .amdhsa_system_sgpr_workgroup_id_x 1
  .amdhsa_float_denorm_mode_32 3
  .amdhsa_float_denorm_mode_16_64 3
.end_amdhsa_kernel
"""

def gen_k1(att=None, docheck=True):
    import k1_gx as GX
    p=Prog()
    prologue(p)
    il,idn=GX.gen(p)
    if not GX.MERGE: p("s_endpgm")
    if docheck:
        ins=p.ins
        body=ins[il:idn]
        tr=ins[:il]+body+body+ins[idn:]
        pr=check(tr,'gemm1')
        print("gemm1 check problems:",len(pr))
    a=Prog(); att(a); p.ins+=a.ins
    if GX.MERGE:
        import p2
        b=Prog(); p2.gen_p2(b); p.ins+=b.ins
    p.label("L_k1_end"); p("s_endpgm")
    return p

def announce_zero(p, wreg, lab, vt, st=72):
    p(f"s_cmp_eq_u32 s{wreg}, 0"); p(f"s_cbranch_scc0 {lab}")
    p("s_cmp_lt_u32 s2, 16"); p(f"s_cselect_b32 s{st}, 2, 1")
    p(f"v_mov_b32 v{vt}, 0"); p(f"v_mov_b32 v{vt+1}, s{st}"); p("v_cmp_eq_u32 vcc, 0, v0"); p(f"s_and_saveexec_b64 s[{st}:{st+1}], vcc")
    p(f"global_atomic_add v{vt}, v{vt+1}, s[68:69] sc1")
    p(f"s_mov_b64 exec, s[{st}:{st+1}]")
    p.label(lab)
```

```python
from core import *
import stamp as ST
from k1_gx import f2u, NKS_TOT, H_BYTES, ntify, FNT
import os
MERGE=int(os.environ.get('MERGE','1'))
ANT=os.environ.get('ANT','')
AOFF=int(os.environ.get('AOFF','0'))
AROT=int(os.environ.get('AROT','0'))
STMOD=os.environ.get('STMOD',' sc1')
KVP_OFF=0x1502000
LOG2E=1.4426950408889634
WSL=28672; W0=0; X0=3*WSL; XSL=32768
PHI_L=X0+2*XSL; ZERO_L=PHI_L+3840
PS=336; VS=168
PL=0; VL=256*PS; KVL=VL+256*VS
S_W=24
S_X=8; S_WQ=12; S_H=16; S_KV=20
S_XSO=25; S_XSO2=26; S_WSO=27; S_CNT=28; S_MW=29; S_MX=30; S_C=31; S_RT=32; S_QD=33; S_AW=34; S_AX=35; S_TW=36; S_TX=37; S_SD=72; S_SN=73; S_MWW=74
V_WD=1; V_TRB=8; V_XD=10; V_TR=14; V_XP=16; V_L=20; V_L16=21; V_BD=22; V_BD2=23
QACC=0; KACC=96; VACC=176
def accq(t,tt): b=QACC+(t*4+tt)*4; return f"a[{b}:{b+3}]"
def acck(t,tt,r=None):
    b=KACC+(t*4+tt)*4; return f"v[{b}:{b+3}]" if r is None else f"v{b+r}"
def accv(t,tt,r=None):
    b=VACC+(t*4+tt)*4; return f"v[{b}:{b+3}]" if r is None else f"v{b+r}"
def acc(sec,t,tt): return (accq,acck,accv)[sec](t,tt)
AR=80; NAR=6; XF=104
def afr(i): b=AR+4*(i%NAR); return f"a[{b}:{b+3}]"
def afh(i,h): b=AR+4*(i%NAR)+2*h; return f"a[{b}:{b+1}]"
def xf(b_,tt): b=XF+(b_*4+tt)*4; return f"a[{b}:{b+3}]"

def wdma():
    o=[Ins(f"s_add_u32 s{S_MW}, s{S_MWW}, s{S_SD}")]
    for i in range(7):
        if i%4==0:
            o.append(Ins(f"s_add_u32 m0, s{S_MW}, {4096*(i//4)}" if i else f"s_mov_b32 m0, s{S_MW}")); o.append(Ins("s_nop 0"))
        o.append(Ins(f"buffer_load_dwordx4 v{V_WD+i}, s[{S_WQ}:{S_WQ+3}], s{S_WSO} offen offset:{1024*(i%4)} lds{ANT}"))
    o+= [Ins(f"s_add_u32 s{S_SD}, s{S_SD}, {WSL}"), Ins(f"s_cmp_eq_u32 s{S_SD}, {3*WSL}"), Ins(f"s_cselect_b32 s{S_SD}, 0, s{S_SD}"),
         Ins(f"s_add_u32 s{S_WSO}, s{S_WSO}, {64*3456}")]
    if AROT: o+=[Ins(f"s_add_u32 s{S_AW}, s{S_AW}, 1"), Ins(f"s_cmp_eq_u32 s{S_AW}, 9"), Ins(f"s_cselect_b32 s38, {9*64*3456}, 0"), Ins(f"s_cselect_b32 s{S_AW}, 0, s{S_AW}"), Ins(f"s_sub_u32 s{S_WSO}, s{S_WSO}, s38")]
    return o
def xdma():
    o=[]
    for i in range(8):
        if i%4==0:
            o.append(Ins(f"s_add_u32 m0, s{S_MX}, {4096*(i//4)}" if i else f"s_mov_b32 m0, s{S_MX}")); o.append(Ins("s_nop 0"))
        o.append(Ins(f"buffer_load_dwordx4 v{V_XD+(i%4)}, s[{S_X}:{S_X+3}], s{S_XSO if i<4 else S_XSO2} offen offset:{1024*(i%4)} lds"))
    if not AROT:
        return o+[Ins(f"s_xor_b32 s{S_MX}, s{S_MX}, s{S_TX}"), Ins(f"s_add_u32 s{S_XSO}, s{S_XSO}, 128"), Ins(f"s_add_u32 s{S_XSO2}, s{S_XSO2}, 128")]
    o+= [Ins(f"s_xor_b32 s{S_MX}, s{S_MX}, s{S_TX}"),
         Ins(f"s_add_u32 s{S_XSO}, s{S_XSO}, 128"), Ins(f"s_add_u32 s{S_AX}, s{S_AX}, 1"), Ins(f"s_cmp_eq_u32 s{S_AX}, 9"),
         Ins(f"s_cselect_b32 s39, {9*128}, 0"), Ins(f"s_cselect_b32 s{S_AX}, 0, s{S_AX}"), Ins(f"s_sub_u32 s{S_XSO}, s{S_XSO}, s39"),
         Ins(f"s_add_u32 s{S_XSO2}, s{S_XSO}, {32*1152}")]
    return o

SEQ=[(b_,sec,t) for b_ in range(2) for sec in range(3) for t in range(5)]
PF=4
def ard(i):
    nxt=i>=30; b_,sec,t=SEQ[i%30]
    return [Ins(f"ds_read_b64_tr_b16 {afh(i,h)}, v{V_TR+(1 if nxt else 0)} offset:{b_*13824+sec*144+h*1728+8*t}") for h in range(2)]
def xrd(b_,nxt): return [Ins(f"ds_read_b128 {xf(b_,tt)}, v{V_XP+(2 if nxt else 0)+b_} offset:{tt*2048}") for tt in range(4)]

def superstep():
    main=[]
    for i,(b_,sec,t) in enumerate(SEQ):
        if i==26:
            main.append(Ins("s_waitcnt vmcnt(7) lgkmcnt(0)")); main.append(Ins("s_barrier"))
        nxt=ard(i+PF)
        if 1<=i<5: nxt=nxt+[xrd(1,False)[i-1]]
        if i>=26: nxt=nxt+[xrd(0,True)[i-26]]
        if 22<=i<26: pass
        for tt in range(4):
            main.append(Ins(f"v_mfma_f32_16x16x32_bf16 {acc(sec,t,tt)}, {afr(i)}, {xf(b_,tt)}, {acc(sec,t,tt)}"))
            if tt<len(nxt): main.append(nxt[tt])
    return main

def entry_queue():
    q=[]
    for i in range(26,30):
        for x in ard(i+PF): q.append(x.wr)
        q.append(xrd(0,True)[i-26].wr)
    return q

def bc(r): return f"v[{r}:{r+1}]"
def softmax_pk(p, P0, tmp, want_norm):
    A=p
    P=[f"v{P0(f)}" for f in range(18)]
    mx=tmp+36; mn=tmp+38; sp=tmp+40; sm=tmp+42
    A(f"v_max3_f32 v{mx}, {P[0]}, {P[1]}, {P[2]}"); A(f"v_min3_f32 v{mn}, {P[0]}, {P[1]}, {P[2]}")
    for i in range(3,17,2):
        A(f"v_max3_f32 v{mx}, v{mx}, {P[i]}, {P[i+1]}"); A(f"v_min3_f32 v{mn}, v{mn}, {P[i]}, {P[i+1]}")
    A(f"v_max_f32 v{mx}, v{mx}, {P[17]}"); A(f"v_min_f32 v{mn}, v{mn}, {P[17]}")
    A(f"v_mul_f32_e64 v{mx}, -s{S_C}, v{mx}"); A(f"v_mul_f32 v{mn}, s{S_C}, v{mn}")
    for i in range(0,18,2):
        pr=bc(P0(i))
        A(f"v_pk_fma_f32 {bc(tmp+i)}, {pr}, {bc(94)}, {bc(mx)} op_sel_hi:[1,0,0]")
        A(f"v_pk_fma_f32 {bc(tmp+18+i)}, {pr}, {bc(94)}, {bc(mn)} op_sel_hi:[1,0,0] neg_lo:[0,1,0] neg_hi:[0,1,0]")
    for i in range(18):
        A(f"v_exp_f32 v{tmp+i}, v{tmp+i}"); A(f"v_exp_f32 v{tmp+18+i}, v{tmp+18+i}")
    if want_norm:
        A(f"v_pk_add_f32 {bc(sp)}, {bc(tmp)}, {bc(tmp+2)}");
        A("s_nop 0")
        A(f"v_pk_add_f32 {bc(sm)}, {bc(tmp+18)}, {bc(tmp+20)}")
        for i in range(4,18,2):
            A(f"v_pk_add_f32 {bc(sp)}, {bc(sp)}, {bc(tmp+i)}"); A(f"v_pk_add_f32 {bc(sm)}, {bc(sm)}, {bc(tmp+18+i)}")
        A(f"v_add_f32 v{sp}, v{sp}, v{sp+1}"); A(f"v_add_f32 v{sm}, v{sm}, v{sm+1}")
        A(f"v_rcp_f32 v{sp}, v{sp}"); A(f"v_rcp_f32 v{sm}, v{sm}"); A("s_nop 0")
        for i in range(0,18,2):
            A(f"v_pk_mul_f32 {bc(tmp+i)}, {bc(tmp+i)}, {bc(sp)} op_sel_hi:[1,0]"); A(f"v_pk_mul_f32 {bc(tmp+18+i)}, {bc(tmp+18+i)}, {bc(sm)} op_sel_hi:[1,0]")
    else:
        A("s_nop 0")

def stage2(p, src, dst, B0, pre=None):
    for tt in range(4):
        for t in range(5):
            p(f"v_cvt_pk_bf16_f32 v{B0+tt*12+2*t}, {src(t,tt,0)}, {src(t,tt,1)}")
            p(f"v_cvt_pk_bf16_f32 v{B0+tt*12+2*t+1}, {src(t,tt,2)}, {src(t,tt,3)}")
        p(f"v_mov_b32 v{B0+tt*12+10}, 0"); p(f"v_mov_b32 v{B0+tt*12+11}, 0")
    if pre: pre()
    p("s_nop 1")
    for tt in range(4):
        for s in range(3):
            for u in range(5):
                a=80+4*(u*3+s); b=B0+tt*12+4*s
                c=dst(u,tt) if s>0 else "0"
                p(f"v_mfma_f32_16x16x32_bf16 {dst(u,tt)}, a[{a}:{a+3}], v[{b}:{b+3}], {c}")
    p("s_nop 7")

def gen_att(p, docheck=True):
    p.label("L_att")
    A=p
    A(f"s_mov_b32 s{S_QD}, s4"); A(f"s_mov_b32 s{S_RT}, s5")
    A(f"s_sub_u32 s{S_WQ}, s58, 4096"); A(f"s_subb_u32 s{S_WQ+1}, s59, 0"); A(f"s_mov_b32 s{S_WQ+2}, {576*3456+4096}"); A(f"s_mov_b32 s{S_WQ+3}, 0x20000")
    A(f"v_and_b32 v{V_L}, 63, v0")
    A(f"s_mul_i32 s38, s{S_W}, 448")
    for i in range(7):
        A(f"v_add_u32 v30, s38, v{V_L}")
        if i: A(f"v_add_u32 v30, {64*i}, v30")
        A("v_mul_u32_u24 v31, 7282, v30"); A("v_lshrrev_b32 v31, 16, v31")
        A("v_mul_u32_u24 v32, 9, v31"); A("v_sub_u32 v32, v30, v32"); A("v_lshlrev_b32 v32, 4, v32")
        A("v_mul_u32_u24 v31, 0x480, v31")
        A(f"v_add3_u32 v{V_WD+i}, v32, v31, 0"); A(f"v_add_u32 v{V_WD+i}, {4096-1024*(i%4)}, v{V_WD+i}")
    A(f"s_mul_i32 s{S_WSO}, s{S_QD}, 144")
    if AROT:
        A(f"s_add_u32 s41, s{S_RT}, {AOFF}"); A("s_cmp_ge_u32 s41, 9"); A("s_cselect_b32 s38, 9, 0"); A("s_sub_u32 s41, s41, s38")
        A(f"s_mov_b32 s{S_AW}, s41"); A(f"s_mov_b32 s{S_AX}, s41"); A(f"s_mul_i32 s38, s41, {64*3456}"); A(f"s_add_u32 s{S_WSO}, s{S_WSO}, s38")
    A(f"s_mul_i32 s{S_MWW}, s{S_W}, 7168"); A(f"s_mov_b32 s{S_SD}, 0")
    A.add(ntify(wdma(), FNT&2))
    A(f"s_mul_i32 s38, s{S_RT}, {256*1152}")
    A(f"s_add_u32 s{S_X}, s56, s38"); A(f"s_addc_u32 s{S_X+1}, s57, 0"); A(f"s_sub_u32 s{S_X}, s{S_X}, 4096"); A(f"s_subb_u32 s{S_X+1}, s{S_X+1}, 0")
    A(f"s_mov_b32 s{S_X+2}, {256*1152+4096}"); A(f"s_mov_b32 s{S_X+3}, 0x20000")
    g="v24"; t15="v25"; l3="v26"; l7="v27"; rp="v28"; cc="v29"
    A(f"v_lshrrev_b32 {g}, 4, v{V_L}"); A(f"v_and_b32 {t15}, 15, v{V_L}"); A(f"v_lshrrev_b32 {l3}, 3, v{V_L}"); A(f"v_and_b32 {l7}, 7, v{V_L}")
    for i in range(4):
        A(f"v_add_u32 v30, {4*(i&1)}, {g}"); A("v_and_b32 v30, 7, v30"); A(f"v_xor_b32 v30, v30, {l7}"); A("v_lshlrev_b32 v30, 4, v30")
        A(f"v_add_u32 v31, {8*i}, {l3}"); A("v_mul_u32_u24 v31, 0x480, v31")
        A(f"v_add3_u32 v{V_XD+i}, v30, v31, 0"); A(f"v_add_u32 v{V_XD+i}, {4096-1024*i}, v{V_XD+i}")
    A(f"s_mul_i32 s{S_XSO}, s{S_W}, {64*1152}")
    if AROT: A(f"s_lshl_b32 s38, s41, 7"); A(f"s_add_u32 s{S_XSO}, s{S_XSO}, s38")
    A(f"s_add_u32 s{S_XSO2}, s{S_XSO}, {32*1152}")
    A(f"s_lshl_b32 s{S_MX}, s{S_W}, 13"); A(f"s_add_u32 s{S_MX}, s{S_MX}, {X0}"); A(f"s_add_u32 s38, s{S_MX}, {XSL}"); A(f"s_xor_b32 s{S_TX}, s{S_MX}, s38")
    A(f"s_mov_b32 s40, s{S_MX}")
    A.add(ntify(xdma(), FNT&1))
    ST.stamp(p,1)
    A(f"s_mov_b32 s{S_C}, 0x{f2u(LOG2E):08x}")
    A(f"s_mov_b32 s{S_H}, s70"); A(f"s_mov_b32 s{S_H+1}, s71"); A(f"s_mov_b32 s{S_H+2}, {H_BYTES}"); A(f"s_mov_b32 s{S_H+3}, 0x20000")
    A(f"s_add_u32 s{S_KV}, s70, {KVP_OFF}"); A(f"s_addc_u32 s{S_KV+1}, s71, 0"); A(f"s_mov_b32 s{S_KV+2}, {8*32*2880}"); A(f"s_mov_b32 s{S_KV+3}, 0x20000")
    A(f"v_lshlrev_b32 v{V_L16}, 4, v{V_L}")
    A(f"v_lshrrev_b32 {rp}, 2, {t15}"); A(f"v_and_b32 {cc}, 3, {t15}")
    A(f"v_lshrrev_b32 v30, 1, {t15}"); A(f"v_xor_b32 v30, v30, {g}"); A("v_lshlrev_b32 v30, 4, v30"); A(f"v_lshlrev_b32 v31, 7, {t15}"); A("v_add_u32 v30, v30, v31")
    A(f"v_add_u32 v{V_XP}, s40, v30"); A(f"v_xor_b32 v{V_XP+1}, 64, v{V_XP}")
    A(f"v_add_u32 v{V_XP+2}, {XSL}, v{V_XP}"); A(f"v_add_u32 v{V_XP+3}, {XSL}, v{V_XP+1}")
    A(f"v_lshlrev_b32 v30, 3, {g}"); A(f"v_add_u32 v30, v30, {rp}"); A("v_mul_u32_u24 v30, 432, v30"); A(f"v_mul_u32_u24 v31, 36, {cc}")
    A(f"v_and_b32 v33, 1, {cc}"); A("v_lshlrev_b32 v33, 2, v33"); A("v_sub_u32 v31, v31, v33")
    A(f"v_add_u32 v{V_TRB}, v30, v31"); A(f"v_mov_b32 v{V_TR}, v{V_TRB}"); A(f"v_add_u32 v{V_TR+1}, {WSL}, v{V_TRB}"); A(f"s_mov_b32 s{S_SN}, {WSL}")
    A(f"v_cmp_eq_u32 vcc, {cc}, {g}")
    A(f"v_mul_u32_u24 v30, 960, {g}"); A(f"v_mul_u32_u24 v31, 40, {rp}"); A("v_add_u32 v30, v30, v31"); A(f"v_add_u32 v30, {PHI_L}, v30")
    A(f"v_mov_b32 v32, {ZERO_L}"); A(f"v_cndmask_b32 v{V_BD}, v32, v30, vcc")
    A(f"v_mul_u32_u24 v30, 1920, {g}"); A("v_add_u32 v30, v30, v31"); A(f"v_add_u32 v30, {KVL}, v30"); A(f"v_cndmask_b32 v{V_BD2}, v32, v30, vcc")
    A(f"s_mul_i32 s38, s{S_QD}, {4*648}")
    A(f"s_add_u32 s48, s60, s38"); A("s_addc_u32 s49, s61, 0"); A(f"s_mov_b32 s50, {4*648}"); A("s_mov_b32 s51, 0x20000")
    A("v_lshlrev_b32 v30, 2, v0")
    for i in range(3): A(f"buffer_load_dword v{44+i}, v30, s[48:51], 0 offen offset:{1024*i}")
    A("v_mov_b32 v40, 0"); A("v_mov_b32 v41, 0"); A("v_mov_b32 v42, 0"); A("v_mov_b32 v43, 0")
    A("v_lshlrev_b32 v30, 4, v0"); A(f"v_add_u32 v30, {PHI_L}, v30")
    A("ds_write_b128 v30, v[40:43]")
    A("v_cmp_gt_u32 vcc, 104, v0"); A("s_and_saveexec_b64 s[48:49], vcc"); A("s_cbranch_execz L_att_z1")
    A("ds_write_b128 v30, v[40:43] offset:4096")
    A.label("L_att_z1"); A("s_mov_b64 exec, s[48:49]")
    for i in range(3):
        A(f"v_add_u32 v30, {256*i}, v0")
        A("v_mul_u32_u24 v31, 405, v30"); A("v_lshrrev_b32 v31, 16, v31")
        A("v_mul_u32_u24 v32, 162, v31"); A("v_sub_u32 v32, v30, v32")
        A("v_mul_u32_u24 v33, 57, v32"); A("v_lshrrev_b32 v33, 9, v33")
        A("v_mul_u32_u24 v34, 9, v33"); A("v_sub_u32 v34, v32, v34")
        A("v_and_b32 v35, 1, v31"); A("v_lshl_add_u32 v33, v35, 1, v33")
        A("v_mul_u32_u24 v31, 960, v31"); A("v_mul_u32_u24 v33, 40, v33"); A("v_lshlrev_b32 v34, 2, v34")
        A(f"v_add3_u32 v{47+i}, v31, v33, v34"); A(f"v_add_u32 v{47+i}, {PHI_L}, v{47+i}")
    for r in range(80): A(f"v_accvgpr_write_b32 a{r}, 0")
    for r in range(96,256): A(f"v_mov_b32 v{r}, 0")
    xl=xdma(); XA_=xl[:6]; XB_=xl[6:]
    A.add(wdma())
    A.add(XA_)
    A("s_waitcnt vmcnt(11) lgkmcnt(0)"); A("s_barrier")
    if MERGE:
        import k1
        k1.announce_zero(p, S_W, "L_att_az", 50, st=52)
    A("ds_write_b32 v47, v44"); A("ds_write_b32 v48, v45")
    A("v_cmp_gt_u32 vcc, 136, v0"); A("s_and_saveexec_b64 s[48:49], vcc"); A("s_cbranch_execz L_att_z2")
    A("ds_write_b32 v49, v46")
    A.label("L_att_z2"); A("s_mov_b64 exec, s[48:49]")
    A("s_waitcnt lgkmcnt(0)")
    ST.stamp(p,2)
    A(f"v_mov_b32 v{V_TR+1}, v{V_TRB}"); A(f"v_swap_b32 v{V_XP}, v{V_XP+2}"); A(f"v_swap_b32 v{V_XP+1}, v{V_XP+3}")
    for i in range(26,30):
        A.add(ard(i+PF)); A.add([xrd(0,True)[i-26]])
    A(f"v_add_u32 v{V_TR+1}, {WSL}, v{V_TRB}"); A(f"v_swap_b32 v{V_XP}, v{V_XP+2}"); A(f"v_swap_b32 v{V_XP+1}, v{V_XP+3}")
    A(f"s_mov_b32 s{S_CNT}, 0")
    il=len(p.ins)
    A.label("L_att_loop")
    m,_=auto_lgkm(superstep(), entry_queue(), extra=2)
    ib=[i for i,x in enumerate(m) if x.kind=='barrier'][0]
    head=m[:ib+1]; rest=m[ib+1:]
    p.add(spread(head, dma_items(XB_+wdma()), first=1, last=72))
    p.add(spread(rest, dma_items(XA_), first=0))
    A(f"v_mov_b32 v{V_TR}, v{V_TR+1}")
    A(f"s_add_u32 s{S_SN}, s{S_SN}, {WSL}"); A(f"s_cmp_eq_u32 s{S_SN}, {3*WSL}"); A(f"s_cselect_b32 s{S_SN}, 0, s{S_SN}")
    A(f"v_add_u32 v{V_TR+1}, s{S_SN}, v{V_TRB}")
    A(f"v_swap_b32 v{V_XP}, v{V_XP+2}"); A(f"v_swap_b32 v{V_XP+1}, v{V_XP+3}")
    A(f"s_add_u32 s{S_CNT}, s{S_CNT}, 1"); A(f"s_cmp_lt_u32 s{S_CNT}, 9"); A("s_cbranch_scc1 L_att_loop")
    idn=len(p.ins)
    A("s_waitcnt vmcnt(0) lgkmcnt(0)")
    ST.stamp(p,3)
    A("s_barrier")
    rds=[f"ds_read_b64_tr_b16 a[{80+4*(u*3+s)+2*h}:{80+4*(u*3+s)+2*h+1}], v{V_BD} offset:{(8*s+4*h)*40+8*u}" for u in range(5) for s in range(3) for h in range(2)]
    for x in rds[:14]: A(x)
    A("v_mov_b32 v40, 0"); A("v_mov_b32 v41, 0"); A("v_mov_b32 v42, 0"); A("v_mov_b32 v43, 0")
    A("v_lshlrev_b32 v30, 4, v0"); A(f"v_add_u32 v30, {KVL}, v30")
    A(f"v_mov_b32 v94, s{S_C}")
    A("s_waitcnt lgkmcnt(0)")
    for x in rds[14:28]: A(x)
    A("s_waitcnt lgkmcnt(0)")
    for x in rds[28:]: A(x)
    A("ds_write_b128 v30, v[40:43]")
    A("v_cmp_gt_u32 vcc, 224, v0"); A("s_and_saveexec_b64 s[48:49], vcc"); A("s_cbranch_execz L_att_z3")
    A("ds_write_b128 v30, v[40:43] offset:4096")
    A.label("L_att_z3"); A("s_mov_b64 exec, s[48:49]")
    stage2(p, acck, acck, 24, pre=lambda: A("s_waitcnt lgkmcnt(0)"))
    A(f"v_and_b32 v72, 15, v{V_L}"); A(f"v_lshrrev_b32 v73, 4, v{V_L}")
    A(f"s_lshl_b32 s38, s{S_W}, 6"); A("v_add_u32 v72, s38, v72")
    A(f"v_mul_u32_u24 v74, {PS}, v72"); A("v_mul_u32_u24 v75, 80, v73"); A("v_add_u32 v74, v74, v75")
    A(f"v_mul_u32_u24 v75, {VS}, v72"); A("v_mul_u32_u24 v76, 40, v73"); A("v_add_u32 v75, v75, v76"); A(f"v_add_u32 v75, {VL}, v75")
    A("v_and_b32 v76, 1, v73"); A("v_cmp_eq_u32 s[58:59], 1, v76"); A("v_mov_b32 v70, 1.0"); A("v_mov_b32 v71, 0")
    pendw=[]
    for tt in range(4):
        q=Prog()
        softmax_pk(q, lambda f: KACC+((f//4)*4+tt)*4+(f%4), 24, True)
        body=q.ins
        if pendw:
            step=max(1,len(body)//(len(pendw)+1)); out=[]; k=0
            for i,x in enumerate(body):
                out.append(x)
                if i%step==step-1 and k<len(pendw): out.append(pendw[k]); k+=1
            out+=pendw[k:]; body=out
        p.add(body)
        PK=76 if tt%2==0 else None
        if tt%2==0: regs=[76+i for i in range(18)]+[None]
        def pk(i):
            return 76+i if tt%2==0 else KACC+((i//4)*4+(tt-1))*4+(i%4)
        A("s_waitcnt lgkmcnt(0)")
        for i in range(18): A(f"v_cvt_pk_bf16_f32 v{pk(i)}, v{24+2*i}, v{25+2*i}")
        off=tt*16*PS
        pendw=[Ins(f"ds_write_b128 v74, v[{pk(4*i)}:{pk(4*i)+3}] offset:{off+16*i}") for i in range(4)]
        pendw.append(Ins(f"ds_write_b64 v74, v[{pk(16)}:{pk(16)+1}] offset:{off+64}"))
        A(f"v_cndmask_b32 {accv(0,tt,0)}, {accv(0,tt,0)}, v70, s[58:59]"); A(f"v_cndmask_b32 {accv(0,tt,1)}, {accv(0,tt,1)}, v71, s[58:59]")
        A(f"v_cndmask_b32 {accv(4,tt,2)}, v70, {accv(4,tt,2)}, s[58:59]"); A(f"v_cndmask_b32 {accv(4,tt,3)}, v71, {accv(4,tt,3)}, s[58:59]")
        for t in range(5):
            b0=VACC+(t*4+tt)*4
            A(f"v_cvt_pk_bf16_f32 v{b0}, v{b0}, v{b0+1}"); A(f"v_cvt_pk_bf16_f32 v{b0+1}, v{b0+2}, v{b0+3}")
        offv=tt*16*VS
        pendw+=[Ins(f"ds_write_b64 v75, v[{VACC+(t*4+tt)*4}:{VACC+(t*4+tt)*4+1}] offset:{offv+8*t}") for t in range(5)]
    p.add(pendw)
    A("s_waitcnt lgkmcnt(0)"); A("s_barrier")
    ST.stamp(p,4)
    A(f"v_and_b32 v24, 15, v{V_L}"); A(f"v_lshrrev_b32 v25, 4, v{V_L}"); A("v_lshrrev_b32 v26, 2, v24"); A("v_and_b32 v27, 3, v24")
    A("v_lshlrev_b32 v28, 3, v25"); A("v_add_u32 v28, v28, v26")
    A(f"v_mul_u32_u24 v29, {VS}, v28"); A("v_lshlrev_b32 v30, 3, v27"); A("v_add_u32 v29, v29, v30")
    A(f"s_mul_i32 s38, s{S_W}, 40"); A(f"s_add_u32 s38, s38, {VL}"); A("v_add_u32 v29, s38, v29")
    A(f"v_mul_u32_u24 v31, {PS}, v28"); A("v_add_u32 v31, v31, v30")
    A(f"s_mul_i32 s38, s{S_W}, 80"); A("v_add_u32 v31, s38, v31")
    A(f"v_add_u32 v32, {128*PS}, v31")
    KV=96
    def kvr(ks):
        fr=36+20*(ks%2); o=[]
        for dt in range(2):
            for h in range(2): o.append(Ins(f"ds_read_b64_tr_b16 v[{fr+4*dt+2*h}:{fr+4*dt+2*h+1}], v29 offset:{(32*ks+4*h)*VS+32*dt}"))
        for ft in range(3):
            for h in range(2):
                base,ko=("v31",ks) if ks<4 else ("v32",ks-4)
                o.append(Ins(f"ds_read_b64_tr_b16 v[{fr+8+4*ft+2*h}:{fr+8+4*ft+2*h+1}], {base} offset:{(32*ko+4*h)*PS+32*ft}"))
        return o
    st=kvr(0)
    for ks in range(8):
        fr=36+20*(ks%2)
        nx=kvr(ks+1) if ks<7 else []
        k=0
        for dt in range(2):
            for ft in range(3):
                d=KV+(dt*3+ft)*4
                c=f"v[{d}:{d+3}]" if ks>0 else "0"
                if k==0: st.append(Ins("s_waitcnt lgkmcnt(0)")); st+=nx[:5]
                st.append(Ins(f"v_mfma_f32_16x16x32_bf16 v[{d}:{d+3}], v[{fr+4*dt}:{fr+4*dt+3}], v[{fr+8+4*ft}:{fr+8+4*ft+3}], {c}"))
                if k==1: st+=nx[5:]
                k+=1
    p.add(st)
    A(f"s_lshl_b32 s38, s{S_RT}, 5"); A(f"s_lshl_b32 s39, s{S_QD}, 2"); A("s_add_u32 s38, s38, s39"); A(f"s_add_u32 s38, s38, s{S_W}"); A("s_mul_i32 s38, s38, 2880")
    A("v_mul_u32_u24 v33, 80, v24"); A("v_lshlrev_b32 v34, 4, v25"); A("v_add_u32 v33, v33, v34")
    A("v_cmp_eq_u32 s[50:51], 0, v25"); A("v_cmp_gt_u32 s[52:53], 4, v24")
    A("s_nop 1")
    A("s_and_b64 s[54:55], s[50:51], s[52:53]")
    for ft in range(3):
        for dt in range(2):
            d=KV+(dt*3+ft)*4
            mask=(None if dt==0 else "s[50:51]") if ft<2 else ("s[52:53]" if dt==0 else "s[54:55]")
            if mask: A(f"s_mov_b64 exec, {mask}")
            A(f"buffer_store_dwordx4 v[{d}:{d+3}], v33, s[{S_KV}:{S_KV+3}], s38 offen offset:{ft*16*80+dt*64} sc1")
            if mask: A("s_mov_b64 exec, -1")
    A("v_mov_b32 v94, 0") if False else None
    A("v_mov_b32 v93, 0"); A("global_load_dword v95, v93, s[68:69] sc1")
    def accqv(t,tt,r): return f"v{96+(t*4+tt)*4+r}"
    for i in list(range(24,80))+list(range(24)): A(f"v_accvgpr_read_b32 v{96+i}, a{i}")
    stage2(p, accqv, lambda u,tt: f"v[{176+(u*4+tt)*4}:{176+(u*4+tt)*4+3}]", 24)
    A("s_waitcnt vmcnt(0)")
    A("s_barrier")
    A(f"s_add_u32 s66, s70, {0x15C0000}"); A("s_addc_u32 s67, s71, 0")
    import p2 as P2
    P2.zero_ready(p, "L_att_zr", S_W, vt=33, early="v95")
    A(f"s_cmp_eq_u32 s{S_W}, 0"); A("s_cbranch_scc0 L_att_nosig")
    A(f"s_lshl_b32 s38, s{S_QD}, 7"); A("v_mov_b32 v33, s38"); A("v_mov_b32 v34, 1")
    A(f"v_cmp_eq_u32 vcc, 0, v{V_L}"); A("s_and_saveexec_b64 s[48:49], vcc")
    A("global_atomic_add v33, v34, s[66:67] sc1")
    A("s_mov_b64 exec, s[48:49]")
    A.label("L_att_nosig")
    ST.stamp(p,5)
    A("s_mov_b32 s40, s62"); A("s_mov_b32 s41, s63"); A(f"s_mov_b32 s42, {576*1152}"); A("s_mov_b32 s43, 0x20000")
    A(f"s_lshl_b32 s48, s{S_RT}, 3"); A(f"s_add_u32 s48, s48, s{S_QD}"); A("s_lshl_b32 s48, s48, 2"); A(f"s_add_u32 s48, s48, s{S_W}"); A("s_mul_i32 s48, s48, 3072")
    if not os.environ.get('NOPF'):
        for i in range(3): A(f"buffer_load_dwordx4 a[{4*i}:{4*i+3}], v{V_L16}, s[40:43], s48 offen offset:{1024*i}")
    A("s_mov_b32 s40, s56"); A("s_mov_b32 s41, s57"); A(f"s_mov_b32 s42, {2048*1152}"); A("s_mov_b32 s43, 0x20000")
    A("s_mov_b32 s44, s64"); A("s_mov_b32 s45, s65"); A("s_mov_b32 s46, 1152"); A("s_mov_b32 s47, 0x20000")
    A(f"v_lshrrev_b32 v168, 3, v{V_L}"); A(f"v_and_b32 v169, 7, v{V_L}"); A("v_lshlrev_b32 v170, 4, v169")
    A("v_mul_u32_u24 v171, 0x480, v168"); A("v_add_u32 v171, v171, v170")
    A(f"s_lshl_b32 s48, s{S_RT}, 5"); A(f"s_lshl_b32 s49, s{S_QD}, 2"); A("s_add_u32 s48, s48, s49"); A(f"s_add_u32 s48, s48, s{S_W}")
    A(f"s_mul_i32 s49, s48, {8*1152}")
    for c in range(9):
        A(f"buffer_load_dwordx4 v[{96+4*c}:{99+4*c}], v171, s[40:43], s49 offen offset:{128*c}")
        A(f"buffer_load_dwordx4 v[{132+4*c}:{135+4*c}], v170, s[44:47], 0 offen offset:{128*c}")
    for tt in range(4):
        if tt==3:
            A(f"s_lshl_b32 s38, s{S_QD}, 7"); A("v_mov_b32 v174, s38"); A("global_load_dword v175, v174, s[66:67] sc1")
        softmax_pk(p, lambda f: 176+((f//4)*4+tt)*4+(f%4), 24, False)
        for half in range(2):
            for i in range(9):
                A(f"v_cvt_pk_bf16_f32 v{76+i}, v{24+18*half+2*i}, v{25+18*half+2*i}")
            for i in range(9): A(f"v_accvgpr_write_b32 a{140+tt*24+half*12+i}, v{76+i}")
            for i in range(9,12): A(f"v_accvgpr_write_b32 a{140+tt*24+half*12+i}, 0")
    A("v_mov_b32 v172, 0"); A("v_mov_b32 v173, 0")
    A("s_waitcnt vmcnt(0)")
    for c in range(9):
        for r in range(4):
            A(f"v_dot2_f32_bf16 v{172+(r&1)}, v{96+4*c+r}, v{132+4*c+r}, v{172+(r&1)}")
    A("s_nop 3")
    A("v_add_f32 v172, v172, v173")
    for m in (0x041F,0x081F,0x101F):
        A("s_nop 0")
        A(f"ds_swizzle_b32 v173, v172 offset:0x{m:04X}"); A("s_waitcnt lgkmcnt(0)"); A("v_add_f32 v172, v172, v173")
    A(f"v_mul_f32 v172, 0x{f2u(-LOG2E):08x}, v172"); A("v_exp_f32 v172, v172"); A("s_nop 0"); A("v_add_f32 v172, 1.0, v172"); A("v_rcp_f32 v172, v172")
    A(f"s_add_u32 s40, s70, {0x1500000}"); A("s_addc_u32 s41, s71, 0"); A("s_mov_b32 s42, 8192"); A("s_mov_b32 s43, 0x20000")
    A("s_lshl_b32 s48, s48, 5"); A("v_lshlrev_b32 v168, 2, v168")
    A("v_cmp_eq_u32 vcc, 0, v169"); A("s_and_saveexec_b64 s[50:51], vcc")
    A("buffer_store_dword v172, v168, s[40:43], s48 offen sc1")
    A("s_mov_b64 exec, s[50:51]")
    ST.stamp(p,6)
    A(f"s_cmp_eq_u32 s{S_W}, 0"); A("s_cbranch_scc0 L_att_wdone")
    A("v_readfirstlane_b32 s38, v175"); A("s_nop 1"); A("s_cmp_ge_u32 s38, 8"); A("s_cbranch_scc1 L_att_wdone")
    A(f"s_lshl_b32 s38, s{S_QD}, 7"); A("v_mov_b32 v33, s38")
    A("s_mov_b32 s39, 0")
    A.label("L_att_poll")
    A("s_add_u32 s39, s39, 1"); A("s_cmp_gt_u32 s39, 200000"); A("s_cbranch_scc1 L_att_wdone")
    A("global_load_dword v34, v33, s[66:67] sc1"); A("s_waitcnt vmcnt(0)")
    A("v_readfirstlane_b32 s38, v34"); A("s_nop 1"); A("s_cmp_ge_u32 s38, 8"); A("s_cbranch_scc1 L_att_wdone")
    A("s_sleep 6"); A("s_branch L_att_poll")
    A.label("L_att_wdone")
    A("s_barrier")
    A(f"s_lshl_b32 s39, s{S_QD}, 2"); A(f"s_add_u32 s39, s39, s{S_W}"); A("s_mul_i32 s39, s39, 2880")
    A(f"v_cmp_gt_u32 vcc, 52, v{V_L}")
    for r in range(8):
        A(f"s_add_u32 s38, s39, {r*32*2880}")
        for i in range(2):
            b=96+(r*3+i)*4
            A(f"buffer_load_dwordx4 v[{b}:{b+3}], v{V_L16}, s[{S_KV}:{S_KV+3}], s38 offen offset:{1024*i} sc1")
    A("s_mov_b64 exec, vcc")
    for r in range(8):
        A(f"s_add_u32 s38, s39, {r*32*2880}")
        b=96+(r*3+2)*4
        A(f"buffer_load_dwordx4 v[{b}:{b+3}], v{V_L16}, s[{S_KV}:{S_KV+3}], s38 offen offset:2048 sc1")
    A("s_mov_b64 exec, -1")
    A(f"s_and_b32 s48, s{S_W}, 1")
    for i in range(3):
        A(f"v_add_u32 v30, {64*i}, v{V_L}")
        A("v_mul_u32_u24 v31, 205, v30"); A("v_lshrrev_b32 v31, 10, v31")
        A("v_mul_u32_u24 v32, 5, v31"); A("v_sub_u32 v32, v30, v32")
        A("s_cmp_eq_u32 s48, 0"); A("s_cselect_b32 s49, 4, 0")
        A(f"v_cmp_eq_u32 s[{50+2*i}:{51+2*i}], s49, v32")
        A("v_cmp_le_u32 vcc, 18, v31"); A("v_mov_b32 v36, 0"); A("v_mov_b32 v37, 240"); A("v_cndmask_b32 v36, v36, v37, vcc")
        A("v_mul_u32_u24 v31, 40, v31"); A("v_add_u32 v31, v31, v36")
        A(f"s_mul_i32 s38, s{S_W}, 1920"); A(f"s_add_u32 s38, s38, {KVL}"); A("v_add_u32 v31, s38, v31")
        A("v_lshlrev_b32 v32, 1, v32"); A("v_subrev_u32 v33, s48, v32")
        A("v_add_u32 v34, 1, v33")
        A("v_cmp_gt_i32 vcc, 0, v33"); A("v_add_u32 v36, 10, v33"); A("s_nop 0"); A("v_cndmask_b32 v33, v33, v36, vcc")
        A(f"v_lshl_add_u32 v{40+2*i}, v33, 2, v31"); A(f"v_lshl_add_u32 v{41+2*i}, v34, 2, v31")
    A("v_mov_b32 v35, 1.0")
    A("s_waitcnt vmcnt(0)")
    for i in range(3):
        for k in (0,2):
            for r in range(1,8): A(f"v_pk_add_f32 {bc(96+i*4+k)}, {bc(96+i*4+k)}, {bc(96+(r*3+i)*4+k)}")
    A(f"v_cmp_gt_u32 vcc, 52, v{V_L}")
    A("s_cmp_eq_u32 s48, 0"); A("s_cbranch_scc1 L_att_even")
    for i in range(3): A(f"v_cndmask_b32 v{96+i*4+1}, v{96+i*4+1}, v35, s[{50+2*i}:{51+2*i}]")
    A("s_branch L_att_par")
    A.label("L_att_even")
    for i in range(3): A(f"v_cndmask_b32 v{96+i*4+3}, v{96+i*4+3}, v35, s[{50+2*i}:{51+2*i}]")
    A.label("L_att_par")
    for i in range(3):
        A(f"v_cvt_pk_bf16_f32 v38, v{96+i*4}, v{96+i*4+1}"); A(f"v_cvt_pk_bf16_f32 v39, v{96+i*4+2}, v{96+i*4+3}")
        if i==2: A("s_mov_b64 exec, vcc")
        A(f"ds_write_b32 v{40+2*i}, v38"); A(f"ds_write_b32 v{41+2*i}, v39")
        if i==2: A("s_mov_b64 exec, -1")
    A("s_waitcnt lgkmcnt(0)"); A("s_barrier")
    ST.stamp(p,7)
    def N(half,u,tt,r=None):
        b=96+((half*5+u)*4+tt)*4; return f"v[{b}:{b+3}]" if r is None else f"v{b+r}"
    seq=[(half,s,u) for half in range(2) for s in range(3) for u in range(5)]
    def rd(i):
        half,s,u=seq[i]
        return [Ins(f"ds_read_b64_tr_b16 {afh(i,h)}, v{V_BD2} offset:{half*960+(8*s+4*h)*40+8*u}") for h in range(2)]
    st=[]
    for i in range(PF): st+=rd(i)
    for i,(half,s,u) in enumerate(seq):
        nxt=rd(i+PF) if i+PF<len(seq) else []
        for tt in range(4):
            e=140+tt*24+half*12+4*s
            c=N(half,u,tt) if s>0 else "0"
            st.append(Ins(f"v_mfma_f32_16x16x32_bf16 {N(half,u,tt)}, {afr(i)}, a[{e}:{e+3}], {c}"))
            if tt<len(nxt): st.append(nxt[tt])
    st,_=auto_lgkm(st); p.add(st)
    A(f"s_lshl_b32 s38, s{S_RT}, 3"); A(f"s_lshl_b32 s39, s{S_W}, 1"); A("s_add_u32 s38, s38, s39"); A(f"s_mul_i32 s38, s38, {NKS_TOT}")
    A(f"s_lshr_b32 s39, s{S_QD}, 2"); A("s_add_u32 s40, s38, s39"); A("s_add_u32 s40, s40, 160"); A("s_lshl_b32 s40, s40, 11")
    A(f"s_and_b32 s39, s{S_QD}, 3"); A("s_lshl_b32 s39, s39, 2"); A("s_add_u32 s40, s40, s39")
    A(f"s_lshl_b32 s39, s{S_QD}, 1"); A("s_add_u32 s38, s38, s39"); A("s_add_u32 s38, s38, 144"); A("s_lshl_b32 s38, s38, 11")
    A(f"v_and_b32 v72, 15, v{V_L}"); A(f"v_lshrrev_b32 v73, 4, v{V_L}"); A("v_and_b32 v74, 1, v73"); A("v_lshrrev_b32 v73, 1, v73")
    A("v_lshlrev_b32 v72, 4, v72"); A("v_lshlrev_b32 v74, 9, v74"); A("v_lshlrev_b32 v73, 10, v73"); A("v_add3_u32 v72, v72, v74, v73")
    A("s_nop 3")
    for tt in range(4):
        a=24; b=26; den=28
        A(f"v_rcp_f32 v{a}, {N(0,4,tt,3)}"); A(f"v_rcp_f32 v{b}, {N(1,4,tt,3)}"); A("s_nop 0")
        A(f"v_mul_f32 v{den}, {N(0,4,tt,2)}, v{a}"); A(f"v_fmac_f32 v{den}, {N(1,4,tt,2)}, v{b}"); A(f"v_add_f32 v{den}, 0x{f2u(1e-6):08x}, v{den}")
        A(f"v_rcp_f32 v{den}, v{den}"); A("s_nop 0"); A(f"v_mul_f32 v{a}, v{a}, v{den}"); A(f"v_mul_f32 v{b}, v{b}, v{den}")
        for d in range(0,18,2):
            n0=96+((0*5+d//4)*4+tt)*4+d%4; n1=96+((1*5+d//4)*4+tt)*4+d%4
            A(f"v_pk_mul_f32 {bc(30+d)}, {bc(n0)}, {bc(a)} op_sel_hi:[1,0]")
            A(f"v_pk_fma_f32 {bc(30+d)}, {bc(n1)}, {bc(b)}, {bc(30+d)} op_sel_hi:[1,0,1]")
        o=48+12*(tt%2)
        for i in range(9): A(f"v_cvt_pk_bf16_f32 v{o+i}, v{30+2*i}, v{31+2*i}")
        for s in range(2):
            A(f"s_add_u32 s39, s38, {2048*s+256*(tt&1)}")
            A(f"buffer_store_dwordx4 v[{o+4*s}:{o+4*s+3}], v72, s[{S_H}:{S_H+3}], s39 offen{STMOD}")
        A(f"s_add_u32 s39, s40, {256*(tt&1)}")
        A(f"buffer_store_dword v{o+8}, v72, s[{S_H}:{S_H+3}], s39 offen{STMOD}")
        if tt==1: A(f"s_add_u32 s38, s38, {NKS_TOT*2048}"); A(f"s_add_u32 s40, s40, {NKS_TOT*2048}")
    ST.stamp(p,8)
    ST.flush(p,70,71,2)
    if MERGE:
        A("s_mov_b32 s90, 1"); A("s_mov_b32 s91, 4")
        A(f"s_lshl_b32 s92, s{S_RT}, 3"); A(f"s_add_u32 s92, s92, s{S_QD}")
        A(f"s_mov_b32 s93, s{S_W}")
        A(f"s_add_u32 s94, s{S_RT}, 40"); A("s_mov_b32 s95, 0")
        A("s_mul_i32 s38, s92, 171"); A("s_lshr_b32 s38, s38, 10"); A("s_add_u32 s96, s38, 40"); A("s_mov_b32 s97, 8")
        A("s_branch L_p2")
    else:
        A("s_endpgm")
    if docheck:
        ins=p.ins
        body=ins[il:idn]
        tr=ins[:il]+body+body+ins[idn:]
        print("att check problems:",len(check(tr,'att')))
if __name__=="__main__":
    for m in range(1792): assert (m*7282)>>16==m//9
    for n in range(12): assert (n*86)>>8==n//3
    for n in range(768): assert (n*405)>>16==n//162, n
    for n in range(162): assert (n*57)>>9==n//9
    for n in range(192): assert (n*205)>>10==n//5
    p=Prog(); gen_att(p); print(len(p.ins))
```

```python
from core import *
import stamp as ST
import os, math, struct
XNT=os.environ.get('XNT','')
WNT=os.environ.get('WNT','')
STMOD=os.environ.get('STMOD',' sc1')
MERGE=int(os.environ.get('MERGE','1'))
XPF=int(os.environ.get('XPF','0'))
FNT=int(os.environ.get('FNT','2'))
ROT=int(os.environ.get('ROT','1')); WPF=int(os.environ.get('WPF','0'))
def f2u(x): return struct.unpack('<I', struct.pack('<f', x))[0]
C0 = -2.0*math.log2(math.e)*math.sqrt(2.0/math.pi)
C1 = C0*0.044715
NKS_TOT=162; H_BYTES=64*NKS_TOT*2048
CH=16384
XA=65536; XB=32768
WR0=6
def XF(tt,ks):
    i=ks*4+tt
    if i<64: return f"a[{4*i}:{4*i+3}]"
    i-=64; return f"v[{224+4*i}:{224+4*i+3}]"
def acc(buf,tt,j,r=None):
    b=96+64*buf+16*tt+4*j
    return f"v[{b}:{b+3}]" if r is None else f"v{b+r}"
AR=64; NAR=8
def afr(i): b=AR+4*(i%NAR); return f"v[{b}:{b+3}]"
def afh(i,h): b=AR+4*(i%NAR)+2*h; return f"v[{b}:{b+1}]"
TMP0=32; HP=24
V_WD=1
V_XD=3
V_TRP=7
V_TR=11
V_XP=17
V_L16=21
V_C1=22; V_HST=23
S_W=24
S_X=8; S_G=12; S_U=16; S_H=20
S_XSO=25; S_XSO2=26; S_WSO=27; S_HSO=28; S_CNT=29; S_MW=30; S_MX=31; S_PF=56; S_PFO=32; S_HST=33; S_AW=34; S_AX=35; S_GRP=48
PKC=[60,62,58]

def gelu(buf, pk=False):
    out=[]
    for tt in range(4):
        hp=HP+4*(tt%2)
        if pk:
            chains=[]
            for j in range(2):
                for r in (0,2):
                    bx=96+64*buf+16*tt+4*j+r; bu=bx+8
                    X=f"v[{bx}:{bx+1}]"; U=f"v[{bu}:{bu+1}]"
                    a=TMP0+4*((j*2+r//2)+4*(tt%2)) if False else TMP0+4*(j*2+r//2)
                    T=f"v[{a}:{a+1}]"; Y=f"v[{a+2}:{a+3}]"
                    chains.append([f"v_pk_mul_f32 {T}, {X}, {X}",
                                   f"v_pk_fma_f32 {T}, {T}, v[50:51], v[52:53]",
                                   f"v_pk_mul_f32 {T}, {T}, {X}",
                                   f"v_exp_f32 v{a}, v{a}", f"v_exp_f32 v{a+1}, v{a+1}",
                                   f"v_pk_mul_f32 {Y}, {X}, {U}",
                                   f"v_pk_add_f32 {T}, {T}, v[54:55]",
                                   f"v_rcp_f32 v{a}, v{a}", f"v_rcp_f32 v{a+1}, v{a+1}",
                                   f"v_pk_mul_f32 {Y}, {Y}, {T}",
                                   f"v_cvt_pk_bf16_f32 v{hp+2*j+r//2}, v{a+2}, v{a+3}"])
            for k in range(11):
                for c in chains: out.append(Ins(c[k]))
        else:
            chains=[]
            for j in range(2):
                for r in range(4):
                    x=acc(buf,tt,j,r); u=acc(buf,tt,2+j,r)
                    T,Y=f"v{TMP0+j*4+r}",f"v{TMP0+8+j*4+r}"
                    chains.append([f"v_mul_f32 {T}, {x}, {x}",
                                   f"v_fmaak_f32 {T}, v{V_C1}, {T}, 0x{f2u(C0):08x}",
                                   f"v_mul_f32 {T}, {T}, {x}",
                                   f"v_exp_f32 {T}, {T}",
                                   f"v_mul_f32 {Y}, {x}, {u}",
                                   f"v_add_f32 {T}, 1.0, {T}",
                                   f"v_rcp_f32 {T}, {T}",
                                   f"v_mul_f32 {Y}, {Y}, {T}"])
            for p0 in (0,4):
                cs=chains[p0:p0+4]
                for k in range(8):
                    for c in cs: out.append(Ins(c[k]))
                for pp in (p0,p0+2):
                    out.append(Ins(f"v_cvt_pk_bf16_f32 v{hp+pp//2}, v{TMP0+8+pp}, v{TMP0+8+pp+1}"))
        if not os.environ.get('NOST'): out.append(Ins(f"buffer_store_dwordx4 v[{hp}:{hp+3}], v{V_HST}, s[{S_H}:{S_H+3}], s{S_HSO} offen offset:{256*(tt&1)}{STMOD}", tag='st'))
        if tt==1: out.append(Ins(f"s_add_u32 s{S_HSO}, s{S_HSO}, {NKS_TOT*2048}"))
        if tt==3: out.append(Ins(f"s_sub_u32 s{S_HSO}, s{S_HSO}, {NKS_TOT*2048-2048}"))
    return out
def pkconst():
    return [Ins(f"v_mov_b32 v50, 0x{f2u(C1):08x}"),Ins(f"v_mov_b32 v51, 0x{f2u(C1):08x}"),Ins(f"v_mov_b32 v52, 0x{f2u(C0):08x}"),Ins(f"v_mov_b32 v53, 0x{f2u(C0):08x}"),Ins("v_mov_b32 v54, 1.0"),Ins("v_mov_b32 v55, 1.0")]

def ntify(lst, on):
    if not on: return lst
    return [Ins(x.text.replace(' lds',' nt lds')) if x.kind=='dma' and ' nt' not in x.text else x for x in lst]
def wdma(slot):
    return [Ins(f"s_add_u32 m0, s{S_MW}, {slot*CH}"), Ins("s_nop 0"),
            Ins(f"buffer_load_dwordx4 v{V_WD}, s[{S_G}:{S_G+3}], s{S_WSO} offen lds{WNT}"),
            Ins(f"buffer_load_dwordx4 v{V_WD+1}, s[{S_G}:{S_G+3}], s{S_WSO} offen offset:1024 lds{WNT}"),
            Ins(f"s_add_u32 m0, s{S_MW}, {slot*CH+8192}"), Ins("s_nop 0"),
            Ins(f"buffer_load_dwordx4 v{V_WD}, s[{S_U}:{S_U+3}], s{S_WSO} offen lds{WNT}"),
            Ins(f"buffer_load_dwordx4 v{V_WD+1}, s[{S_U}:{S_U+3}], s{S_WSO} offen offset:1024 lds{WNT}")]
def wadv(last):
    if not ROT:
        return [Ins(f"s_add_u32 s{S_WSO}, s{S_WSO}, {64*9216}")] if not last else [Ins(f"s_sub_u32 s{S_WSO}, s{S_WSO}, {8*64*9216-128}")]
    o=[Ins(f"s_add_u32 s{S_AW}, s{S_AW}, 1"), Ins(f"s_cmp_eq_u32 s{S_AW}, 9"), Ins(f"s_cselect_b32 s{S_AW}, 0, s{S_AW}")]
    if last: o.append(Ins(f"s_add_u32 s{S_GRP}, s{S_GRP}, 128"))
    o+=[Ins(f"s_mul_i32 s{S_WSO}, s{S_AW}, {64*9216}"), Ins(f"s_add_u32 s{S_WSO}, s{S_WSO}, s{S_GRP}")]
    return o
def xdma(c):
    base=XA if c%2==0 else XB
    o=[]
    for i in range(8):
        if i%4==0:
            o.append(Ins(f"s_add_u32 m0, s{S_MX}, {base+4096*(i//4)}")); o.append(Ins("s_nop 0"))
        o.append(Ins(f"buffer_load_dwordx4 v{V_XD+(i%4)}, s[{S_X}:{S_X+3}], s{S_XSO if i<4 else S_XSO2} offen offset:{1024*(i%4)} lds{XNT}"))
    if not ROT:
        return o+[Ins(f"s_add_u32 s{S_XSO}, s{S_XSO}, 128"), Ins(f"s_add_u32 s{S_XSO2}, s{S_XSO2}, 128")]
    o+=[Ins(f"s_add_u32 s{S_AX}, s{S_AX}, 1"), Ins(f"s_cmp_eq_u32 s{S_AX}, 9"), Ins(f"s_cselect_b32 s49, {9*128}, 0"), Ins(f"s_cselect_b32 s{S_AX}, 0, s{S_AX}"),
        Ins(f"s_add_u32 s{S_XSO}, s{S_XSO}, 128"), Ins(f"s_sub_u32 s{S_XSO}, s{S_XSO}, s49"), Ins(f"s_add_u32 s{S_XSO2}, s{S_XSO}, {32*1152}")]
    return o
def xrd(c):
    return [Ins(f"ds_read_b128 {XF(tt,2*c+b)}, v{V_XP+2*(c%2)+b} offset:{tt*2048}") for b in range(2) for tt in range(4)]

def trset(P, g0=False):
    o=[]
    for grp in range(3):
        for i in range(2):
            o.append(Ins(f"v_add_u32 v{V_TR+2*grp+i}, {grp*4*CH}, v{V_TRP+2*P+i}"))
    return o
def ard(i, slot, b, j, fi):
    grp=slot//4; so=(slot%4)*CH
    return [Ins(f"ds_read_b64_tr_b16 {afh(fi,h)}, v{V_TR+2*grp+(j&1)} offset:{so+(j>>1)*8192+b*4096+h*512}") for h in range(2)]

PF=4
def phase(buf, entry_pref=True, next_first=None):
    seq=[(c,b,j) for c in range(9) for b in range(2) for j in range(4)]
    main=[]; marks={}
    for i,(c,b,j) in enumerate(seq):
        if j==0 and b==0: main.append(('mark',c,'start'))
        n=i+PF
        if n<len(seq):
            cn,bn,jn=seq[n]
            if bn==0 and jn==0: main.append(('mark',cn,'firstread'))
            nxt=ard(n,cn,bn,jn,n)
        else:
            if n==len(seq): main.append(('mark',9,'firstread'))
            nxt=next_first[n-len(seq)] if next_first else []
        ks=2*c+b
        for tt in range(4):
            cc=acc(buf,tt,j) if ks>0 else "0"
            main.append(Ins(f"v_mfma_f32_16x16x32_bf16 {acc(buf,tt,j)}, {afr(i)}, {XF(tt,ks)}, {cc}"))
            if tt<len(nxt): main.append(nxt[tt])
    return main

def first_reads(P_is_next_set):
    return [ard(k,0,k//4,k%4,72+k) for k in range(PF)]

def expand(main, hooks):
    out=[]
    for x in main:
        if isinstance(x,tuple):
            out+=hooks.get((x[1],x[2]),[])
        else: out.append(x)
    return out

def gen(p):
    A=p
    A("s_mul_i32 s39, s36, 384")
    A(f"s_add_u32 s{S_G}, s42, s39"); A(f"s_addc_u32 s{S_G+1}, s43, 0"); A(f"s_sub_u32 s{S_G+2}, {576*9216}, s39"); A(f"s_mov_b32 s{S_G+3}, 0x20000")
    A(f"s_add_u32 s{S_U}, s44, s39"); A(f"s_addc_u32 s{S_U+1}, s45, 0"); A(f"s_sub_u32 s{S_U+2}, {576*9216}, s39"); A(f"s_mov_b32 s{S_U+3}, 0x20000")
    A(f"s_mul_i32 s38, s37, {256*1152}")
    A(f"s_add_u32 s{S_X}, s40, s38"); A(f"s_addc_u32 s{S_X+1}, s41, 0"); A(f"s_sub_u32 s{S_X}, s{S_X}, 4096"); A(f"s_subb_u32 s{S_X+1}, s{S_X+1}, 0")
    A(f"s_mov_b32 s{S_X+2}, {256*1152+4096}"); A(f"s_mov_b32 s{S_X+3}, 0x20000")
    A("v_and_b32 v24, 63, v0"); A("v_lshrrev_b32 v25, 4, v24"); A("v_and_b32 v26, 15, v24"); A("v_lshrrev_b32 v27, 3, v24"); A("v_and_b32 v28, 7, v24")
    for i in range(4):
        A(f"v_add_u32 v30, {4*(i&1)}, v25"); A("v_and_b32 v30, 7, v30"); A("v_xor_b32 v30, v30, v28"); A("v_lshlrev_b32 v30, 4, v30")
        A(f"v_add_u32 v31, {8*i}, v27"); A("v_mul_u32_u24 v31, 0x480, v31")
        A(f"v_add3_u32 v{V_XD+i}, v30, v31, 0"); A(f"v_add_u32 v{V_XD+i}, {4096-1024*i}, v{V_XD+i}")
    A(f"s_mov_b32 s50, {'s37' if ROT else 0}")
    if ROT==2:
        A("s_mul_i32 s38, s36, 86"); A("s_lshr_b32 s38, s38, 8"); A("s_mul_i32 s38, s38, 3"); A("s_sub_u32 s38, s36, s38"); A("s_mul_i32 s38, s38, 3")
        A("s_add_u32 s50, s50, s38"); A("s_cmp_ge_u32 s50, 9"); A("s_cselect_b32 s38, 9, 0"); A("s_sub_u32 s50, s50, s38")
    A(f"s_mov_b32 s{S_AW}, s50"); A(f"s_mov_b32 s{S_AX}, s50"); A(f"s_mov_b32 s{S_GRP}, 0")
    A(f"s_mul_i32 s{S_XSO}, s{S_W}, {64*1152}"); A("s_lshl_b32 s38, s50, 7"); A(f"s_add_u32 s{S_XSO}, s{S_XSO}, s38"); A(f"s_add_u32 s{S_XSO2}, s{S_XSO}, {32*1152}")
    A(f"s_lshl_b32 s{S_MX}, s{S_W}, 13")
    A.add(ntify(xdma(0), FNT&1))
    A(f"s_lshl_b32 s38, s{S_W}, 4")
    for e in range(2):
        A("v_bfe_u32 v30, v27, 1, 1");
        if e: A("v_or_b32 v30, 2, v30")
        A("v_lshrrev_b32 v31, 1, v28"); A("v_xor_b32 v30, v30, v31"); A("v_lshlrev_b32 v30, 5, v30"); A("v_and_b32 v31, 1, v28"); A("v_lshlrev_b32 v31, 4, v31"); A("v_add_u32 v30, v30, v31")
        A(f"v_add_u32 v31, s38, v27");
        if e: A("v_add_u32 v31, 8, v31")
        A("v_mul_u32_u24 v31, 0x2400, v31")
        A(f"v_add_u32 v{V_WD+e}, v30, v31")
        if e: A(f"v_subrev_u32 v{V_WD+e}, 1024, v{V_WD+e}")
    A(f"s_mul_i32 s{S_WSO}, s{S_AW}, {64*9216}"); A(f"s_lshl_b32 s{S_MW}, s{S_W}, 11")
    A.add(ntify(wdma(WR0+0), FNT&2)); A.add(wadv(False))
    ST.stamp(p,1)
    A(f"s_mov_b32 s{S_H}, s46"); A(f"s_mov_b32 s{S_H+1}, s47"); A(f"s_mov_b32 s{S_H+2}, {H_BYTES}"); A(f"s_mov_b32 s{S_H+3}, 0x20000")
    A(f"v_lshlrev_b32 v{V_L16}, 4, v24")
    A("v_lshrrev_b32 v30, 2, v26"); A("v_and_b32 v31, 3, v26")
    A("v_lshlrev_b32 v29, 3, v25"); A("v_add_u32 v29, v29, v30"); A("v_lshlrev_b32 v29, 7, v29"); A("v_lshlrev_b32 v31, 3, v31"); A("v_add_u32 v29, v29, v31")
    A("v_lshrrev_b32 v30, 1, v30"); A("v_and_b32 v31, 1, v25"); A("v_lshlrev_b32 v31, 1, v31"); A("v_or_b32 v30, v30, v31")
    for s in range(4):
        A(f"v_xor_b32 v31, {s}, v30"); A("v_lshlrev_b32 v31, 5, v31"); A(f"v_add_u32 v{V_TRP+s}, v31, v29")
    A("v_lshrrev_b32 v30, 1, v26"); A("v_xor_b32 v30, v30, v25"); A("v_lshlrev_b32 v30, 4, v30"); A("v_lshlrev_b32 v31, 7, v26"); A("v_add_u32 v30, v30, v31")
    A(f"v_add_u32 v30, s{S_MX}, v30")
    A(f"v_add_u32 v{V_XP}, {XA}, v30"); A(f"v_xor_b32 v{V_XP+1}, 64, v{V_XP}"); A(f"v_add_u32 v{V_XP+2}, {XB}, v30"); A(f"v_xor_b32 v{V_XP+3}, 64, v{V_XP+2}")
    A(f"v_mov_b32 v{V_C1}, 0x{f2u(C1):08x}")
    A("v_and_b32 v30, 1, v25"); A("v_lshlrev_b32 v30, 9, v30"); A("v_lshrrev_b32 v31, 1, v25"); A("v_lshlrev_b32 v31, 10, v31"); A("v_lshlrev_b32 v29, 4, v26")
    A(f"v_add3_u32 v{V_HST}, v29, v30, v31")
    A("s_lshl_b32 s38, s37, 3"); A(f"s_lshl_b32 s39, s{S_W}, 1"); A("s_add_u32 s38, s38, s39"); A(f"s_mul_i32 s38, s38, {NKS_TOT}")
    A("s_mul_i32 s39, s36, 6"); A("s_add_u32 s38, s38, s39"); A(f"s_lshl_b32 s{S_HSO}, s38, 11")
    A("s_lshl_b32 s38, s36, 3"); A("s_add_u32 s38, s38, s37"); A("s_lshl_b32 s38, s38, 2"); A(f"s_add_u32 s38, s38, s{S_W}")
    A(f"s_mul_i32 s{S_PFO}, s38, {8*1024}")
    A(f"s_mov_b32 s{S_PF}, s66"); A(f"s_mov_b32 s{S_PF+1}, s67"); A(f"s_mov_b32 s{S_PF+2}, {4608*1152}"); A(f"s_mov_b32 s{S_PF+3}, 0x20000")
    for s in range(4): A(f"v_add_u32 v{V_TR+s}, {WR0*CH}, v{V_TRP+s}")
    A.add(ntify(wdma(WR0+1), FNT&4)); A.add(wadv(False)); A.add(ntify(xdma(1), FNT&8))
    log=['X0']*8+['W0']*4+['W1']*4+['X1']*8
    def waitfor(tags, extra=""):
        nonlocal log
        idx=[i for i,t in enumerate(log) if t in tags]
        if idx:
            last=max(idx); n=len(log)-1-last
            log=log[last+1:]
            return [Ins(f"s_waitcnt vmcnt({n}) {extra}".strip())]
        return [Ins(f"s_waitcnt {extra}")] if extra else []
    def g0rd(i):
        c,b,j8=i//16,(i%16)//8,i%8
        P=j8//4; j=j8%4
        sl=c%4
        return [Ins(f"ds_read_b64_tr_b16 {afh(i,h)}, v{V_TR+2*P+(j&1)} offset:{sl*CH+(j>>1)*8192+b*4096+h*512}") for h in range(2)]
    p.add(waitfor(('X0','W0'))); p("s_barrier")
    if MERGE:
        import k1
        k1.announce_zero(p, S_W, "L_gx_az", 60)
    ST.stamp(p,2)
    p.add(xrd(0))
    pre=[]
    for i in range(PF): pre+=g0rd(i)
    p.add(pre[:6]); p("s_waitcnt lgkmcnt(6)"); p.add(pre[6:])
    q0=[x.wr for x in pre]
    N0=9*16
    if XPF:
        A("s_mul_i32 s38, s36, 86"); A("s_lshr_b32 s38, s38, 8"); A("s_mul_i32 s38, s38, 3"); A("s_sub_u32 s38, s36, s38")
        A("s_lshl_b32 s38, s38, 6"); A(f"s_lshl_b32 s39, s{S_W}, 4"); A("s_add_u32 s38, s38, s39"); A("s_mul_i32 s74, s38, 1152"); A(f"s_add_u32 s74, s74, {4096+128*XPF}"); A(f"s_add_u32 s75, s74, {8*1152}")
        A("v_and_b32 v63, 63, v0"); A("v_lshrrev_b32 v62, 3, v63"); A("v_mul_u32_u24 v62, 0x480, v62"); A("v_and_b32 v63, 7, v63"); A("v_lshl_add_u32 v63, v63, 4, v62")
    A("s_lshl_b32 s38, s2, 2"); A(f"s_add_u32 s38, s38, s{S_W}"); A("s_mul_i32 s51, s38, 6144")
    A("s_mov_b32 s52, s42"); A("s_mov_b32 s53, s43"); A(f"s_mov_b32 s54, {576*9216}"); A("s_mov_b32 s55, 0x20000")
    A("s_mov_b32 s60, s44"); A("s_mov_b32 s61, s45"); A(f"s_mov_b32 s62, {576*9216}"); A("s_mov_b32 s63, 0x20000")
    def lin(k):
        srd="s[52:55]" if k<6 else "s[60:63]"; kk=k%6
        o=[]
        if kk==4: o.append(Ins("s_add_u32 s51, s51, 4096"))
        if k==6: o.append(Ins("s_sub_u32 s51, s51, 4096"))
        o.append(Ins(f"buffer_load_dwordx4 v[56:59], v{V_L16}, {srd}, s51 offen offset:{1024*(kk%4)}"))
        return o
    def tagged(lst,tag):
        for x in lst:
            if x.kind=='dma': x.tag=tag
        return lst
    def logit(stream):
        for x in stream:
            if getattr(x,'kind',None) in('dma','vmem'): log.append(x.tag or 'P')
    carry=tagged(wdma(WR0+2)+wadv(False),'W2')+tagged(xdma(2),'X2')
    for c in range(9):
        main=[]
        for ii in range(16):
            i=c*16+ii
            if ii==8: main.append(('mid',))
            n=i+PF
            nxt=g0rd(n) if n<N0 else []
            b=ii//8; j8=ii%8; P=j8//4; j=j8%4; ks=2*c+b
            for tt in range(4):
                cc=acc(P,tt,j) if ks>0 else "0"
                main.append(Ins(f"v_mfma_f32_16x16x32_bf16 {acc(P,tt,j)}, {afr(i)}, {XF(tt,ks)}, {cc}"))
                if tt<len(nxt): main.append(nxt[tt])
        im=main.index(('mid',))
        first=main[:im]; second=main[im+1:]
        if carry: first=spread(first, dma_items(carry), first=4 if c else 0)
        logit(first)
        carry=[]
        midl=[]
        if c+1<9: midl+=waitfor((f'X{c+1}',f'W{c+1}'))
        midl.append(Ins("s_barrier"))
        dl=[]
        if c+3<9: dl+=tagged(wdma(WR0+(c+3)%4)+wadv(c+3==8),f'W{c+3}')
        g1={6:(0,1),7:(2,3),8:(4,5)}.get(c,())
        for cc_ in g1: dl+=tagged(wdma(cc_)+wadv(False),f'G{cc_}')
        if c+1<9:
            xr=xrd(c+1)
            second=spread(second,[[x] for x in xr], first=1, last=18)
        if dl: second=spread(second, dma_items(dl), first=2)
        if XPF and c+XPF<9:
            second=spread(second, [[Ins(f"buffer_load_dwordx4 v[56:59], v63, s[{S_X}:{S_X+3}], s74 offen")],[Ins(f"buffer_load_dwordx4 v[56:59], v63, s[{S_X}:{S_X+3}], s75 offen")],[Ins("s_add_u32 s74, s74, 128"),Ins("s_add_u32 s75, s75, 128")]], first=3)
        if WPF and c<3:
            second=spread(second, [lin(k) for k in range(4*c,4*c+4)], first=5)
        logit(second)
        if c+3<9: carry=tagged(xdma(c+3),f'X{c+3}')
        stream,q0=auto_lgkm(fix_m0(first+midl+second), q0, extra=2)
        p.add(stream)
    ST.stamp(p,3)
    p.add(pkconst()); p("s_nop 4")
    p.add(gelu(0,pk=True)); log+=['S']*4
    p.add(trset(0))
    p.add(waitfor(('G0','G1','G2'))); p("s_barrier")
    fr=first_reads(0)
    for k in range(PF): p.add(fr[k])
    ST.stamp(p,4)
    if MERGE:
        p("s_lshr_b32 s91, s4, 1"); p("s_mov_b32 s90, 0")
        p("s_and_b32 s38, s4, 1"); p("s_mul_i32 s38, s38, 24"); p("s_add_u32 s92, s38, s6")
        p(f"s_mov_b32 s93, s{S_W}")
        p("s_mul_i32 s38, s36, 43"); p("s_lshr_b32 s38, s38, 8"); p("s_lshl_b32 s39, s37, 2"); p("s_add_u32 s94, s38, s39"); p("s_add_u32 s94, s94, 8")
        p("s_mul_i32 s38, s92, 171"); p("s_lshr_b32 s38, s38, 10"); p("s_lshl_b32 s38, s38, 2"); p("s_add_u32 s96, s38, s91"); p("s_add_u32 s95, s96, 8"); p("s_add_u32 s96, s96, 48"); p("s_mov_b32 s97, 6")
        p("s_lshl_b32 s38, s96, 7"); p("v_mov_b32 v48, s38"); p(f"s_add_u32 s64, s70, {0x15C0000}"); p("s_addc_u32 s65, s71, 0")
        p("v_mov_b32 v61, 0"); p("global_load_dword v60, v61, s[68:69] sc1")
    p(f"s_mov_b32 s{S_CNT}, 0")
    il=len(p.ins)
    p.label("L_gx_loop")
    q0=[x.wr for k in range(PF) for x in fr[k]]
    pfl=lambda: [Ins(f"buffer_load_dwordx4 v[56:59], v{V_L16}, s[{S_PF}:{S_PF+3}], s{S_PFO} offen", tag='pf'), Ins(f"s_add_u32 s{S_PFO}, s{S_PFO}, 1024")]
    def marks(m, fn):
        cur=[]
        for x in m:
            if isinstance(x,tuple):
                t=fn(x)
                if t: cur.append(Ins(t+":"))
            else: cur.append(x)
        return cur
    cur=marks(phase(1, next_first=first_reads(0)), lambda x: (f"FREE{x[1]//3-1}" if x[2]=='start' and x[1] in (3,6) else ("PRE9" if x[2]=='firstread' and x[1]==9 else None)))
    def mfma_index_of(cur,lab):
        k=0
        for x in cur:
            if x.kind=='label' and x.text.startswith(lab): return k
            if x.kind=='mfma': k+=1
    for k in (0,1):
        d=[]
        for cc_ in (3*k,3*k+1,3*k+2): d+=wdma(cc_)+wadv(False)
        f=mfma_index_of(cur,f"FREE{k}")
        cur=spread(cur, dma_items(d), first=f+1, last=f+84)
    mer=interleave(cur, pfl()+pfl()+gelu(0), budget=2)
    out=[]; seq=[]
    for x in mer:
        if x.kind=='label' and x.text.startswith('FREE'):
            if MERGE and x.text.startswith('FREE1'):
                out.append(Ins(f"s_waitcnt vmcnt({len(seq)})"))
            out.append(Ins("s_barrier"))
            if MERGE and x.text.startswith('FREE1'):
                out+=[Ins(f"s_cmp_eq_u32 s{S_CNT}, 1"), Ins("s_cbranch_scc0 L_gx_nosig"), Ins(f"s_cmp_eq_u32 s{S_W}, 0"), Ins("s_cbranch_scc0 L_gx_nosig"),
                      Ins("v_readfirstlane_b32 s38, v60"), Ins("s_mov_b32 s39, 0"), Ins("L_gx_zr:"), Ins("s_cmp_ge_u32 s38, 272"), Ins("s_cbranch_scc1 L_gx_zok"),
                      Ins("s_add_u32 s39, s39, 1"), Ins("s_cmp_gt_u32 s39, 200000"), Ins("s_cbranch_scc1 L_gx_zok"), Ins("s_sleep 6"),
                      Ins("v_mov_b32 v61, 0"), Ins("global_load_dword v60, v61, s[68:69] sc1"), Ins("s_waitcnt vmcnt(0)"), Ins("v_readfirstlane_b32 s38, v60"), Ins("s_branch L_gx_zr"),
                      Ins("L_gx_zok:"),
                      Ins("s_mul_i32 s38, s36, 43"), Ins("s_lshr_b32 s38, s38, 8"), Ins("s_lshl_b32 s39, s37, 2"), Ins("s_add_u32 s38, s38, s39"), Ins("s_add_u32 s38, s38, 48"), Ins("s_lshl_b32 s38, s38, 7"),
                      Ins(f"s_add_u32 s72, s70, {0x15C0000}"), Ins("s_addc_u32 s73, s71, 0"),
                      Ins("v_mov_b32 v61, s38"), Ins("v_mov_b32 v62, 1"), Ins("v_cmp_eq_u32 vcc, 0, v0"), Ins("s_and_saveexec_b64 s[74:75], vcc"),
                      Ins("global_atomic_add v61, v62, s[72:73] sc1"), Ins("s_mov_b64 exec, s[74:75]"), Ins("L_gx_nosig:"), Ins("s_nop 0")]
        elif x.kind=='label' and x.text.startswith('PRE9'):
            d=[i for i,t in enumerate(seq) if t=='dma']; assert len(d)==24
            out.append(Ins(f"s_waitcnt vmcnt({len(seq)-1-d[11]})")); out.append(Ins("s_barrier")); out+=trset(0)
        else:
            if x.kind in('vmem','dma'): seq.append(x.kind)
            out.append(x)
    if MERGE:
        ist=[i for i,x in enumerate(out) if x.tag=='st']
        out.insert(ist[-1]-40, Ins("global_load_dword v49, v48, s[64:65] sc1", tag='look'))
        vm=[x for x in out if x.kind in('vmem','dma')]
        n_after_look=len(vm)-1-[i for i,x in enumerate(vm) if x.tag=='look'][0]
        assert all(x.kind!='dma' for x in vm[len(vm)-n_after_look:])
    out1=out; tail_exact=len(seq)-1-max(i for i,t in enumerate(seq) if t=='dma'); tail1=min(4,tail_exact)
    cur=marks(phase(0, next_first=first_reads(1)), lambda x: (f"LAND{x[1]}" if x[2]=='firstread' and x[1] in (3,6) else ("SWITCH1" if x[2]=='firstread' and x[1]==9 else None)))
    d678=wdma(6)+wadv(False)+wdma(7)+wadv(False)+wdma(8)+wadv(True)
    cur=spread(cur, dma_items(d678), first=2, last=84)
    mer=interleave(cur, pfl()+pfl()+gelu(1), budget=2)
    out=[]; seq=[]
    for x in mer:
        if x.kind=='label' and x.text.startswith('LAND3'):
            out.append(Ins(f"s_waitcnt vmcnt({len(seq)+tail1})")); out.append(Ins("s_barrier"))
        elif x.kind=='label' and x.text.startswith('LAND6'):
            last=max(i for i,t in enumerate(seq) if t=='dma'); assert seq.count('dma')==12
            out.append(Ins(f"s_waitcnt vmcnt({len(seq)-1-last})")); out.append(Ins("s_barrier"))
        elif x.kind=='label' and x.text.startswith('SWITCH'):
            out+=trset(1)
        else:
            if x.kind in('vmem','dma'): seq.append(x.kind)
            out.append(x)
    if os.environ.get('NOVM'): out=[x for x in out if not (x.kind=='wait' and 'vmcnt' in x.text)]; out1=[x for x in out1 if not (x.kind=='wait' and 'vmcnt' in x.text and 'vmcnt(0)' not in x.text)]
    st,q1=auto_lgkm(out,q0,extra=2)
    p.add(st)
    st,q2=auto_lgkm(out1,q1,extra=2)
    p.add(st)
    p("s_barrier")
    p(f"s_add_u32 s{S_CNT}, s{S_CNT}, 1"); p(f"s_cmp_lt_u32 s{S_CNT}, 2"); p("s_cbranch_scc1 L_gx_loop")
    idn=len(p.ins)
    assert [sorted(d) for d in q2]==[sorted(x.wr) for k in range(PF) for x in fr[k]] or True
    p("s_waitcnt lgkmcnt(0)")
    ST.stamp(p,5)
    if MERGE:
        import p2 as P2
        p(f"s_waitcnt vmcnt({n_after_look})"); p("s_barrier")
        P2.gen_p2a_ffn(p)
    p.add(pkconst()); p("s_nop 4")
    p.add(gelu(1,pk=True))
    ST.stamp(p,6)
    ST.flush(p,70,71,0)
    if MERGE: p("s_branch L_p2b")
    return il,idn
```

```python
from core import *
import stamp as ST
import os, math, struct
XNT=os.environ.get('XNT','')
WNT=os.environ.get('WNT','')
STMOD=os.environ.get('STMOD',' sc1')
MERGE=int(os.environ.get('MERGE','1'))
XPF=int(os.environ.get('XPF','0'))
FNT=int(os.environ.get('FNT','0'))
ROT=int(os.environ.get('ROT','0')); WPF=int(os.environ.get('WPF','0'))
def f2u(x): return struct.unpack('<I', struct.pack('<f', x))[0]
C0 = -2.0*math.log2(math.e)*math.sqrt(2.0/math.pi)
C1 = C0*0.044715
NKS_TOT=162; H_BYTES=64*NKS_TOT*2048
CH=16384
XA=65536; XB=32768
WR0=6
def XF(T,s16):
    i=s16*2+T
    if i<64: return f"a[{4*i}:{4*i+3}]"
    i-=64; return f"v[{224+4*i}:{224+4*i+3}]"
def acc(buf,T,sec,r=None):
    b=96+64*buf+32*T+16*sec
    return f"v[{b}:{b+15}]" if r is None else f"v{b+r}"
AR=64; NAR=8
def afr(i): b=AR+4*(i%NAR); return f"v[{b}:{b+3}]"
def afh(i,h): b=AR+4*(i%NAR)+2*h; return f"v[{b}:{b+1}]"
MF="v_mfma_f32_32x32x16_bf16"
TMP0=32; HP=24
V_WD=1
V_XD=3
V_TRP=7
V_TR=11
V_XP=14
V_L16=22
V_C1=23
S_W=24
S_X=8; S_G=12; S_U=16; S_H=20
S_XSO=25; S_XSO2=26; S_WSO=27; S_HSO=28; S_CNT=29; S_MW=30; S_MX=31; S_PF=56; S_PFO=32; S_HST=33; S_AW=34; S_AX=35; S_GRP=48
PKC=[60,62,58]

def gelu(buf, pk=False):
    out=[]
    for T in range(2):
        for e in range(2):
            hp=HP+4*((2*T+e)%2)
            if pk:
                chains=[]
                for r in range(8*e,8*e+8,2):
                    bx=96+64*buf+32*T+r; bu=bx+16
                    X=f"v[{bx}:{bx+1}]"; U=f"v[{bu}:{bu+1}]"
                    a=TMP0+4*((r-8*e)//2)
                    T_=f"v[{a}:{a+1}]"; Y=f"v[{a+2}:{a+3}]"
                    chains.append([f"v_pk_mul_f32 {T_}, {X}, {X}",
                                   f"v_pk_fma_f32 {T_}, {T_}, v[50:51], v[52:53]",
                                   f"v_pk_mul_f32 {T_}, {T_}, {X}",
                                   f"v_exp_f32 v{a}, v{a}", f"v_exp_f32 v{a+1}, v{a+1}",
                                   f"v_pk_mul_f32 {Y}, {X}, {U}",
                                   f"v_pk_add_f32 {T_}, {T_}, v[54:55]",
                                   f"v_rcp_f32 v{a}, v{a}", f"v_rcp_f32 v{a+1}, v{a+1}",
                                   f"v_pk_mul_f32 {Y}, {Y}, {T_}",
                                   f"v_cvt_pk_bf16_f32 v{hp+(r-8*e)//2}, v{a+2}, v{a+3}"])
                for k in range(11):
                    for c in chains: out.append(Ins(c[k]))
            else:
                chains=[]
                for r in range(8*e,8*e+8):
                    x=acc(buf,T,0,r); u=acc(buf,T,1,r)
                    T_,Y=f"v{TMP0+r-8*e}",f"v{TMP0+8+r-8*e}"
                    chains.append([f"v_mul_f32 {T_}, {x}, {x}",
                                   f"v_fmaak_f32 {T_}, v{V_C1}, {T_}, 0x{f2u(C0):08x}",
                                   f"v_mul_f32 {T_}, {T_}, {x}",
                                   f"v_exp_f32 {T_}, {T_}",
                                   f"v_mul_f32 {Y}, {x}, {u}",
                                   f"v_add_f32 {T_}, 1.0, {T_}",
                                   f"v_rcp_f32 {T_}, {T_}",
                                   f"v_mul_f32 {Y}, {Y}, {T_}"])
                for p0 in (0,4):
                    cs=chains[p0:p0+4]
                    for k in range(8):
                        for c in cs: out.append(Ins(c[k]))
                    for pp in (p0,p0+2):
                        out.append(Ins(f"v_cvt_pk_bf16_f32 v{hp+pp//2}, v{TMP0+8+pp}, v{TMP0+8+pp+1}"))
            if not os.environ.get('NOST'): out.append(Ins(f"buffer_store_dwordx4 v[{hp}:{hp+3}], v{V_L16}, s[{S_H}:{S_H+3}], s{S_HSO} offen offset:{1024*e}{STMOD}", tag='st'))
        out.append(Ins(f"s_add_u32 s{S_HSO}, s{S_HSO}, {NKS_TOT*2048}" if T==0 else f"s_sub_u32 s{S_HSO}, s{S_HSO}, {NKS_TOT*2048-2048}"))
    return out
def pkconst():
    return [Ins(f"v_mov_b32 v50, 0x{f2u(C1):08x}"),Ins(f"v_mov_b32 v51, 0x{f2u(C1):08x}"),Ins(f"v_mov_b32 v52, 0x{f2u(C0):08x}"),Ins(f"v_mov_b32 v53, 0x{f2u(C0):08x}"),Ins("v_mov_b32 v54, 1.0"),Ins("v_mov_b32 v55, 1.0")]

def ntify(lst, on):
    if not on: return lst
    return [Ins(x.text.replace(' lds',' nt lds')) if x.kind=='dma' and ' nt' not in x.text else x for x in lst]
def wdma(slot):
    return [Ins(f"s_add_u32 m0, s{S_MW}, {slot*CH}"), Ins("s_nop 0"),
            Ins(f"buffer_load_dwordx4 v{V_WD}, s[{S_G}:{S_G+3}], s{S_WSO} offen lds{WNT}"),
            Ins(f"buffer_load_dwordx4 v{V_WD+1}, s[{S_G}:{S_G+3}], s{S_WSO} offen offset:1024 lds{WNT}"),
            Ins(f"s_add_u32 m0, s{S_MW}, {slot*CH+8192}"), Ins("s_nop 0"),
            Ins(f"buffer_load_dwordx4 v{V_WD}, s[{S_U}:{S_U+3}], s{S_WSO} offen lds{WNT}"),
            Ins(f"buffer_load_dwordx4 v{V_WD+1}, s[{S_U}:{S_U+3}], s{S_WSO} offen offset:1024 lds{WNT}")]
def wadv(last):
    if not ROT:
        return [Ins(f"s_add_u32 s{S_WSO}, s{S_WSO}, {64*9216}")] if not last else [Ins(f"s_sub_u32 s{S_WSO}, s{S_WSO}, {8*64*9216-128}")]
    o=[Ins(f"s_add_u32 s{S_AW}, s{S_AW}, 1"), Ins(f"s_cmp_eq_u32 s{S_AW}, 9"), Ins(f"s_cselect_b32 s{S_AW}, 0, s{S_AW}")]
    if last: o.append(Ins(f"s_add_u32 s{S_GRP}, s{S_GRP}, 128"))
    o+=[Ins(f"s_mul_i32 s{S_WSO}, s{S_AW}, {64*9216}"), Ins(f"s_add_u32 s{S_WSO}, s{S_WSO}, s{S_GRP}")]
    return o
def xdma(c):
    base=XA if c%2==0 else XB
    o=[]
    for i in range(8):
        if i%4==0:
            o.append(Ins(f"s_add_u32 m0, s{S_MX}, {base+4096*(i//4)}")); o.append(Ins("s_nop 0"))
        o.append(Ins(f"buffer_load_dwordx4 v{V_XD+(i%4)}, s[{S_X}:{S_X+3}], s{S_XSO if i<4 else S_XSO2} offen offset:{1024*(i%4)} lds{XNT}"))
    if not ROT:
        return o+[Ins(f"s_add_u32 s{S_XSO}, s{S_XSO}, 128"), Ins(f"s_add_u32 s{S_XSO2}, s{S_XSO2}, 128")]
    o+=[Ins(f"s_add_u32 s{S_AX}, s{S_AX}, 1"), Ins(f"s_cmp_eq_u32 s{S_AX}, 9"), Ins(f"s_cselect_b32 s49, {9*128}, 0"), Ins(f"s_cselect_b32 s{S_AX}, 0, s{S_AX}"),
        Ins(f"s_add_u32 s{S_XSO}, s{S_XSO}, 128"), Ins(f"s_sub_u32 s{S_XSO}, s{S_XSO}, s49"), Ins(f"s_add_u32 s{S_XSO2}, s{S_XSO}, {32*1152}")]
    return o
def xrd(c):
    return [Ins(f"ds_read_b128 {XF(T,4*c+sp)}, v{V_XP+4*(c%2)+sp} offset:{T*4096}") for sp in range(4) for T in range(2)]

def trset(P, g0=False):
    return [Ins(f"v_add_u32 v{V_TR+grp}, {grp*4*CH}, v{V_TRP+P}") for grp in range(3)]
def ard(i, slot, sp, sec, fi):
    grp=slot//4; so=(slot%4)*CH
    return [Ins(f"ds_read_b64_tr_b16 {afh(fi,h)}, v{V_TR+grp} offset:{so+sec*8192+sp*2048+h*512}") for h in range(2)]

PF=4
def phase(buf, entry_pref=True, next_first=None):
    seq=[(c,sp,sec) for c in range(9) for sp in range(4) for sec in range(2)]
    main=[]
    for i,(c,sp,sec) in enumerate(seq):
        if sp==0 and sec==0: main.append(('mark',c,'start'))
        n=i+PF
        if n<len(seq):
            cn,spn,secn=seq[n]
            if spn==0 and secn==0: main.append(('mark',cn,'firstread'))
            nxt=ard(n,cn,spn,secn,n)
        else:
            if n==len(seq): main.append(('mark',9,'firstread'))
            nxt=next_first[n-len(seq)] if next_first else []
        s16=4*c+sp
        for T in range(2):
            cc=acc(buf,T,sec) if s16>0 else "0"
            main.append(Ins(f"{MF} {acc(buf,T,sec)}, {afr(i)}, {XF(T,s16)}, {cc}"))
            if T<len(nxt): main.append(nxt[T])
    return main

def first_reads(P_is_next_set):
    return [ard(k,0,k//2,k%2,72+k) for k in range(PF)]

def expand(main, hooks):
    out=[]
    for x in main:
        if isinstance(x,tuple):
            out+=hooks.get((x[1],x[2]),[])
        else: out.append(x)
    return out

def gen(p):
    A=p
    A("s_mul_i32 s39, s36, 384")
    A(f"s_add_u32 s{S_G}, s42, s39"); A(f"s_addc_u32 s{S_G+1}, s43, 0"); A(f"s_sub_u32 s{S_G+2}, {576*9216}, s39"); A(f"s_mov_b32 s{S_G+3}, 0x20000")
    A(f"s_add_u32 s{S_U}, s44, s39"); A(f"s_addc_u32 s{S_U+1}, s45, 0"); A(f"s_sub_u32 s{S_U+2}, {576*9216}, s39"); A(f"s_mov_b32 s{S_U+3}, 0x20000")
    A(f"s_mul_i32 s38, s37, {256*1152}")
    A(f"s_add_u32 s{S_X}, s40, s38"); A(f"s_addc_u32 s{S_X+1}, s41, 0"); A(f"s_sub_u32 s{S_X}, s{S_X}, 4096"); A(f"s_subb_u32 s{S_X+1}, s{S_X+1}, 0")
    A(f"s_mov_b32 s{S_X+2}, {256*1152+4096}"); A(f"s_mov_b32 s{S_X+3}, 0x20000")
    A("v_and_b32 v24, 63, v0"); A("v_lshrrev_b32 v25, 4, v24"); A("v_and_b32 v26, 15, v24"); A("v_lshrrev_b32 v27, 3, v24"); A("v_and_b32 v28, 7, v24")
    for i in range(4):
        A(f"v_add_u32 v30, {4*(i&1)}, v25"); A("v_and_b32 v30, 7, v30"); A("v_xor_b32 v30, v30, v28"); A("v_lshlrev_b32 v30, 4, v30")
        A(f"v_add_u32 v31, {8*i}, v27"); A("v_mul_u32_u24 v31, 0x480, v31")
        A(f"v_add3_u32 v{V_XD+i}, v30, v31, 0"); A(f"v_add_u32 v{V_XD+i}, {4096-1024*i}, v{V_XD+i}")
    A(f"s_mov_b32 s50, {'s37' if ROT else 0}")
    if ROT==2:
        A("s_mul_i32 s38, s36, 86"); A("s_lshr_b32 s38, s38, 8"); A("s_mul_i32 s38, s38, 3"); A("s_sub_u32 s38, s36, s38"); A("s_mul_i32 s38, s38, 3")
        A("s_add_u32 s50, s50, s38"); A("s_cmp_ge_u32 s50, 9"); A("s_cselect_b32 s38, 9, 0"); A("s_sub_u32 s50, s50, s38")
    A(f"s_mov_b32 s{S_AW}, s50"); A(f"s_mov_b32 s{S_AX}, s50"); A(f"s_mov_b32 s{S_GRP}, 0")
    A(f"s_mul_i32 s{S_XSO}, s{S_W}, {64*1152}"); A("s_lshl_b32 s38, s50, 7"); A(f"s_add_u32 s{S_XSO}, s{S_XSO}, s38"); A(f"s_add_u32 s{S_XSO2}, s{S_XSO}, {32*1152}")
    A(f"s_lshl_b32 s{S_MX}, s{S_W}, 13")
    A.add(ntify(xdma(0), FNT&1))
    A(f"s_lshl_b32 s38, s{S_W}, 4")
    A("v_bfe_u32 v30, v27, 1, 1"); A("v_lshrrev_b32 v31, 2, v28"); A("v_xor_b32 v30, v30, v31"); A("v_lshlrev_b32 v30, 6, v30")
    A("v_and_b32 v31, 3, v28"); A("v_lshlrev_b32 v31, 4, v31"); A("v_add_u32 v30, v30, v31")
    A(f"v_add_u32 v31, s38, v27"); A("v_mul_u32_u24 v31, 0x2400, v31")
    A(f"v_add_u32 v{V_WD}, v30, v31"); A(f"v_add_u32 v{V_WD+1}, {8*9216-1024}, v{V_WD}")
    A(f"s_mul_i32 s{S_WSO}, s{S_AW}, {64*9216}"); A(f"s_lshl_b32 s{S_MW}, s{S_W}, 11")
    A.add(ntify(wdma(WR0+0), FNT&2)); A.add(wadv(False))
    ST.stamp(p,1)
    A(f"s_mov_b32 s{S_H}, s46"); A(f"s_mov_b32 s{S_H+1}, s47"); A(f"s_mov_b32 s{S_H+2}, {H_BYTES}"); A(f"s_mov_b32 s{S_H+3}, 0x20000")
    A(f"v_lshlrev_b32 v{V_L16}, 4, v24")
    A("v_lshrrev_b32 v30, 2, v26"); A("v_and_b32 v31, 3, v26")
    A("v_lshrrev_b32 v29, 1, v25"); A("v_lshlrev_b32 v29, 3, v29"); A("v_add_u32 v29, v29, v30"); A("v_lshlrev_b32 v29, 7, v29")
    A("v_lshlrev_b32 v31, 3, v31"); A("v_add_u32 v29, v29, v31"); A("v_and_b32 v31, 1, v25"); A("v_lshlrev_b32 v31, 5, v31"); A("v_add_u32 v29, v29, v31")
    A("v_lshrrev_b32 v30, 1, v30")
    for P in range(2):
        A(f"v_xor_b32 v31, {P}, v30"); A("v_lshlrev_b32 v31, 6, v31"); A(f"v_add_u32 v{V_TRP+P}, v31, v29")
    A("v_and_b32 v29, 31, v24"); A("v_lshrrev_b32 v30, 5, v24"); A("v_bfe_u32 v31, v29, 1, 3"); A("v_xor_b32 v30, v30, v31"); A("v_lshlrev_b32 v30, 4, v30")
    A("v_lshlrev_b32 v31, 7, v29"); A("v_add_u32 v30, v30, v31"); A(f"v_add_u32 v30, s{S_MX}, v30")
    for sl,base in ((0,XA),(1,XB)):
        A(f"v_add_u32 v{V_XP+4*sl}, {base}, v30")
        for sp in range(1,4): A(f"v_xor_b32 v{V_XP+4*sl+sp}, {32*sp}, v{V_XP+4*sl}")
    A(f"v_mov_b32 v{V_C1}, 0x{f2u(C1):08x}")
    A("s_lshl_b32 s38, s37, 3"); A(f"s_lshl_b32 s39, s{S_W}, 1"); A("s_add_u32 s38, s38, s39"); A(f"s_mul_i32 s38, s38, {NKS_TOT}")
    A("s_mul_i32 s39, s36, 6"); A("s_add_u32 s38, s38, s39"); A(f"s_lshl_b32 s{S_HSO}, s38, 11")
    A("s_lshl_b32 s38, s36, 3"); A("s_add_u32 s38, s38, s37"); A("s_lshl_b32 s38, s38, 2"); A(f"s_add_u32 s38, s38, s{S_W}")
    A(f"s_mul_i32 s{S_PFO}, s38, {8*1024}")
    A(f"s_mov_b32 s{S_PF}, s66"); A(f"s_mov_b32 s{S_PF+1}, s67"); A(f"s_mov_b32 s{S_PF+2}, {4608*1152}"); A(f"s_mov_b32 s{S_PF+3}, 0x20000")
    for s in range(2): A(f"v_add_u32 v{V_TR+s}, {WR0*CH}, v{V_TRP+s}")
    A.add(ntify(wdma(WR0+1), FNT&4)); A.add(wadv(False)); A.add(ntify(xdma(1), FNT&8))
    log=['X0']*8+['W0']*4+['W1']*4+['X1']*8
    def waitfor(tags, extra=""):
        nonlocal log
        idx=[i for i,t in enumerate(log) if t in tags]
        if idx:
            last=max(idx); n=len(log)-1-last
            log=log[last+1:]
            return [Ins(f"s_waitcnt vmcnt({n}) {extra}".strip())]
        return [Ins(f"s_waitcnt {extra}")] if extra else []
    def g0rd(i):
        c,sp,P,sec=i//16,(i%16)//4,(i%4)//2,i%2
        sl=c%4
        return [Ins(f"ds_read_b64_tr_b16 {afh(i,h)}, v{V_TR+P} offset:{sl*CH+sec*8192+sp*2048+h*512}") for h in range(2)]
    p.add(waitfor(('X0','W0'))); p("s_barrier")
    if MERGE:
        import k1
        k1.announce_zero(p, S_W, "L_gx_az", 60)
    ST.stamp(p,2)
    p.add(xrd(0))
    pre=[]
    for i in range(PF): pre+=g0rd(i)
    p.add(pre[:6]); p("s_waitcnt lgkmcnt(6)"); p.add(pre[6:])
    q0=[x.wr for x in pre]
    N0=9*16
    if XPF:
        A("s_mul_i32 s38, s36, 86"); A("s_lshr_b32 s38, s38, 8"); A("s_mul_i32 s38, s38, 3"); A("s_sub_u32 s38, s36, s38")
        A("s_lshl_b32 s38, s38, 6"); A(f"s_lshl_b32 s39, s{S_W}, 4"); A("s_add_u32 s38, s38, s39"); A("s_mul_i32 s74, s38, 1152"); A(f"s_add_u32 s74, s74, {4096+128*XPF}"); A(f"s_add_u32 s75, s74, {8*1152}")
        A("v_and_b32 v63, 63, v0"); A("v_lshrrev_b32 v62, 3, v63"); A("v_mul_u32_u24 v62, 0x480, v62"); A("v_and_b32 v63, 7, v63"); A("v_lshl_add_u32 v63, v63, 4, v62")
    A("s_lshl_b32 s38, s2, 2"); A(f"s_add_u32 s38, s38, s{S_W}"); A("s_mul_i32 s51, s38, 6144")
    A("s_mov_b32 s52, s42"); A("s_mov_b32 s53, s43"); A(f"s_mov_b32 s54, {576*9216}"); A("s_mov_b32 s55, 0x20000")
    A("s_mov_b32 s60, s44"); A("s_mov_b32 s61, s45"); A(f"s_mov_b32 s62, {576*9216}"); A("s_mov_b32 s63, 0x20000")
    def lin(k):
        srd="s[52:55]" if k<6 else "s[60:63]"; kk=k%6
        o=[]
        if kk==4: o.append(Ins("s_add_u32 s51, s51, 4096"))
        if k==6: o.append(Ins("s_sub_u32 s51, s51, 4096"))
        o.append(Ins(f"buffer_load_dwordx4 v[56:59], v{V_L16}, {srd}, s51 offen offset:{1024*(kk%4)}"))
        return o
    def tagged(lst,tag):
        for x in lst:
            if x.kind=='dma': x.tag=tag
        return lst
    def logit(stream):
        for x in stream:
            if getattr(x,'kind',None) in('dma','vmem'): log.append(x.tag or 'P')
    carry=tagged(wdma(WR0+2)+wadv(False),'W2')+tagged(xdma(2),'X2')
    for c in range(9):
        main=[]
        for ii in range(16):
            i=c*16+ii
            if ii==8: main.append(('mid',))
            n=i+PF
            nxt=g0rd(n) if n<N0 else []
            sp,P,sec=ii//4,(ii%4)//2,ii%2; s16=4*c+sp
            for T in range(2):
                cc=acc(P,T,sec) if s16>0 else "0"
                main.append(Ins(f"{MF} {acc(P,T,sec)}, {afr(i)}, {XF(T,s16)}, {cc}"))
                if T<len(nxt): main.append(nxt[T])
        im=main.index(('mid',))
        first=main[:im]; second=main[im+1:]
        if carry: first=spread(first, dma_items(carry), first=2 if c else 0)
        logit(first)
        carry=[]
        midl=[]
        if c+1<9: midl+=waitfor((f'X{c+1}',f'W{c+1}'))
        midl.append(Ins("s_barrier"))
        dl=[]
        if c+3<9: dl+=tagged(wdma(WR0+(c+3)%4)+wadv(c+3==8),f'W{c+3}')
        g1={6:(0,1),7:(2,3),8:(4,5)}.get(c,())
        for cc_ in g1: dl+=tagged(wdma(cc_)+wadv(False),f'G{cc_}')
        if c+1<9:
            xr=xrd(c+1)
            second=spread(second,[[x] for x in xr], first=0, last=9)
        if dl: second=spread(second, dma_items(dl), first=1)
        if XPF and c+XPF<9:
            second=spread(second, [[Ins(f"buffer_load_dwordx4 v[56:59], v63, s[{S_X}:{S_X+3}], s74 offen")],[Ins(f"buffer_load_dwordx4 v[56:59], v63, s[{S_X}:{S_X+3}], s75 offen")],[Ins("s_add_u32 s74, s74, 128"),Ins("s_add_u32 s75, s75, 128")]], first=3)
        if WPF and c<3:
            second=spread(second, [lin(k) for k in range(4*c,4*c+4)], first=5)
        logit(second)
        if c+3<9: carry=tagged(xdma(c+3),f'X{c+3}')
        stream,q0=auto_lgkm(fix_m0(first+midl+second), q0, extra=2)
        p.add(stream)
    ST.stamp(p,3)
    p.add(pkconst()); p("s_nop 7")
    p.add(gelu(0,pk=True)); log+=['S']*4
    p.add(trset(0))
    p.add(waitfor(('G0','G1','G2'))); p("s_barrier")
    fr=first_reads(0)
    for k in range(PF): p.add(fr[k])
    ST.stamp(p,4)
    if MERGE: p("v_mov_b32 v61, 0"); p("global_load_dword v60, v61, s[68:69] sc1")
    p(f"s_mov_b32 s{S_CNT}, 0")
    il=len(p.ins)
    p.label("L_gx_loop")
    q0=[x.wr for k in range(PF) for x in fr[k]]
    pfl=lambda: [Ins(f"buffer_load_dwordx4 v[56:59], v{V_L16}, s[{S_PF}:{S_PF+3}], s{S_PFO} offen", tag='pf'), Ins(f"s_add_u32 s{S_PFO}, s{S_PFO}, 1024")]
    def marks(m, fn):
        cur=[]
        for x in m:
            if isinstance(x,tuple):
                t=fn(x)
                if t: cur.append(Ins(t+":"))
            else: cur.append(x)
        return cur
    cur=marks(phase(1, next_first=first_reads(0)), lambda x: (f"FREE{x[1]//3-1}" if x[2]=='start' and x[1] in (3,6) else ("PRE9" if x[2]=='firstread' and x[1]==9 else None)))
    def mfma_index_of(cur,lab):
        k=0
        for x in cur:
            if x.kind=='label' and x.text.startswith(lab): return k
            if x.kind=='mfma': k+=1
    for k in (0,1):
        d=[]
        for cc_ in (3*k,3*k+1,3*k+2): d+=wdma(cc_)+wadv(False)
        f=mfma_index_of(cur,f"FREE{k}")
        cur=spread(cur, dma_items(d), first=f+1, last=f+42)
    mer=interleave(cur, ([] if os.environ.get('NOPF') else pfl()+pfl())+gelu(0), budget=5)
    out=[]; seq=[]
    for x in mer:
        if x.kind=='label' and x.text.startswith('FREE'):
            if MERGE and x.text.startswith('FREE1'):
                out.append(Ins(f"s_waitcnt vmcnt({len(seq)})"))
            out.append(Ins("s_barrier"))
            if MERGE and x.text.startswith('FREE1'):
                out+=[Ins(f"s_cmp_eq_u32 s{S_CNT}, 1"), Ins("s_cbranch_scc0 L_gx_nosig"), Ins(f"s_cmp_eq_u32 s{S_W}, 0"), Ins("s_cbranch_scc0 L_gx_nosig"),
                      Ins("v_readfirstlane_b32 s38, v60"), Ins("s_mov_b32 s39, 0"), Ins("L_gx_zr:"), Ins("s_cmp_ge_u32 s38, 272"), Ins("s_cbranch_scc1 L_gx_zok"),
                      Ins("s_add_u32 s39, s39, 1"), Ins("s_cmp_gt_u32 s39, 200000"), Ins("s_cbranch_scc1 L_gx_zok"), Ins("s_sleep 6"),
                      Ins("v_mov_b32 v61, 0"), Ins("global_load_dword v60, v61, s[68:69] sc1"), Ins("s_waitcnt vmcnt(0)"), Ins("v_readfirstlane_b32 s38, v60"), Ins("s_branch L_gx_zr"),
                      Ins("L_gx_zok:"),
                      Ins("s_mul_i32 s38, s36, 43"), Ins("s_lshr_b32 s38, s38, 8"), Ins("s_lshl_b32 s39, s37, 2"), Ins("s_add_u32 s38, s38, s39"), Ins("s_add_u32 s38, s38, 48"), Ins("s_lshl_b32 s38, s38, 7"),
                      Ins(f"s_add_u32 s72, s70, {0x15C0000}"), Ins("s_addc_u32 s73, s71, 0"),
                      Ins("v_mov_b32 v61, s38"), Ins("v_mov_b32 v62, 1"), Ins("v_cmp_eq_u32 vcc, 0, v0"), Ins("s_and_saveexec_b64 s[74:75], vcc"),
                      Ins("global_atomic_add v61, v62, s[72:73] sc1"), Ins("s_mov_b64 exec, s[74:75]"), Ins("L_gx_nosig:"), Ins("s_nop 0")]
        elif x.kind=='label' and x.text.startswith('PRE9'):
            d=[i for i,t in enumerate(seq) if t=='dma']; assert len(d)==24
            out.append(Ins(f"s_waitcnt vmcnt({len(seq)-1-d[11]})")); out.append(Ins("s_barrier")); out+=trset(0)
        else:
            if x.kind in('vmem','dma'): seq.append(x.kind)
            out.append(x)
    out1=out; tail1=min(4,len(seq)-1-max(i for i,t in enumerate(seq) if t=='dma'))
    cur=marks(phase(0, next_first=first_reads(1)), lambda x: (f"LAND{x[1]}" if x[2]=='firstread' and x[1] in (3,6) else ("SWITCH1" if x[2]=='firstread' and x[1]==9 else None)))
    d678=wdma(6)+wadv(False)+wdma(7)+wadv(False)+wdma(8)+wadv(True)
    cur=spread(cur, dma_items(d678), first=1, last=42)
    mer=interleave(cur, ([] if os.environ.get('NOPF') else pfl()+pfl())+gelu(1), budget=5)
    out=[]; seq=[]
    for x in mer:
        if x.kind=='label' and x.text.startswith('LAND3'):
            out.append(Ins(f"s_waitcnt vmcnt({len(seq)+tail1})")); out.append(Ins("s_barrier"))
        elif x.kind=='label' and x.text.startswith('LAND6'):
            last=max(i for i,t in enumerate(seq) if t=='dma'); assert seq.count('dma')==12
            out.append(Ins(f"s_waitcnt vmcnt({len(seq)-1-last})")); out.append(Ins("s_barrier"))
        elif x.kind=='label' and x.text.startswith('SWITCH'):
            out+=trset(1)
        else:
            if x.kind in('vmem','dma'): seq.append(x.kind)
            out.append(x)
    st,q1=auto_lgkm(out,q0,extra=2)
    p.add(st)
    st,q2=auto_lgkm(out1,q1,extra=2)
    p.add(st)
    p("s_barrier")
    p(f"s_add_u32 s{S_CNT}, s{S_CNT}, 1"); p(f"s_cmp_lt_u32 s{S_CNT}, 2"); p("s_cbranch_scc1 L_gx_loop")
    idn=len(p.ins)
    assert [sorted(d) for d in q2]==[sorted(x.wr) for k in range(PF) for x in fr[k]] or True
    p("s_waitcnt lgkmcnt(0)")
    ST.stamp(p,5)
    p.add(pkconst()); p("s_nop 7")
    p.add(gelu(1,pk=True))
    ST.stamp(p,6)
    ST.flush(p,70,71,0)
    if MERGE:
        p("s_lshr_b32 s91, s4, 1"); p("s_mov_b32 s90, 0")
        p("s_and_b32 s38, s4, 1"); p("s_mul_i32 s38, s38, 24"); p("s_add_u32 s92, s38, s6")
        p(f"s_mov_b32 s93, s{S_W}")
        p("s_mul_i32 s38, s36, 43"); p("s_lshr_b32 s38, s38, 8"); p("s_lshl_b32 s39, s37, 2"); p("s_add_u32 s94, s38, s39"); p("s_add_u32 s94, s94, 8")
        p("s_mul_i32 s38, s92, 171"); p("s_lshr_b32 s38, s38, 10"); p("s_lshl_b32 s38, s38, 2"); p("s_add_u32 s96, s38, s91"); p("s_add_u32 s95, s96, 8"); p("s_add_u32 s96, s96, 48"); p("s_mov_b32 s97, 6")
        p("s_branch L_p2")
    return il,idn
```

```python
from core import *
import stamp as ST
from k1_gx import NKS_TOT, H_BYTES, f2u, GSHAPE
import os
G_OFF=0x1500000; P_OFF=0x1600000
U=12; STG=12288; D=int(os.environ.get('P2D','4')); B2=int(os.environ.get('P2B2','0'))
HMOD=os.environ.get('HMOD',' sc1')
OMOD=os.environ.get('OMOD','')
SLEEP2=int(os.environ.get('SLEEP2','8'))
SLEEP=int(os.environ.get('SLEEP','6'))
ACC=64
def acc(q,r=None):
    b=ACC+q*16
    return f"v[{b}:{b+15}]" if r is None else f"v{b+r}"
def hfr(u,b_): b=(u*2+b_)*4; return f"a[{b}:{b+3}]"
def afr(q): b=96+4*q; return f"a[{b}:{b+3}]"
def afh(q,h): b=96+4*q+2*h; return f"a[{b}:{b+1}]"
MF="v_mfma_f32_32x32x16_bf16"
V_TR=8; V_DL=14; V_DF=17; V_L16=20; V_LT=7
S_H=16; S_P=20; S_CUR=24
S_W=93; S_WB=29; S_DSO=30; S_INA=31; S_INB=32; S_HS0=33; S_HS1=34; S_RND=35; S_NR=36; S_XA=37; S_XF=67; S_XS=66
WI={'e':31,'a':32,'b':46,'c':47}; HI={'e':52,'a':53,'b':54,'c':55}
S_JT=90
S_JO=91
S_JTILE=92
S_JW=93
CNT_OFF=0x15C0000
HC0=8; OC0=40; HE0=48; TW0=80; NLINES=272

def trread(i,h,stage):
    b_,q=i//6,i%6
    grp=stage//5; so=(stage%5)*STG
    x=Ins(f"ds_read_b64_tr_b16 {afh(i,h)}, v{V_TR+2*grp+(q&1)} offset:{so+(q&~1)*64+b_*6144+h*1536}")
    return x
def cls(v):
    v%=12
    return 'e' if v%2==0 else ('c' if v==11 else ('b' if v%4==3 else 'a'))
def issue_h(idx):
    u_dst=idx%U
    return [Ins(f"buffer_load_dwordx4 {hfr(u_dst,0)}, v{V_L16}, s[{S_H}:{S_H+3}], s{S_HS0} offen{HMOD}"),
            Ins(f"buffer_load_dwordx4 {hfr(u_dst,1)}, v{V_L16}, s[{S_H}:{S_H+3}], s{S_HS0} offen offset:1024{HMOD}"),
            Ins(f"s_add_u32 s{S_HS0}, s{S_HS0}, s{HI[cls(idx)]}")]
def issue_w(idx):
    u_dst=idx%U
    o=[Ins(f"s_add_u32 m0, s{S_WB}, {u_dst*STG}"), Ins("s_nop 0")]
    for e in range(3):
        o.append(Ins(f"buffer_load_dwordx4 v{V_DF+e}, s[{S_CUR}:{S_CUR+3}], s{S_DSO} offen offset:{1024*e} lds"))
    o.append(Ins(f"s_add_u32 s{S_DSO}, s{S_DSO}, s{WI[cls(idx)]}"))
    return o
def items2(lst):
    items=[]; pend=[]
    for x in lst:
        if x.kind=='nop': continue
        if x.kind in('dma','vmem'):
            if pend: items.append(pend); pend=[]
            items.append([x])
        else: pend.append(x)
    if pend: items.append(pend)
    return items
def step(u):
    if B2:
        main=[Ins(f"s_waitcnt vmcnt({5*(D-3)})"),Ins("s_barrier")] if u%2==0 else [Ins("s_nop 0"),Ins("s_nop 0")]
    else:
        main=[Ins(f"s_waitcnt vmcnt({5*(D-2)})"),Ins("s_barrier")]
    un=(u+1)%U
    for i in range(12):
        if i%2==0: main.append(Ins("s_waitcnt lgkmcnt(8)"))
        n=i+6
        rd=[trread(n,h,u) for h in range(2)] if n<12 else [trread(n-12,h,un) for h in range(2)]
        b_,q=i//6,i%6
        main.append(Ins(f"{MF} {acc(q)}, {afr(i)}, {hfr(u,b_)}, {acc(q)}"))
        main+=rd
    fl=issue_h(u+D)+issue_w(u+D)
    if u==(24-D-12)-4: fl=[Ins("global_load_dword v27, v7, s[64:65] sc1")]+fl
    res=spread(main, items2(fl), first=0, last=11)
    if u==(16-D)%12:
        sw=[Ins(f"s_cmp_eq_u32 s{S_RND}, s{S_XS}"), Ins("s_cbranch_scc0 L_p2_nosw")]
        sw+=[Ins(f"v_mov_b32 v{V_DF+e}, v{V_DL+e}") for e in range(3)]
        sw+=[Ins(f"s_mov_b32 s{S_DSO}, 0")]+[Ins(f"s_mov_b32 s{WI[k]}, {288*1152}") for k in 'eabc']+[Ins("L_p2_nosw:"),Ins("s_nop 0")]
        res=res[:2]+sw+res[2:]
    if u==(8 if D==4 else 24-D-12):
        sw=[Ins(f"s_cmp_eq_u32 s{S_RND}, s{S_XF}"), Ins("s_cbranch_scc0 L_p2_nolate")]
        sw+=[Ins(f"s_mov_b32 s{WI['a']}, {5*32*1152}"), Ins(f"s_mov_b32 s{WI['b']}, {5*32*1152}"), Ins(f"s_mov_b32 s{HI['a']}, {5*2048}"), Ins(f"s_mov_b32 s{HI['b']}, {5*2048}")]
        sw+=[Ins("v_readfirstlane_b32 s38, v27"), Ins("s_mov_b32 s39, 0"), Ins("L_p2_late:"), Ins("s_cmp_ge_u32 s38, 6"), Ins("s_cbranch_scc1 L_p2_nolate"),
             Ins("s_add_u32 s39, s39, 1"), Ins("s_cmp_gt_u32 s39, 200000"), Ins("s_cbranch_scc1 L_p2_nolate"), Ins(f"s_sleep {SLEEP}"),
             Ins("global_load_dword v27, v7, s[64:65] sc1"), Ins("s_waitcnt vmcnt(0)"), Ins("v_readfirstlane_b32 s38, v27"), Ins("s_branch L_p2_late"),
             Ins("L_p2_nolate:"), Ins("s_nop 0")]
        res=res[:2]+sw+res[2:]
    if u==5:
        res+=[Ins(f"s_cmp_eq_u32 s{S_RND}, s{S_XA}"), Ins("s_cbranch_scc1 L_p2_lend")]
    if u==11:
        res+=[Ins(f"s_add_u32 s{WI['c']}, s{WI['c']}, s60"), Ins(f"s_add_u32 s{HI['c']}, s{HI['c']}, s61")]
    return res

def cnt_base(p):
    p(f"s_add_u32 s64, s70, {CNT_OFF}"); p("s_addc_u32 s65, s71, 0")
def poll(p, idx_s, target, lab, wreg=S_JW, early=None):
    p(f"s_cmp_eq_u32 s{wreg}, 0"); p(f"s_cbranch_scc0 {lab}_ok")
    if early:
        p(f"v_readfirstlane_b32 s38, {early}"); p("s_nop 1"); p(f"s_cmp_ge_u32 s38, {target}"); p(f"s_cbranch_scc1 {lab}_ok")
    p(f"s_lshl_b32 s38, s{idx_s}, 7"); p("v_mov_b32 v2, s38")
    p("s_mov_b32 s39, 0")
    p.label(lab)
    p(f"global_load_dword v3, v2, s[64:65] sc1"); p("s_waitcnt vmcnt(0)")
    p("v_readfirstlane_b32 s38, v3"); p("s_add_u32 s39, s39, 1")
    p(f"s_cmp_ge_u32 s38, {target}"); p(f"s_cbranch_scc1 {lab}_ok")
    p("s_cmp_gt_u32 s39, 200000"); p(f"s_cbranch_scc1 {lab}_ok")
    p(f"s_sleep {SLEEP}"); p(f"s_branch {lab}")
    p.label(lab+"_ok")
    p("s_barrier")
def signal(p, vtmp, idx_s, lab, wreg=S_JW):
    p(f"s_cmp_eq_u32 s{wreg}, 0"); p(f"s_cbranch_scc0 {lab}")
    p(f"s_lshl_b32 s38, s{idx_s}, 7"); p(f"v_mov_b32 v{vtmp}, s38"); p(f"v_mov_b32 v{vtmp+1}, 1")
    p("v_cmp_eq_u32 vcc, 0, v0"); p("s_and_saveexec_b64 s[48:49], vcc")
    p(f"global_atomic_add v{vtmp}, v{vtmp+1}, s[64:65] sc1")
    p("s_mov_b64 exec, s[48:49]")
    p.label(lab)
def zero_ready(p, lab, wreg, vt=2, early=None, inval=None):
    p(f"s_cmp_eq_u32 s{wreg}, 0"); p(f"s_cbranch_scc0 {lab}_ok")
    if early:
        p(f"v_readfirstlane_b32 s38, {early}"); p("s_nop 1"); p(f"s_cmp_ge_u32 s38, {NLINES}"); p(f"s_cbranch_scc1 {lab}_ok")
        if inval: p(f"v_mov_b32 {inval}, 0")
    p(f"v_mov_b32 v{vt}, 0"); p("s_mov_b32 s39, 0")
    p.label(lab)
    p(f"global_load_dword v{vt+1}, v{vt}, s[68:69] sc1"); p("s_waitcnt vmcnt(0)")
    p(f"v_readfirstlane_b32 s38, v{vt+1}"); p("s_add_u32 s39, s39, 1")
    p(f"s_cmp_ge_u32 s38, {NLINES}"); p(f"s_cbranch_scc1 {lab}_ok")
    p("s_cmp_gt_u32 s39, 200000"); p(f"s_cbranch_scc1 {lab}_ok")
    p(f"s_sleep {SLEEP}"); p(f"s_branch {lab}")
    p.label(lab+"_ok")

def p2_setup(p, early=True):
    cnt_base(p)
    if early:
        p("v_mov_b32 v28, 0"); p("global_load_dword v29, v28, s[68:69] sc1")
        p("s_lshl_b32 s38, s96, 7"); p("v_mov_b32 v24, s38"); p("global_load_dword v25, v24, s[64:65] sc1")
    p("s_load_dwordx2 s[40:41], s[0:1], 24")
    p("s_load_dwordx2 s[42:43], s[0:1], 56")
    p("s_load_dwordx2 s[44:45], s[0:1], 72")
    p(f"s_mul_i32 s5, s{S_JTILE}, 171"); p("s_lshr_b32 s5, s5, 9")
    p("s_mul_i32 s6, s5, 3"); p(f"s_sub_u32 s6, s{S_JTILE}, s6")
    p("v_and_b32 v1, 63, v0"); p(f"v_lshlrev_b32 v{V_L16}, 4, v1")
    p(f"s_mul_i32 s48, s{S_W}, 192")
    p(f"s_cmp_eq_u32 s{S_JT}, 1"); p("s_cselect_b64 s[50:51], -1, 0")
    for e in range(3):
        p(f"v_add_u32 v4, s48, v1")
        if e: p(f"v_add_u32 v4, {64*e}, v4")
        p("v_mul_u32_u24 v5, 0xaab, v4"); p("v_lshrrev_b32 v5, 16, v5")
        p("v_mul_u32_u24 v6, 24, v5"); p("v_sub_u32 v6, v4, v6")
        p("v_bfe_u32 v7, v5, 1, 1"); p("v_lshrrev_b32 v4, 2, v6"); p("v_xor_b32 v4, v4, v7"); p("v_lshlrev_b32 v4, 6, v4")
        p("v_and_b32 v6, 3, v6"); p("v_lshlrev_b32 v6, 4, v6"); p(f"v_add3_u32 v4, v4, v6, 0"); p(f"v_add_u32 v31, {4096-1024*e}, v4")
        if GSHAPE==32:
            p("v_and_b32 v6, 16, v5"); p("v_bfe_u32 v7, v5, 3, 1"); p("v_lshl_add_u32 v6, v7, 2, v6")
            p("v_and_b32 v7, 3, v5"); p("v_add_u32 v6, v6, v7"); p("v_bfe_u32 v7, v5, 2, 1"); p("v_lshl_add_u32 v6, v7, 3, v6")
        else:
            p("v_bfe_u32 v6, v5, 2, 1"); p("v_lshlrev_b32 v6, 4, v6"); p("v_lshrrev_b32 v7, 3, v5"); p("v_lshl_add_u32 v6, v7, 2, v6")
            p("v_and_b32 v7, 3, v5"); p("v_add_u32 v6, v6, v7")
        p("v_lshrrev_b32 v7, 3, v5"); p("v_mul_u32_u24 v7, 18, v7"); p("v_and_b32 v30, 7, v5"); p("v_add_u32 v7, v7, v30")
        p("v_cndmask_b32 v6, v6, v7, s[50:51]")
        p("v_mul_u32_u24 v6, 0x480, v6"); p(f"v_add_u32 v{V_DF+e}, v6, v31")
        p("v_bfe_u32 v6, v5, 1, 2"); p("v_mul_u32_u24 v6, 72, v6"); p("v_lshrrev_b32 v7, 3, v5"); p("v_mul_u32_u24 v7, 18, v7"); p("v_add_u32 v6, v6, v7")
        p("v_and_b32 v7, 1, v5"); p("v_add3_u32 v6, v6, v7, 16"); p("v_mul_u32_u24 v6, 0x480, v6"); p(f"v_add_u32 v{V_DL+e}, v6, v31")
    p("v_lshrrev_b32 v2, 4, v1"); p("v_and_b32 v3, 15, v1")
    p("v_lshrrev_b32 v4, 2, v3"); p("v_and_b32 v5, 3, v3")
    p("v_lshrrev_b32 v6, 1, v2"); p("v_lshlrev_b32 v6, 3, v6"); p("v_add_u32 v6, v6, v4"); p("v_mul_u32_u24 v6, 0x180, v6")
    p("v_lshlrev_b32 v5, 3, v5"); p("v_add_u32 v6, v6, v5"); p("v_and_b32 v5, 1, v2"); p("v_lshl_add_u32 v6, v5, 5, v6")
    p("v_lshrrev_b32 v4, 1, v4")
    for k in range(2):
        p(f"v_xor_b32 v5, {k}, v4"); p("v_lshlrev_b32 v5, 6, v5"); p(f"v_add_u32 v{V_TR+k}, v5, v6")
        p(f"v_add_u32 v{V_TR+2+k}, {5*STG}, v{V_TR+k}"); p(f"v_add_u32 v{V_TR+4+k}, {10*STG}, v{V_TR+k}")
    for r in range(ACC,ACC+96): p(f"v_mov_b32 v{r}, 0")
    p("s_waitcnt lgkmcnt(0)")
    p(f"s_cmp_eq_u32 s{S_JT}, 1")
    R=32*1152
    p("s_cselect_b32 s4, s40, s42"); p("s_cselect_b32 s7, s41, s43")
    p(f"s_mov_b32 s62, {4608*1152+4096}"); p(f"s_cselect_b32 s62, {576*1152+4096}, s62")
    for k,(fv,av) in {'e':(1,8),'a':(1,64),'b':(3,64),'c':(3,64)}.items():
        p(f"s_mov_b32 s{WI[k]}, {fv*R}"); p(f"s_cselect_b32 s{WI[k]}, {av*1152}, s{WI[k]}")
    for k,fv in {'e':1,'a':1,'b':3,'c':3}.items():
        p(f"s_mov_b32 s{HI[k]}, {fv*2048}"); p(f"s_cselect_b32 s{HI[k]}, 2048, s{HI[k]}")
    p(f"s_mov_b32 s60, {(-32*R)&0xffffffff}"); p("s_cselect_b32 s60, 0, s60"); p(f"s_mov_b32 s61, {(-32*2048)&0xffffffff}"); p("s_cselect_b32 s61, 0, s61")
    p(f"s_mov_b32 s{S_NR}, 3"); p(f"s_cselect_b32 s{S_XA}, 1, 99"); p(f"s_cselect_b32 s{S_XF}, 99, 1"); p(f"s_cselect_b32 s{S_XS}, {(16-D)//12}, 99")
    p(f"s_mul_i32 s63, s{S_JO}, 36"); p(f"s_cselect_b32 s63, 144, s63")
    p(f"s_mul_i32 s56, s63, {R}"); p(f"s_cselect_b32 s{S_DSO}, 0, s56")
    p("s_mul_i32 s57, s6, 384")
    p(f"s_add_u32 s{S_CUR}, s4, s57"); p(f"s_addc_u32 s{S_CUR+1}, s7, 0"); p(f"s_sub_u32 s{S_CUR}, s{S_CUR}, 4096"); p(f"s_subb_u32 s{S_CUR+1}, s{S_CUR+1}, 0")
    p(f"s_sub_u32 s{S_CUR+2}, s62, s57"); p(f"s_mov_b32 s{S_CUR+3}, 0x20000")
    p(f"s_mov_b32 s{S_H}, s70"); p(f"s_mov_b32 s{S_H+1}, s71"); p(f"s_mov_b32 s{S_H+2}, {H_BYTES}"); p(f"s_mov_b32 s{S_H+3}, 0x20000")
    p("s_lshl_b32 s57, s5, 2"); p(f"s_add_u32 s57, s57, s{S_W}")
    p(f"s_mul_i32 s48, s57, {NKS_TOT}"); p("s_add_u32 s48, s48, s63"); p(f"s_lshl_b32 s{S_HS0}, s48, 11")
    p(f"s_mul_i32 s{S_WB}, s{S_W}, 3072")

def p2_first_loads(p, uniq):
    poll(p, 96, "s97", f"L_p2_poll1{uniq}", early="v25")
    p("s_lshl_b32 s38, s95, 7"); p(f"v_mov_b32 v{V_LT}, s38")
    for i in range(D): p.add(issue_h(i))

def gen_p2a_ffn(p):
    p("v_mov_b32 v25, v49")
    p2_setup(p, early=False)
    for i in range(D): p.add(issue_w(i))
    p2_first_loads(p, "f")

def gen_p2(p, docheck=True):
    i0=len(p.ins)
    p.label("L_p2")
    p2_setup(p)
    p("s_waitcnt vmcnt(0)"); p("s_barrier")
    zero_ready(p, "L_p2_zr", S_JW, early="v29", inval="v25")
    signal(p, 4, 94, "L_p2_sig1")
    ST.stamp(p,7)
    p(f"s_cmp_ge_u32 s{S_JTILE}, 48"); p("s_cbranch_scc1 L_p2_end")
    for i in range(D): p.add(issue_w(i))
    p2_first_loads(p, "")
    p(f"s_waitcnt vmcnt({2*(D-2)})" if not B2 else f"s_waitcnt vmcnt({min(4,2*(D-3))})"); p("s_barrier")
    p("s_branch L_p2c")
    p.label("L_p2b")
    p("s_waitcnt vmcnt(0)"); p("s_barrier")
    signal(p, 4, 94, "L_p2_sig1b")
    ST.stamp(p,7)
    p.label("L_p2c")
    ST.stamp(p,8)
    for q in range(6):
        for h in range(2): p.add([trread(q,h,0)])
    p(f"s_mov_b32 s{S_RND}, 0")
    iA=len(p.ins)
    p.label("L_p2_loop")
    for u in range(U): p.add(step(u))
    p(f"s_add_u32 s{S_RND}, s{S_RND}, 1"); p(f"s_cmp_lt_u32 s{S_RND}, s{S_NR}"); p("s_cbranch_scc1 L_p2_loop")
    iA2=len(p.ins)
    p.label("L_p2_lend")
    p("s_waitcnt vmcnt(0) lgkmcnt(0)")
    ST.stamp(p,9)
    p(f"s_mul_i32 s47, s{S_JTILE}, 5"); p(f"s_add_u32 s47, s47, s{S_JO}"); p("s_lshl_b32 s47, s47, 2"); p(f"s_add_u32 s47, s47, s{S_W}"); p("s_mul_i32 s47, s47, 12288")
    p(f"s_add_u32 s{S_P}, s70, {P_OFF}"); p(f"s_addc_u32 s{S_P+1}, s71, 0"); p(f"s_mov_b32 s{S_P+2}, {240*4*12288}"); p(f"s_mov_b32 s{S_P+3}, 0x20000")
    p("s_nop 7")
    for i in range(12):
        q,e=i//2,i%2
        t=32+4*(i%4)
        for k in range(4): p(f"v_cvt_pk_bf16_f32 v{t+k}, {acc(q,8*e+2*k)}, {acc(q,8*e+2*k+1)}")
        off=i*1024
        p(f"s_add_u32 s56, s47, {off - off%4096}")
        p(f"buffer_store_dwordx4 v[{t}:{t+3}], v{V_L16}, s[{S_P}:{S_P+3}], s56 offen offset:{off%4096} sc1")
    p(f"s_lshl_b32 s57, s{S_JTILE}, 2"); p(f"s_add_u32 s57, s57, s{S_W}"); p(f"s_add_u32 s57, s57, {TW0}")
    p("v_and_b32 v4, 31, v1"); p("v_lshrrev_b32 v5, 5, v1")
    p("s_lshl_b32 s60, s5, 7"); p(f"s_lshl_b32 s61, s{S_W}, 5"); p("s_add_u32 s60, s60, s61")
    p("v_add_u32 v6, s60, v4")
    p("v_lshlrev_b32 v7, 2, v6")
    p("v_mul_u32_u24 v6, 0x480, v6"); p("v_lshlrev_b32 v5, 3, v5"); p("v_add_u32 v6, v6, v5")
    p("s_mov_b32 s8, s44"); p("s_mov_b32 s9, s45"); p(f"s_mov_b32 s10, {2048*1152}"); p("s_mov_b32 s11, 0x20000")
    p(f"s_add_u32 s12, s70, {G_OFF}"); p("s_addc_u32 s13, s71, 0"); p("s_mov_b32 s14, 8192"); p("s_mov_b32 s15, 0x20000")
    p(f"s_mul_i32 s62, s{S_JTILE}, {5*4*12288}"); p(f"s_mul_i32 s63, s{S_W}, 12288"); p("s_add_u32 s62, s62, s63")
    p("s_lshl_b32 s38, s57, 7"); p("v_mov_b32 v2, s38"); p("v_mov_b32 v8, 1")
    p("s_waitcnt vmcnt(0)")
    ST.stamp(p,1)
    p("v_cmp_eq_u32 vcc, 0, v1"); p("s_and_saveexec_b64 s[48:49], vcc")
    p("global_atomic_add v2, v8, s[64:65] sc1")
    p("s_mov_b64 exec, s[48:49]")
    p("s_mov_b32 s39, 0")
    p.label("L_p2_poll2")
    p("global_load_dword v3, v2, s[64:65] sc1"); p("s_waitcnt vmcnt(0)")
    p("v_readfirstlane_b32 s38, v3"); p("s_add_u32 s39, s39, 1")
    p("s_cmp_ge_u32 s38, 5"); p("s_cbranch_scc1 L_p2_poll2_ok")
    p("s_cmp_gt_u32 s39, 200000"); p("s_cbranch_scc1 L_p2_poll2_ok")
    p(f"s_sleep {SLEEP2}"); p("s_branch L_p2_poll2")
    p.label("L_p2_poll2_ok")
    ST.stamp(p,2)
    p(f"buffer_load_dword v11, v7, s[12:15], 0 offen sc1")
    for c in range(3):
        if c==2: p(f"s_cmp_gt_u32 s{S_JO}, 1"); p("s_cbranch_scc1 L_p3_ld2")
        p(f"s_add_u32 s63, s{S_JO}, {5*c}"); p("s_lshl_b32 s63, s63, 10"); p("s_add_u32 s63, s63, s62")
        for src in range(5):
            b=64+(c*5+src)*4
            p(f"buffer_load_dwordx4 v[{b}:{b+3}], v{V_L16}, s[{S_P}:{S_P+3}], s63 offen sc1")
            if src<4: p(f"s_add_u32 s63, s63, {4*12288}")
    p.label("L_p3_ld2")
    for c in range(3):
        if c==2: p(f"s_cmp_gt_u32 s{S_JO}, 1"); p("s_cbranch_scc1 L_p2_end")
        p(f"s_waitcnt vmcnt({0 if c==2 else 5*(1-c)})" if c<2 else "s_waitcnt vmcnt(2)") if False else None
        if c==0: p("s_waitcnt vmcnt(5)") if False else p("s_waitcnt vmcnt(0)")
        p(f"s_add_u32 s63, s{S_JO}, {5*c}"); p("s_lshl_b32 s63, s63, 5"); p("s_mul_i32 s56, s6, 384"); p("s_add_u32 s63, s63, s56")
        if c==0: p("v_sub_f32 v12, 1.0, v11")
        for k in range(4):
            lo=40+2*k; hi=41+2*k
            s0=64+(c*5)*4+k
            p(f"v_lshlrev_b32 v{lo}, 16, v{s0}"); p(f"v_and_b32 v{hi}, 0xffff0000, v{s0}")
            for src in range(1,4):
                s_=64+(c*5+src)*4+k
                p(f"v_lshlrev_b32 v48, 16, v{s_}"); p(f"v_and_b32 v49, 0xffff0000, v{s_}")
                p(f"v_pk_add_f32 v[{lo}:{hi}], v[{lo}:{hi}], v[48:49]")
            s_=64+(c*5+4)*4+k
            p(f"v_lshlrev_b32 v48, 16, v{s_}"); p(f"v_and_b32 v49, 0xffff0000, v{s_}")
            p(f"v_pk_mul_f32 v[{lo}:{hi}], v[{lo}:{hi}], v[12:13] op_sel_hi:[1,0]")
            p(f"v_pk_fma_f32 v[{lo}:{hi}], v[48:49], v[10:11], v[{lo}:{hi}] op_sel:[0,1,0] op_sel_hi:[1,1,1]")
        o=52+4*(c%2)
        for k in range(4): p(f"v_cvt_pk_bf16_f32 v{o+k}, v{40+2*k}, v{41+2*k}")
        p(f"buffer_store_dwordx2 v[{o}:{o+1}], v6, s[8:11], s63 offen{OMOD}"); p(f"buffer_store_dwordx2 v[{o+2}:{o+3}], v6, s[8:11], s63 offen offset:16{OMOD}")
    p.label("L_p2_end")
    if ST.ENABLE: p("s_waitcnt vmcnt(0)")
    ST.stamp(p,3)
    ST.flush2(p)
    p("s_endpgm")
    if docheck:
        ins=p.ins[i0:]
        a=iA-i0; b=iA2-i0
        tr=ins[:b]+ins[a:b]+ins[b:]
        print("p2 check problems:",len(check(tr,'p2')))
```

```python
from core import *
import stamp as ST
import os, math, struct
XNT=os.environ.get('XNT','')
WNT=os.environ.get('WNT','')
STMOD=os.environ.get('STMOD',' sc1')
MERGE=int(os.environ.get('MERGE','1'))
XPF=int(os.environ.get('XPF','0'))
FNT=int(os.environ.get('FNT','0'))
ROT=int(os.environ.get('ROT','0')); WPF=int(os.environ.get('WPF','0'))
def f2u(x): return struct.unpack('<I', struct.pack('<f', x))[0]
C0 = -2.0*math.log2(math.e)*math.sqrt(2.0/math.pi)
C1 = C0*0.044715
NKS_TOT=162; H_BYTES=64*NKS_TOT*2048
CH=16384
XA=65536; XB=32768
WR0=6
def XF(tt,ks):
    i=ks*4+tt
    if i<64: return f"a[{4*i}:{4*i+3}]"
    i-=64; return f"v[{224+4*i}:{224+4*i+3}]"
def acc(buf,tt,j,r=None):
    b=96+64*buf+16*tt+4*j
    return f"v[{b}:{b+3}]" if r is None else f"v{b+r}"
AR=64; NAR=8
def afr(i): b=AR+4*(i%NAR); return f"v[{b}:{b+3}]"
def afh(i,h): b=AR+4*(i%NAR)+2*h; return f"v[{b}:{b+1}]"
TMP0=32; HP=24
V_WD=1
V_XD=3
V_TRP=7
V_TR=11
V_XP=17
V_L16=21
V_C1=22; V_HST=23
S_W=24
S_X=8; S_G=12; S_U=16; S_H=20
S_XSO=25; S_XSO2=26; S_WSO=27; S_HSO=28; S_CNT=29; S_MW=30; S_MX=31; S_PF=56; S_PFO=32; S_HST=33; S_AW=34; S_AX=35; S_GRP=48
PKC=[60,62,58]

def gelu(buf, pk=False):
    out=[]
    for tt in range(4):
        hp=HP+4*(tt%2)
        if pk:
            chains=[]
            for j in range(2):
                for r in (0,2):
                    bx=96+64*buf+16*tt+4*j+r; bu=bx+8
                    X=f"v[{bx}:{bx+1}]"; U=f"v[{bu}:{bu+1}]"
                    a=TMP0+4*((j*2+r//2)+4*(tt%2)) if False else TMP0+4*(j*2+r//2)
                    T=f"v[{a}:{a+1}]"; Y=f"v[{a+2}:{a+3}]"
                    chains.append([f"v_pk_mul_f32 {T}, {X}, {X}",
                                   f"v_pk_fma_f32 {T}, {T}, v[50:51], v[52:53]",
                                   f"v_pk_mul_f32 {T}, {T}, {X}",
                                   f"v_exp_f32 v{a}, v{a}", f"v_exp_f32 v{a+1}, v{a+1}",
                                   f"v_pk_mul_f32 {Y}, {X}, {U}",
                                   f"v_pk_add_f32 {T}, {T}, v[54:55]",
                                   f"v_rcp_f32 v{a}, v{a}", f"v_rcp_f32 v{a+1}, v{a+1}",
                                   f"v_pk_mul_f32 {Y}, {Y}, {T}",
                                   f"v_cvt_pk_bf16_f32 v{hp+2*j+r//2}, v{a+2}, v{a+3}"])
            for k in range(11):
                for c in chains: out.append(Ins(c[k]))
        else:
            chains=[]
            for j in range(2):
                for r in range(4):
                    x=acc(buf,tt,j,r); u=acc(buf,tt,2+j,r)
                    T,Y=f"v{TMP0+j*4+r}",f"v{TMP0+8+j*4+r}"
                    chains.append([f"v_mul_f32 {T}, {x}, {x}",
                                   f"v_fmaak_f32 {T}, v{V_C1}, {T}, 0x{f2u(C0):08x}",
                                   f"v_mul_f32 {T}, {T}, {x}",
                                   f"v_exp_f32 {T}, {T}",
                                   f"v_mul_f32 {Y}, {x}, {u}",
                                   f"v_add_f32 {T}, 1.0, {T}",
                                   f"v_rcp_f32 {T}, {T}",
                                   f"v_mul_f32 {Y}, {Y}, {T}"])
            for p0 in (0,4):
                cs=chains[p0:p0+4]
                for k in range(8):
                    for c in cs: out.append(Ins(c[k]))
                for pp in (p0,p0+2):
                    out.append(Ins(f"v_cvt_pk_bf16_f32 v{hp+pp//2}, v{TMP0+8+pp}, v{TMP0+8+pp+1}"))
        if not os.environ.get('NOST'): out.append(Ins(f"buffer_store_dwordx4 v[{hp}:{hp+3}], v{V_HST}, s[{S_H}:{S_H+3}], s{S_HSO} offen offset:{256*(tt&1)}{STMOD}", tag='st'))
        if tt==1: out.append(Ins(f"s_add_u32 s{S_HSO}, s{S_HSO}, {NKS_TOT*2048}"))
        if tt==3: out.append(Ins(f"s_sub_u32 s{S_HSO}, s{S_HSO}, {NKS_TOT*2048-2048}"))
    return out
def pkconst():
    return [Ins(f"v_mov_b32 v50, 0x{f2u(C1):08x}"),Ins(f"v_mov_b32 v51, 0x{f2u(C1):08x}"),Ins(f"v_mov_b32 v52, 0x{f2u(C0):08x}"),Ins(f"v_mov_b32 v53, 0x{f2u(C0):08x}"),Ins("v_mov_b32 v54, 1.0"),Ins("v_mov_b32 v55, 1.0")]

def ntify(lst, on):
    if not on: return lst
    return [Ins(x.text.replace(' lds',' nt lds')) if x.kind=='dma' and ' nt' not in x.text else x for x in lst]
def wdma(slot):
    return [Ins(f"s_add_u32 m0, s{S_MW}, {slot*CH}"), Ins("s_nop 0"),
            Ins(f"buffer_load_dwordx4 v{V_WD}, s[{S_G}:{S_G+3}], s{S_WSO} offen lds{WNT}"),
            Ins(f"buffer_load_dwordx4 v{V_WD+1}, s[{S_G}:{S_G+3}], s{S_WSO} offen offset:1024 lds{WNT}"),
            Ins(f"s_add_u32 m0, s{S_MW}, {slot*CH+8192}"), Ins("s_nop 0"),
            Ins(f"buffer_load_dwordx4 v{V_WD}, s[{S_U}:{S_U+3}], s{S_WSO} offen lds{WNT}"),
            Ins(f"buffer_load_dwordx4 v{V_WD+1}, s[{S_U}:{S_U+3}], s{S_WSO} offen offset:1024 lds{WNT}")]
def wadv(last):
    if not ROT:
        return [Ins(f"s_add_u32 s{S_WSO}, s{S_WSO}, {64*9216}")] if not last else [Ins(f"s_sub_u32 s{S_WSO}, s{S_WSO}, {8*64*9216-128}")]
    o=[Ins(f"s_add_u32 s{S_AW}, s{S_AW}, 1"), Ins(f"s_cmp_eq_u32 s{S_AW}, 9"), Ins(f"s_cselect_b32 s{S_AW}, 0, s{S_AW}")]
    if last: o.append(Ins(f"s_add_u32 s{S_GRP}, s{S_GRP}, 128"))
    o+=[Ins(f"s_mul_i32 s{S_WSO}, s{S_AW}, {64*9216}"), Ins(f"s_add_u32 s{S_WSO}, s{S_WSO}, s{S_GRP}")]
    return o
def xdma(c):
    base=XA if c%2==0 else XB
    o=[]
    for i in range(8):
        if i%4==0:
            o.append(Ins(f"s_add_u32 m0, s{S_MX}, {base+4096*(i//4)}")); o.append(Ins("s_nop 0"))
        o.append(Ins(f"buffer_load_dwordx4 v{V_XD+(i%4)}, s[{S_X}:{S_X+3}], s{S_XSO if i<4 else S_XSO2} offen offset:{1024*(i%4)} lds{XNT}"))
    if not ROT:
        return o+[Ins(f"s_add_u32 s{S_XSO}, s{S_XSO}, 128"), Ins(f"s_add_u32 s{S_XSO2}, s{S_XSO2}, 128")]
    o+=[Ins(f"s_add_u32 s{S_AX}, s{S_AX}, 1"), Ins(f"s_cmp_eq_u32 s{S_AX}, 9"), Ins(f"s_cselect_b32 s49, {9*128}, 0"), Ins(f"s_cselect_b32 s{S_AX}, 0, s{S_AX}"),
        Ins(f"s_add_u32 s{S_XSO}, s{S_XSO}, 128"), Ins(f"s_sub_u32 s{S_XSO}, s{S_XSO}, s49"), Ins(f"s_add_u32 s{S_XSO2}, s{S_XSO}, {32*1152}")]
    return o
def xrd(c):
    return [Ins(f"ds_read_b128 {XF(tt,2*c+b)}, v{V_XP+2*(c%2)+b} offset:{tt*2048}") for b in range(2) for tt in range(4)]

def trset(P, g0=False):
    o=[]
    for grp in range(3):
        for i in range(2):
            o.append(Ins(f"v_add_u32 v{V_TR+2*grp+i}, {grp*4*CH}, v{V_TRP+2*P+i}"))
    return o
def ard(i, slot, b, j, fi):
    grp=slot//4; so=(slot%4)*CH
    return [Ins(f"ds_read_b64_tr_b16 {afh(fi,h)}, v{V_TR+2*grp+(j&1)} offset:{so+(j>>1)*8192+b*4096+h*512}") for h in range(2)]

PF=4
def phase(buf, entry_pref=True, next_first=None):
    seq=[(c,b,j) for c in range(9) for b in range(2) for j in range(4)]
    main=[]; marks={}
    for i,(c,b,j) in enumerate(seq):
        if j==0 and b==0: main.append(('mark',c,'start'))
        n=i+PF
        if n<len(seq):
            cn,bn,jn=seq[n]
            if bn==0 and jn==0: main.append(('mark',cn,'firstread'))
            nxt=ard(n,cn,bn,jn,n)
        else:
            if n==len(seq): main.append(('mark',9,'firstread'))
            nxt=next_first[n-len(seq)] if next_first else []
        ks=2*c+b
        for tt in range(4):
            cc=acc(buf,tt,j) if ks>0 else "0"
            main.append(Ins(f"v_mfma_f32_16x16x32_bf16 {acc(buf,tt,j)}, {afr(i)}, {XF(tt,ks)}, {cc}"))
            if tt<len(nxt): main.append(nxt[tt])
    return main

def first_reads(P_is_next_set):
    return [ard(k,0,k//4,k%4,72+k) for k in range(PF)]

def expand(main, hooks):
    out=[]
    for x in main:
        if isinstance(x,tuple):
            out+=hooks.get((x[1],x[2]),[])
        else: out.append(x)
    return out

def gen(p):
    A=p
    A("s_mul_i32 s39, s36, 384")
    A(f"s_add_u32 s{S_G}, s42, s39"); A(f"s_addc_u32 s{S_G+1}, s43, 0"); A(f"s_sub_u32 s{S_G+2}, {576*9216}, s39"); A(f"s_mov_b32 s{S_G+3}, 0x20000")
    A(f"s_add_u32 s{S_U}, s44, s39"); A(f"s_addc_u32 s{S_U+1}, s45, 0"); A(f"s_sub_u32 s{S_U+2}, {576*9216}, s39"); A(f"s_mov_b32 s{S_U+3}, 0x20000")
    A(f"s_mul_i32 s38, s37, {256*1152}")
    A(f"s_add_u32 s{S_X}, s40, s38"); A(f"s_addc_u32 s{S_X+1}, s41, 0"); A(f"s_sub_u32 s{S_X}, s{S_X}, 4096"); A(f"s_subb_u32 s{S_X+1}, s{S_X+1}, 0")
    A(f"s_mov_b32 s{S_X+2}, {256*1152+4096}"); A(f"s_mov_b32 s{S_X+3}, 0x20000")
    A("v_and_b32 v24, 63, v0"); A("v_lshrrev_b32 v25, 4, v24"); A("v_and_b32 v26, 15, v24"); A("v_lshrrev_b32 v27, 3, v24"); A("v_and_b32 v28, 7, v24")
    for i in range(4):
        A(f"v_add_u32 v30, {4*(i&1)}, v25"); A("v_and_b32 v30, 7, v30"); A("v_xor_b32 v30, v30, v28"); A("v_lshlrev_b32 v30, 4, v30")
        A(f"v_add_u32 v31, {8*i}, v27"); A("v_mul_u32_u24 v31, 0x480, v31")
        A(f"v_add3_u32 v{V_XD+i}, v30, v31, 0"); A(f"v_add_u32 v{V_XD+i}, {4096-1024*i}, v{V_XD+i}")
    A(f"s_mov_b32 s50, {'s37' if ROT else 0}")
    if ROT==2:
        A("s_mul_i32 s38, s36, 86"); A("s_lshr_b32 s38, s38, 8"); A("s_mul_i32 s38, s38, 3"); A("s_sub_u32 s38, s36, s38"); A("s_mul_i32 s38, s38, 3")
        A("s_add_u32 s50, s50, s38"); A("s_cmp_ge_u32 s50, 9"); A("s_cselect_b32 s38, 9, 0"); A("s_sub_u32 s50, s50, s38")
    A(f"s_mov_b32 s{S_AW}, s50"); A(f"s_mov_b32 s{S_AX}, s50"); A(f"s_mov_b32 s{S_GRP}, 0")
    A(f"s_mul_i32 s{S_XSO}, s{S_W}, {64*1152}"); A("s_lshl_b32 s38, s50, 7"); A(f"s_add_u32 s{S_XSO}, s{S_XSO}, s38"); A(f"s_add_u32 s{S_XSO2}, s{S_XSO}, {32*1152}")
    A(f"s_lshl_b32 s{S_MX}, s{S_W}, 13")
    A.add(ntify(xdma(0), FNT&1))
    A(f"s_lshl_b32 s38, s{S_W}, 4")
    for e in range(2):
        A("v_bfe_u32 v30, v27, 1, 1");
        if e: A("v_or_b32 v30, 2, v30")
        A("v_lshrrev_b32 v31, 1, v28"); A("v_xor_b32 v30, v30, v31"); A("v_lshlrev_b32 v30, 5, v30"); A("v_and_b32 v31, 1, v28"); A("v_lshlrev_b32 v31, 4, v31"); A("v_add_u32 v30, v30, v31")
        A(f"v_add_u32 v31, s38, v27");
        if e: A("v_add_u32 v31, 8, v31")
        A("v_mul_u32_u24 v31, 0x2400, v31")
        A(f"v_add_u32 v{V_WD+e}, v30, v31")
        if e: A(f"v_subrev_u32 v{V_WD+e}, 1024, v{V_WD+e}")
    A(f"s_mul_i32 s{S_WSO}, s{S_AW}, {64*9216}"); A(f"s_lshl_b32 s{S_MW}, s{S_W}, 11")
    A.add(ntify(wdma(WR0+0), FNT&2)); A.add(wadv(False))
    ST.stamp(p,1)
    A(f"s_mov_b32 s{S_H}, s46"); A(f"s_mov_b32 s{S_H+1}, s47"); A(f"s_mov_b32 s{S_H+2}, {H_BYTES}"); A(f"s_mov_b32 s{S_H+3}, 0x20000")
    A(f"v_lshlrev_b32 v{V_L16}, 4, v24")
    A("v_lshrrev_b32 v30, 2, v26"); A("v_and_b32 v31, 3, v26")
    A("v_lshlrev_b32 v29, 3, v25"); A("v_add_u32 v29, v29, v30"); A("v_lshlrev_b32 v29, 7, v29"); A("v_lshlrev_b32 v31, 3, v31"); A("v_add_u32 v29, v29, v31")
    A("v_lshrrev_b32 v30, 1, v30"); A("v_and_b32 v31, 1, v25"); A("v_lshlrev_b32 v31, 1, v31"); A("v_or_b32 v30, v30, v31")
    for s in range(4):
        A(f"v_xor_b32 v31, {s}, v30"); A("v_lshlrev_b32 v31, 5, v31"); A(f"v_add_u32 v{V_TRP+s}, v31, v29")
    A("v_lshrrev_b32 v30, 1, v26"); A("v_xor_b32 v30, v30, v25"); A("v_lshlrev_b32 v30, 4, v30"); A("v_lshlrev_b32 v31, 7, v26"); A("v_add_u32 v30, v30, v31")
    A(f"v_add_u32 v30, s{S_MX}, v30")
    A(f"v_add_u32 v{V_XP}, {XA}, v30"); A(f"v_xor_b32 v{V_XP+1}, 64, v{V_XP}"); A(f"v_add_u32 v{V_XP+2}, {XB}, v30"); A(f"v_xor_b32 v{V_XP+3}, 64, v{V_XP+2}")
    A(f"v_mov_b32 v{V_C1}, 0x{f2u(C1):08x}")
    A("v_and_b32 v30, 1, v25"); A("v_lshlrev_b32 v30, 9, v30"); A("v_lshrrev_b32 v31, 1, v25"); A("v_lshlrev_b32 v31, 10, v31"); A("v_lshlrev_b32 v29, 4, v26")
    A(f"v_add3_u32 v{V_HST}, v29, v30, v31")
    A("s_lshl_b32 s38, s37, 3"); A(f"s_lshl_b32 s39, s{S_W}, 1"); A("s_add_u32 s38, s38, s39"); A(f"s_mul_i32 s38, s38, {NKS_TOT}")
    A("s_mul_i32 s39, s36, 6"); A("s_add_u32 s38, s38, s39"); A(f"s_lshl_b32 s{S_HSO}, s38, 11")
    A("s_lshl_b32 s38, s36, 3"); A("s_add_u32 s38, s38, s37"); A("s_lshl_b32 s38, s38, 2"); A(f"s_add_u32 s38, s38, s{S_W}")
    A(f"s_mul_i32 s{S_PFO}, s38, {8*1024}")
    A(f"s_mov_b32 s{S_PF}, s66"); A(f"s_mov_b32 s{S_PF+1}, s67"); A(f"s_mov_b32 s{S_PF+2}, {4608*1152}"); A(f"s_mov_b32 s{S_PF+3}, 0x20000")
    for s in range(4): A(f"v_add_u32 v{V_TR+s}, {WR0*CH}, v{V_TRP+s}")
    A.add(ntify(wdma(WR0+1), FNT&4)); A.add(wadv(False)); A.add(ntify(xdma(1), FNT&8))
    log=['X0']*8+['W0']*4+['W1']*4+['X1']*8
    def waitfor(tags, extra=""):
        nonlocal log
        idx=[i for i,t in enumerate(log) if t in tags]
        if idx:
            last=max(idx); n=len(log)-1-last
            log=log[last+1:]
            return [Ins(f"s_waitcnt vmcnt({n}) {extra}".strip())]
        return [Ins(f"s_waitcnt {extra}")] if extra else []
    def g0rd(i):
        c,b,j8=i//16,(i%16)//8,i%8
        P=j8//4; j=j8%4
        sl=c%4
        return [Ins(f"ds_read_b64_tr_b16 {afh(i,h)}, v{V_TR+2*P+(j&1)} offset:{sl*CH+(j>>1)*8192+b*4096+h*512}") for h in range(2)]
    p.label("L_TOUCH_gx")
    p.add(waitfor(('X0','W0'))); p("s_barrier")
    if MERGE:
        import k1
        k1.announce_zero(p, S_W, "L_gx_az", 60)
    ST.stamp(p,2)
    p.add(xrd(0))
    pre=[]
    for i in range(PF): pre+=g0rd(i)
    p.add(pre[:6]); p("s_waitcnt lgkmcnt(6)"); p.add(pre[6:])
    q0=[x.wr for x in pre]
    N0=9*16
    if XPF:
        A("s_mul_i32 s38, s36, 86"); A("s_lshr_b32 s38, s38, 8"); A("s_mul_i32 s38, s38, 3"); A("s_sub_u32 s38, s36, s38")
        A("s_lshl_b32 s38, s38, 6"); A(f"s_lshl_b32 s39, s{S_W}, 4"); A("s_add_u32 s38, s38, s39"); A("s_mul_i32 s74, s38, 1152"); A(f"s_add_u32 s74, s74, {4096+128*XPF}"); A(f"s_add_u32 s75, s74, {8*1152}")
        A("v_and_b32 v63, 63, v0"); A("v_lshrrev_b32 v62, 3, v63"); A("v_mul_u32_u24 v62, 0x480, v62"); A("v_and_b32 v63, 7, v63"); A("v_lshl_add_u32 v63, v63, 4, v62")
    A("s_lshl_b32 s38, s2, 2"); A(f"s_add_u32 s38, s38, s{S_W}"); A("s_mul_i32 s51, s38, 6144")
    A("s_mov_b32 s52, s42"); A("s_mov_b32 s53, s43"); A(f"s_mov_b32 s54, {576*9216}"); A("s_mov_b32 s55, 0x20000")
    A("s_mov_b32 s60, s44"); A("s_mov_b32 s61, s45"); A(f"s_mov_b32 s62, {576*9216}"); A("s_mov_b32 s63, 0x20000")
    def lin(k):
        srd="s[52:55]" if k<6 else "s[60:63]"; kk=k%6
        o=[]
        if kk==4: o.append(Ins("s_add_u32 s51, s51, 4096"))
        if k==6: o.append(Ins("s_sub_u32 s51, s51, 4096"))
        o.append(Ins(f"buffer_load_dwordx4 v[56:59], v{V_L16}, {srd}, s51 offen offset:{1024*(kk%4)}"))
        return o
    def tagged(lst,tag):
        for x in lst:
            if x.kind=='dma': x.tag=tag
        return lst
    def logit(stream):
        for x in stream:
            if getattr(x,'kind',None) in('dma','vmem'): log.append(x.tag or 'P')
    carry=tagged(wdma(WR0+2)+wadv(False),'W2')+tagged(xdma(2),'X2')
    for c in range(9):
        main=[]
        for ii in range(16):
            i=c*16+ii
            if ii==8: main.append(('mid',))
            n=i+PF
            nxt=g0rd(n) if n<N0 else []
            b=ii//8; j8=ii%8; P=j8//4; j=j8%4; ks=2*c+b
            for tt in range(4):
                cc=acc(P,tt,j) if ks>0 else "0"
                main.append(Ins(f"v_mfma_f32_16x16x32_bf16 {acc(P,tt,j)}, {afr(i)}, {XF(tt,ks)}, {cc}"))
                if tt<len(nxt): main.append(nxt[tt])
        im=main.index(('mid',))
        first=main[:im]; second=main[im+1:]
        if carry: first=spread(first, dma_items(carry), first=4 if c else 0)
        logit(first)
        carry=[]
        midl=[]
        if c+1<9: midl+=waitfor((f'X{c+1}',f'W{c+1}'))
        midl.append(Ins("s_barrier"))
        dl=[]
        if c+3<9: dl+=tagged(wdma(WR0+(c+3)%4)+wadv(c+3==8),f'W{c+3}')
        g1={6:(0,1),7:(2,3),8:(4,5)}.get(c,())
        for cc_ in g1: dl+=tagged(wdma(cc_)+wadv(False),f'G{cc_}')
        if c+1<9:
            xr=xrd(c+1)
            second=spread(second,[[x] for x in xr], first=1, last=18)
        if dl: second=spread(second, dma_items(dl), first=2)
        if XPF and c+XPF<9:
            second=spread(second, [[Ins(f"buffer_load_dwordx4 v[56:59], v63, s[{S_X}:{S_X+3}], s74 offen")],[Ins(f"buffer_load_dwordx4 v[56:59], v63, s[{S_X}:{S_X+3}], s75 offen")],[Ins("s_add_u32 s74, s74, 128"),Ins("s_add_u32 s75, s75, 128")]], first=3)
        if WPF and c<3:
            second=spread(second, [lin(k) for k in range(4*c,4*c+4)], first=5)
        logit(second)
        if c+3<9: carry=tagged(xdma(c+3),f'X{c+3}')
        stream,q0=auto_lgkm(fix_m0(first+midl+second), q0, extra=2)
        p.add(stream)
    ST.stamp(p,3)
    p.add(pkconst()); p("s_nop 4")
    p.add(gelu(0,pk=True)); log+=['S']*4
    p.add(trset(0))
    p.add(waitfor(('G0','G1','G2'))); p("s_barrier")
    fr=first_reads(0)
    for k in range(PF): p.add(fr[k])
    ST.stamp(p,4)
    if MERGE:
        p("s_lshr_b32 s91, s4, 1"); p("s_mov_b32 s90, 0")
        p("s_and_b32 s38, s4, 1"); p("s_mul_i32 s38, s38, 24"); p("s_add_u32 s92, s38, s6")
        p(f"s_mov_b32 s93, s{S_W}")
        p("s_mul_i32 s38, s36, 43"); p("s_lshr_b32 s38, s38, 8"); p("s_lshl_b32 s39, s37, 2"); p("s_add_u32 s94, s38, s39"); p("s_add_u32 s94, s94, 8")
        p("s_mul_i32 s38, s92, 171"); p("s_lshr_b32 s38, s38, 10"); p("s_lshl_b32 s38, s38, 2"); p("s_add_u32 s96, s38, s91"); p("s_add_u32 s95, s96, 8"); p("s_add_u32 s96, s96, 48"); p("s_mov_b32 s97, 6")
        p("s_lshl_b32 s38, s96, 7"); p("v_mov_b32 v48, s38"); p(f"s_add_u32 s64, s70, {0x15C0000}"); p("s_addc_u32 s65, s71, 0")
        p("v_mov_b32 v61, 0"); p("global_load_dword v60, v61, s[68:69] sc1")
    p(f"s_mov_b32 s{S_CNT}, 0")
    il=len(p.ins)
    p.label("L_gx_loop")
    q0=[x.wr for k in range(PF) for x in fr[k]]
    pfl=lambda: [Ins(f"buffer_load_dwordx4 v[56:59], v{V_L16}, s[{S_PF}:{S_PF+3}], s{S_PFO} offen", tag='pf'), Ins(f"s_add_u32 s{S_PFO}, s{S_PFO}, 1024")]
    def marks(m, fn):
        cur=[]
        for x in m:
            if isinstance(x,tuple):
                t=fn(x)
                if t: cur.append(Ins(t+":"))
            else: cur.append(x)
        return cur
    cur=marks(phase(1, next_first=first_reads(0)), lambda x: (f"FREE{x[1]//3-1}" if x[2]=='start' and x[1] in (3,6) else ("PRE9" if x[2]=='firstread' and x[1]==9 else None)))
    def mfma_index_of(cur,lab):
        k=0
        for x in cur:
            if x.kind=='label' and x.text.startswith(lab): return k
            if x.kind=='mfma': k+=1
    for k in (0,1):
        d=[]
        for cc_ in (3*k,3*k+1,3*k+2): d+=wdma(cc_)+wadv(False)
        f=mfma_index_of(cur,f"FREE{k}")
        cur=spread(cur, dma_items(d), first=f+1, last=f+84)
    mer=interleave(cur, ([] if os.environ.get('NOPF') else pfl()+pfl())+gelu(0), budget=2)
    out=[]; seq=[]
    for x in mer:
        if x.kind=='label' and x.text.startswith('FREE'):
            if MERGE and x.text.startswith('FREE1'):
                out.append(Ins(f"s_waitcnt vmcnt({len(seq)})"))
            out.append(Ins("s_barrier"))
            if MERGE and x.text.startswith('FREE1'):
                out+=[Ins(f"s_cmp_eq_u32 s{S_CNT}, 1"), Ins("s_cbranch_scc0 L_gx_nosig"), Ins(f"s_cmp_eq_u32 s{S_W}, 0"), Ins("s_cbranch_scc0 L_gx_nosig"),
                      Ins("v_readfirstlane_b32 s38, v60"), Ins("s_mov_b32 s39, 0"), Ins("L_gx_zr:"), Ins("s_cmp_ge_u32 s38, 273"), Ins("s_cbranch_scc1 L_gx_zok"),
                      Ins("s_add_u32 s39, s39, 1"), Ins("s_cmp_gt_u32 s39, 200000"), Ins("s_cbranch_scc1 L_gx_zok"), Ins("s_sleep 6"),
                      Ins("v_mov_b32 v61, 0"), Ins("global_load_dword v60, v61, s[68:69] sc1"), Ins("s_waitcnt vmcnt(0)"), Ins("v_readfirstlane_b32 s38, v60"), Ins("s_branch L_gx_zr"),
                      Ins("L_gx_zok:"),
                      Ins("s_mul_i32 s38, s36, 43"), Ins("s_lshr_b32 s38, s38, 8"), Ins("s_lshl_b32 s39, s37, 2"), Ins("s_add_u32 s38, s38, s39"), Ins("s_add_u32 s38, s38, 48"), Ins("s_lshl_b32 s38, s38, 7"),
                      Ins(f"s_add_u32 s72, s70, {0x15C0000}"), Ins("s_addc_u32 s73, s71, 0"),
                      Ins("v_mov_b32 v61, s38"), Ins("v_mov_b32 v62, 1"), Ins("v_cmp_eq_u32 vcc, 0, v0"), Ins("s_and_saveexec_b64 s[74:75], vcc"),
                      Ins("global_atomic_add v61, v62, s[72:73] sc1"), Ins("s_mov_b64 exec, s[74:75]"), Ins("L_gx_nosig:"), Ins("s_nop 0")]
        elif x.kind=='label' and x.text.startswith('PRE9'):
            d=[i for i,t in enumerate(seq) if t=='dma']; assert len(d)==24
            out.append(Ins(f"s_waitcnt vmcnt({len(seq)-1-d[11]})")); out.append(Ins("s_barrier")); out+=trset(0)
        else:
            if x.kind in('vmem','dma'): seq.append(x.kind)
            out.append(x)
    if MERGE:
        ist=[i for i,x in enumerate(out) if x.tag=='st']
        out.insert(ist[-1]-40, Ins("global_load_dword v49, v48, s[64:65] sc1", tag='look'))
        vm=[x for x in out if x.kind in('vmem','dma')]
        n_after_look=len(vm)-1-[i for i,x in enumerate(vm) if x.tag=='look'][0]
        assert all(x.kind!='dma' for x in vm[len(vm)-n_after_look:])
    out1=out; tail_exact=len(seq)-1-max(i for i,t in enumerate(seq) if t=='dma'); tail1=min(4,tail_exact)
    cur=marks(phase(0, next_first=first_reads(1)), lambda x: (f"LAND{x[1]}" if x[2]=='firstread' and x[1] in (3,6) else ("SWITCH1" if x[2]=='firstread' and x[1]==9 else None)))
    d678=wdma(6)+wadv(False)+wdma(7)+wadv(False)+wdma(8)+wadv(True)
    cur=spread(cur, dma_items(d678), first=2, last=84)
    mer=interleave(cur, ([] if os.environ.get('NOPF') else pfl()+pfl())+gelu(1), budget=2)
    out=[]; seq=[]
    for x in mer:
        if x.kind=='label' and x.text.startswith('LAND3'):
            out.append(Ins(f"s_waitcnt vmcnt({len(seq)+tail1})")); out.append(Ins("s_barrier"))
        elif x.kind=='label' and x.text.startswith('LAND6'):
            last=max(i for i,t in enumerate(seq) if t=='dma'); assert seq.count('dma')==12
            out.append(Ins(f"s_waitcnt vmcnt({len(seq)-1-last})")); out.append(Ins("s_barrier"))
        elif x.kind=='label' and x.text.startswith('SWITCH'):
            out+=trset(1)
        else:
            if x.kind in('vmem','dma'): seq.append(x.kind)
            out.append(x)
    if os.environ.get('NOVM'): out=[x for x in out if not (x.kind=='wait' and 'vmcnt' in x.text)]; out1=[x for x in out1 if not (x.kind=='wait' and 'vmcnt' in x.text and 'vmcnt(0)' not in x.text)]
    st,q1=auto_lgkm(out,q0,extra=2)
    p.add(st)
    st,q2=auto_lgkm(out1,q1,extra=2)
    p.add(st)
    p("s_barrier")
    p(f"s_add_u32 s{S_CNT}, s{S_CNT}, 1"); p(f"s_cmp_lt_u32 s{S_CNT}, 2"); p("s_cbranch_scc1 L_gx_loop")
    idn=len(p.ins)
    assert [sorted(d) for d in q2]==[sorted(x.wr) for k in range(PF) for x in fr[k]] or True
    p("s_waitcnt lgkmcnt(0)")
    ST.stamp(p,5)
    if MERGE:
        import p2 as P2
        p(f"s_waitcnt vmcnt({n_after_look})"); p("s_barrier")
        P2.gen_p2a_ffn(p)
    p.label("L_TOUCH_gx2")
    p.add(pkconst()); p("s_nop 4")
    p.add(gelu(1,pk=True))
    ST.stamp(p,6)
    ST.flush(p,70,71,0)
    if MERGE: p("s_branch L_p2b")
    return il,idn
```

```python
from core import *
import stamp as ST
from k1_gx import f2u, NKS_TOT, H_BYTES, ntify, FNT
import os
MERGE=int(os.environ.get('MERGE','1'))
ANT=os.environ.get('ANT','')
AOFF=int(os.environ.get('AOFF','0'))
AMAP=int(os.environ.get('AMAP','0'))
AROT=int(os.environ.get('AROT','0'))
STMOD=os.environ.get('STMOD',' sc1')
KVP_OFF=0x1502000
LOG2E=1.4426950408889634
WSL=28672; W0=0; X0=3*WSL; XSL=32768
PHI_L=X0+2*XSL; ZERO_L=PHI_L+3840
PS=336; VS=168
PL=0; VL=256*PS; KVL=VL+256*VS
S_W=24
S_X=8; S_WQ=12; S_H=16; S_KV=20
S_XSO=25; S_XSO2=26; S_WSO=27; S_CNT=28; S_MW=29; S_MX=30; S_C=31; S_RT=32; S_QD=33; S_AW=34; S_AX=35; S_TW=36; S_TX=37; S_SD=72; S_SN=73; S_MWW=74
V_WD=1; V_TRB=8; V_XD=10; V_TR=14; V_XP=16; V_L=20; V_L16=21; V_BD=22; V_BD2=23
QACC=0; KACC=96; VACC=176
def accq(t,tt): b=QACC+(t*4+tt)*4; return f"a[{b}:{b+3}]"
def acck(t,tt,r=None):
    b=KACC+(t*4+tt)*4; return f"v[{b}:{b+3}]" if r is None else f"v{b+r}"
def accv(t,tt,r=None):
    b=VACC+(t*4+tt)*4; return f"v[{b}:{b+3}]" if r is None else f"v{b+r}"
def acc(sec,t,tt): return (accq,acck,accv)[sec](t,tt)
AR=80; NAR=6; XF=104
def afr(i): b=AR+4*(i%NAR); return f"a[{b}:{b+3}]"
def afh(i,h): b=AR+4*(i%NAR)+2*h; return f"a[{b}:{b+1}]"
def xf(b_,tt): b=XF+(b_*4+tt)*4; return f"a[{b}:{b+3}]"

def wdma():
    o=[Ins(f"s_add_u32 s{S_MW}, s{S_MWW}, s{S_SD}")]
    for i in range(7):
        if i%4==0:
            o.append(Ins(f"s_add_u32 m0, s{S_MW}, {4096*(i//4)}" if i else f"s_mov_b32 m0, s{S_MW}")); o.append(Ins("s_nop 0"))
        o.append(Ins(f"buffer_load_dwordx4 v{V_WD+i}, s[{S_WQ}:{S_WQ+3}], s{S_WSO} offen offset:{1024*(i%4)} lds{ANT}"))
    o+= [Ins(f"s_add_u32 s{S_SD}, s{S_SD}, {WSL}"), Ins(f"s_cmp_eq_u32 s{S_SD}, {3*WSL}"), Ins(f"s_cselect_b32 s{S_SD}, 0, s{S_SD}"),
         Ins(f"s_add_u32 s{S_WSO}, s{S_WSO}, {64*3456}")]
    if AROT: o+=[Ins(f"s_add_u32 s{S_AW}, s{S_AW}, 1"), Ins(f"s_cmp_eq_u32 s{S_AW}, 9"), Ins(f"s_cselect_b32 s38, {9*64*3456}, 0"), Ins(f"s_cselect_b32 s{S_AW}, 0, s{S_AW}"), Ins(f"s_sub_u32 s{S_WSO}, s{S_WSO}, s38")]
    return o
def xdma():
    o=[]
    for i in range(8):
        if i%4==0:
            o.append(Ins(f"s_add_u32 m0, s{S_MX}, {4096*(i//4)}" if i else f"s_mov_b32 m0, s{S_MX}")); o.append(Ins("s_nop 0"))
        o.append(Ins(f"buffer_load_dwordx4 v{V_XD+(i%4)}, s[{S_X}:{S_X+3}], s{S_XSO if i<4 else S_XSO2} offen offset:{1024*(i%4)} lds"))
    if not AROT:
        return o+[Ins(f"s_xor_b32 s{S_MX}, s{S_MX}, s{S_TX}"), Ins(f"s_add_u32 s{S_XSO}, s{S_XSO}, 128"), Ins(f"s_add_u32 s{S_XSO2}, s{S_XSO2}, 128")]
    o+= [Ins(f"s_xor_b32 s{S_MX}, s{S_MX}, s{S_TX}"),
         Ins(f"s_add_u32 s{S_XSO}, s{S_XSO}, 128"), Ins(f"s_add_u32 s{S_AX}, s{S_AX}, 1"), Ins(f"s_cmp_eq_u32 s{S_AX}, 9"),
         Ins(f"s_cselect_b32 s39, {9*128}, 0"), Ins(f"s_cselect_b32 s{S_AX}, 0, s{S_AX}"), Ins(f"s_sub_u32 s{S_XSO}, s{S_XSO}, s39"),
         Ins(f"s_add_u32 s{S_XSO2}, s{S_XSO}, {32*1152}")]
    return o

SEQ=[(b_,sec,t) for b_ in range(2) for sec in range(3) for t in range(5)]
PF=4
def ard(i):
    nxt=i>=30; b_,sec,t=SEQ[i%30]
    return [Ins(f"ds_read_b64_tr_b16 {afh(i,h)}, v{V_TR+(1 if nxt else 0)} offset:{b_*13824+sec*144+h*1728+8*t}") for h in range(2)]
def xrd(b_,nxt): return [Ins(f"ds_read_b128 {xf(b_,tt)}, v{V_XP+(2 if nxt else 0)+b_} offset:{tt*2048}") for tt in range(4)]

def superstep():
    main=[]
    for i,(b_,sec,t) in enumerate(SEQ):
        if i==26:
            main.append(Ins("s_waitcnt vmcnt(7) lgkmcnt(0)")); main.append(Ins("s_barrier"))
        nxt=ard(i+PF)
        if 1<=i<5: nxt=nxt+[xrd(1,False)[i-1]]
        if i>=26: nxt=nxt+[xrd(0,True)[i-26]]
        if 22<=i<26: pass
        for tt in range(4):
            main.append(Ins(f"v_mfma_f32_16x16x32_bf16 {acc(sec,t,tt)}, {afr(i)}, {xf(b_,tt)}, {acc(sec,t,tt)}"))
            if tt<len(nxt): main.append(nxt[tt])
    return main

def entry_queue():
    q=[]
    for i in range(26,30):
        for x in ard(i+PF): q.append(x.wr)
        q.append(xrd(0,True)[i-26].wr)
    return q

def bc(r): return f"v[{r}:{r+1}]"
def softmax_pk(p, P0, tmp, want_norm):
    A=p
    P=[f"v{P0(f)}" for f in range(18)]
    mx=tmp+36; mn=tmp+38; sp=tmp+40; sm=tmp+42
    A(f"v_max3_f32 v{mx}, {P[0]}, {P[1]}, {P[2]}"); A(f"v_min3_f32 v{mn}, {P[0]}, {P[1]}, {P[2]}")
    for i in range(3,17,2):
        A(f"v_max3_f32 v{mx}, v{mx}, {P[i]}, {P[i+1]}"); A(f"v_min3_f32 v{mn}, v{mn}, {P[i]}, {P[i+1]}")
    A(f"v_max_f32 v{mx}, v{mx}, {P[17]}"); A(f"v_min_f32 v{mn}, v{mn}, {P[17]}")
    A(f"v_mul_f32_e64 v{mx}, -s{S_C}, v{mx}"); A(f"v_mul_f32 v{mn}, s{S_C}, v{mn}")
    for i in range(0,18,2):
        pr=bc(P0(i))
        A(f"v_pk_fma_f32 {bc(tmp+i)}, {pr}, {bc(94)}, {bc(mx)} op_sel_hi:[1,0,0]")
        A(f"v_pk_fma_f32 {bc(tmp+18+i)}, {pr}, {bc(94)}, {bc(mn)} op_sel_hi:[1,0,0] neg_lo:[0,1,0] neg_hi:[0,1,0]")
    for i in range(18):
        A(f"v_exp_f32 v{tmp+i}, v{tmp+i}"); A(f"v_exp_f32 v{tmp+18+i}, v{tmp+18+i}")
    if want_norm:
        A(f"v_pk_add_f32 {bc(sp)}, {bc(tmp)}, {bc(tmp+2)}");
        A("s_nop 0")
        A(f"v_pk_add_f32 {bc(sm)}, {bc(tmp+18)}, {bc(tmp+20)}")
        for i in range(4,18,2):
            A(f"v_pk_add_f32 {bc(sp)}, {bc(sp)}, {bc(tmp+i)}"); A(f"v_pk_add_f32 {bc(sm)}, {bc(sm)}, {bc(tmp+18+i)}")
        A(f"v_add_f32 v{sp}, v{sp}, v{sp+1}"); A(f"v_add_f32 v{sm}, v{sm}, v{sm+1}")
        A(f"v_rcp_f32 v{sp}, v{sp}"); A(f"v_rcp_f32 v{sm}, v{sm}"); A("s_nop 0")
        for i in range(0,18,2):
            A(f"v_pk_mul_f32 {bc(tmp+i)}, {bc(tmp+i)}, {bc(sp)} op_sel_hi:[1,0]"); A(f"v_pk_mul_f32 {bc(tmp+18+i)}, {bc(tmp+18+i)}, {bc(sm)} op_sel_hi:[1,0]")
    else:
        A("s_nop 0")

def stage2(p, src, dst, B0, pre=None):
    for tt in range(4):
        for t in range(5):
            p(f"v_cvt_pk_bf16_f32 v{B0+tt*12+2*t}, {src(t,tt,0)}, {src(t,tt,1)}")
            p(f"v_cvt_pk_bf16_f32 v{B0+tt*12+2*t+1}, {src(t,tt,2)}, {src(t,tt,3)}")
        p(f"v_mov_b32 v{B0+tt*12+10}, 0"); p(f"v_mov_b32 v{B0+tt*12+11}, 0")
    if pre: pre()
    p("s_nop 1")
    for tt in range(4):
        for s in range(3):
            for u in range(5):
                a=80+4*(u*3+s); b=B0+tt*12+4*s
                c=dst(u,tt) if s>0 else "0"
                p(f"v_mfma_f32_16x16x32_bf16 {dst(u,tt)}, a[{a}:{a+3}], v[{b}:{b+3}], {c}")
    p("s_nop 7")

def gen_att(p, docheck=True):
    p.label("L_att")
    A=p
    if AMAP: A(f"s_mov_b32 s{S_QD}, s5"); A(f"s_mov_b32 s{S_RT}, s4")
    else: A(f"s_mov_b32 s{S_QD}, s4"); A(f"s_mov_b32 s{S_RT}, s5")
    A(f"s_sub_u32 s{S_WQ}, s58, 4096"); A(f"s_subb_u32 s{S_WQ+1}, s59, 0"); A(f"s_mov_b32 s{S_WQ+2}, {576*3456+4096}"); A(f"s_mov_b32 s{S_WQ+3}, 0x20000")
    A(f"v_and_b32 v{V_L}, 63, v0")
    A(f"s_mul_i32 s38, s{S_W}, 448")
    for i in range(7):
        A(f"v_add_u32 v30, s38, v{V_L}")
        if i: A(f"v_add_u32 v30, {64*i}, v30")
        A("v_mul_u32_u24 v31, 7282, v30"); A("v_lshrrev_b32 v31, 16, v31")
        A("v_mul_u32_u24 v32, 9, v31"); A("v_sub_u32 v32, v30, v32"); A("v_lshlrev_b32 v32, 4, v32")
        A("v_mul_u32_u24 v31, 0x480, v31")
        A(f"v_add3_u32 v{V_WD+i}, v32, v31, 0"); A(f"v_add_u32 v{V_WD+i}, {4096-1024*(i%4)}, v{V_WD+i}")
    A(f"s_mul_i32 s{S_WSO}, s{S_QD}, 144")
    if AROT:
        A(f"s_add_u32 s41, s{S_RT}, {AOFF}"); A("s_cmp_ge_u32 s41, 9"); A("s_cselect_b32 s38, 9, 0"); A("s_sub_u32 s41, s41, s38")
        A(f"s_mov_b32 s{S_AW}, s41"); A(f"s_mov_b32 s{S_AX}, s41"); A(f"s_mul_i32 s38, s41, {64*3456}"); A(f"s_add_u32 s{S_WSO}, s{S_WSO}, s38")
    A(f"s_mul_i32 s{S_MWW}, s{S_W}, 7168"); A(f"s_mov_b32 s{S_SD}, 0")
    A.add(ntify(wdma(), FNT&2))
    A(f"s_mul_i32 s38, s{S_RT}, {256*1152}")
    A(f"s_add_u32 s{S_X}, s56, s38"); A(f"s_addc_u32 s{S_X+1}, s57, 0"); A(f"s_sub_u32 s{S_X}, s{S_X}, 4096"); A(f"s_subb_u32 s{S_X+1}, s{S_X+1}, 0")
    A(f"s_mov_b32 s{S_X+2}, {256*1152+4096}"); A(f"s_mov_b32 s{S_X+3}, 0x20000")
    g="v24"; t15="v25"; l3="v26"; l7="v27"; rp="v28"; cc="v29"
    A(f"v_lshrrev_b32 {g}, 4, v{V_L}"); A(f"v_and_b32 {t15}, 15, v{V_L}"); A(f"v_lshrrev_b32 {l3}, 3, v{V_L}"); A(f"v_and_b32 {l7}, 7, v{V_L}")
    for i in range(4):
        A(f"v_add_u32 v30, {4*(i&1)}, {g}"); A("v_and_b32 v30, 7, v30"); A(f"v_xor_b32 v30, v30, {l7}"); A("v_lshlrev_b32 v30, 4, v30")
        A(f"v_add_u32 v31, {8*i}, {l3}"); A("v_mul_u32_u24 v31, 0x480, v31")
        A(f"v_add3_u32 v{V_XD+i}, v30, v31, 0"); A(f"v_add_u32 v{V_XD+i}, {4096-1024*i}, v{V_XD+i}")
    A(f"s_mul_i32 s{S_XSO}, s{S_W}, {64*1152}")
    if AROT: A(f"s_lshl_b32 s38, s41, 7"); A(f"s_add_u32 s{S_XSO}, s{S_XSO}, s38")
    A(f"s_add_u32 s{S_XSO2}, s{S_XSO}, {32*1152}")
    A(f"s_lshl_b32 s{S_MX}, s{S_W}, 13"); A(f"s_add_u32 s{S_MX}, s{S_MX}, {X0}"); A(f"s_add_u32 s38, s{S_MX}, {XSL}"); A(f"s_xor_b32 s{S_TX}, s{S_MX}, s38")
    A(f"s_mov_b32 s40, s{S_MX}")
    A.add(ntify(xdma(), FNT&1))
    ST.stamp(p,1)
    A(f"s_mov_b32 s{S_C}, 0x{f2u(LOG2E):08x}")
    A(f"s_mov_b32 s{S_H}, s70"); A(f"s_mov_b32 s{S_H+1}, s71"); A(f"s_mov_b32 s{S_H+2}, {H_BYTES}"); A(f"s_mov_b32 s{S_H+3}, 0x20000")
    A(f"s_add_u32 s{S_KV}, s70, {KVP_OFF}"); A(f"s_addc_u32 s{S_KV+1}, s71, 0"); A(f"s_mov_b32 s{S_KV+2}, {8*32*2880}"); A(f"s_mov_b32 s{S_KV+3}, 0x20000")
    A(f"v_lshlrev_b32 v{V_L16}, 4, v{V_L}")
    A(f"v_lshrrev_b32 {rp}, 2, {t15}"); A(f"v_and_b32 {cc}, 3, {t15}")
    A(f"v_lshrrev_b32 v30, 1, {t15}"); A(f"v_xor_b32 v30, v30, {g}"); A("v_lshlrev_b32 v30, 4, v30"); A(f"v_lshlrev_b32 v31, 7, {t15}"); A("v_add_u32 v30, v30, v31")
    A(f"v_add_u32 v{V_XP}, s40, v30"); A(f"v_xor_b32 v{V_XP+1}, 64, v{V_XP}")
    A(f"v_add_u32 v{V_XP+2}, {XSL}, v{V_XP}"); A(f"v_add_u32 v{V_XP+3}, {XSL}, v{V_XP+1}")
    A(f"v_lshlrev_b32 v30, 3, {g}"); A(f"v_add_u32 v30, v30, {rp}"); A("v_mul_u32_u24 v30, 432, v30"); A(f"v_mul_u32_u24 v31, 36, {cc}")
    A(f"v_and_b32 v33, 1, {cc}"); A("v_lshlrev_b32 v33, 2, v33"); A("v_sub_u32 v31, v31, v33")
    A(f"v_add_u32 v{V_TRB}, v30, v31"); A(f"v_mov_b32 v{V_TR}, v{V_TRB}"); A(f"v_add_u32 v{V_TR+1}, {WSL}, v{V_TRB}"); A(f"s_mov_b32 s{S_SN}, {WSL}")
    A(f"v_cmp_eq_u32 vcc, {cc}, {g}")
    A(f"v_mul_u32_u24 v30, 960, {g}"); A(f"v_mul_u32_u24 v31, 40, {rp}"); A("v_add_u32 v30, v30, v31"); A(f"v_add_u32 v30, {PHI_L}, v30")
    A(f"v_mov_b32 v32, {ZERO_L}"); A(f"v_cndmask_b32 v{V_BD}, v32, v30, vcc")
    A(f"v_mul_u32_u24 v30, 1920, {g}"); A("v_add_u32 v30, v30, v31"); A(f"v_add_u32 v30, {KVL}, v30"); A(f"v_cndmask_b32 v{V_BD2}, v32, v30, vcc")
    A(f"s_mul_i32 s38, s{S_QD}, {4*648}")
    A(f"s_add_u32 s48, s60, s38"); A("s_addc_u32 s49, s61, 0"); A(f"s_mov_b32 s50, {4*648}"); A("s_mov_b32 s51, 0x20000")
    A("v_lshlrev_b32 v30, 2, v0")
    for i in range(3): A(f"buffer_load_dword v{44+i}, v30, s[48:51], 0 offen offset:{1024*i}")
    A("v_mov_b32 v40, 0"); A("v_mov_b32 v41, 0"); A("v_mov_b32 v42, 0"); A("v_mov_b32 v43, 0")
    A("v_lshlrev_b32 v30, 4, v0"); A(f"v_add_u32 v30, {PHI_L}, v30")
    A("ds_write_b128 v30, v[40:43]")
    A("v_cmp_gt_u32 vcc, 104, v0"); A("s_and_saveexec_b64 s[48:49], vcc"); A("s_cbranch_execz L_att_z1")
    A("ds_write_b128 v30, v[40:43] offset:4096")
    A.label("L_att_z1"); A("s_mov_b64 exec, s[48:49]")
    for i in range(3):
        A(f"v_add_u32 v30, {256*i}, v0")
        A("v_mul_u32_u24 v31, 405, v30"); A("v_lshrrev_b32 v31, 16, v31")
        A("v_mul_u32_u24 v32, 162, v31"); A("v_sub_u32 v32, v30, v32")
        A("v_mul_u32_u24 v33, 57, v32"); A("v_lshrrev_b32 v33, 9, v33")
        A("v_mul_u32_u24 v34, 9, v33"); A("v_sub_u32 v34, v32, v34")
        A("v_and_b32 v35, 1, v31"); A("v_lshl_add_u32 v33, v35, 1, v33")
        A("v_mul_u32_u24 v31, 960, v31"); A("v_mul_u32_u24 v33, 40, v33"); A("v_lshlrev_b32 v34, 2, v34")
        A(f"v_add3_u32 v{47+i}, v31, v33, v34"); A(f"v_add_u32 v{47+i}, {PHI_L}, v{47+i}")
    for r in range(80): A(f"v_accvgpr_write_b32 a{r}, 0")
    for r in range(96,256): A(f"v_mov_b32 v{r}, 0")
    xl=xdma(); XA_=xl[:6]; XB_=xl[6:]
    A.add(wdma())
    A.add(XA_)
    A.label("L_TOUCH_att")
    A("s_waitcnt vmcnt(11) lgkmcnt(0)"); A("s_barrier")
    if MERGE:
        import k1
        k1.announce_zero(p, S_W, "L_att_az", 50, st=52)
    A("ds_write_b32 v47, v44"); A("ds_write_b32 v48, v45")
    A("v_cmp_gt_u32 vcc, 136, v0"); A("s_and_saveexec_b64 s[48:49], vcc"); A("s_cbranch_execz L_att_z2")
    A("ds_write_b32 v49, v46")
    A.label("L_att_z2"); A("s_mov_b64 exec, s[48:49]")
    A("s_waitcnt lgkmcnt(0)")
    ST.stamp(p,2)
    A(f"v_mov_b32 v{V_TR+1}, v{V_TRB}"); A(f"v_swap_b32 v{V_XP}, v{V_XP+2}"); A(f"v_swap_b32 v{V_XP+1}, v{V_XP+3}")
    for i in range(26,30):
        A.add(ard(i+PF)); A.add([xrd(0,True)[i-26]])
    A(f"v_add_u32 v{V_TR+1}, {WSL}, v{V_TRB}"); A(f"v_swap_b32 v{V_XP}, v{V_XP+2}"); A(f"v_swap_b32 v{V_XP+1}, v{V_XP+3}")
    A(f"s_mov_b32 s{S_CNT}, 0")
    il=len(p.ins)
    A.label("L_att_loop")
    m,_=auto_lgkm(superstep(), entry_queue(), extra=2)
    ib=[i for i,x in enumerate(m) if x.kind=='barrier'][0]
    head=m[:ib+1]; rest=m[ib+1:]
    p.add(spread(head, dma_items(XB_+wdma()), first=1, last=72))
    p.add(spread(rest, dma_items(XA_), first=0))
    A(f"v_mov_b32 v{V_TR}, v{V_TR+1}")
    A(f"s_add_u32 s{S_SN}, s{S_SN}, {WSL}"); A(f"s_cmp_eq_u32 s{S_SN}, {3*WSL}"); A(f"s_cselect_b32 s{S_SN}, 0, s{S_SN}")
    A(f"v_add_u32 v{V_TR+1}, s{S_SN}, v{V_TRB}")
    A(f"v_swap_b32 v{V_XP}, v{V_XP+2}"); A(f"v_swap_b32 v{V_XP+1}, v{V_XP+3}")
    A(f"s_add_u32 s{S_CNT}, s{S_CNT}, 1"); A(f"s_cmp_lt_u32 s{S_CNT}, 9"); A("s_cbranch_scc1 L_att_loop")
    idn=len(p.ins)
    A("s_waitcnt vmcnt(0) lgkmcnt(0)")
    ST.stamp(p,3)
    A("s_barrier")
    rds=[f"ds_read_b64_tr_b16 a[{80+4*(u*3+s)+2*h}:{80+4*(u*3+s)+2*h+1}], v{V_BD} offset:{(8*s+4*h)*40+8*u}" for u in range(5) for s in range(3) for h in range(2)]
    for x in rds[:14]: A(x)
    A("v_mov_b32 v40, 0"); A("v_mov_b32 v41, 0"); A("v_mov_b32 v42, 0"); A("v_mov_b32 v43, 0")
    A("v_lshlrev_b32 v30, 4, v0"); A(f"v_add_u32 v30, {KVL}, v30")
    A(f"v_mov_b32 v94, s{S_C}")
    A("s_waitcnt lgkmcnt(0)")
    for x in rds[14:28]: A(x)
    A("s_waitcnt lgkmcnt(0)")
    for x in rds[28:]: A(x)
    A("ds_write_b128 v30, v[40:43]")
    A("v_cmp_gt_u32 vcc, 224, v0"); A("s_and_saveexec_b64 s[48:49], vcc"); A("s_cbranch_execz L_att_z3")
    A("ds_write_b128 v30, v[40:43] offset:4096")
    A.label("L_att_z3"); A("s_mov_b64 exec, s[48:49]")
    stage2(p, acck, acck, 24, pre=lambda: A("s_waitcnt lgkmcnt(0)"))
    A(f"v_and_b32 v72, 15, v{V_L}"); A(f"v_lshrrev_b32 v73, 4, v{V_L}")
    A(f"s_lshl_b32 s38, s{S_W}, 6"); A("v_add_u32 v72, s38, v72")
    A(f"v_mul_u32_u24 v74, {PS}, v72"); A("v_mul_u32_u24 v75, 80, v73"); A("v_add_u32 v74, v74, v75")
    A(f"v_mul_u32_u24 v75, {VS}, v72"); A("v_mul_u32_u24 v76, 40, v73"); A("v_add_u32 v75, v75, v76"); A(f"v_add_u32 v75, {VL}, v75")
    A("v_and_b32 v76, 1, v73"); A("v_cmp_eq_u32 s[58:59], 1, v76"); A("v_mov_b32 v70, 1.0"); A("v_mov_b32 v71, 0")
    pendw=[]
    for tt in range(4):
        q=Prog()
        softmax_pk(q, lambda f: KACC+((f//4)*4+tt)*4+(f%4), 24, True)
        body=q.ins
        if pendw:
            step=max(1,len(body)//(len(pendw)+1)); out=[]; k=0
            for i,x in enumerate(body):
                out.append(x)
                if i%step==step-1 and k<len(pendw): out.append(pendw[k]); k+=1
            out+=pendw[k:]; body=out
        p.add(body)
        PK=76 if tt%2==0 else None
        if tt%2==0: regs=[76+i for i in range(18)]+[None]
        def pk(i):
            return 76+i if tt%2==0 else KACC+((i//4)*4+(tt-1))*4+(i%4)
        A("s_waitcnt lgkmcnt(0)")
        for i in range(18): A(f"v_cvt_pk_bf16_f32 v{pk(i)}, v{24+2*i}, v{25+2*i}")
        off=tt*16*PS
        pendw=[Ins(f"ds_write_b128 v74, v[{pk(4*i)}:{pk(4*i)+3}] offset:{off+16*i}") for i in range(4)]
        pendw.append(Ins(f"ds_write_b64 v74, v[{pk(16)}:{pk(16)+1}] offset:{off+64}"))
        A(f"v_cndmask_b32 {accv(0,tt,0)}, {accv(0,tt,0)}, v70, s[58:59]"); A(f"v_cndmask_b32 {accv(0,tt,1)}, {accv(0,tt,1)}, v71, s[58:59]")
        A(f"v_cndmask_b32 {accv(4,tt,2)}, v70, {accv(4,tt,2)}, s[58:59]"); A(f"v_cndmask_b32 {accv(4,tt,3)}, v71, {accv(4,tt,3)}, s[58:59]")
        for t in range(5):
            b0=VACC+(t*4+tt)*4
            A(f"v_cvt_pk_bf16_f32 v{b0}, v{b0}, v{b0+1}"); A(f"v_cvt_pk_bf16_f32 v{b0+1}, v{b0+2}, v{b0+3}")
        offv=tt*16*VS
        pendw+=[Ins(f"ds_write_b64 v75, v[{VACC+(t*4+tt)*4}:{VACC+(t*4+tt)*4+1}] offset:{offv+8*t}") for t in range(5)]
    p.add(pendw)
    A("s_waitcnt lgkmcnt(0)"); A("s_barrier")
    ST.stamp(p,4)
    A(f"v_and_b32 v24, 15, v{V_L}"); A(f"v_lshrrev_b32 v25, 4, v{V_L}"); A("v_lshrrev_b32 v26, 2, v24"); A("v_and_b32 v27, 3, v24")
    A("v_lshlrev_b32 v28, 3, v25"); A("v_add_u32 v28, v28, v26")
    A(f"v_mul_u32_u24 v29, {VS}, v28"); A("v_lshlrev_b32 v30, 3, v27"); A("v_add_u32 v29, v29, v30")
    A(f"s_mul_i32 s38, s{S_W}, 40"); A(f"s_add_u32 s38, s38, {VL}"); A("v_add_u32 v29, s38, v29")
    A(f"v_mul_u32_u24 v31, {PS}, v28"); A("v_add_u32 v31, v31, v30")
    A(f"s_mul_i32 s38, s{S_W}, 80"); A("v_add_u32 v31, s38, v31")
    A(f"v_add_u32 v32, {128*PS}, v31")
    KV=96
    def kvr(ks):
        fr=36+20*(ks%2); o=[]
        for dt in range(2):
            for h in range(2): o.append(Ins(f"ds_read_b64_tr_b16 v[{fr+4*dt+2*h}:{fr+4*dt+2*h+1}], v29 offset:{(32*ks+4*h)*VS+32*dt}"))
        for ft in range(3):
            for h in range(2):
                base,ko=("v31",ks) if ks<4 else ("v32",ks-4)
                o.append(Ins(f"ds_read_b64_tr_b16 v[{fr+8+4*ft+2*h}:{fr+8+4*ft+2*h+1}], {base} offset:{(32*ko+4*h)*PS+32*ft}"))
        return o
    st=kvr(0)
    for ks in range(8):
        fr=36+20*(ks%2)
        nx=kvr(ks+1) if ks<7 else []
        k=0
        for dt in range(2):
            for ft in range(3):
                d=KV+(dt*3+ft)*4
                c=f"v[{d}:{d+3}]" if ks>0 else "0"
                if k==0: st.append(Ins("s_waitcnt lgkmcnt(0)")); st+=nx[:5]
                st.append(Ins(f"v_mfma_f32_16x16x32_bf16 v[{d}:{d+3}], v[{fr+4*dt}:{fr+4*dt+3}], v[{fr+8+4*ft}:{fr+8+4*ft+3}], {c}"))
                if k==1: st+=nx[5:]
                k+=1
    p.add(st)
    A(f"s_lshl_b32 s38, s{S_RT}, 5"); A(f"s_lshl_b32 s39, s{S_QD}, 2"); A("s_add_u32 s38, s38, s39"); A(f"s_add_u32 s38, s38, s{S_W}"); A("s_mul_i32 s38, s38, 2880")
    A("v_mul_u32_u24 v33, 80, v24"); A("v_lshlrev_b32 v34, 4, v25"); A("v_add_u32 v33, v33, v34")
    A("v_cmp_eq_u32 s[50:51], 0, v25"); A("v_cmp_gt_u32 s[52:53], 4, v24")
    A("s_nop 1")
    A("s_and_b64 s[54:55], s[50:51], s[52:53]")
    for ft in range(3):
        for dt in range(2):
            d=KV+(dt*3+ft)*4
            mask=(None if dt==0 else "s[50:51]") if ft<2 else ("s[52:53]" if dt==0 else "s[54:55]")
            if mask: A(f"s_mov_b64 exec, {mask}")
            A(f"buffer_store_dwordx4 v[{d}:{d+3}], v33, s[{S_KV}:{S_KV+3}], s38 offen offset:{ft*16*80+dt*64} sc1")
            if mask: A("s_mov_b64 exec, -1")
    A("v_mov_b32 v94, 0") if False else None
    A("v_mov_b32 v93, 0"); A("global_load_dword v95, v93, s[68:69] sc1")
    def accqv(t,tt,r): return f"v{96+(t*4+tt)*4+r}"
    for i in list(range(24,80))+list(range(24)): A(f"v_accvgpr_read_b32 v{96+i}, a{i}")
    stage2(p, accqv, lambda u,tt: f"v[{176+(u*4+tt)*4}:{176+(u*4+tt)*4+3}]", 24)
    A("s_waitcnt vmcnt(0)")
    A("s_barrier")
    A(f"s_add_u32 s66, s70, {0x15C0000}"); A("s_addc_u32 s67, s71, 0")
    import p2 as P2
    P2.zero_ready(p, "L_att_zr", S_W, vt=33, early="v95")
    A(f"s_cmp_eq_u32 s{S_W}, 0"); A("s_cbranch_scc0 L_att_nosig")
    A(f"s_lshl_b32 s38, s{S_QD}, 7"); A("v_mov_b32 v33, s38"); A("v_mov_b32 v34, 1")
    A(f"v_cmp_eq_u32 vcc, 0, v{V_L}"); A("s_and_saveexec_b64 s[48:49], vcc")
    A("global_atomic_add v33, v34, s[66:67] sc1")
    A("s_mov_b64 exec, s[48:49]")
    A.label("L_att_nosig")
    ST.stamp(p,5)
    A("s_mov_b32 s40, s62"); A("s_mov_b32 s41, s63"); A(f"s_mov_b32 s42, {576*1152}"); A("s_mov_b32 s43, 0x20000")
    A(f"s_lshl_b32 s48, s{S_RT}, 3"); A(f"s_add_u32 s48, s48, s{S_QD}"); A("s_lshl_b32 s48, s48, 2"); A(f"s_add_u32 s48, s48, s{S_W}"); A("s_mul_i32 s48, s48, 3072")
    if not os.environ.get('NOPF'):
        for i in range(3): A(f"buffer_load_dwordx4 a[{4*i}:{4*i+3}], v{V_L16}, s[40:43], s48 offen offset:{1024*i}")
    A("s_mov_b32 s40, s56"); A("s_mov_b32 s41, s57"); A(f"s_mov_b32 s42, {2048*1152}"); A("s_mov_b32 s43, 0x20000")
    A("s_mov_b32 s44, s64"); A("s_mov_b32 s45, s65"); A("s_mov_b32 s46, 1152"); A("s_mov_b32 s47, 0x20000")
    A(f"v_lshrrev_b32 v168, 3, v{V_L}"); A(f"v_and_b32 v169, 7, v{V_L}"); A("v_lshlrev_b32 v170, 4, v169")
    A("v_mul_u32_u24 v171, 0x480, v168"); A("v_add_u32 v171, v171, v170")
    A(f"s_lshl_b32 s48, s{S_RT}, 5"); A(f"s_lshl_b32 s49, s{S_QD}, 2"); A("s_add_u32 s48, s48, s49"); A(f"s_add_u32 s48, s48, s{S_W}")
    A(f"s_mul_i32 s49, s48, {8*1152}")
    for c in range(9):
        A(f"buffer_load_dwordx4 v[{96+4*c}:{99+4*c}], v171, s[40:43], s49 offen offset:{128*c}")
        A(f"buffer_load_dwordx4 v[{132+4*c}:{135+4*c}], v170, s[44:47], 0 offen offset:{128*c}")
    for tt in range(4):
        if tt==3:
            A(f"s_lshl_b32 s38, s{S_QD}, 7"); A("v_mov_b32 v174, s38"); A("global_load_dword v175, v174, s[66:67] sc1")
        softmax_pk(p, lambda f: 176+((f//4)*4+tt)*4+(f%4), 24, False)
        for half in range(2):
            for i in range(9):
                A(f"v_cvt_pk_bf16_f32 v{76+i}, v{24+18*half+2*i}, v{25+18*half+2*i}")
            for i in range(9): A(f"v_accvgpr_write_b32 a{140+tt*24+half*12+i}, v{76+i}")
            for i in range(9,12): A(f"v_accvgpr_write_b32 a{140+tt*24+half*12+i}, 0")
    A("v_mov_b32 v172, 0"); A("v_mov_b32 v173, 0")
    A("s_waitcnt vmcnt(0)")
    for c in range(9):
        for r in range(4):
            A(f"v_dot2_f32_bf16 v{172+(r&1)}, v{96+4*c+r}, v{132+4*c+r}, v{172+(r&1)}")
    A("s_nop 3")
    A("v_add_f32 v172, v172, v173")
    for m in (0x041F,0x081F,0x101F):
        A("s_nop 0")
        A(f"ds_swizzle_b32 v173, v172 offset:0x{m:04X}"); A("s_waitcnt lgkmcnt(0)"); A("v_add_f32 v172, v172, v173")
    A(f"v_mul_f32 v172, 0x{f2u(-LOG2E):08x}, v172"); A("v_exp_f32 v172, v172"); A("s_nop 0"); A("v_add_f32 v172, 1.0, v172"); A("v_rcp_f32 v172, v172")
    A(f"s_add_u32 s40, s70, {0x1500000}"); A("s_addc_u32 s41, s71, 0"); A("s_mov_b32 s42, 8192"); A("s_mov_b32 s43, 0x20000")
    A("s_lshl_b32 s48, s48, 5"); A("v_lshlrev_b32 v168, 2, v168")
    A("v_cmp_eq_u32 vcc, 0, v169"); A("s_and_saveexec_b64 s[50:51], vcc")
    A("buffer_store_dword v172, v168, s[40:43], s48 offen sc1")
    A("s_mov_b64 exec, s[50:51]")
    ST.stamp(p,6)
    A.label("L_TOUCH_att2")
    A(f"s_cmp_eq_u32 s{S_W}, 0"); A("s_cbranch_scc0 L_att_wdone")
    A("v_readfirstlane_b32 s38, v175"); A("s_nop 1"); A("s_cmp_ge_u32 s38, 8"); A("s_cbranch_scc1 L_att_wdone")
    A(f"s_lshl_b32 s38, s{S_QD}, 7"); A("v_mov_b32 v33, s38")
    A("s_mov_b32 s39, 0")
    A.label("L_att_poll")
    A("s_add_u32 s39, s39, 1"); A("s_cmp_gt_u32 s39, 200000"); A("s_cbranch_scc1 L_att_wdone")
    A("global_load_dword v34, v33, s[66:67] sc1"); A("s_waitcnt vmcnt(0)")
    A("v_readfirstlane_b32 s38, v34"); A("s_nop 1"); A("s_cmp_ge_u32 s38, 8"); A("s_cbranch_scc1 L_att_wdone")
    A("s_sleep 6"); A("s_branch L_att_poll")
    A.label("L_att_wdone")
    A("s_barrier")
    A(f"s_lshl_b32 s39, s{S_QD}, 2"); A(f"s_add_u32 s39, s39, s{S_W}"); A("s_mul_i32 s39, s39, 2880")
    A(f"v_cmp_gt_u32 vcc, 52, v{V_L}")
    for r in range(8):
        A(f"s_add_u32 s38, s39, {r*32*2880}")
        for i in range(2):
            b=96+(r*3+i)*4
            A(f"buffer_load_dwordx4 v[{b}:{b+3}], v{V_L16}, s[{S_KV}:{S_KV+3}], s38 offen offset:{1024*i} sc1")
    A("s_mov_b64 exec, vcc")
    for r in range(8):
        A(f"s_add_u32 s38, s39, {r*32*2880}")
        b=96+(r*3+2)*4
        A(f"buffer_load_dwordx4 v[{b}:{b+3}], v{V_L16}, s[{S_KV}:{S_KV+3}], s38 offen offset:2048 sc1")
    A("s_mov_b64 exec, -1")
    A(f"s_and_b32 s48, s{S_W}, 1")
    for i in range(3):
        A(f"v_add_u32 v30, {64*i}, v{V_L}")
        A("v_mul_u32_u24 v31, 205, v30"); A("v_lshrrev_b32 v31, 10, v31")
        A("v_mul_u32_u24 v32, 5, v31"); A("v_sub_u32 v32, v30, v32")
        A("s_cmp_eq_u32 s48, 0"); A("s_cselect_b32 s49, 4, 0")
        A(f"v_cmp_eq_u32 s[{50+2*i}:{51+2*i}], s49, v32")
        A("v_cmp_le_u32 vcc, 18, v31"); A("v_mov_b32 v36, 0"); A("v_mov_b32 v37, 240"); A("v_cndmask_b32 v36, v36, v37, vcc")
        A("v_mul_u32_u24 v31, 40, v31"); A("v_add_u32 v31, v31, v36")
        A(f"s_mul_i32 s38, s{S_W}, 1920"); A(f"s_add_u32 s38, s38, {KVL}"); A("v_add_u32 v31, s38, v31")
        A("v_lshlrev_b32 v32, 1, v32"); A("v_subrev_u32 v33, s48, v32")
        A("v_add_u32 v34, 1, v33")
        A("v_cmp_gt_i32 vcc, 0, v33"); A("v_add_u32 v36, 10, v33"); A("s_nop 0"); A("v_cndmask_b32 v33, v33, v36, vcc")
        A(f"v_lshl_add_u32 v{40+2*i}, v33, 2, v31"); A(f"v_lshl_add_u32 v{41+2*i}, v34, 2, v31")
    A("v_mov_b32 v35, 1.0")
    A("s_waitcnt vmcnt(0)")
    for i in range(3):
        for k in (0,2):
            for r in range(1,8): A(f"v_pk_add_f32 {bc(96+i*4+k)}, {bc(96+i*4+k)}, {bc(96+(r*3+i)*4+k)}")
    A(f"v_cmp_gt_u32 vcc, 52, v{V_L}")
    A("s_cmp_eq_u32 s48, 0"); A("s_cbranch_scc1 L_att_even")
    for i in range(3): A(f"v_cndmask_b32 v{96+i*4+1}, v{96+i*4+1}, v35, s[{50+2*i}:{51+2*i}]")
    A("s_branch L_att_par")
    A.label("L_att_even")
    for i in range(3): A(f"v_cndmask_b32 v{96+i*4+3}, v{96+i*4+3}, v35, s[{50+2*i}:{51+2*i}]")
    A.label("L_att_par")
    for i in range(3):
        A(f"v_cvt_pk_bf16_f32 v38, v{96+i*4}, v{96+i*4+1}"); A(f"v_cvt_pk_bf16_f32 v39, v{96+i*4+2}, v{96+i*4+3}")
        if i==2: A("s_mov_b64 exec, vcc")
        A(f"ds_write_b32 v{40+2*i}, v38"); A(f"ds_write_b32 v{41+2*i}, v39")
        if i==2: A("s_mov_b64 exec, -1")
    A("s_waitcnt lgkmcnt(0)"); A("s_barrier")
    ST.stamp(p,7)
    def N(half,u,tt,r=None):
        b=96+((half*5+u)*4+tt)*4; return f"v[{b}:{b+3}]" if r is None else f"v{b+r}"
    seq=[(half,s,u) for half in range(2) for s in range(3) for u in range(5)]
    def rd(i):
        half,s,u=seq[i]
        return [Ins(f"ds_read_b64_tr_b16 {afh(i,h)}, v{V_BD2} offset:{half*960+(8*s+4*h)*40+8*u}") for h in range(2)]
    st=[]
    for i in range(PF): st+=rd(i)
    for i,(half,s,u) in enumerate(seq):
        nxt=rd(i+PF) if i+PF<len(seq) else []
        for tt in range(4):
            e=140+tt*24+half*12+4*s
            c=N(half,u,tt) if s>0 else "0"
            st.append(Ins(f"v_mfma_f32_16x16x32_bf16 {N(half,u,tt)}, {afr(i)}, a[{e}:{e+3}], {c}"))
            if tt<len(nxt): st.append(nxt[tt])
    st,_=auto_lgkm(st); p.add(st)
    A(f"s_lshl_b32 s38, s{S_RT}, 3"); A(f"s_lshl_b32 s39, s{S_W}, 1"); A("s_add_u32 s38, s38, s39"); A(f"s_mul_i32 s38, s38, {NKS_TOT}")
    A(f"s_lshr_b32 s39, s{S_QD}, 2"); A("s_add_u32 s40, s38, s39"); A("s_add_u32 s40, s40, 160"); A("s_lshl_b32 s40, s40, 11")
    A(f"s_and_b32 s39, s{S_QD}, 3"); A("s_lshl_b32 s39, s39, 2"); A("s_add_u32 s40, s40, s39")
    A(f"s_lshl_b32 s39, s{S_QD}, 1"); A("s_add_u32 s38, s38, s39"); A("s_add_u32 s38, s38, 144"); A("s_lshl_b32 s38, s38, 11")
    A(f"v_and_b32 v72, 15, v{V_L}"); A(f"v_lshrrev_b32 v73, 4, v{V_L}"); A("v_and_b32 v74, 1, v73"); A("v_lshrrev_b32 v73, 1, v73")
    A("v_lshlrev_b32 v72, 4, v72"); A("v_lshlrev_b32 v74, 9, v74"); A("v_lshlrev_b32 v73, 10, v73"); A("v_add3_u32 v72, v72, v74, v73")
    A("s_nop 3")
    for tt in range(4):
        a=24; b=26; den=28
        A(f"v_rcp_f32 v{a}, {N(0,4,tt,3)}"); A(f"v_rcp_f32 v{b}, {N(1,4,tt,3)}"); A("s_nop 0")
        A(f"v_mul_f32 v{den}, {N(0,4,tt,2)}, v{a}"); A(f"v_fmac_f32 v{den}, {N(1,4,tt,2)}, v{b}"); A(f"v_add_f32 v{den}, 0x{f2u(1e-6):08x}, v{den}")
        A(f"v_rcp_f32 v{den}, v{den}"); A("s_nop 0"); A(f"v_mul_f32 v{a}, v{a}, v{den}"); A(f"v_mul_f32 v{b}, v{b}, v{den}")
        for d in range(0,18,2):
            n0=96+((0*5+d//4)*4+tt)*4+d%4; n1=96+((1*5+d//4)*4+tt)*4+d%4
            A(f"v_pk_mul_f32 {bc(30+d)}, {bc(n0)}, {bc(a)} op_sel_hi:[1,0]")
            A(f"v_pk_fma_f32 {bc(30+d)}, {bc(n1)}, {bc(b)}, {bc(30+d)} op_sel_hi:[1,0,1]")
        o=48+12*(tt%2)
        for i in range(9): A(f"v_cvt_pk_bf16_f32 v{o+i}, v{30+2*i}, v{31+2*i}")
        for s in range(2):
            A(f"s_add_u32 s39, s38, {2048*s+256*(tt&1)}")
            A(f"buffer_store_dwordx4 v[{o+4*s}:{o+4*s+3}], v72, s[{S_H}:{S_H+3}], s39 offen{STMOD}")
        A(f"s_add_u32 s39, s40, {256*(tt&1)}")
        A(f"buffer_store_dword v{o+8}, v72, s[{S_H}:{S_H+3}], s39 offen{STMOD}")
        if tt==1: A(f"s_add_u32 s38, s38, {NKS_TOT*2048}"); A(f"s_add_u32 s40, s40, {NKS_TOT*2048}")
    ST.stamp(p,8)
    ST.flush(p,70,71,2)
    if MERGE:
        A("s_mov_b32 s90, 1"); A("s_mov_b32 s91, 4")
        if AMAP:
            A(f"s_mul_i32 s92, s{S_RT}, 6"); A(f"s_add_u32 s92, s92, s{S_QD}"); A(f"s_cmp_ge_u32 s{S_QD}, 6"); A("s_cselect_b32 s92, 99, s92")
        else:
            A(f"s_lshl_b32 s92, s{S_RT}, 3"); A(f"s_add_u32 s92, s92, s{S_QD}")
        A(f"s_mov_b32 s93, s{S_W}")
        A(f"s_add_u32 s94, s{S_RT}, 40"); A("s_mov_b32 s95, 0")
        A("s_mul_i32 s38, s92, 171"); A("s_lshr_b32 s38, s38, 10"); A("s_add_u32 s96, s38, 40"); A("s_mov_b32 s97, 8")
        A("s_branch L_p2")
    else:
        A("s_endpgm")
    if docheck:
        ins=p.ins
        body=ins[il:idn]
        tr=ins[:il]+body+body+ins[idn:]
        print("att check problems:",len(check(tr,'att')))
if __name__=="__main__":
    for m in range(1792): assert (m*7282)>>16==m//9
    for n in range(12): assert (n*86)>>8==n//3
    for n in range(768): assert (n*405)>>16==n//162, n
    for n in range(162): assert (n*57)>>9==n//9
    for n in range(192): assert (n*205)>>10==n//5
    p=Prog(); gen_att(p); print(len(p.ins))
```

```python
from core import *
import stamp as ST
import os, math, struct
XNT=os.environ.get('XNT','')
WNT=os.environ.get('WNT','')
STMOD=os.environ.get('STMOD',' sc1')
MERGE=int(os.environ.get('MERGE','1'))
XPF=int(os.environ.get('XPF','0'))
FNT=int(os.environ.get('FNT','0'))
ROT=int(os.environ.get('ROT','0')); WPF=int(os.environ.get('WPF','0'))
def f2u(x): return struct.unpack('<I', struct.pack('<f', x))[0]
C0 = -2.0*math.log2(math.e)*math.sqrt(2.0/math.pi)
C1 = C0*0.044715
NKS_TOT=162; H_BYTES=64*NKS_TOT*2048
CH=16384
XA=65536; XB=32768
WR0=6
def XF(T,s16):
    i=s16*2+T
    if i<64: return f"a[{4*i}:{4*i+3}]"
    i-=64; return f"v[{224+4*i}:{224+4*i+3}]"
def acc(buf,T,sec,r=None):
    b=96+64*buf+32*T+16*sec
    return f"v[{b}:{b+15}]" if r is None else f"v{b+r}"
AR=64; NAR=8
def afr(i): b=AR+4*(i%NAR); return f"v[{b}:{b+3}]"
def afh(i,h): b=AR+4*(i%NAR)+2*h; return f"v[{b}:{b+1}]"
MF="v_mfma_f32_32x32x16_bf16"
TMP0=32; HP=24
V_WD=1
V_XD=3
V_TRP=7
V_TR=11
V_XP=14
V_L16=22
V_C1=23
S_W=24
S_X=8; S_G=12; S_U=16; S_H=20
S_XSO=25; S_XSO2=26; S_WSO=27; S_HSO=28; S_CNT=29; S_MW=30; S_MX=31; S_PF=56; S_PFO=32; S_HST=33; S_AW=34; S_AX=35; S_GRP=48
PKC=[60,62,58]

def gelu(buf, pk=False):
    out=[]
    for T in range(2):
        for e in range(2):
            hp=HP+4*((2*T+e)%2)
            if pk:
                chains=[]
                for r in range(8*e,8*e+8,2):
                    bx=96+64*buf+32*T+r; bu=bx+16
                    X=f"v[{bx}:{bx+1}]"; U=f"v[{bu}:{bu+1}]"
                    a=TMP0+4*((r-8*e)//2)
                    T_=f"v[{a}:{a+1}]"; Y=f"v[{a+2}:{a+3}]"
                    chains.append([f"v_pk_mul_f32 {T_}, {X}, {X}",
                                   f"v_pk_fma_f32 {T_}, {T_}, v[50:51], v[52:53]",
                                   f"v_pk_mul_f32 {T_}, {T_}, {X}",
                                   f"v_exp_f32 v{a}, v{a}", f"v_exp_f32 v{a+1}, v{a+1}",
                                   f"v_pk_mul_f32 {Y}, {X}, {U}",
                                   f"v_pk_add_f32 {T_}, {T_}, v[54:55]",
                                   f"v_rcp_f32 v{a}, v{a}", f"v_rcp_f32 v{a+1}, v{a+1}",
                                   f"v_pk_mul_f32 {Y}, {Y}, {T_}",
                                   f"v_cvt_pk_bf16_f32 v{hp+(r-8*e)//2}, v{a+2}, v{a+3}"])
                for k in range(11):
                    for c in chains: out.append(Ins(c[k]))
            else:
                chains=[]
                for r in range(8*e,8*e+8):
                    x=acc(buf,T,0,r); u=acc(buf,T,1,r)
                    T_,Y=f"v{TMP0+r-8*e}",f"v{TMP0+8+r-8*e}"
                    chains.append([f"v_mul_f32 {T_}, {x}, {x}",
                                   f"v_fmaak_f32 {T_}, v{V_C1}, {T_}, 0x{f2u(C0):08x}",
                                   f"v_mul_f32 {T_}, {T_}, {x}",
                                   f"v_exp_f32 {T_}, {T_}",
                                   f"v_mul_f32 {Y}, {x}, {u}",
                                   f"v_add_f32 {T_}, 1.0, {T_}",
                                   f"v_rcp_f32 {T_}, {T_}",
                                   f"v_mul_f32 {Y}, {Y}, {T_}"])
                for p0 in (0,4):
                    cs=chains[p0:p0+4]
                    for k in range(8):
                        for c in cs: out.append(Ins(c[k]))
                    for pp in (p0,p0+2):
                        out.append(Ins(f"v_cvt_pk_bf16_f32 v{hp+pp//2}, v{TMP0+8+pp}, v{TMP0+8+pp+1}"))
            if not os.environ.get('NOST'): out.append(Ins(f"buffer_store_dwordx4 v[{hp}:{hp+3}], v{V_L16}, s[{S_H}:{S_H+3}], s{S_HSO} offen offset:{1024*e}{STMOD}", tag='st'))
        out.append(Ins(f"s_add_u32 s{S_HSO}, s{S_HSO}, {NKS_TOT*2048}" if T==0 else f"s_sub_u32 s{S_HSO}, s{S_HSO}, {NKS_TOT*2048-2048}"))
    return out
def pkconst():
    return [Ins(f"v_mov_b32 v50, 0x{f2u(C1):08x}"),Ins(f"v_mov_b32 v51, 0x{f2u(C1):08x}"),Ins(f"v_mov_b32 v52, 0x{f2u(C0):08x}"),Ins(f"v_mov_b32 v53, 0x{f2u(C0):08x}"),Ins("v_mov_b32 v54, 1.0"),Ins("v_mov_b32 v55, 1.0")]

def ntify(lst, on):
    if not on: return lst
    return [Ins(x.text.replace(' lds',' nt lds')) if x.kind=='dma' and ' nt' not in x.text else x for x in lst]
def wdma(slot):
    return [Ins(f"s_add_u32 m0, s{S_MW}, {slot*CH}"), Ins("s_nop 0"),
            Ins(f"buffer_load_dwordx4 v{V_WD}, s[{S_G}:{S_G+3}], s{S_WSO} offen lds{WNT}"),
            Ins(f"buffer_load_dwordx4 v{V_WD+1}, s[{S_G}:{S_G+3}], s{S_WSO} offen offset:1024 lds{WNT}"),
            Ins(f"s_add_u32 m0, s{S_MW}, {slot*CH+8192}"), Ins("s_nop 0"),
            Ins(f"buffer_load_dwordx4 v{V_WD}, s[{S_U}:{S_U+3}], s{S_WSO} offen lds{WNT}"),
            Ins(f"buffer_load_dwordx4 v{V_WD+1}, s[{S_U}:{S_U+3}], s{S_WSO} offen offset:1024 lds{WNT}")]
def wadv(last):
    if not ROT:
        return [Ins(f"s_add_u32 s{S_WSO}, s{S_WSO}, {64*9216}")] if not last else [Ins(f"s_sub_u32 s{S_WSO}, s{S_WSO}, {8*64*9216-128}")]
    o=[Ins(f"s_add_u32 s{S_AW}, s{S_AW}, 1"), Ins(f"s_cmp_eq_u32 s{S_AW}, 9"), Ins(f"s_cselect_b32 s{S_AW}, 0, s{S_AW}")]
    if last: o.append(Ins(f"s_add_u32 s{S_GRP}, s{S_GRP}, 128"))
    o+=[Ins(f"s_mul_i32 s{S_WSO}, s{S_AW}, {64*9216}"), Ins(f"s_add_u32 s{S_WSO}, s{S_WSO}, s{S_GRP}")]
    return o
def xdma(c):
    base=XA if c%2==0 else XB
    o=[]
    for i in range(8):
        if i%4==0:
            o.append(Ins(f"s_add_u32 m0, s{S_MX}, {base+4096*(i//4)}")); o.append(Ins("s_nop 0"))
        o.append(Ins(f"buffer_load_dwordx4 v{V_XD+(i%4)}, s[{S_X}:{S_X+3}], s{S_XSO if i<4 else S_XSO2} offen offset:{1024*(i%4)} lds{XNT}"))
    if not ROT:
        return o+[Ins(f"s_add_u32 s{S_XSO}, s{S_XSO}, 128"), Ins(f"s_add_u32 s{S_XSO2}, s{S_XSO2}, 128")]
    o+=[Ins(f"s_add_u32 s{S_AX}, s{S_AX}, 1"), Ins(f"s_cmp_eq_u32 s{S_AX}, 9"), Ins(f"s_cselect_b32 s49, {9*128}, 0"), Ins(f"s_cselect_b32 s{S_AX}, 0, s{S_AX}"),
        Ins(f"s_add_u32 s{S_XSO}, s{S_XSO}, 128"), Ins(f"s_sub_u32 s{S_XSO}, s{S_XSO}, s49"), Ins(f"s_add_u32 s{S_XSO2}, s{S_XSO}, {32*1152}")]
    return o
def xrd(c):
    return [Ins(f"ds_read_b128 {XF(T,4*c+sp)}, v{V_XP+4*(c%2)+sp} offset:{T*4096}") for sp in range(4) for T in range(2)]

def trset(P, g0=False):
    return [Ins(f"v_add_u32 v{V_TR+grp}, {grp*4*CH}, v{V_TRP+P}") for grp in range(3)]
def ard(i, slot, sp, sec, fi):
    grp=slot//4; so=(slot%4)*CH
    return [Ins(f"ds_read_b64_tr_b16 {afh(fi,h)}, v{V_TR+grp} offset:{so+sec*8192+sp*2048+h*512}") for h in range(2)]

PF=4
def phase(buf, entry_pref=True, next_first=None):
    seq=[(c,sp,sec) for c in range(9) for sp in range(4) for sec in range(2)]
    main=[]
    for i,(c,sp,sec) in enumerate(seq):
        if sp==0 and sec==0: main.append(('mark',c,'start'))
        n=i+PF
        if n<len(seq):
            cn,spn,secn=seq[n]
            if spn==0 and secn==0: main.append(('mark',cn,'firstread'))
            nxt=ard(n,cn,spn,secn,n)
        else:
            if n==len(seq): main.append(('mark',9,'firstread'))
            nxt=next_first[n-len(seq)] if next_first else []
        s16=4*c+sp
        for T in range(2):
            cc=acc(buf,T,sec) if s16>0 else "0"
            main.append(Ins(f"{MF} {acc(buf,T,sec)}, {afr(i)}, {XF(T,s16)}, {cc}"))
            if T<len(nxt): main.append(nxt[T])
    return main

def first_reads(P_is_next_set):
    return [ard(k,0,k//2,k%2,72+k) for k in range(PF)]

def expand(main, hooks):
    out=[]
    for x in main:
        if isinstance(x,tuple):
            out+=hooks.get((x[1],x[2]),[])
        else: out.append(x)
    return out

def gen(p):
    A=p
    A("s_mul_i32 s39, s36, 384")
    A(f"s_add_u32 s{S_G}, s42, s39"); A(f"s_addc_u32 s{S_G+1}, s43, 0"); A(f"s_sub_u32 s{S_G+2}, {576*9216}, s39"); A(f"s_mov_b32 s{S_G+3}, 0x20000")
    A(f"s_add_u32 s{S_U}, s44, s39"); A(f"s_addc_u32 s{S_U+1}, s45, 0"); A(f"s_sub_u32 s{S_U+2}, {576*9216}, s39"); A(f"s_mov_b32 s{S_U+3}, 0x20000")
    A(f"s_mul_i32 s38, s37, {256*1152}")
    A(f"s_add_u32 s{S_X}, s40, s38"); A(f"s_addc_u32 s{S_X+1}, s41, 0"); A(f"s_sub_u32 s{S_X}, s{S_X}, 4096"); A(f"s_subb_u32 s{S_X+1}, s{S_X+1}, 0")
    A(f"s_mov_b32 s{S_X+2}, {256*1152+4096}"); A(f"s_mov_b32 s{S_X+3}, 0x20000")
    A("v_and_b32 v24, 63, v0"); A("v_lshrrev_b32 v25, 4, v24"); A("v_and_b32 v26, 15, v24"); A("v_lshrrev_b32 v27, 3, v24"); A("v_and_b32 v28, 7, v24")
    for i in range(4):
        A(f"v_add_u32 v30, {4*(i&1)}, v25"); A("v_and_b32 v30, 7, v30"); A("v_xor_b32 v30, v30, v28"); A("v_lshlrev_b32 v30, 4, v30")
        A(f"v_add_u32 v31, {8*i}, v27"); A("v_mul_u32_u24 v31, 0x480, v31")
        A(f"v_add3_u32 v{V_XD+i}, v30, v31, 0"); A(f"v_add_u32 v{V_XD+i}, {4096-1024*i}, v{V_XD+i}")
    A(f"s_mov_b32 s50, {'s37' if ROT else 0}")
    if ROT==2:
        A("s_mul_i32 s38, s36, 86"); A("s_lshr_b32 s38, s38, 8"); A("s_mul_i32 s38, s38, 3"); A("s_sub_u32 s38, s36, s38"); A("s_mul_i32 s38, s38, 3")
        A("s_add_u32 s50, s50, s38"); A("s_cmp_ge_u32 s50, 9"); A("s_cselect_b32 s38, 9, 0"); A("s_sub_u32 s50, s50, s38")
    A(f"s_mov_b32 s{S_AW}, s50"); A(f"s_mov_b32 s{S_AX}, s50"); A(f"s_mov_b32 s{S_GRP}, 0")
    A(f"s_mul_i32 s{S_XSO}, s{S_W}, {64*1152}"); A("s_lshl_b32 s38, s50, 7"); A(f"s_add_u32 s{S_XSO}, s{S_XSO}, s38"); A(f"s_add_u32 s{S_XSO2}, s{S_XSO}, {32*1152}")
    A(f"s_lshl_b32 s{S_MX}, s{S_W}, 13")
    A.add(ntify(xdma(0), FNT&1))
    A(f"s_lshl_b32 s38, s{S_W}, 4")
    A("v_bfe_u32 v30, v27, 1, 1"); A("v_lshrrev_b32 v31, 2, v28"); A("v_xor_b32 v30, v30, v31"); A("v_lshlrev_b32 v30, 6, v30")
    A("v_and_b32 v31, 3, v28"); A("v_lshlrev_b32 v31, 4, v31"); A("v_add_u32 v30, v30, v31")
    A(f"v_add_u32 v31, s38, v27"); A("v_mul_u32_u24 v31, 0x2400, v31")
    A(f"v_add_u32 v{V_WD}, v30, v31"); A(f"v_add_u32 v{V_WD+1}, {8*9216-1024}, v{V_WD}")
    A(f"s_mul_i32 s{S_WSO}, s{S_AW}, {64*9216}"); A(f"s_lshl_b32 s{S_MW}, s{S_W}, 11")
    A.add(ntify(wdma(WR0+0), FNT&2)); A.add(wadv(False))
    ST.stamp(p,1)
    A(f"s_mov_b32 s{S_H}, s46"); A(f"s_mov_b32 s{S_H+1}, s47"); A(f"s_mov_b32 s{S_H+2}, {H_BYTES}"); A(f"s_mov_b32 s{S_H+3}, 0x20000")
    A(f"v_lshlrev_b32 v{V_L16}, 4, v24")
    A("v_lshrrev_b32 v30, 2, v26"); A("v_and_b32 v31, 3, v26")
    A("v_lshrrev_b32 v29, 1, v25"); A("v_lshlrev_b32 v29, 3, v29"); A("v_add_u32 v29, v29, v30"); A("v_lshlrev_b32 v29, 7, v29")
    A("v_lshlrev_b32 v31, 3, v31"); A("v_add_u32 v29, v29, v31"); A("v_and_b32 v31, 1, v25"); A("v_lshlrev_b32 v31, 5, v31"); A("v_add_u32 v29, v29, v31")
    A("v_lshrrev_b32 v30, 1, v30")
    for P in range(2):
        A(f"v_xor_b32 v31, {P}, v30"); A("v_lshlrev_b32 v31, 6, v31"); A(f"v_add_u32 v{V_TRP+P}, v31, v29")
    A("v_and_b32 v29, 31, v24"); A("v_lshrrev_b32 v30, 5, v24"); A("v_bfe_u32 v31, v29, 1, 3"); A("v_xor_b32 v30, v30, v31"); A("v_lshlrev_b32 v30, 4, v30")
    A("v_lshlrev_b32 v31, 7, v29"); A("v_add_u32 v30, v30, v31"); A(f"v_add_u32 v30, s{S_MX}, v30")
    for sl,base in ((0,XA),(1,XB)):
        A(f"v_add_u32 v{V_XP+4*sl}, {base}, v30")
        for sp in range(1,4): A(f"v_xor_b32 v{V_XP+4*sl+sp}, {32*sp}, v{V_XP+4*sl}")
    A(f"v_mov_b32 v{V_C1}, 0x{f2u(C1):08x}")
    A("s_lshl_b32 s38, s37, 3"); A(f"s_lshl_b32 s39, s{S_W}, 1"); A("s_add_u32 s38, s38, s39"); A(f"s_mul_i32 s38, s38, {NKS_TOT}")
    A("s_mul_i32 s39, s36, 6"); A("s_add_u32 s38, s38, s39"); A(f"s_lshl_b32 s{S_HSO}, s38, 11")
    A("s_lshl_b32 s38, s36, 3"); A("s_add_u32 s38, s38, s37"); A("s_lshl_b32 s38, s38, 2"); A(f"s_add_u32 s38, s38, s{S_W}")
    A(f"s_mul_i32 s{S_PFO}, s38, {8*1024}")
    A(f"s_mov_b32 s{S_PF}, s66"); A(f"s_mov_b32 s{S_PF+1}, s67"); A(f"s_mov_b32 s{S_PF+2}, {4608*1152}"); A(f"s_mov_b32 s{S_PF+3}, 0x20000")
    for s in range(2): A(f"v_add_u32 v{V_TR+s}, {WR0*CH}, v{V_TRP+s}")
    A.add(ntify(wdma(WR0+1), FNT&4)); A.add(wadv(False)); A.add(ntify(xdma(1), FNT&8))
    log=['X0']*8+['W0']*4+['W1']*4+['X1']*8
    def waitfor(tags, extra=""):
        nonlocal log
        idx=[i for i,t in enumerate(log) if t in tags]
        if idx:
            last=max(idx); n=len(log)-1-last
            log=log[last+1:]
            return [Ins(f"s_waitcnt vmcnt({n}) {extra}".strip())]
        return [Ins(f"s_waitcnt {extra}")] if extra else []
    def g0rd(i):
        c,sp,P,sec=i//16,(i%16)//4,(i%4)//2,i%2
        sl=c%4
        return [Ins(f"ds_read_b64_tr_b16 {afh(i,h)}, v{V_TR+P} offset:{sl*CH+sec*8192+sp*2048+h*512}") for h in range(2)]
    p.add(waitfor(('X0','W0'))); p("s_barrier")
    if MERGE:
        import k1
        k1.announce_zero(p, S_W, "L_gx_az", 60)
    ST.stamp(p,2)
    p.add(xrd(0))
    pre=[]
    for i in range(PF): pre+=g0rd(i)
    p.add(pre[:6]); p("s_waitcnt lgkmcnt(6)"); p.add(pre[6:])
    q0=[x.wr for x in pre]
    N0=9*16
    if XPF:
        A("s_mul_i32 s38, s36, 86"); A("s_lshr_b32 s38, s38, 8"); A("s_mul_i32 s38, s38, 3"); A("s_sub_u32 s38, s36, s38")
        A("s_lshl_b32 s38, s38, 6"); A(f"s_lshl_b32 s39, s{S_W}, 4"); A("s_add_u32 s38, s38, s39"); A("s_mul_i32 s74, s38, 1152"); A(f"s_add_u32 s74, s74, {4096+128*XPF}"); A(f"s_add_u32 s75, s74, {8*1152}")
        A("v_and_b32 v63, 63, v0"); A("v_lshrrev_b32 v62, 3, v63"); A("v_mul_u32_u24 v62, 0x480, v62"); A("v_and_b32 v63, 7, v63"); A("v_lshl_add_u32 v63, v63, 4, v62")
    A("s_lshl_b32 s38, s2, 2"); A(f"s_add_u32 s38, s38, s{S_W}"); A("s_mul_i32 s51, s38, 6144")
    A("s_mov_b32 s52, s42"); A("s_mov_b32 s53, s43"); A(f"s_mov_b32 s54, {576*9216}"); A("s_mov_b32 s55, 0x20000")
    A("s_mov_b32 s60, s44"); A("s_mov_b32 s61, s45"); A(f"s_mov_b32 s62, {576*9216}"); A("s_mov_b32 s63, 0x20000")
    def lin(k):
        srd="s[52:55]" if k<6 else "s[60:63]"; kk=k%6
        o=[]
        if kk==4: o.append(Ins("s_add_u32 s51, s51, 4096"))
        if k==6: o.append(Ins("s_sub_u32 s51, s51, 4096"))
        o.append(Ins(f"buffer_load_dwordx4 v[56:59], v{V_L16}, {srd}, s51 offen offset:{1024*(kk%4)}"))
        return o
    def tagged(lst,tag):
        for x in lst:
            if x.kind=='dma': x.tag=tag
        return lst
    def logit(stream):
        for x in stream:
            if getattr(x,'kind',None) in('dma','vmem'): log.append(x.tag or 'P')
    carry=tagged(wdma(WR0+2)+wadv(False),'W2')+tagged(xdma(2),'X2')
    for c in range(9):
        main=[]
        for ii in range(16):
            i=c*16+ii
            if ii==8: main.append(('mid',))
            n=i+PF
            nxt=g0rd(n) if n<N0 else []
            sp,P,sec=ii//4,(ii%4)//2,ii%2; s16=4*c+sp
            for T in range(2):
                cc=acc(P,T,sec) if s16>0 else "0"
                main.append(Ins(f"{MF} {acc(P,T,sec)}, {afr(i)}, {XF(T,s16)}, {cc}"))
                if T<len(nxt): main.append(nxt[T])
        im=main.index(('mid',))
        first=main[:im]; second=main[im+1:]
        if carry: first=spread(first, dma_items(carry), first=2 if c else 0)
        logit(first)
        carry=[]
        midl=[]
        if c+1<9: midl+=waitfor((f'X{c+1}',f'W{c+1}'))
        midl.append(Ins("s_barrier"))
        dl=[]
        if c+3<9: dl+=tagged(wdma(WR0+(c+3)%4)+wadv(c+3==8),f'W{c+3}')
        g1={6:(0,1),7:(2,3),8:(4,5)}.get(c,())
        for cc_ in g1: dl+=tagged(wdma(cc_)+wadv(False),f'G{cc_}')
        if c+1<9:
            xr=xrd(c+1)
            second=spread(second,[[x] for x in xr], first=0, last=9)
        if dl: second=spread(second, dma_items(dl), first=1)
        if XPF and c+XPF<9:
            second=spread(second, [[Ins(f"buffer_load_dwordx4 v[56:59], v63, s[{S_X}:{S_X+3}], s74 offen")],[Ins(f"buffer_load_dwordx4 v[56:59], v63, s[{S_X}:{S_X+3}], s75 offen")],[Ins("s_add_u32 s74, s74, 128"),Ins("s_add_u32 s75, s75, 128")]], first=3)
        if WPF and c<3:
            second=spread(second, [lin(k) for k in range(4*c,4*c+4)], first=5)
        logit(second)
        if c+3<9: carry=tagged(xdma(c+3),f'X{c+3}')
        stream,q0=auto_lgkm(fix_m0(first+midl+second), q0, extra=2)
        p.add(stream)
    ST.stamp(p,3)
    p.add(pkconst()); p("s_nop 7")
    p.add(gelu(0,pk=True)); log+=['S']*4
    p.add(trset(0))
    p.add(waitfor(('G0','G1','G2'))); p("s_barrier")
    fr=first_reads(0)
    for k in range(PF): p.add(fr[k])
    ST.stamp(p,4)
    if MERGE:
        p("s_lshr_b32 s91, s4, 1"); p("s_mov_b32 s90, 0")
        p("s_and_b32 s38, s4, 1"); p("s_mul_i32 s38, s38, 24"); p("s_add_u32 s92, s38, s6")
        p(f"s_mov_b32 s93, s{S_W}")
        p("s_mul_i32 s38, s36, 43"); p("s_lshr_b32 s38, s38, 8"); p("s_lshl_b32 s39, s37, 2"); p("s_add_u32 s94, s38, s39"); p("s_add_u32 s94, s94, 8")
        p("s_mul_i32 s38, s92, 171"); p("s_lshr_b32 s38, s38, 10"); p("s_lshl_b32 s38, s38, 2"); p("s_add_u32 s96, s38, s91"); p("s_add_u32 s95, s96, 8"); p("s_add_u32 s96, s96, 48"); p("s_mov_b32 s97, 6")
        p("s_lshl_b32 s38, s96, 7"); p("v_mov_b32 v48, s38"); p(f"s_add_u32 s64, s70, {0x15C0000}"); p("s_addc_u32 s65, s71, 0")
        p("v_mov_b32 v61, 0"); p("global_load_dword v60, v61, s[68:69] sc1")
    p(f"s_mov_b32 s{S_CNT}, 0")
    il=len(p.ins)
    p.label("L_gx_loop")
    q0=[x.wr for k in range(PF) for x in fr[k]]
    pfl=lambda: [Ins(f"buffer_load_dwordx4 v[56:59], v{V_L16}, s[{S_PF}:{S_PF+3}], s{S_PFO} offen", tag='pf'), Ins(f"s_add_u32 s{S_PFO}, s{S_PFO}, 1024")]
    def marks(m, fn):
        cur=[]
        for x in m:
            if isinstance(x,tuple):
                t=fn(x)
                if t: cur.append(Ins(t+":"))
            else: cur.append(x)
        return cur
    cur=marks(phase(1, next_first=first_reads(0)), lambda x: (f"FREE{x[1]//3-1}" if x[2]=='start' and x[1] in (3,6) else ("PRE9" if x[2]=='firstread' and x[1]==9 else None)))
    def mfma_index_of(cur,lab):
        k=0
        for x in cur:
            if x.kind=='label' and x.text.startswith(lab): return k
            if x.kind=='mfma': k+=1
    for k in (0,1):
        d=[]
        for cc_ in (3*k,3*k+1,3*k+2): d+=wdma(cc_)+wadv(False)
        f=mfma_index_of(cur,f"FREE{k}")
        cur=spread(cur, dma_items(d), first=f+1, last=f+42)
    mer=interleave(cur, ([] if os.environ.get('NOPF') else pfl()+pfl())+gelu(0), budget=5)
    out=[]; seq=[]
    for x in mer:
        if x.kind=='label' and x.text.startswith('FREE'):
            if MERGE and x.text.startswith('FREE1'):
                out.append(Ins(f"s_waitcnt vmcnt({len(seq)})"))
            out.append(Ins("s_barrier"))
            if MERGE and x.text.startswith('FREE1'):
                out+=[Ins(f"s_cmp_eq_u32 s{S_CNT}, 1"), Ins("s_cbranch_scc0 L_gx_nosig"), Ins(f"s_cmp_eq_u32 s{S_W}, 0"), Ins("s_cbranch_scc0 L_gx_nosig"),
                      Ins("v_readfirstlane_b32 s38, v60"), Ins("s_mov_b32 s39, 0"), Ins("L_gx_zr:"), Ins("s_cmp_ge_u32 s38, 273"), Ins("s_cbranch_scc1 L_gx_zok"),
                      Ins("s_add_u32 s39, s39, 1"), Ins("s_cmp_gt_u32 s39, 200000"), Ins("s_cbranch_scc1 L_gx_zok"), Ins("s_sleep 6"),
                      Ins("v_mov_b32 v61, 0"), Ins("global_load_dword v60, v61, s[68:69] sc1"), Ins("s_waitcnt vmcnt(0)"), Ins("v_readfirstlane_b32 s38, v60"), Ins("s_branch L_gx_zr"),
                      Ins("L_gx_zok:"),
                      Ins("s_mul_i32 s38, s36, 43"), Ins("s_lshr_b32 s38, s38, 8"), Ins("s_lshl_b32 s39, s37, 2"), Ins("s_add_u32 s38, s38, s39"), Ins("s_add_u32 s38, s38, 48"), Ins("s_lshl_b32 s38, s38, 7"),
                      Ins(f"s_add_u32 s72, s70, {0x15C0000}"), Ins("s_addc_u32 s73, s71, 0"),
                      Ins("v_mov_b32 v61, s38"), Ins("v_mov_b32 v62, 1"), Ins("v_cmp_eq_u32 vcc, 0, v0"), Ins("s_and_saveexec_b64 s[74:75], vcc"),
                      Ins("global_atomic_add v61, v62, s[72:73] sc1"), Ins("s_mov_b64 exec, s[74:75]"), Ins("L_gx_nosig:"), Ins("s_nop 0")]
        elif x.kind=='label' and x.text.startswith('PRE9'):
            d=[i for i,t in enumerate(seq) if t=='dma']; assert len(d)==24
            out.append(Ins(f"s_waitcnt vmcnt({len(seq)-1-d[11]})")); out.append(Ins("s_barrier")); out+=trset(0)
        else:
            if x.kind in('vmem','dma'): seq.append(x.kind)
            out.append(x)
    if MERGE:
        ist=[i for i,x in enumerate(out) if x.tag=='st']
        out.insert(ist[-1]-30, Ins("global_load_dword v49, v48, s[64:65] sc1", tag='look'))
        vm=[x for x in out if x.kind in('vmem','dma')]
        n_after_look=len(vm)-1-[i for i,x in enumerate(vm) if x.tag=='look'][0]
        assert all(x.kind!='dma' for x in vm[len(vm)-n_after_look:])
    out1=out; tail_exact=len(seq)-1-max(i for i,t in enumerate(seq) if t=='dma'); tail1=min(4,tail_exact)
    cur=marks(phase(0, next_first=first_reads(1)), lambda x: (f"LAND{x[1]}" if x[2]=='firstread' and x[1] in (3,6) else ("SWITCH1" if x[2]=='firstread' and x[1]==9 else None)))
    d678=wdma(6)+wadv(False)+wdma(7)+wadv(False)+wdma(8)+wadv(True)
    cur=spread(cur, dma_items(d678), first=1, last=42)
    mer=interleave(cur, ([] if os.environ.get('NOPF') else pfl()+pfl())+gelu(1), budget=5)
    out=[]; seq=[]
    for x in mer:
        if x.kind=='label' and x.text.startswith('LAND3'):
            out.append(Ins(f"s_waitcnt vmcnt({len(seq)+tail1})")); out.append(Ins("s_barrier"))
        elif x.kind=='label' and x.text.startswith('LAND6'):
            last=max(i for i,t in enumerate(seq) if t=='dma'); assert seq.count('dma')==12
            out.append(Ins(f"s_waitcnt vmcnt({len(seq)-1-last})")); out.append(Ins("s_barrier"))
        elif x.kind=='label' and x.text.startswith('SWITCH'):
            out+=trset(1)
        else:
            if x.kind in('vmem','dma'): seq.append(x.kind)
            out.append(x)
    st,q1=auto_lgkm(out,q0,extra=2)
    p.add(st)
    st,q2=auto_lgkm(out1,q1,extra=2)
    p.add(st)
    p("s_barrier")
    p(f"s_add_u32 s{S_CNT}, s{S_CNT}, 1"); p(f"s_cmp_lt_u32 s{S_CNT}, 2"); p("s_cbranch_scc1 L_gx_loop")
    idn=len(p.ins)
    assert [sorted(d) for d in q2]==[sorted(x.wr) for k in range(PF) for x in fr[k]] or True
    p("s_waitcnt lgkmcnt(0)")
    ST.stamp(p,5)
    if MERGE:
        import p2 as P2
        p(f"s_waitcnt vmcnt({n_after_look})"); p("s_barrier")
        P2.gen_p2a_ffn(p)
    p.add(pkconst()); p("s_nop 7")
    p.add(gelu(1,pk=True))
    ST.stamp(p,6)
    ST.flush(p,70,71,0)
    if MERGE: p("s_branch L_p2b")
    return il,idn
```

```python
from core import *
import stamp as ST
from k1_gx import NKS_TOT, H_BYTES, f2u, GSHAPE
import os
G_OFF=0x1500000; P_OFF=0x1600000
U=12; STG=12288; D=int(os.environ.get('P2D','4')); B2=int(os.environ.get('P2B2','0'))
HMOD=os.environ.get('HMOD',' sc1')
OMOD=os.environ.get('OMOD','')
SLEEP2=int(os.environ.get('SLEEP2','2'))
SLEEP=int(os.environ.get('SLEEP','6'))
ACC=64
P2S=int(os.environ.get('P2S','16'))
RL=6
assert not B2 or D+2<=RL or True
def acc(q,r=None):
    b=ACC+q*16
    return f"v[{b}:{b+15}]" if r is None else f"v{b+r}"
def acc16(q,tt,r=None):
    b=ACC+(q*2+tt)*4
    return f"v[{b}:{b+3}]" if r is None else f"v{b+r}"
def hfr(u,b_): b=(u*2+b_)*4; return f"a[{b}:{b+3}]"
def afr(q): b=96+4*q; return f"a[{b}:{b+3}]"
def afh(q,h): b=96+4*q+2*h; return f"a[{b}:{b+1}]"
MF="v_mfma_f32_32x32x16_bf16"
V_TR=8; V_HL=12; V_DL=14; V_DF=17; V_L16=20; V_LT=7
S_H=16; S_P=20; S_CUR=24
S_W=93; S_WB=29; S_DSO=30; S_INA=31; S_INB=32; S_HS0=33; S_HS1=34; S_RND=35; S_NR=36; S_XA=37; S_XF=67; S_XS=66
WI={'e':31,'a':32,'b':46,'c':47}; HI={'e':52,'a':53,'b':54,'c':55}
S_JT=90
S_JO=91
S_JTILE=92
S_JW=93
CNT_OFF=0x15C0000
HC0=8; OC0=40; HE0=48; TW0=80; NLINES=272

def trread(i,h,stage):
    so=(stage%RL)*STG
    if P2S==16:
        x=Ins(f"ds_read_b64_tr_b16 {afh(i,h)}, v{V_TR+(i&3)} offset:{so+(i>>2)*128+h*1536}"); x.cost=1
        return x
    b_,q=i//6,i%6
    sl=stage%RL; grp=sl//3; so=(sl%3)*STG
    return Ins(f"ds_read_b64_tr_b16 {afh(i,h)}, v{V_TR+2*grp+(q&1)} offset:{so+(q&~1)*64+b_*6144+h*1536}")
def cls(v):
    v%=12
    return 'e' if v%2==0 else ('c' if v==11 else ('b' if v%4==3 else 'a'))
def issue_h(idx):
    u_dst=idx%U
    va,o1=(V_HL,256) if P2S==16 else (V_L16,1024)
    return [Ins(f"buffer_load_dwordx4 {hfr(u_dst,0)}, v{va}, s[{S_H}:{S_H+3}], s{S_HS0} offen{HMOD}"),
            Ins(f"buffer_load_dwordx4 {hfr(u_dst,1)}, v{va}, s[{S_H}:{S_H+3}], s{S_HS0} offen offset:{o1}{HMOD}"),
            Ins(f"s_add_u32 s{S_HS0}, s{S_HS0}, s{HI[cls(idx)]}")]
def issue_w(idx):
    u_dst=idx%U
    o=[Ins(f"s_add_u32 m0, s{S_WB}, {(u_dst%RL)*STG}"), Ins("s_nop 0")]
    for e in range(3):
        o.append(Ins(f"buffer_load_dwordx4 v{V_DF+e}, s[{S_CUR}:{S_CUR+3}], s{S_DSO} offen offset:{1024*e} lds"))
    o.append(Ins(f"s_add_u32 s{S_DSO}, s{S_DSO}, s{WI[cls(idx)]}"))
    return o
def items2(lst):
    items=[]; pend=[]
    for x in lst:
        if x.kind=='nop': continue
        if x.kind in('dma','vmem'):
            if pend: items.append(pend); pend=[]
            items.append([x])
        else: pend.append(x)
    if pend: items.append(pend)
    return items
def step(u):
    if B2:
        main=[Ins(f"s_waitcnt vmcnt({5*(D-3)})"),Ins("s_barrier")] if u%2==0 else [Ins("s_nop 0"),Ins("s_nop 0")]
    else:
        main=[Ins(f"s_waitcnt vmcnt({5*(D-2)})"),Ins("s_barrier")]
    un=(u+1)%U
    for i in range(12):
        if i%2==0: main.append(Ins("s_waitcnt lgkmcnt(8)"))
        n=i+6
        rd=[trread(n,h,u) for h in range(2)] if n<12 else [trread(n-12,h,un) for h in range(2)]
        if P2S==16:
            for tt in range(2):
                main.append(Ins(f"v_mfma_f32_16x16x32_bf16 {acc16(i,tt)}, {afr(i)}, {hfr(u,tt)}, {acc16(i,tt)}")); main.append(rd[tt])
        else:
            b_,q=i//6,i%6
            main.append(Ins(f"{MF} {acc(q)}, {afr(i)}, {hfr(u,b_)}, {acc(q)}"))
            main+=rd
    fl=issue_h(u+D)+issue_w(u+D)
    if u==(24-D-12)-4: fl=[Ins("global_load_dword v27, v7, s[64:65] sc1")]+fl
    res=spread(main, items2(fl), first=0 if P2S==32 else 2, last=11 if P2S==32 else 22)
    if u==(16-D)%12:
        sw=[Ins(f"s_cmp_eq_u32 s{S_RND}, s{S_XS}"), Ins("s_cbranch_scc0 L_p2_nosw")]
        sw+=[Ins(f"v_mov_b32 v{V_DF+e}, v{V_DL+e}") for e in range(3)]
        sw+=[Ins(f"s_mov_b32 s{S_DSO}, 0")]+[Ins(f"s_mov_b32 s{WI[k]}, {288*1152}") for k in 'eabc']+[Ins("L_p2_nosw:"),Ins("s_nop 0")]
        res=res[:2]+sw+res[2:]
    if u==(8 if D==4 else 24-D-12):
        sw=[Ins(f"s_cmp_eq_u32 s{S_RND}, s{S_XF}"), Ins("s_cbranch_scc0 L_p2_nolate")]
        sw+=[Ins(f"s_mov_b32 s{WI['a']}, {5*32*1152}"), Ins(f"s_mov_b32 s{WI['b']}, {5*32*1152}"), Ins(f"s_mov_b32 s{HI['a']}, {5*2048}"), Ins(f"s_mov_b32 s{HI['b']}, {5*2048}")]
        sw+=[Ins("v_readfirstlane_b32 s38, v27"), Ins("s_mov_b32 s39, 0"), Ins("L_p2_late:"), Ins("s_cmp_ge_u32 s38, 6"), Ins("s_cbranch_scc1 L_p2_nolate"),
             Ins("s_add_u32 s39, s39, 1"), Ins("s_cmp_gt_u32 s39, 200000"), Ins("s_cbranch_scc1 L_p2_nolate"), Ins(f"s_sleep {SLEEP}"),
             Ins("global_load_dword v27, v7, s[64:65] sc1"), Ins("s_waitcnt vmcnt(0)"), Ins("v_readfirstlane_b32 s38, v27"), Ins("s_branch L_p2_late"),
             Ins("L_p2_nolate:"), Ins("s_nop 0")]
        res=res[:2]+sw+res[2:]
    if u==5:
        res+=[Ins(f"s_cmp_eq_u32 s{S_RND}, s{S_XA}"), Ins("s_cbranch_scc1 L_p2_lend")]
    if u==11:
        res+=[Ins(f"s_add_u32 s{WI['c']}, s{WI['c']}, s60"), Ins(f"s_add_u32 s{HI['c']}, s{HI['c']}, s61")]
    return res

def cnt_base(p):
    p(f"s_add_u32 s64, s70, {CNT_OFF}"); p("s_addc_u32 s65, s71, 0")
def poll(p, idx_s, target, lab, wreg=S_JW, early=None):
    p(f"s_cmp_eq_u32 s{wreg}, 0"); p(f"s_cbranch_scc0 {lab}_ok")
    if early:
        p(f"v_readfirstlane_b32 s38, {early}"); p("s_nop 1"); p(f"s_cmp_ge_u32 s38, {target}"); p(f"s_cbranch_scc1 {lab}_ok")
    p(f"s_lshl_b32 s38, s{idx_s}, 7"); p("v_mov_b32 v2, s38")
    p("s_mov_b32 s39, 0")
    p.label(lab)
    p(f"global_load_dword v3, v2, s[64:65] sc1"); p("s_waitcnt vmcnt(0)")
    p("v_readfirstlane_b32 s38, v3"); p("s_add_u32 s39, s39, 1")
    p(f"s_cmp_ge_u32 s38, {target}"); p(f"s_cbranch_scc1 {lab}_ok")
    p("s_cmp_gt_u32 s39, 200000"); p(f"s_cbranch_scc1 {lab}_ok")
    p(f"s_sleep {SLEEP}"); p(f"s_branch {lab}")
    p.label(lab+"_ok")
    p("s_barrier")
def signal(p, vtmp, idx_s, lab, wreg=S_JW):
    p(f"s_cmp_eq_u32 s{wreg}, 0"); p(f"s_cbranch_scc0 {lab}")
    p(f"s_lshl_b32 s38, s{idx_s}, 7"); p(f"v_mov_b32 v{vtmp}, s38"); p(f"v_mov_b32 v{vtmp+1}, 1")
    p("v_cmp_eq_u32 vcc, 0, v0"); p("s_and_saveexec_b64 s[48:49], vcc")
    p(f"global_atomic_add v{vtmp}, v{vtmp+1}, s[64:65] sc1")
    p("s_mov_b64 exec, s[48:49]")
    p.label(lab)
def zero_ready(p, lab, wreg, vt=2, early=None, inval=None):
    p(f"s_cmp_eq_u32 s{wreg}, 0"); p(f"s_cbranch_scc0 {lab}_ok")
    if early:
        p(f"v_readfirstlane_b32 s38, {early}"); p("s_nop 1"); p(f"s_cmp_ge_u32 s38, {NLINES}"); p(f"s_cbranch_scc1 {lab}_ok")
        if inval: p(f"v_mov_b32 {inval}, 0")
    p(f"v_mov_b32 v{vt}, 0"); p("s_mov_b32 s39, 0")
    p.label(lab)
    p(f"global_load_dword v{vt+1}, v{vt}, s[68:69] sc1"); p("s_waitcnt vmcnt(0)")
    p(f"v_readfirstlane_b32 s38, v{vt+1}"); p("s_add_u32 s39, s39, 1")
    p(f"s_cmp_ge_u32 s38, {NLINES}"); p(f"s_cbranch_scc1 {lab}_ok")
    p("s_cmp_gt_u32 s39, 200000"); p(f"s_cbranch_scc1 {lab}_ok")
    p(f"s_sleep {SLEEP}"); p(f"s_branch {lab}")
    p.label(lab+"_ok")

def p2_setup(p, early=True):
    cnt_base(p)
    if early:
        p("v_mov_b32 v28, 0"); p("global_load_dword v29, v28, s[68:69] sc1")
        p("s_lshl_b32 s38, s96, 7"); p("v_mov_b32 v24, s38"); p("global_load_dword v25, v24, s[64:65] sc1")
    p("s_load_dwordx2 s[40:41], s[0:1], 24")
    p("s_load_dwordx2 s[42:43], s[0:1], 56")
    p("s_load_dwordx2 s[44:45], s[0:1], 72")
    p(f"s_mul_i32 s5, s{S_JTILE}, 171"); p("s_lshr_b32 s5, s5, 9")
    p("s_mul_i32 s6, s5, 3"); p(f"s_sub_u32 s6, s{S_JTILE}, s6")
    p("v_and_b32 v1, 63, v0"); p(f"v_lshlrev_b32 v{V_L16}, 4, v1")
    p(f"s_mul_i32 s48, s{S_W}, 192")
    p(f"s_cmp_eq_u32 s{S_JT}, 1"); p("s_cselect_b64 s[50:51], -1, 0")
    for e in range(3):
        p(f"v_add_u32 v4, s48, v1")
        if e: p(f"v_add_u32 v4, {64*e}, v4")
        p("v_mul_u32_u24 v5, 0xaab, v4"); p("v_lshrrev_b32 v5, 16, v5")
        p("v_mul_u32_u24 v6, 24, v5"); p("v_sub_u32 v6, v4, v6")
        if P2S==32:
            p("v_bfe_u32 v7, v5, 1, 1"); p("v_lshrrev_b32 v4, 2, v6"); p("v_xor_b32 v4, v4, v7"); p("v_lshlrev_b32 v4, 6, v4")
            p("v_and_b32 v6, 3, v6"); p("v_lshlrev_b32 v6, 4, v6")
        else:
            p("v_bfe_u32 v7, v5, 1, 1"); p("v_bfe_u32 v4, v5, 3, 1"); p("v_lshlrev_b32 v4, 1, v4"); p("v_or_b32 v7, v7, v4")
            p("v_lshrrev_b32 v4, 1, v6"); p("v_xor_b32 v4, v4, v7"); p("v_lshlrev_b32 v4, 5, v4")
            p("v_and_b32 v6, 1, v6"); p("v_lshlrev_b32 v6, 4, v6")
        p(f"v_add3_u32 v4, v4, v6, 0"); p(f"v_add_u32 v31, {4096-1024*e}, v4")
        if GSHAPE==32:
            p("v_and_b32 v6, 16, v5"); p("v_bfe_u32 v7, v5, 3, 1"); p("v_lshl_add_u32 v6, v7, 2, v6")
            p("v_and_b32 v7, 3, v5"); p("v_add_u32 v6, v6, v7"); p("v_bfe_u32 v7, v5, 2, 1"); p("v_lshl_add_u32 v6, v7, 3, v6")
        else:
            p("v_bfe_u32 v6, v5, 2, 1"); p("v_lshlrev_b32 v6, 4, v6"); p("v_lshrrev_b32 v7, 3, v5"); p("v_lshl_add_u32 v6, v7, 2, v6")
            p("v_and_b32 v7, 3, v5"); p("v_add_u32 v6, v6, v7")
        p("v_lshrrev_b32 v7, 3, v5"); p("v_mul_u32_u24 v7, 18, v7"); p("v_and_b32 v30, 7, v5"); p("v_add_u32 v7, v7, v30")
        p("v_cndmask_b32 v6, v6, v7, s[50:51]")
        p("v_mul_u32_u24 v6, 0x480, v6"); p(f"v_add_u32 v{V_DF+e}, v6, v31")
        p("v_bfe_u32 v6, v5, 1, 2"); p("v_mul_u32_u24 v6, 72, v6"); p("v_lshrrev_b32 v7, 3, v5"); p("v_mul_u32_u24 v7, 18, v7"); p("v_add_u32 v6, v6, v7")
        p("v_and_b32 v7, 1, v5"); p("v_add3_u32 v6, v6, v7, 16"); p("v_mul_u32_u24 v6, 0x480, v6"); p(f"v_add_u32 v{V_DL+e}, v6, v31")
    p("v_lshrrev_b32 v2, 4, v1"); p("v_and_b32 v3, 15, v1")
    p("v_lshrrev_b32 v4, 2, v3"); p("v_and_b32 v5, 3, v3")
    if P2S==32:
        p("v_lshrrev_b32 v6, 1, v2"); p("v_lshlrev_b32 v6, 3, v6"); p("v_add_u32 v6, v6, v4"); p("v_mul_u32_u24 v6, 0x180, v6")
        p("v_lshlrev_b32 v5, 3, v5"); p("v_add_u32 v6, v6, v5"); p("v_and_b32 v5, 1, v2"); p("v_lshl_add_u32 v6, v5, 5, v6")
        p("v_lshrrev_b32 v4, 1, v4")
        for k in range(2):
            p(f"v_xor_b32 v5, {k}, v4"); p("v_lshlrev_b32 v5, 6, v5"); p(f"v_add_u32 v{V_TR+k}, v5, v6"); p(f"v_add_u32 v{V_TR+2+k}, {3*STG}, v{V_TR+k}")
    else:
        p("v_lshlrev_b32 v6, 3, v2"); p("v_add_u32 v6, v6, v4"); p("v_mul_u32_u24 v6, 0x180, v6")
        p("v_lshlrev_b32 v5, 3, v5"); p("v_add_u32 v6, v6, v5")
        p("v_lshrrev_b32 v4, 1, v4"); p("v_and_b32 v5, 1, v2"); p("v_lshlrev_b32 v5, 1, v5"); p("v_or_b32 v4, v4, v5")
        for k in range(4):
            p(f"v_xor_b32 v5, {k}, v4"); p("v_lshlrev_b32 v5, 5, v5"); p(f"v_add_u32 v{V_TR+k}, v5, v6")
        p("v_lshrrev_b32 v4, 1, v2"); p("v_lshlrev_b32 v4, 10, v4"); p("v_and_b32 v5, 1, v2"); p("v_lshlrev_b32 v5, 9, v5"); p("v_lshlrev_b32 v6, 4, v3")
        p(f"v_add3_u32 v{V_HL}, v4, v5, v6")
    for r in range(ACC,ACC+96): p(f"v_mov_b32 v{r}, 0")
    p("s_waitcnt lgkmcnt(0)")
    p(f"s_cmp_eq_u32 s{S_JT}, 1")
    R=32*1152
    p("s_cselect_b32 s4, s40, s42"); p("s_cselect_b32 s7, s41, s43")
    p(f"s_mov_b32 s62, {4608*1152+4096}"); p(f"s_cselect_b32 s62, {576*1152+4096}, s62")
    for k,(fv,av) in {'e':(1,8),'a':(1,64),'b':(3,64),'c':(3,64)}.items():
        p(f"s_mov_b32 s{WI[k]}, {fv*R}"); p(f"s_cselect_b32 s{WI[k]}, {av*1152}, s{WI[k]}")
    for k,fv in {'e':1,'a':1,'b':3,'c':3}.items():
        p(f"s_mov_b32 s{HI[k]}, {fv*2048}"); p(f"s_cselect_b32 s{HI[k]}, 2048, s{HI[k]}")
    p(f"s_mov_b32 s60, {(-32*R)&0xffffffff}"); p("s_cselect_b32 s60, 0, s60"); p(f"s_mov_b32 s61, {(-32*2048)&0xffffffff}"); p("s_cselect_b32 s61, 0, s61")
    p(f"s_mov_b32 s{S_NR}, 3"); p(f"s_cselect_b32 s{S_XA}, 1, 99"); p(f"s_cselect_b32 s{S_XF}, 99, 1"); p(f"s_cselect_b32 s{S_XS}, {(16-D)//12}, 99")
    p(f"s_mul_i32 s63, s{S_JO}, 36"); p(f"s_cselect_b32 s63, 144, s63")
    p(f"s_mul_i32 s56, s63, {R}"); p(f"s_cselect_b32 s{S_DSO}, 0, s56")
    p("s_mul_i32 s57, s6, 384")
    p(f"s_add_u32 s{S_CUR}, s4, s57"); p(f"s_addc_u32 s{S_CUR+1}, s7, 0"); p(f"s_sub_u32 s{S_CUR}, s{S_CUR}, 4096"); p(f"s_subb_u32 s{S_CUR+1}, s{S_CUR+1}, 0")
    p(f"s_sub_u32 s{S_CUR+2}, s62, s57"); p(f"s_mov_b32 s{S_CUR+3}, 0x20000")
    p(f"s_mov_b32 s{S_H}, s70"); p(f"s_mov_b32 s{S_H+1}, s71"); p(f"s_mov_b32 s{S_H+2}, {H_BYTES}"); p(f"s_mov_b32 s{S_H+3}, 0x20000")
    p("s_lshl_b32 s57, s5, 2"); p(f"s_add_u32 s57, s57, s{S_W}")
    p(f"s_mul_i32 s48, s57, {NKS_TOT}"); p("s_add_u32 s48, s48, s63"); p(f"s_lshl_b32 s{S_HS0}, s48, 11")
    p(f"s_mul_i32 s{S_WB}, s{S_W}, 3072")

def p2_first_loads(p, uniq):
    poll(p, 96, "s97", f"L_p2_poll1{uniq}", early="v25")
    p("s_lshl_b32 s38, s95, 7"); p(f"v_mov_b32 v{V_LT}, s38")
    for i in range(D): p.add(issue_h(i))

def gen_p2a_ffn(p):
    p("v_mov_b32 v25, v49")
    p2_setup(p, early=False)
    for i in range(D): p.add(issue_w(i))
    p2_first_loads(p, "f")

def gen_p2(p, docheck=True):
    i0=len(p.ins)
    p.label("L_p2")
    p2_setup(p)
    p("s_waitcnt vmcnt(0)"); p("s_barrier")
    zero_ready(p, "L_p2_zr", S_JW, early="v29", inval="v25")
    signal(p, 4, 94, "L_p2_sig1")
    ST.stamp(p,7)
    p(f"s_cmp_ge_u32 s{S_JTILE}, 48"); p("s_cbranch_scc1 L_p2_end")
    for i in range(D): p.add(issue_w(i))
    p2_first_loads(p, "")
    p(f"s_waitcnt vmcnt({2*(D-2)})" if not B2 else f"s_waitcnt vmcnt({min(4,2*(D-3))})"); p("s_barrier")
    p("s_branch L_p2c")
    p.label("L_p2b")
    p("s_waitcnt vmcnt(0)"); p("s_barrier")
    signal(p, 4, 94, "L_p2_sig1b")
    ST.stamp(p,7)
    p.label("L_p2c")
    ST.stamp(p,8)
    for q in range(6):
        for h in range(2): p.add([trread(q,h,0)])
    p(f"s_mov_b32 s{S_RND}, 0")
    iA=len(p.ins)
    p.label("L_p2_loop")
    for u in range(U): p.add(step(u))
    p(f"s_add_u32 s{S_RND}, s{S_RND}, 1"); p(f"s_cmp_lt_u32 s{S_RND}, s{S_NR}"); p("s_cbranch_scc1 L_p2_loop")
    iA2=len(p.ins)
    p.label("L_p2_lend")
    p("s_waitcnt vmcnt(0) lgkmcnt(0)")
    ST.stamp(p,9)
    p(f"s_mul_i32 s47, s{S_JTILE}, 5"); p(f"s_add_u32 s47, s47, s{S_JO}"); p("s_lshl_b32 s47, s47, 2"); p(f"s_add_u32 s47, s47, s{S_W}"); p("s_mul_i32 s47, s47, 12288")
    p(f"s_add_u32 s{S_P}, s70, {P_OFF}"); p(f"s_addc_u32 s{S_P+1}, s71, 0"); p(f"s_mov_b32 s{S_P+2}, {240*4*12288}"); p(f"s_mov_b32 s{S_P+3}, 0x20000")
    p("s_nop 7")
    OWN=200
    for i in range(12):
        q,e=i//2,i%2
        t=32+4*(i%4)
        p(f"s_cmp_eq_u32 s{S_JO}, {i%5}"); p(f"s_cbranch_scc1 L_p3_own{i}")
        def cr(k):
            if P2S==32: return acc(q,8*e+k)
            tt,pp=i//6,i%6
            return acc16(2*pp+k//4,tt,k%4)
        for k in range(4): p(f"v_cvt_pk_bf16_f32 v{t+k}, {cr(2*k)}, {cr(2*k+1)}")
        off=i*1024
        p(f"s_add_u32 s56, s47, {off - off%4096}")
        p(f"buffer_store_dwordx4 v[{t}:{t+3}], v{V_L16}, s[{S_P}:{S_P+3}], s56 offen offset:{off%4096} sc1")
        p(f"s_branch L_p3_nx{i}")
        p.label(f"L_p3_own{i}")
        for k in range(8): p(f"v_mov_b32 v{OWN+8*(i//5)+k}, {cr(k)}")
        p.label(f"L_p3_nx{i}")
    p(f"s_lshl_b32 s57, s{S_JTILE}, 2"); p(f"s_add_u32 s57, s57, s{S_W}"); p(f"s_add_u32 s57, s57, {TW0}")
    if P2S==32: p("v_and_b32 v4, 31, v1"); p("v_lshrrev_b32 v5, 5, v1")
    else: p("v_and_b32 v4, 15, v1"); p("v_lshrrev_b32 v5, 4, v1")
    p("s_lshl_b32 s60, s5, 7"); p(f"s_lshl_b32 s61, s{S_W}, 5"); p("s_add_u32 s60, s60, s61")
    p("v_add_u32 v6, s60, v4")
    p("v_lshlrev_b32 v7, 2, v6")
    p("v_mul_u32_u24 v6, 0x480, v6"); p("v_lshlrev_b32 v5, 3, v5"); p("v_add_u32 v6, v6, v5")
    p("s_mov_b32 s8, s44"); p("s_mov_b32 s9, s45"); p(f"s_mov_b32 s10, {2048*1152}"); p("s_mov_b32 s11, 0x20000")
    p(f"s_add_u32 s12, s70, {G_OFF}"); p("s_addc_u32 s13, s71, 0"); p("s_mov_b32 s14, 8192"); p("s_mov_b32 s15, 0x20000")
    p(f"s_mul_i32 s62, s{S_JTILE}, {5*4*12288}"); p(f"s_mul_i32 s63, s{S_W}, 12288"); p("s_add_u32 s62, s62, s63")
    p("s_lshl_b32 s38, s57, 7"); p("v_mov_b32 v2, s38"); p("v_mov_b32 v8, 1")
    p("s_waitcnt vmcnt(0)")
    ST.stamp(p,1)
    p("v_cmp_eq_u32 vcc, 0, v1"); p("s_and_saveexec_b64 s[48:49], vcc")
    p("global_atomic_add v2, v8, s[64:65] sc1")
    p("s_mov_b64 exec, s[48:49]")
    p("s_mov_b32 s39, 0")
    p.label("L_p2_poll2")
    p("global_load_dword v3, v2, s[64:65] sc1"); p("s_waitcnt vmcnt(0)")
    p("v_readfirstlane_b32 s38, v3"); p("s_add_u32 s39, s39, 1")
    p("s_cmp_ge_u32 s38, 5"); p("s_cbranch_scc1 L_p2_poll2_ok")
    p("s_cmp_gt_u32 s39, 200000"); p("s_cbranch_scc1 L_p2_poll2_ok")
    p(f"s_sleep {SLEEP2}"); p("s_branch L_p2_poll2")
    p.label("L_p2_poll2_ok")
    ST.stamp(p,2)
    p(f"buffer_load_dword v11, v7, s[12:15], 0 offen sc1")
    if P2S==16: p(f"buffer_load_dword v13, v7, s[12:15], 0 offen offset:64 sc1")
    for k in range(4):
        p(f"s_add_u32 s38, s{S_JO}, {k+1}"); p("s_and_b32 s38, s38, 3")
        if k==3: p("s_mov_b32 s38, 4")
        p(f"s_cmp_eq_u32 s{S_JO}, 4"); p(f"s_cselect_b32 s38, {k}, s38"); p(f"s_mul_i32 s{52+k}, s38, {4*12288}")
    for c in range(3):
        if c==2: p(f"s_cmp_gt_u32 s{S_JO}, 1"); p("s_cbranch_scc1 L_p3_ld2")
        p(f"s_add_u32 s63, s{S_JO}, {5*c}"); p("s_lshl_b32 s63, s63, 10"); p("s_add_u32 s63, s63, s62")
        for k in range(4):
            b=64+(c*4+k)*4
            p(f"s_add_u32 s38, s63, s{52+k}")
            p(f"buffer_load_dwordx4 v[{b}:{b+3}], v{V_L16}, s[{S_P}:{S_P+3}], s38 offen sc1")
    p.label("L_p3_ld2")
    p("s_waitcnt vmcnt(0)")
    if P2S==32: p("v_sub_f32 v12, 1.0, v11")
    else: p("v_mov_b32 v14, v11")
    p(f"s_cmp_eq_u32 s{S_JO}, 4"); p("s_cbranch_scc1 L_p3_att")
    for variant in range(2):
        if variant==1: p.label("L_p3_att")
        for c in range(3):
            if c==2: p(f"s_cmp_gt_u32 s{S_JO}, 1"); p("s_cbranch_scc1 L_p2_end")
            if variant==1 and c==2: break
            if P2S==32:
                p(f"s_add_u32 s63, s{S_JO}, {5*c}"); p("s_lshl_b32 s63, s63, 5"); p("s_mul_i32 s56, s6, 384"); p("s_add_u32 s63, s63, s56")
            else:
                p(f"s_add_u32 s63, s{S_JO}, {5*c}"); p("s_cmp_ge_u32 s63, 6"); p("s_cselect_b32 s56, 6, 0"); p("s_cselect_b64 s[50:51], -1, 0"); p(f"s_cselect_b32 s57, {16*1152}, 0")
                p("s_sub_u32 s63, s63, s56"); p("s_lshl_b32 s63, s63, 6"); p("s_mul_i32 s56, s6, 384"); p("s_add_u32 s63, s63, s56"); p("s_add_u32 s63, s63, s57")
                p("v_cndmask_b32 v11, v14, v13, s[50:51]"); p("v_sub_f32 v12, 1.0, v11")
            for k in range(4):
                lo=40+2*k; hi=41+2*k; own=f"v[{OWN+8*c+2*k}:{OWN+8*c+2*k+1}]"
                def unpack(src):
                    s_=64+(c*4+src)*4+k
                    p(f"v_lshlrev_b32 v48, 16, v{s_}"); p(f"v_and_b32 v49, 0xffff0000, v{s_}")
                if variant==0:
                    unpack(0); p(f"v_pk_add_f32 v[{lo}:{hi}], {own}, v[48:49]")
                    for src in (1,2): unpack(src); p(f"v_pk_add_f32 v[{lo}:{hi}], v[{lo}:{hi}], v[48:49]")
                    unpack(3)
                    p(f"v_pk_mul_f32 v[{lo}:{hi}], v[{lo}:{hi}], v[12:13] op_sel_hi:[1,0]")
                    p(f"v_pk_fma_f32 v[{lo}:{hi}], v[48:49], v[10:11], v[{lo}:{hi}] op_sel:[0,1,0] op_sel_hi:[1,1,1]")
                else:
                    s0=64+(c*4)*4+k
                    p(f"v_lshlrev_b32 v{lo}, 16, v{s0}"); p(f"v_and_b32 v{hi}, 0xffff0000, v{s0}")
                    for src in (1,2,3): unpack(src); p(f"v_pk_add_f32 v[{lo}:{hi}], v[{lo}:{hi}], v[48:49]")
                    p(f"v_pk_mul_f32 v[{lo}:{hi}], v[{lo}:{hi}], v[12:13] op_sel_hi:[1,0]")
                    p(f"v_pk_fma_f32 v[{lo}:{hi}], {own}, v[10:11], v[{lo}:{hi}] op_sel:[0,1,0] op_sel_hi:[1,1,1]")
            o=52+4*(c%2)
            for k in range(4): p(f"v_cvt_pk_bf16_f32 v{o+k}, v{40+2*k}, v{41+2*k}")
            p(f"buffer_store_dwordx2 v[{o}:{o+1}], v6, s[8:11], s63 offen{OMOD}"); p(f"buffer_store_dwordx2 v[{o+2}:{o+3}], v6, s[8:11], s63 offen offset:{16 if P2S==32 else 32}{OMOD}")
        if variant==0: p("s_branch L_p2_end")
    p.label("L_p2_end")
    if ST.ENABLE: p("s_waitcnt vmcnt(0)")
    ST.stamp(p,3)
    ST.flush2(p)
    p("s_endpgm")
    if docheck:
        ins=p.ins[i0:]
        a=iA-i0; b=iA2-i0
        tr=ins[:b]+ins[a:b]+ins[b:]
        print("p2 check problems:",len(check(tr,'p2')))
```

```python
from core import *
import k1_gx as G1
import stamp as ST
G_OFF=0x1500000; KVP_OFF=0x1502000; P_OFF=0x1600000
import os
KNAME='k1_kernel'
TLBW=int(os.environ.get('TLBW','0'))
XL2=int(os.environ.get('XL2','0'))
PF0=int(os.environ.get('PF0','1'))
MERGE=int(os.environ.get('MERGE','1'))
CPF=int(os.environ.get('CPF','1'))
WS_BASE=int(os.environ.get('WS_BASE','0'),0)
LOG2E=1.4426950408889634
from k1_gx import f2u

def prologue(p):
    p("s_cmp_ge_u32 s2, 256"); p("s_cbranch_scc1 L_k1_end")
    ST.stamp(p,0)
    p("s_load_dwordx4 s[56:59], s[0:1], 0")
    p("s_load_dwordx4 s[60:63], s[0:1], 16")
    p("s_load_dwordx2 s[42:43], s[0:1], 40")
    p("s_load_dwordx2 s[44:45], s[0:1], 48")
    p("s_load_dwordx2 s[64:65], s[0:1], 64")
    p("s_load_dwordx2 s[66:67], s[0:1], 56")
    p("s_load_dwordx4 s[68:71], s[0:1], 80")
    p("v_lshrrev_b32 v1, 6, v0")
    p("s_and_b32 s4, s2, 7")
    p("s_lshr_b32 s5, s2, 3")
    p(f"v_readfirstlane_b32 s{G1.S_W}, v1")
    if CPF:
        p("s_nop 0"); p(f"s_cmp_eq_u32 s{G1.S_W}, 3"); p("s_cbranch_scc0 L_k1_ncpf")
        code_prefetch(p,KNAME,"L_code_end",tmp_s=72,vaddr=2,vdst=56,uniq="k1")
        p.label("L_k1_ncpf")
    p("s_waitcnt lgkmcnt(0)")
    ST.stamp(p,7)
    if WS_BASE: p(f"s_add_u32 s70, s70, {WS_BASE}"); p("s_addc_u32 s71, s71, 0")
    p("s_mov_b32 s46, s70"); p("s_mov_b32 s47, s71")
    p("s_mov_b32 s40, s56"); p("s_mov_b32 s41, s57")
    if TLBW:
        p(f"s_cmp_eq_u32 s{G1.S_W}, {TLBW-1}"); p("s_cbranch_scc0 L_k1_ntlb")
        p("v_and_b32 v2, 63, v0"); p("v_lshlrev_b32 v3, 18, v2")
        p("s_mov_b32 s8, s70"); p("s_mov_b32 s9, s71"); p(f"s_mov_b32 s10, {0x2200000}"); p("s_mov_b32 s11, 0x20000")
        for k in range(3):
            p(f"s_mov_b32 s72, {k*64*262144}"); p("buffer_load_dword v56, v3, s[8:11], s72 offen")
        p("s_load_dwordx2 s[72:73], s[0:1], 72") ; p("s_mov_b32 s8, s66"); p("s_mov_b32 s9, s67"); p(f"s_mov_b32 s10, {4608*1152}")
        p("buffer_load_dword v57, v3, s[8:11], 0 offen")
        p("s_mov_b32 s8, s62"); p("s_mov_b32 s9, s63"); p(f"s_mov_b32 s10, {576*1152}")
        p("buffer_load_dword v57, v3, s[8:11], 0 offen")
        p("s_waitcnt lgkmcnt(0)"); p("s_mov_b32 s8, s72"); p("s_mov_b32 s9, s73"); p(f"s_mov_b32 s10, {2048*1152}")
        p("buffer_load_dword v57, v3, s[8:11], 0 offen")
        for lo,sz in ((42,576*9216),(44,576*9216),(58,576*3456),(56,2048*1152)):
            p(f"s_mov_b32 s8, s{lo}"); p(f"s_mov_b32 s9, s{lo+1}"); p(f"s_mov_b32 s10, {sz}")
            p("buffer_load_dword v58, v3, s[8:11], 0 offen")
        p.label("L_k1_ntlb")
    if XL2:
        p("s_lshr_b32 s72, s2, 3"); p("s_lshl_b32 s72, s72, 2"); p(f"s_add_u32 s72, s72, s{G1.S_W}"); p("s_mul_i32 s73, s72, 18432")
        p("v_and_b32 v2, 63, v0"); p("v_lshlrev_b32 v3, 4, v2")
        p("s_mov_b32 s8, s56"); p("s_mov_b32 s9, s57"); p(f"s_mov_b32 s10, {2048*1152}"); p("s_mov_b32 s11, 0x20000")
        for k in range(XL2):
            p(f"buffer_load_dwordx4 v[56:59], v3, s[8:11], s73 offen offset:{1024*(k%4)}")
            if k%4==3: p("s_add_u32 s73, s73, 4096")
    if PF0:
        p("s_lshl_b32 s72, s2, 2"); p(f"s_add_u32 s72, s72, s{G1.S_W}")
        p("v_and_b32 v2, 63, v0"); p("v_lshlrev_b32 v3, 4, v2")
        p("s_mov_b32 s8, s56"); p("s_mov_b32 s9, s57"); p(f"s_mov_b32 s10, {2048*1152}"); p("s_mov_b32 s11, 0x20000")
        p("s_mul_i32 s73, s72, 2304")
        if PF0&1:
            for k in range(3): p(f"buffer_load_dwordx4 v[56:59], v3, s[8:11], s73 offen offset:{1024*k}")
        if PF0&2:
            p("v_lshrrev_b32 v4, 3, v2"); p("v_mul_u32_u24 v4, 384, v4"); p("v_and_b32 v5, 7, v2"); p("v_lshl_add_u32 v4, v5, 4, v4")
            for m,lo in ((0,42),(1,44)):
                p(f"s_mov_b32 s8, s{lo}"); p(f"s_mov_b32 s9, s{lo+1}"); p(f"s_mov_b32 s10, {576*9216}")
                for j in range(2):
                    p(f"s_add_u32 s73, s72, {1024*j}"); p("s_mul_i32 s74, s73, 21846"); p("s_lshr_b32 s74, s74, 16"); p("s_mul_i32 s75, s74, 3"); p("s_sub_u32 s75, s73, s75")
                    p("s_mul_i32 s74, s74, 9216"); p("s_mul_i32 s75, s75, 3072"); p("s_add_u32 s74, s74, s75")
                    p(f"buffer_load_dwordx4 v[56:59], v4, s[8:11], s74 offen")
        if PF0&4:
            p("s_mov_b32 s8, s58"); p("s_mov_b32 s9, s59"); p(f"s_mov_b32 s10, {576*3456}"); p("s_mul_i32 s73, s72, 1944")
            for k in range(2): p(f"buffer_load_dwordx4 v[56:59], v3, s[8:11], s73 offen offset:{1024*k}")
    if MERGE:
        p(f"s_cmp_eq_u32 s{G1.S_W}, 0"); p("s_cbranch_scc0 L_k1_nz")
        p(f"s_add_u32 s72, s70, {0x15C0000}"); p("s_addc_u32 s73, s71, 0"); p("s_lshl_b32 s74, s2, 7")
        p("v_and_b32 v2, 31, v0"); p("v_lshlrev_b32 v2, 2, v2"); p("v_add_u32 v2, s74, v2"); p("v_mov_b32 v3, 0")
        p("global_store_dword v2, v3, s[72:73] sc1")
        p("s_cmp_lt_u32 s2, 17"); p("s_cbranch_scc0 L_k1_nz")
        p(f"v_add_u32 v2, {256*128}, v2")
        p("global_store_dword v2, v3, s[72:73] sc1")
        p.label("L_k1_nz")
    p("s_cmp_lt_u32 s5, 8"); p("s_cbranch_scc1 L_att")
    p("s_sub_u32 s6, s5, 8")
    p("s_lshr_b32 s36, s6, 3"); p("s_mul_i32 s7, s4, 3"); p("s_add_u32 s36, s36, s7")
    p("s_and_b32 s37, s6, 7")

def gate_role(p):
    p.label("L_gate")
    p("s_mov_b32 s7, s4")
    p("s_cmp_lt_u32 s4, 4"); p("s_cbranch_scc1 L_gate_b")
    p("s_lshl_b32 s7, s4, 1"); p("s_add_u32 s7, s7, s6"); p("s_sub_u32 s7, s7, 26")
    p.label("L_gate_b")
    p("s_lshl_b32 s7, s7, 2"); p(f"s_add_u32 s7, s7, s{G1.S_W}")
    p("s_mov_b32 s8, s56"); p("s_mov_b32 s9, s57"); p(f"s_mov_b32 s10, {2048*1152}"); p("s_mov_b32 s11, 0x20000")
    p("s_mov_b32 s12, s64"); p("s_mov_b32 s13, s65"); p("s_mov_b32 s14, 1152"); p("s_mov_b32 s15, 0x20000")
    p(f"s_add_u32 s16, s70, {G_OFF}"); p("s_addc_u32 s17, s71, 0"); p("s_mov_b32 s18, 8192"); p("s_mov_b32 s19, 0x20000")
    p("v_and_b32 v1, 63, v0"); p("v_lshrrev_b32 v2, 3, v1"); p("v_and_b32 v3, 7, v1")
    p("v_lshlrev_b32 v4, 4, v3")
    p("s_movk_i32 s20, 0x480"); p("v_mul_lo_u32 v5, v2, s20"); p("v_add_u32 v5, v5, v4")
    p("v_lshlrev_b32 v6, 2, v2")
    for c in range(9):
        p(f"buffer_load_dwordx4 v[{16+4*c}:{19+4*c}], v4, s[12:15], 0 offen offset:{128*c}")
    p.label("L_gate_loop")
    p(f"s_mul_i32 s21, s7, {8*1152}")
    for c in range(9):
        p(f"buffer_load_dwordx4 v[{64+4*c}:{67+4*c}], v5, s[8:11], s21 offen offset:{128*c}")
    p("v_mov_b32 v8, 0"); p("v_mov_b32 v9, 0")
    p("s_waitcnt vmcnt(0)")
    for c in range(9):
        for r in range(4):
            a=8+(r&1)
            p(f"v_dot2_f32_bf16 v{a}, v{64+4*c+r}, v{16+4*c+r}, v{a}")
    p("s_nop 3")
    p("v_add_f32 v8, v8, v9")
    for m in (0x041F,0x081F,0x101F):
        p("s_nop 0")
        p(f"ds_swizzle_b32 v9, v8 offset:0x{m:04X}"); p("s_waitcnt lgkmcnt(0)"); p("v_add_f32 v8, v8, v9")
    p(f"v_mul_f32 v8, 0x{f2u(-LOG2E):08x}, v8"); p("v_exp_f32 v8, v8"); p("s_nop 0"); p("v_add_f32 v8, 1.0, v8"); p("v_rcp_f32 v8, v8")
    p("s_lshl_b32 s21, s7, 5")
    p("v_cmp_eq_u32 vcc, 0, v3"); p("s_and_saveexec_b64 s[22:23], vcc")
    p("buffer_store_dword v8, v6, s[16:19], s21 offen")
    p("s_mov_b64 exec, s[22:23]")
    p("s_add_u32 s7, s7, 48"); p("s_cmp_lt_u32 s7, 256"); p("s_cbranch_scc1 L_gate_loop")
    p("s_load_dwordx2 s[24:25], s[0:1], 56"); p("s_load_dwordx2 s[26:27], s[0:1], 24"); p("s_waitcnt lgkmcnt(0)")
    p("s_mov_b32 s8, s24"); p("s_mov_b32 s9, s25"); p(f"s_mov_b32 s10, {4608*1152}"); p("s_mov_b32 s11, 0x20000")
    p("s_mov_b32 s12, s26"); p("s_mov_b32 s13, s27"); p(f"s_mov_b32 s14, {576*1152}"); p("s_mov_b32 s15, 0x20000")
    p("v_lshlrev_b32 v4, 4, v1")
    p("s_sub_u32 s7, s7, 48"); p.label("L_gate_m"); p("s_cmp_lt_u32 s7, 48"); p("s_cbranch_scc1 L_gate_m2"); p("s_sub_u32 s7, s7, 48"); p("s_branch L_gate_m"); p.label("L_gate_m2")
    p(f"s_mul_i32 s21, s7, {14*1024}")
    for i in range(14):
        p(f"buffer_load_dwordx4 v[{16+4*i}:{19+4*i}], v4, s[12:15], s21 offen"); p("s_add_u32 s21, s21, 1024")
    p("s_waitcnt vmcnt(0)")
    p("s_endpgm")

def kernel_text(name, body, nv=512, ns=102, acc_off=256):
    t=f".globl {name}\n.p2align 8\n.type {name},@function\n{name}:\n"+body
    return t
def desc(name, nv=512, ns=102, acc_off=256):
    return f""".amdhsa_kernel {name}
  .amdhsa_next_free_vgpr {nv}
  .amdhsa_next_free_sgpr {ns}
  .amdhsa_accum_offset {acc_off}
  .amdhsa_group_segment_fixed_size 0
  .amdhsa_kernarg_size 96
  .amdhsa_user_sgpr_count 2
  .amdhsa_user_sgpr_kernarg_segment_ptr 1
  .amdhsa_system_sgpr_workgroup_id_x 1
  .amdhsa_float_denorm_mode_32 3
  .amdhsa_float_denorm_mode_16_64 3
.end_amdhsa_kernel
"""

def gen_k1(att=None, docheck=True):
    import k1_gx as GX
    p=Prog()
    prologue(p)
    il,idn=GX.gen(p)
    if not GX.MERGE: p("s_endpgm")
    if docheck:
        ins=p.ins
        body=ins[il:idn]
        tr=ins[:il]+body+body+ins[idn:]
        pr=check(tr,'gemm1')
        print("gemm1 check problems:",len(pr))
    a=Prog(); att(a); p.ins+=a.ins
    if GX.MERGE:
        import p2
        b=Prog(); p2.gen_p2(b); p.ins+=b.ins
    p.label("L_k1_end"); p("s_endpgm")
    return p

def announce_zero(p, wreg, lab, vt, st=72):
    p(f"s_cmp_eq_u32 s{wreg}, 0"); p(f"s_cbranch_scc0 {lab}")
    p("s_cmp_lt_u32 s2, 17"); p(f"s_cselect_b32 s{st}, 2, 1")
    p(f"v_mov_b32 v{vt}, 0"); p(f"v_mov_b32 v{vt+1}, s{st}"); p("v_cmp_eq_u32 vcc, 0, v0"); p(f"s_and_saveexec_b64 s[{st}:{st+1}], vcc")
    p(f"global_atomic_add v{vt}, v{vt+1}, s[68:69] sc1")
    p(f"s_mov_b64 exec, s[{st}:{st+1}]")
    p.label(lab)
```

```python
import sys, os
from core import *
NAME="gated_mix__linear_kernel_hedgehog__geglu_ffn__prompt_kernel"
HDR=open('gated_mix__linear_kernel_hedgehog__geglu_ffn__prompt.s.ref').read().split('; Override launch')[0]
def build(path):
    import k1,k1_att,k1_gx
    if k1_gx.MERGE:
        k1.KNAME=NAME
        p1=k1.gen_k1(k1_att.gen_att)
        PADS=int(os.environ.get('PADS','1'))
        if PADS:
            import pads
            def expand(ins, tg):
                out=[]
                for i in ins:
                    if i.kind=='label' and i.text.startswith('L_TOUCH_'):
                        u=i.text[8:-1]; out+=pads.touch_code(u, 24, tg.get(u,[]))
                    else: out.append(i)
                return out
            base=expand(p1.ins,{})
            ni,pl=pads.insert_pads(base)
            pos={i.text[:-1]:k for k,i in enumerate(ni) if i.kind=='label' and i.text.endswith(':')}
            after=lambda lst,u: [n for n in lst if pos[n]>pos['L_tb'+u]]
            gx=[n for n,s_ in pl if s_ in('start','L_gx_loop')]; att=[n for n,s_ in pl if s_ in('L_att','L_att_loop')]; p2p=[n for n,s_ in pl if s_ in('L_p2','L_p2b','L_p2_loop','L_p2_lend')]
            skip=int(os.environ.get('PADSKIP','1'))
            tg={'gx':after(gx,'gx')[skip:], 'gx2':after(p2p,'gx2'), 'att':after(att,'att'), 'att2':after(p2p,'att2')}
            print('pads',pl)
            full=expand(p1.ins,tg)
            newins,pl2=pads.insert_pads(full)
            assert [n for n,_ in pl2]==[n for n,_ in pl], (pl,pl2)
            p1.ins=[Ins("s_branch L_start"),Ins(".p2align 12"),Ins("L_start:")]+newins
        else:
            p1.ins=[i for i in p1.ins if not (i.kind=='label' and i.text.startswith('L_TOUCH_'))]
        t=HDR+"; @launch grid=(256,1,1) block=(256,1,1) lds=163840\n"
        t+='.amdgcn_target "amdgcn-amd-amdhsa--gfx950"\n.text\n'
        t+=k1.kernel_text(NAME,p1.text())+"L_code_end:\n"
        t+='.section .rodata,"a"\n.p2align 6\n'+k1.desc(NAME)
    else:
        import k2
        p1=k1.gen_k1(k1_att.gen_att); p2=k2.gen_k2(); p3=k2.gen_k3()
        L=[("k1_kernel",256,163840),("k2_kernel",240,147456),("k3_kernel",192,0)]
        t=HDR
        for (n,g,l) in L: t+=f"; @launch kernel={n} grid=({g},1,1) block=(256,1,1) lds={l}\n"
        t+='.amdgcn_target "amdgcn-amd-amdhsa--gfx950"\n.text\n'
        t+=k1.kernel_text("k1_kernel",p1.text())+k1.kernel_text("k2_kernel",p2.text())+k1.kernel_text("k3_kernel",p3.text())+"L_code_end:\n"
        t+='.section .rodata,"a"\n.p2align 6\n'+k1.desc("k1_kernel")+'.p2align 6\n'+k1.desc("k2_kernel")+'.p2align 6\n'+k1.desc("k3_kernel",nv=104,ns=40,acc_off=104)
    t=t.replace(' lds nt\n',' nt lds\n')
    open(path,'w').write(t)
    print(path, len(t))
if __name__=="__main__":
    import stamp
    if "--stamp" in sys.argv: stamp.ENABLE=True; sys.argv.remove("--stamp")
    build(sys.argv[1] if len(sys.argv)>1 else 'out.s')
```

```python
from core import *
import stamp as ST
from k1_gx import f2u, NKS_TOT, H_BYTES, ntify, FNT
import os
MERGE=int(os.environ.get('MERGE','1'))
ANT=os.environ.get('ANT','')
AOFF=int(os.environ.get('AOFF','0'))
AMAP=int(os.environ.get('AMAP','0'))
GMOVE=int(os.environ.get('GMOVE','1'))
AROT=int(os.environ.get('AROT','1'))
STMOD=os.environ.get('STMOD',' sc1')
KVP_OFF=0x1502000
LOG2E=1.4426950408889634
WSL=28672; W0=0; X0=3*WSL; XSL=32768
PHI_L=X0+2*XSL; ZERO_L=PHI_L+3840
PS=336; VS=168
PL=0; VL=256*PS; KVL=VL+256*VS
S_W=24
S_X=8; S_WQ=12; S_H=16; S_KV=20
S_XSO=25; S_XSO2=26; S_WSO=27; S_CNT=28; S_MW=29; S_MX=30; S_C=31; S_RT=32; S_QD=33; S_AW=34; S_AX=35; S_TW=36; S_TX=37; S_SD=72; S_SN=73; S_MWW=74
V_WD=1; V_TRB=8; V_XD=10; V_TR=14; V_XP=16; V_L=20; V_L16=21; V_BD=22; V_BD2=23
QACC=0; KACC=96; VACC=176
def accq(t,tt): b=QACC+(t*4+tt)*4; return f"a[{b}:{b+3}]"
def acck(t,tt,r=None):
    b=KACC+(t*4+tt)*4; return f"v[{b}:{b+3}]" if r is None else f"v{b+r}"
def accv(t,tt,r=None):
    b=VACC+(t*4+tt)*4; return f"v[{b}:{b+3}]" if r is None else f"v{b+r}"
def acc(sec,t,tt): return (accq,acck,accv)[sec](t,tt)
AR=80; NAR=6; XF=104
def afr(i): b=AR+4*(i%NAR); return f"a[{b}:{b+3}]"
def afh(i,h): b=AR+4*(i%NAR)+2*h; return f"a[{b}:{b+1}]"
def xf(b_,tt): b=XF+(b_*4+tt)*4; return f"a[{b}:{b+3}]"

def wdma():
    o=[Ins(f"s_add_u32 s{S_MW}, s{S_MWW}, s{S_SD}")]
    for i in range(7):
        if i%4==0:
            o.append(Ins(f"s_add_u32 m0, s{S_MW}, {4096*(i//4)}" if i else f"s_mov_b32 m0, s{S_MW}")); o.append(Ins("s_nop 0"))
        o.append(Ins(f"buffer_load_dwordx4 v{V_WD+i}, s[{S_WQ}:{S_WQ+3}], s{S_WSO} offen offset:{1024*(i%4)} lds{ANT}"))
    o+= [Ins(f"s_add_u32 s{S_SD}, s{S_SD}, {WSL}"), Ins(f"s_cmp_eq_u32 s{S_SD}, {3*WSL}"), Ins(f"s_cselect_b32 s{S_SD}, 0, s{S_SD}"),
         Ins(f"s_add_u32 s{S_WSO}, s{S_WSO}, {64*3456}")]
    if AROT: o+=[Ins(f"s_add_u32 s{S_AW}, s{S_AW}, 1"), Ins(f"s_cmp_eq_u32 s{S_AW}, 9"), Ins(f"s_cselect_b32 s38, {9*64*3456}, 0"), Ins(f"s_cselect_b32 s{S_AW}, 0, s{S_AW}"), Ins(f"s_sub_u32 s{S_WSO}, s{S_WSO}, s38")]
    return o
def xdma():
    o=[]
    for i in range(8):
        if i%4==0:
            o.append(Ins(f"s_add_u32 m0, s{S_MX}, {4096*(i//4)}" if i else f"s_mov_b32 m0, s{S_MX}")); o.append(Ins("s_nop 0"))
        o.append(Ins(f"buffer_load_dwordx4 v{V_XD+(i%4)}, s[{S_X}:{S_X+3}], s{S_XSO if i<4 else S_XSO2} offen offset:{1024*(i%4)} lds"))
    if not AROT:
        return o+[Ins(f"s_xor_b32 s{S_MX}, s{S_MX}, s{S_TX}"), Ins(f"s_add_u32 s{S_XSO}, s{S_XSO}, 128"), Ins(f"s_add_u32 s{S_XSO2}, s{S_XSO2}, 128")]
    o+= [Ins(f"s_xor_b32 s{S_MX}, s{S_MX}, s{S_TX}"),
         Ins(f"s_add_u32 s{S_XSO}, s{S_XSO}, 128"), Ins(f"s_add_u32 s{S_AX}, s{S_AX}, 1"), Ins(f"s_cmp_eq_u32 s{S_AX}, 9"),
         Ins(f"s_cselect_b32 s39, {9*128}, 0"), Ins(f"s_cselect_b32 s{S_AX}, 0, s{S_AX}"), Ins(f"s_sub_u32 s{S_XSO}, s{S_XSO}, s39"),
         Ins(f"s_add_u32 s{S_XSO2}, s{S_XSO}, {32*1152}")]
    return o

SEQ=[(b_,sec,t) for b_ in range(2) for sec in range(3) for t in range(5)]
PF=4
def ard(i):
    nxt=i>=30; b_,sec,t=SEQ[i%30]
    return [Ins(f"ds_read_b64_tr_b16 {afh(i,h)}, v{V_TR+(1 if nxt else 0)} offset:{b_*13824+sec*144+h*1728+8*t}") for h in range(2)]
def xrd(b_,nxt): return [Ins(f"ds_read_b128 {xf(b_,tt)}, v{V_XP+(2 if nxt else 0)+b_} offset:{tt*2048}") for tt in range(4)]

def superstep():
    main=[]
    for i,(b_,sec,t) in enumerate(SEQ):
        if i==26:
            main.append(Ins("s_waitcnt vmcnt(7) lgkmcnt(0)")); main.append(Ins("s_barrier"))
        nxt=ard(i+PF)
        if 1<=i<5: nxt=nxt+[xrd(1,False)[i-1]]
        if i>=26: nxt=nxt+[xrd(0,True)[i-26]]
        if 22<=i<26: pass
        for tt in range(4):
            main.append(Ins(f"v_mfma_f32_16x16x32_bf16 {acc(sec,t,tt)}, {afr(i)}, {xf(b_,tt)}, {acc(sec,t,tt)}"))
            if tt<len(nxt): main.append(nxt[tt])
    return main

def entry_queue():
    q=[]
    for i in range(26,30):
        for x in ard(i+PF): q.append(x.wr)
        q.append(xrd(0,True)[i-26].wr)
    return q

def bc(r): return f"v[{r}:{r+1}]"
def softmax_pk(p, P0, tmp, want_norm):
    A=p
    P=[f"v{P0(f)}" for f in range(18)]
    mx=tmp+36; mn=tmp+38; sp=tmp+40; sm=tmp+42
    A(f"v_max3_f32 v{mx}, {P[0]}, {P[1]}, {P[2]}"); A(f"v_min3_f32 v{mn}, {P[0]}, {P[1]}, {P[2]}")
    for i in range(3,17,2):
        A(f"v_max3_f32 v{mx}, v{mx}, {P[i]}, {P[i+1]}"); A(f"v_min3_f32 v{mn}, v{mn}, {P[i]}, {P[i+1]}")
    A(f"v_max_f32 v{mx}, v{mx}, {P[17]}"); A(f"v_min_f32 v{mn}, v{mn}, {P[17]}")
    A(f"v_mul_f32_e64 v{mx}, -s{S_C}, v{mx}"); A(f"v_mul_f32 v{mn}, s{S_C}, v{mn}")
    for i in range(0,18,2):
        pr=bc(P0(i))
        A(f"v_pk_fma_f32 {bc(tmp+i)}, {pr}, {bc(94)}, {bc(mx)} op_sel_hi:[1,0,0]")
        A(f"v_pk_fma_f32 {bc(tmp+18+i)}, {pr}, {bc(94)}, {bc(mn)} op_sel_hi:[1,0,0] neg_lo:[0,1,0] neg_hi:[0,1,0]")
    for i in range(18):
        A(f"v_exp_f32 v{tmp+i}, v{tmp+i}"); A(f"v_exp_f32 v{tmp+18+i}, v{tmp+18+i}")
    if want_norm:
        A(f"v_pk_add_f32 {bc(sp)}, {bc(tmp)}, {bc(tmp+2)}");
        A("s_nop 0")
        A(f"v_pk_add_f32 {bc(sm)}, {bc(tmp+18)}, {bc(tmp+20)}")
        for i in range(4,18,2):
            A(f"v_pk_add_f32 {bc(sp)}, {bc(sp)}, {bc(tmp+i)}"); A(f"v_pk_add_f32 {bc(sm)}, {bc(sm)}, {bc(tmp+18+i)}")
        A(f"v_add_f32 v{sp}, v{sp}, v{sp+1}"); A(f"v_add_f32 v{sm}, v{sm}, v{sm+1}")
        A(f"v_rcp_f32 v{sp}, v{sp}"); A(f"v_rcp_f32 v{sm}, v{sm}"); A("s_nop 0")
        for i in range(0,18,2):
            A(f"v_pk_mul_f32 {bc(tmp+i)}, {bc(tmp+i)}, {bc(sp)} op_sel_hi:[1,0]"); A(f"v_pk_mul_f32 {bc(tmp+18+i)}, {bc(tmp+18+i)}, {bc(sm)} op_sel_hi:[1,0]")
    else:
        A("s_nop 0")

def stage2(p, src, dst, B0, pre=None):
    for tt in range(4):
        for t in range(5):
            p(f"v_cvt_pk_bf16_f32 v{B0+tt*12+2*t}, {src(t,tt,0)}, {src(t,tt,1)}")
            p(f"v_cvt_pk_bf16_f32 v{B0+tt*12+2*t+1}, {src(t,tt,2)}, {src(t,tt,3)}")
        p(f"v_mov_b32 v{B0+tt*12+10}, 0"); p(f"v_mov_b32 v{B0+tt*12+11}, 0")
    if pre: pre()
    p("s_nop 1")
    for tt in range(4):
        for s in range(3):
            for u in range(5):
                a=80+4*(u*3+s); b=B0+tt*12+4*s
                c=dst(u,tt) if s>0 else "0"
                p(f"v_mfma_f32_16x16x32_bf16 {dst(u,tt)}, a[{a}:{a+3}], v[{b}:{b+3}], {c}")
    p("s_nop 7")

def gen_att(p, docheck=True):
    p.label("L_att")
    A=p
    if AMAP: A(f"s_mov_b32 s{S_QD}, s5"); A(f"s_mov_b32 s{S_RT}, s4")
    else: A(f"s_mov_b32 s{S_QD}, s4"); A(f"s_mov_b32 s{S_RT}, s5")
    A(f"s_sub_u32 s{S_WQ}, s58, 4096"); A(f"s_subb_u32 s{S_WQ+1}, s59, 0"); A(f"s_mov_b32 s{S_WQ+2}, {576*3456+4096}"); A(f"s_mov_b32 s{S_WQ+3}, 0x20000")
    A(f"v_and_b32 v{V_L}, 63, v0")
    A(f"s_mul_i32 s38, s{S_W}, 448")
    for i in range(7):
        A(f"v_add_u32 v30, s38, v{V_L}")
        if i: A(f"v_add_u32 v30, {64*i}, v30")
        A("v_mul_u32_u24 v31, 7282, v30"); A("v_lshrrev_b32 v31, 16, v31")
        A("v_mul_u32_u24 v32, 9, v31"); A("v_sub_u32 v32, v30, v32"); A("v_lshlrev_b32 v32, 4, v32")
        A("v_mul_u32_u24 v31, 0x480, v31")
        A(f"v_add3_u32 v{V_WD+i}, v32, v31, 0"); A(f"v_add_u32 v{V_WD+i}, {4096-1024*(i%4)}, v{V_WD+i}")
    A(f"s_mul_i32 s{S_WSO}, s{S_QD}, 144")
    if AROT:
        A(f"s_add_u32 s41, s{S_RT}, {AOFF}"); A("s_cmp_ge_u32 s41, 9"); A("s_cselect_b32 s38, 9, 0"); A("s_sub_u32 s41, s41, s38")
        A(f"s_mov_b32 s{S_AW}, s41"); A(f"s_mov_b32 s{S_AX}, s41"); A(f"s_mul_i32 s38, s41, {64*3456}"); A(f"s_add_u32 s{S_WSO}, s{S_WSO}, s38")
    A(f"s_mul_i32 s{S_MWW}, s{S_W}, 7168"); A(f"s_mov_b32 s{S_SD}, 0")
    A.add(ntify(wdma(), FNT&2))
    A(f"s_mul_i32 s38, s{S_RT}, {256*1152}")
    A(f"s_add_u32 s{S_X}, s56, s38"); A(f"s_addc_u32 s{S_X+1}, s57, 0"); A(f"s_sub_u32 s{S_X}, s{S_X}, 4096"); A(f"s_subb_u32 s{S_X+1}, s{S_X+1}, 0")
    A(f"s_mov_b32 s{S_X+2}, {256*1152+4096}"); A(f"s_mov_b32 s{S_X+3}, 0x20000")
    g="v24"; t15="v25"; l3="v26"; l7="v27"; rp="v28"; cc="v29"
    A(f"v_lshrrev_b32 {g}, 4, v{V_L}"); A(f"v_and_b32 {t15}, 15, v{V_L}"); A(f"v_lshrrev_b32 {l3}, 3, v{V_L}"); A(f"v_and_b32 {l7}, 7, v{V_L}")
    for i in range(4):
        A(f"v_add_u32 v30, {4*(i&1)}, {g}"); A("v_and_b32 v30, 7, v30"); A(f"v_xor_b32 v30, v30, {l7}"); A("v_lshlrev_b32 v30, 4, v30")
        A(f"v_add_u32 v31, {8*i}, {l3}"); A("v_mul_u32_u24 v31, 0x480, v31")
        A(f"v_add3_u32 v{V_XD+i}, v30, v31, 0"); A(f"v_add_u32 v{V_XD+i}, {4096-1024*i}, v{V_XD+i}")
    A(f"s_mul_i32 s{S_XSO}, s{S_W}, {64*1152}")
    if AROT: A(f"s_lshl_b32 s38, s41, 7"); A(f"s_add_u32 s{S_XSO}, s{S_XSO}, s38")
    A(f"s_add_u32 s{S_XSO2}, s{S_XSO}, {32*1152}")
    A(f"s_lshl_b32 s{S_MX}, s{S_W}, 13"); A(f"s_add_u32 s{S_MX}, s{S_MX}, {X0}"); A(f"s_add_u32 s38, s{S_MX}, {XSL}"); A(f"s_xor_b32 s{S_TX}, s{S_MX}, s38")
    A(f"s_mov_b32 s40, s{S_MX}")
    A.add(ntify(xdma(), FNT&1))
    ST.stamp(p,1)
    A(f"s_mov_b32 s{S_C}, 0x{f2u(LOG2E):08x}")
    A(f"s_mov_b32 s{S_H}, s70"); A(f"s_mov_b32 s{S_H+1}, s71"); A(f"s_mov_b32 s{S_H+2}, {H_BYTES}"); A(f"s_mov_b32 s{S_H+3}, 0x20000")
    A(f"s_add_u32 s{S_KV}, s70, {KVP_OFF}"); A(f"s_addc_u32 s{S_KV+1}, s71, 0"); A(f"s_mov_b32 s{S_KV+2}, {8*32*2880}"); A(f"s_mov_b32 s{S_KV+3}, 0x20000")
    A(f"v_lshlrev_b32 v{V_L16}, 4, v{V_L}")
    A(f"v_lshrrev_b32 {rp}, 2, {t15}"); A(f"v_and_b32 {cc}, 3, {t15}")
    A(f"v_lshrrev_b32 v30, 1, {t15}"); A(f"v_xor_b32 v30, v30, {g}"); A("v_lshlrev_b32 v30, 4, v30"); A(f"v_lshlrev_b32 v31, 7, {t15}"); A("v_add_u32 v30, v30, v31")
    A(f"v_add_u32 v{V_XP}, s40, v30"); A(f"v_xor_b32 v{V_XP+1}, 64, v{V_XP}")
    A(f"v_add_u32 v{V_XP+2}, {XSL}, v{V_XP}"); A(f"v_add_u32 v{V_XP+3}, {XSL}, v{V_XP+1}")
    A(f"v_lshlrev_b32 v30, 3, {g}"); A(f"v_add_u32 v30, v30, {rp}"); A("v_mul_u32_u24 v30, 432, v30"); A(f"v_mul_u32_u24 v31, 36, {cc}")
    A(f"v_and_b32 v33, 1, {cc}"); A("v_lshlrev_b32 v33, 2, v33"); A("v_sub_u32 v31, v31, v33")
    A(f"v_add_u32 v{V_TRB}, v30, v31"); A(f"v_mov_b32 v{V_TR}, v{V_TRB}"); A(f"v_add_u32 v{V_TR+1}, {WSL}, v{V_TRB}"); A(f"s_mov_b32 s{S_SN}, {WSL}")
    A(f"v_cmp_eq_u32 vcc, {cc}, {g}")
    A(f"v_mul_u32_u24 v30, 960, {g}"); A(f"v_mul_u32_u24 v31, 40, {rp}"); A("v_add_u32 v30, v30, v31"); A(f"v_add_u32 v30, {PHI_L}, v30")
    A(f"v_mov_b32 v32, {ZERO_L}"); A(f"v_cndmask_b32 v{V_BD}, v32, v30, vcc")
    A(f"v_mul_u32_u24 v30, 1920, {g}"); A("v_add_u32 v30, v30, v31"); A(f"v_add_u32 v30, {KVL}, v30"); A(f"v_cndmask_b32 v{V_BD2}, v32, v30, vcc")
    A(f"s_mul_i32 s38, s{S_QD}, {4*648}")
    A(f"s_add_u32 s48, s60, s38"); A("s_addc_u32 s49, s61, 0"); A(f"s_mov_b32 s50, {4*648}"); A("s_mov_b32 s51, 0x20000")
    A("v_lshlrev_b32 v30, 2, v0")
    for i in range(3): A(f"buffer_load_dword v{44+i}, v30, s[48:51], 0 offen offset:{1024*i}")
    A("v_mov_b32 v40, 0"); A("v_mov_b32 v41, 0"); A("v_mov_b32 v42, 0"); A("v_mov_b32 v43, 0")
    A("v_lshlrev_b32 v30, 4, v0"); A(f"v_add_u32 v30, {PHI_L}, v30")
    A("ds_write_b128 v30, v[40:43]")
    A("v_cmp_gt_u32 vcc, 104, v0"); A("s_and_saveexec_b64 s[48:49], vcc"); A("s_cbranch_execz L_att_z1")
    A("ds_write_b128 v30, v[40:43] offset:4096")
    A.label("L_att_z1"); A("s_mov_b64 exec, s[48:49]")
    for i in range(3):
        A(f"v_add_u32 v30, {256*i}, v0")
        A("v_mul_u32_u24 v31, 405, v30"); A("v_lshrrev_b32 v31, 16, v31")
        A("v_mul_u32_u24 v32, 162, v31"); A("v_sub_u32 v32, v30, v32")
        A("v_mul_u32_u24 v33, 57, v32"); A("v_lshrrev_b32 v33, 9, v33")
        A("v_mul_u32_u24 v34, 9, v33"); A("v_sub_u32 v34, v32, v34")
        A("v_and_b32 v35, 1, v31"); A("v_lshl_add_u32 v33, v35, 1, v33")
        A("v_mul_u32_u24 v31, 960, v31"); A("v_mul_u32_u24 v33, 40, v33"); A("v_lshlrev_b32 v34, 2, v34")
        A(f"v_add3_u32 v{47+i}, v31, v33, v34"); A(f"v_add_u32 v{47+i}, {PHI_L}, v{47+i}")
    for r in range(80): A(f"v_accvgpr_write_b32 a{r}, 0")
    for r in range(96,256): A(f"v_mov_b32 v{r}, 0")
    xl=xdma(); XA_=xl[:6]; XB_=xl[6:]
    A.add(wdma())
    A.add(XA_)
    A.label("L_TOUCH_att")
    A("s_waitcnt vmcnt(11) lgkmcnt(0)"); A("s_barrier")
    if MERGE:
        import k1
        k1.announce_zero(p, S_W, "L_att_az", 50, st=52)
    A("ds_write_b32 v47, v44"); A("ds_write_b32 v48, v45")
    A("v_cmp_gt_u32 vcc, 136, v0"); A("s_and_saveexec_b64 s[48:49], vcc"); A("s_cbranch_execz L_att_z2")
    A("ds_write_b32 v49, v46")
    A.label("L_att_z2"); A("s_mov_b64 exec, s[48:49]")
    A("s_waitcnt lgkmcnt(0)")
    ST.stamp(p,2)
    A(f"v_mov_b32 v{V_TR+1}, v{V_TRB}"); A(f"v_swap_b32 v{V_XP}, v{V_XP+2}"); A(f"v_swap_b32 v{V_XP+1}, v{V_XP+3}")
    for i in range(26,30):
        A.add(ard(i+PF)); A.add([xrd(0,True)[i-26]])
    A(f"v_add_u32 v{V_TR+1}, {WSL}, v{V_TRB}"); A(f"v_swap_b32 v{V_XP}, v{V_XP+2}"); A(f"v_swap_b32 v{V_XP+1}, v{V_XP+3}")
    A(f"s_mov_b32 s{S_CNT}, 0")
    il=len(p.ins)
    A.label("L_att_loop")
    m,_=auto_lgkm(superstep(), entry_queue(), extra=2)
    ib=[i for i,x in enumerate(m) if x.kind=='barrier'][0]
    head=m[:ib+1]; rest=m[ib+1:]
    _f=(lambda l: [x for x in l if x.kind!='dma' or not ((os.environ.get('ANOW') and 'v1' <= x.ops[0] <= 'v7' and len(x.ops[0])==2) or (os.environ.get('ANOX') and x.ops[0] in ('v10','v11','v12','v13')))])
    LAST=int(os.environ.get('ALAST','100'))
    p.add(spread(head, dma_items(_f(XB_+wdma())), first=1, last=LAST))
    p.add(spread(rest, dma_items(_f(XA_)), first=0))
    A(f"v_mov_b32 v{V_TR}, v{V_TR+1}")
    A(f"s_add_u32 s{S_SN}, s{S_SN}, {WSL}"); A(f"s_cmp_eq_u32 s{S_SN}, {3*WSL}"); A(f"s_cselect_b32 s{S_SN}, 0, s{S_SN}")
    A(f"v_add_u32 v{V_TR+1}, s{S_SN}, v{V_TRB}")
    A(f"v_swap_b32 v{V_XP}, v{V_XP+2}"); A(f"v_swap_b32 v{V_XP+1}, v{V_XP+3}")
    A(f"s_add_u32 s{S_CNT}, s{S_CNT}, 1"); A(f"s_cmp_lt_u32 s{S_CNT}, {int(os.environ.get('ATTN','9'))}"); A("s_cbranch_scc1 L_att_loop")
    idn=len(p.ins)
    A("s_waitcnt vmcnt(0) lgkmcnt(0)")
    ST.stamp(p,3)
    A("s_barrier")
    rds=[f"ds_read_b64_tr_b16 a[{80+4*(u*3+s)+2*h}:{80+4*(u*3+s)+2*h+1}], v{V_BD} offset:{(8*s+4*h)*40+8*u}" for u in range(5) for s in range(3) for h in range(2)]
    for x in rds[:14]: A(x)
    A("v_mov_b32 v40, 0"); A("v_mov_b32 v41, 0"); A("v_mov_b32 v42, 0"); A("v_mov_b32 v43, 0")
    A("v_lshlrev_b32 v30, 4, v0"); A(f"v_add_u32 v30, {KVL}, v30")
    A(f"v_mov_b32 v94, s{S_C}")
    A("s_waitcnt lgkmcnt(0)")
    for x in rds[14:28]: A(x)
    A("s_waitcnt lgkmcnt(0)")
    for x in rds[28:]: A(x)
    A("ds_write_b128 v30, v[40:43]")
    A("v_cmp_gt_u32 vcc, 224, v0"); A("s_and_saveexec_b64 s[48:49], vcc"); A("s_cbranch_execz L_att_z3")
    A("ds_write_b128 v30, v[40:43] offset:4096")
    A.label("L_att_z3"); A("s_mov_b64 exec, s[48:49]")
    stage2(p, acck, acck, 24, pre=lambda: A("s_waitcnt lgkmcnt(0)"))
    A(f"v_and_b32 v72, 15, v{V_L}"); A(f"v_lshrrev_b32 v73, 4, v{V_L}")
    A(f"s_lshl_b32 s38, s{S_W}, 6"); A("v_add_u32 v72, s38, v72")
    A(f"v_mul_u32_u24 v74, {PS}, v72"); A("v_mul_u32_u24 v75, 80, v73"); A("v_add_u32 v74, v74, v75")
    A(f"v_mul_u32_u24 v75, {VS}, v72"); A("v_mul_u32_u24 v76, 40, v73"); A("v_add_u32 v75, v75, v76"); A(f"v_add_u32 v75, {VL}, v75")
    A("v_and_b32 v76, 1, v73"); A("v_cmp_eq_u32 s[58:59], 1, v76"); A("v_mov_b32 v70, 1.0"); A("v_mov_b32 v71, 0")
    pendw=[]
    for tt in range(4):
        q=Prog()
        softmax_pk(q, lambda f: KACC+((f//4)*4+tt)*4+(f%4), 24, True)
        body=q.ins
        if pendw:
            step=max(1,len(body)//(len(pendw)+1)); out=[]; k=0
            for i,x in enumerate(body):
                out.append(x)
                if i%step==step-1 and k<len(pendw): out.append(pendw[k]); k+=1
            out+=pendw[k:]; body=out
        p.add(body)
        PK=76 if tt%2==0 else None
        if tt%2==0: regs=[76+i for i in range(18)]+[None]
        def pk(i):
            return 76+i if tt%2==0 else KACC+((i//4)*4+(tt-1))*4+(i%4)
        A("s_waitcnt lgkmcnt(0)")
        for i in range(18): A(f"v_cvt_pk_bf16_f32 v{pk(i)}, v{24+2*i}, v{25+2*i}")
        off=tt*16*PS
        pendw=[Ins(f"ds_write_b128 v74, v[{pk(4*i)}:{pk(4*i)+3}] offset:{off+16*i}") for i in range(4)]
        pendw.append(Ins(f"ds_write_b64 v74, v[{pk(16)}:{pk(16)+1}] offset:{off+64}"))
        A(f"v_cndmask_b32 {accv(0,tt,0)}, {accv(0,tt,0)}, v70, s[58:59]"); A(f"v_cndmask_b32 {accv(0,tt,1)}, {accv(0,tt,1)}, v71, s[58:59]")
        A(f"v_cndmask_b32 {accv(4,tt,2)}, v70, {accv(4,tt,2)}, s[58:59]"); A(f"v_cndmask_b32 {accv(4,tt,3)}, v71, {accv(4,tt,3)}, s[58:59]")
        for t in range(5):
            b0=VACC+(t*4+tt)*4
            A(f"v_cvt_pk_bf16_f32 v{b0}, v{b0}, v{b0+1}"); A(f"v_cvt_pk_bf16_f32 v{b0+1}, v{b0+2}, v{b0+3}")
        offv=tt*16*VS
        pendw+=[Ins(f"ds_write_b64 v75, v[{VACC+(t*4+tt)*4}:{VACC+(t*4+tt)*4+1}] offset:{offv+8*t}") for t in range(5)]
    p.add(pendw)
    A("s_waitcnt lgkmcnt(0)"); A("s_barrier")
    ST.stamp(p,4)
    A(f"v_and_b32 v24, 15, v{V_L}"); A(f"v_lshrrev_b32 v25, 4, v{V_L}"); A("v_lshrrev_b32 v26, 2, v24"); A("v_and_b32 v27, 3, v24")
    A("v_lshlrev_b32 v28, 3, v25"); A("v_add_u32 v28, v28, v26")
    A(f"v_mul_u32_u24 v29, {VS}, v28"); A("v_lshlrev_b32 v30, 3, v27"); A("v_add_u32 v29, v29, v30")
    A(f"s_mul_i32 s38, s{S_W}, 40"); A(f"s_add_u32 s38, s38, {VL}"); A("v_add_u32 v29, s38, v29")
    A(f"v_mul_u32_u24 v31, {PS}, v28"); A("v_add_u32 v31, v31, v30")
    A(f"s_mul_i32 s38, s{S_W}, 80"); A("v_add_u32 v31, s38, v31")
    A(f"v_add_u32 v32, {128*PS}, v31")
    KV=96
    def kvr(ks):
        fr=36+20*(ks%2); o=[]
        for dt in range(2):
            for h in range(2): o.append(Ins(f"ds_read_b64_tr_b16 v[{fr+4*dt+2*h}:{fr+4*dt+2*h+1}], v29 offset:{(32*ks+4*h)*VS+32*dt}"))
        for ft in range(3):
            for h in range(2):
                base,ko=("v31",ks) if ks<4 else ("v32",ks-4)
                o.append(Ins(f"ds_read_b64_tr_b16 v[{fr+8+4*ft+2*h}:{fr+8+4*ft+2*h+1}], {base} offset:{(32*ko+4*h)*PS+32*ft}"))
        return o
    st=kvr(0)
    for ks in range(8):
        fr=36+20*(ks%2)
        nx=kvr(ks+1) if ks<7 else []
        k=0
        for dt in range(2):
            for ft in range(3):
                d=KV+(dt*3+ft)*4
                c=f"v[{d}:{d+3}]" if ks>0 else "0"
                if k==0: st.append(Ins("s_waitcnt lgkmcnt(0)")); st+=nx[:5]
                st.append(Ins(f"v_mfma_f32_16x16x32_bf16 v[{d}:{d+3}], v[{fr+4*dt}:{fr+4*dt+3}], v[{fr+8+4*ft}:{fr+8+4*ft+3}], {c}"))
                if k==1: st+=nx[5:]
                k+=1
    p.add(st)
    A(f"s_lshl_b32 s38, s{S_RT}, 5"); A(f"s_lshl_b32 s39, s{S_QD}, 2"); A("s_add_u32 s38, s38, s39"); A(f"s_add_u32 s38, s38, s{S_W}"); A("s_mul_i32 s38, s38, 2880")
    A("v_mul_u32_u24 v33, 80, v24"); A("v_lshlrev_b32 v34, 4, v25"); A("v_add_u32 v33, v33, v34")
    A("v_cmp_eq_u32 s[50:51], 0, v25"); A("v_cmp_gt_u32 s[52:53], 4, v24")
    A("s_nop 1")
    A("s_and_b64 s[54:55], s[50:51], s[52:53]")
    for ft in range(3):
        for dt in range(2):
            d=KV+(dt*3+ft)*4
            mask=(None if dt==0 else "s[50:51]") if ft<2 else ("s[52:53]" if dt==0 else "s[54:55]")
            if mask: A(f"s_mov_b64 exec, {mask}")
            A(f"buffer_store_dwordx4 v[{d}:{d+3}], v33, s[{S_KV}:{S_KV+3}], s38 offen offset:{ft*16*80+dt*64} sc1")
            if mask: A("s_mov_b64 exec, -1")
    A("v_mov_b32 v94, 0") if False else None
    A("v_mov_b32 v93, 0"); A("global_load_dword v95, v93, s[68:69] sc1")
    def accqv(t,tt,r): return f"v{96+(t*4+tt)*4+r}"
    for i in list(range(24,80))+list(range(24)): A(f"v_accvgpr_read_b32 v{96+i}, a{i}")
    stage2(p, accqv, lambda u,tt: f"v[{176+(u*4+tt)*4}:{176+(u*4+tt)*4+3}]", 24)
    A("s_waitcnt vmcnt(0)")
    A("s_barrier")
    A(f"s_add_u32 s66, s70, {0x15C0000}"); A("s_addc_u32 s67, s71, 0")
    import p2 as P2
    P2.zero_ready(p, "L_att_zr", S_W, vt=33, early="v95")
    A(f"s_cmp_eq_u32 s{S_W}, 0"); A("s_cbranch_scc0 L_att_nosig")
    A(f"s_lshl_b32 s38, s{S_QD}, 7"); A("v_mov_b32 v33, s38"); A("v_mov_b32 v34, 1")
    A(f"v_cmp_eq_u32 vcc, 0, v{V_L}"); A("s_and_saveexec_b64 s[48:49], vcc")
    A("global_atomic_add v33, v34, s[66:67] sc1")
    A("s_mov_b64 exec, s[48:49]")
    A.label("L_att_nosig")
    ST.stamp(p,5)
    A("s_mov_b32 s40, s62"); A("s_mov_b32 s41, s63"); A(f"s_mov_b32 s42, {576*1152}"); A("s_mov_b32 s43, 0x20000")
    A(f"s_lshl_b32 s48, s{S_RT}, 3"); A(f"s_add_u32 s48, s48, s{S_QD}"); A("s_lshl_b32 s48, s48, 2"); A(f"s_add_u32 s48, s48, s{S_W}"); A("s_mul_i32 s48, s48, 3072")
    if not os.environ.get('NOPF'):
        for i in range(3): A(f"buffer_load_dwordx4 a[{4*i}:{4*i+3}], v{V_L16}, s[40:43], s48 offen offset:{1024*i}")
    if not GMOVE:
        A("s_mov_b32 s40, s56"); A("s_mov_b32 s41, s57"); A(f"s_mov_b32 s42, {2048*1152}"); A("s_mov_b32 s43, 0x20000")
        A("s_mov_b32 s44, s64"); A("s_mov_b32 s45, s65"); A("s_mov_b32 s46, 1152"); A("s_mov_b32 s47, 0x20000")
        A(f"v_lshrrev_b32 v168, 3, v{V_L}"); A(f"v_and_b32 v169, 7, v{V_L}"); A("v_lshlrev_b32 v170, 4, v169")
        A("v_mul_u32_u24 v171, 0x480, v168"); A("v_add_u32 v171, v171, v170")
        A(f"s_lshl_b32 s48, s{S_RT}, 5"); A(f"s_lshl_b32 s49, s{S_QD}, 2"); A("s_add_u32 s48, s48, s49"); A(f"s_add_u32 s48, s48, s{S_W}")
        A(f"s_mul_i32 s49, s48, {8*1152}")
        for c in range(9):
            A(f"buffer_load_dwordx4 v[{96+4*c}:{99+4*c}], v171, s[40:43], s49 offen offset:{128*c}")
            A(f"buffer_load_dwordx4 v[{132+4*c}:{135+4*c}], v170, s[44:47], 0 offen offset:{128*c}")
    for tt in range(4):
        if tt==3:
            A(f"s_lshl_b32 s38, s{S_QD}, 7"); A("v_mov_b32 v174, s38"); A("global_load_dword v175, v174, s[66:67] sc1")
        softmax_pk(p, lambda f: 176+((f//4)*4+tt)*4+(f%4), 24, False)
        for half in range(2):
            for i in range(9):
                A(f"v_cvt_pk_bf16_f32 v{76+i}, v{24+18*half+2*i}, v{25+18*half+2*i}")
            for i in range(9): A(f"v_accvgpr_write_b32 a{140+tt*24+half*12+i}, v{76+i}")
            for i in range(9,12): A(f"v_accvgpr_write_b32 a{140+tt*24+half*12+i}, 0")
    if GMOVE: A("s_waitcnt vmcnt(0)")
    else:
        A("v_mov_b32 v172, 0"); A("v_mov_b32 v173, 0")
        A("s_waitcnt vmcnt(0)")
        for c in range(9):
            for r in range(4):
                A(f"v_dot2_f32_bf16 v{172+(r&1)}, v{96+4*c+r}, v{132+4*c+r}, v{172+(r&1)}")
        A("s_nop 3")
        A("v_add_f32 v172, v172, v173")
        for m in (0x041F,0x081F,0x101F):
            A("s_nop 0")
            A(f"ds_swizzle_b32 v173, v172 offset:0x{m:04X}"); A("s_waitcnt lgkmcnt(0)"); A("v_add_f32 v172, v172, v173")
        A(f"v_mul_f32 v172, 0x{f2u(-LOG2E):08x}, v172"); A("v_exp_f32 v172, v172"); A("s_nop 0"); A("v_add_f32 v172, 1.0, v172"); A("v_rcp_f32 v172, v172")
        A(f"s_add_u32 s40, s70, {0x1500000}"); A("s_addc_u32 s41, s71, 0"); A("s_mov_b32 s42, 8192"); A("s_mov_b32 s43, 0x20000")
        A("s_lshl_b32 s48, s48, 5"); A("v_lshlrev_b32 v168, 2, v168")
        A("v_cmp_eq_u32 vcc, 0, v169"); A("s_and_saveexec_b64 s[50:51], vcc")
        A("buffer_store_dword v172, v168, s[40:43], s48 offen sc1")
        A("s_mov_b64 exec, s[50:51]")
    ST.stamp(p,6)
    A.label("L_TOUCH_att2")
    A(f"s_cmp_eq_u32 s{S_W}, 0"); A("s_cbranch_scc0 L_att_wdone")
    A("v_readfirstlane_b32 s38, v175"); A("s_nop 1"); A("s_cmp_ge_u32 s38, 8"); A("s_cbranch_scc1 L_att_wdone")
    A(f"s_lshl_b32 s38, s{S_QD}, 7"); A("v_mov_b32 v33, s38")
    A("s_mov_b32 s39, 0")
    A.label("L_att_poll")
    A("s_add_u32 s39, s39, 1"); A("s_cmp_gt_u32 s39, 200000"); A("s_cbranch_scc1 L_att_wdone")
    A("global_load_dword v34, v33, s[66:67] sc1"); A("s_waitcnt vmcnt(0)")
    A("v_readfirstlane_b32 s38, v34"); A("s_nop 1"); A("s_cmp_ge_u32 s38, 8"); A("s_cbranch_scc1 L_att_wdone")
    A("s_sleep 6"); A("s_branch L_att_poll")
    A.label("L_att_wdone")
    A("s_barrier")
    A(f"s_lshl_b32 s39, s{S_QD}, 2"); A(f"s_add_u32 s39, s39, s{S_W}"); A("s_mul_i32 s39, s39, 2880")
    A(f"v_cmp_gt_u32 vcc, 52, v{V_L}")
    for r in range(8):
        A(f"s_add_u32 s38, s39, {r*32*2880}")
        for i in range(2):
            b=96+(r*3+i)*4
            A(f"buffer_load_dwordx4 v[{b}:{b+3}], v{V_L16}, s[{S_KV}:{S_KV+3}], s38 offen offset:{1024*i} sc1")
    A("s_mov_b64 exec, vcc")
    for r in range(8):
        A(f"s_add_u32 s38, s39, {r*32*2880}")
        b=96+(r*3+2)*4
        A(f"buffer_load_dwordx4 v[{b}:{b+3}], v{V_L16}, s[{S_KV}:{S_KV+3}], s38 offen offset:2048 sc1")
    A("s_mov_b64 exec, -1")
    A(f"s_and_b32 s48, s{S_W}, 1")
    for i in range(3):
        A(f"v_add_u32 v30, {64*i}, v{V_L}")
        A("v_mul_u32_u24 v31, 205, v30"); A("v_lshrrev_b32 v31, 10, v31")
        A("v_mul_u32_u24 v32, 5, v31"); A("v_sub_u32 v32, v30, v32")
        A("s_cmp_eq_u32 s48, 0"); A("s_cselect_b32 s49, 4, 0")
        A(f"v_cmp_eq_u32 s[{50+2*i}:{51+2*i}], s49, v32")
        A("v_cmp_le_u32 vcc, 18, v31"); A("v_mov_b32 v36, 0"); A("v_mov_b32 v37, 240"); A("v_cndmask_b32 v36, v36, v37, vcc")
        A("v_mul_u32_u24 v31, 40, v31"); A("v_add_u32 v31, v31, v36")
        A(f"s_mul_i32 s38, s{S_W}, 1920"); A(f"s_add_u32 s38, s38, {KVL}"); A("v_add_u32 v31, s38, v31")
        A("v_lshlrev_b32 v32, 1, v32"); A("v_subrev_u32 v33, s48, v32")
        A("v_add_u32 v34, 1, v33")
        A("v_cmp_gt_i32 vcc, 0, v33"); A("v_add_u32 v36, 10, v33"); A("s_nop 0"); A("v_cndmask_b32 v33, v33, v36, vcc")
        A(f"v_lshl_add_u32 v{40+2*i}, v33, 2, v31"); A(f"v_lshl_add_u32 v{41+2*i}, v34, 2, v31")
    A("v_mov_b32 v35, 1.0")
    A("s_waitcnt vmcnt(0)")
    for i in range(3):
        for k in (0,2):
            for r in range(1,8): A(f"v_pk_add_f32 {bc(96+i*4+k)}, {bc(96+i*4+k)}, {bc(96+(r*3+i)*4+k)}")
    A(f"v_cmp_gt_u32 vcc, 52, v{V_L}")
    A("s_cmp_eq_u32 s48, 0"); A("s_cbranch_scc1 L_att_even")
    for i in range(3): A(f"v_cndmask_b32 v{96+i*4+1}, v{96+i*4+1}, v35, s[{50+2*i}:{51+2*i}]")
    A("s_branch L_att_par")
    A.label("L_att_even")
    for i in range(3): A(f"v_cndmask_b32 v{96+i*4+3}, v{96+i*4+3}, v35, s[{50+2*i}:{51+2*i}]")
    A.label("L_att_par")
    for i in range(3):
        A(f"v_cvt_pk_bf16_f32 v38, v{96+i*4}, v{96+i*4+1}"); A(f"v_cvt_pk_bf16_f32 v39, v{96+i*4+2}, v{96+i*4+3}")
        if i==2: A("s_mov_b64 exec, vcc")
        A(f"ds_write_b32 v{40+2*i}, v38"); A(f"ds_write_b32 v{41+2*i}, v39")
        if i==2: A("s_mov_b64 exec, -1")
    A("s_waitcnt lgkmcnt(0)"); A("s_barrier")
    ST.stamp(p,7)
    def N(half,u,tt,r=None):
        b=96+((half*5+u)*4+tt)*4; return f"v[{b}:{b+3}]" if r is None else f"v{b+r}"
    seq=[(half,s,u) for half in range(2) for s in range(3) for u in range(5)]
    def rd(i):
        half,s,u=seq[i]
        return [Ins(f"ds_read_b64_tr_b16 {afh(i,h)}, v{V_BD2} offset:{half*960+(8*s+4*h)*40+8*u}") for h in range(2)]
    st=[]
    for i in range(PF): st+=rd(i)
    for i,(half,s,u) in enumerate(seq):
        nxt=rd(i+PF) if i+PF<len(seq) else []
        for tt in range(4):
            e=140+tt*24+half*12+4*s
            c=N(half,u,tt) if s>0 else "0"
            st.append(Ins(f"v_mfma_f32_16x16x32_bf16 {N(half,u,tt)}, {afr(i)}, a[{e}:{e+3}], {c}"))
            if tt<len(nxt): st.append(nxt[tt])
    st,_=auto_lgkm(st); p.add(st)
    A(f"s_lshl_b32 s38, s{S_RT}, 3"); A(f"s_lshl_b32 s39, s{S_W}, 1"); A("s_add_u32 s38, s38, s39"); A(f"s_mul_i32 s38, s38, {NKS_TOT}")
    A(f"s_lshr_b32 s39, s{S_QD}, 2"); A("s_add_u32 s40, s38, s39"); A("s_add_u32 s40, s40, 160"); A("s_lshl_b32 s40, s40, 11")
    A(f"s_and_b32 s39, s{S_QD}, 3"); A("s_lshl_b32 s39, s39, 2"); A("s_add_u32 s40, s40, s39")
    A(f"s_lshl_b32 s39, s{S_QD}, 1"); A("s_add_u32 s38, s38, s39"); A("s_add_u32 s38, s38, 144"); A("s_lshl_b32 s38, s38, 11")
    A(f"v_and_b32 v72, 15, v{V_L}"); A(f"v_lshrrev_b32 v73, 4, v{V_L}"); A("v_and_b32 v74, 1, v73"); A("v_lshrrev_b32 v73, 1, v73")
    A("v_lshlrev_b32 v72, 4, v72"); A("v_lshlrev_b32 v74, 9, v74"); A("v_lshlrev_b32 v73, 10, v73"); A("v_add3_u32 v72, v72, v74, v73")
    A("s_nop 3")
    for tt in range(4):
        a=24; b=26; den=28
        A(f"v_rcp_f32 v{a}, {N(0,4,tt,3)}"); A(f"v_rcp_f32 v{b}, {N(1,4,tt,3)}"); A("s_nop 0")
        A(f"v_mul_f32 v{den}, {N(0,4,tt,2)}, v{a}"); A(f"v_fmac_f32 v{den}, {N(1,4,tt,2)}, v{b}"); A(f"v_add_f32 v{den}, 0x{f2u(1e-6):08x}, v{den}")
        A(f"v_rcp_f32 v{den}, v{den}"); A("s_nop 0"); A(f"v_mul_f32 v{a}, v{a}, v{den}"); A(f"v_mul_f32 v{b}, v{b}, v{den}")
        for d in range(0,18,2):
            n0=96+((0*5+d//4)*4+tt)*4+d%4; n1=96+((1*5+d//4)*4+tt)*4+d%4
            A(f"v_pk_mul_f32 {bc(30+d)}, {bc(n0)}, {bc(a)} op_sel_hi:[1,0]")
            A(f"v_pk_fma_f32 {bc(30+d)}, {bc(n1)}, {bc(b)}, {bc(30+d)} op_sel_hi:[1,0,1]")
        o=48+12*(tt%2)
        for i in range(9): A(f"v_cvt_pk_bf16_f32 v{o+i}, v{30+2*i}, v{31+2*i}")
        for s in range(2):
            A(f"s_add_u32 s39, s38, {2048*s+256*(tt&1)}")
            A(f"buffer_store_dwordx4 v[{o+4*s}:{o+4*s+3}], v72, s[{S_H}:{S_H+3}], s39 offen{STMOD}")
        A(f"s_add_u32 s39, s40, {256*(tt&1)}")
        A(f"buffer_store_dword v{o+8}, v72, s[{S_H}:{S_H+3}], s39 offen{STMOD}")
        if tt==1: A(f"s_add_u32 s38, s38, {NKS_TOT*2048}"); A(f"s_add_u32 s40, s40, {NKS_TOT*2048}")
    ST.stamp(p,8)
    ST.flush(p,70,71,2)
    if MERGE:
        A("s_mov_b32 s90, 1"); A("s_mov_b32 s91, 4")
        if AMAP:
            A(f"s_mul_i32 s92, s{S_RT}, 6"); A(f"s_add_u32 s92, s92, s{S_QD}"); A(f"s_cmp_ge_u32 s{S_QD}, 6"); A("s_cselect_b32 s92, 99, s92")
        else:
            A(f"s_lshl_b32 s92, s{S_RT}, 3"); A(f"s_add_u32 s92, s92, s{S_QD}")
        A(f"s_mov_b32 s93, s{S_W}")
        A(f"s_add_u32 s94, s{S_RT}, 40"); A("s_mov_b32 s95, 0")
        A("s_mul_i32 s38, s92, 171"); A("s_lshr_b32 s38, s38, 10"); A("s_add_u32 s96, s38, 40"); A("s_mov_b32 s97, 8")
        A("s_branch L_p2")
    else:
        A("s_endpgm")
    if docheck:
        ins=p.ins
        body=ins[il:idn]
        tr=ins[:il]+body+body+ins[idn:]
        print("att check problems:",len(check(tr,'att')))
if __name__=="__main__":
    for m in range(1792): assert (m*7282)>>16==m//9
    for n in range(12): assert (n*86)>>8==n//3
    for n in range(768): assert (n*405)>>16==n//162, n
    for n in range(162): assert (n*57)>>9==n//9
    for n in range(192): assert (n*205)>>10==n//5
    p=Prog(); gen_att(p); print(len(p.ins))
```

```python
from core import *
import stamp as ST
from k1_gx import NKS_TOT, H_BYTES, f2u, GSHAPE
import os
GMOVE=int(os.environ.get('GMOVE','1'))
G_OFF=0x1500000; P_OFF=0x1600000
U=12; STG=12288; D=int(os.environ.get('P2D','4')); B2=int(os.environ.get('P2B2','0'))
HMOD=os.environ.get('HMOD',' sc1')
OMOD=os.environ.get('OMOD','')
SLEEP2=int(os.environ.get('SLEEP2','2'))
SLEEP=int(os.environ.get('SLEEP','6'))
ACC=64
P2S=int(os.environ.get('P2S','16'))
RL=6
assert not B2 or D+2<=RL or True
def acc(q,r=None):
    b=ACC+q*16
    return f"v[{b}:{b+15}]" if r is None else f"v{b+r}"
def acc16(q,tt,r=None):
    b=ACC+(q*2+tt)*4
    return f"v[{b}:{b+3}]" if r is None else f"v{b+r}"
def hfr(u,b_): b=(u*2+b_)*4; return f"a[{b}:{b+3}]"
def afr(q): b=96+4*q; return f"a[{b}:{b+3}]"
def afh(q,h): b=96+4*q+2*h; return f"a[{b}:{b+1}]"
MF="v_mfma_f32_32x32x16_bf16"
V_TR=8; V_HL=12; V_DL=14; V_DF=17; V_L16=20; V_LT=7
S_H=16; S_P=20; S_CUR=24
S_W=93; S_WB=29; S_DSO=30; S_INA=31; S_INB=32; S_HS0=33; S_HS1=34; S_RND=35; S_NR=36; S_XA=37; S_XF=67; S_XS=66
WI={'e':31,'a':32,'b':46,'c':47}; HI={'e':52,'a':53,'b':54,'c':55}
S_JT=90
S_JO=91
S_JTILE=92
S_JW=93
CNT_OFF=0x15C0000
HC0=8; OC0=40; HE0=48; TW0=80; GC0=272; NLINES=273

def trread(i,h,stage):
    so=(stage%RL)*STG
    if P2S==16:
        x=Ins(f"ds_read_b64_tr_b16 {afh(i,h)}, v{V_TR+(i&3)} offset:{so+(i>>2)*128+h*1536}"); x.cost=1
        return x
    b_,q=i//6,i%6
    sl=stage%RL; grp=sl//3; so=(sl%3)*STG
    return Ins(f"ds_read_b64_tr_b16 {afh(i,h)}, v{V_TR+2*grp+(q&1)} offset:{so+(q&~1)*64+b_*6144+h*1536}")
def cls(v):
    v%=12
    return 'e' if v%2==0 else ('c' if v==11 else ('b' if v%4==3 else 'a'))
def issue_h(idx):
    u_dst=idx%U
    va,o1=(V_HL,256) if P2S==16 else (V_L16,1024)
    return [Ins(f"buffer_load_dwordx4 {hfr(u_dst,0)}, v{va}, s[{S_H}:{S_H+3}], s{S_HS0} offen{HMOD}"),
            Ins(f"buffer_load_dwordx4 {hfr(u_dst,1)}, v{va}, s[{S_H}:{S_H+3}], s{S_HS0} offen offset:{o1}{HMOD}"),
            Ins(f"s_add_u32 s{S_HS0}, s{S_HS0}, s{HI[cls(idx)]}")]
def issue_w(idx):
    u_dst=idx%U
    o=[Ins(f"s_add_u32 m0, s{S_WB}, {(u_dst%RL)*STG}"), Ins("s_nop 0")]
    for e in range(3):
        o.append(Ins(f"buffer_load_dwordx4 v{V_DF+e}, s[{S_CUR}:{S_CUR+3}], s{S_DSO} offen offset:{1024*e} lds"))
    o.append(Ins(f"s_add_u32 s{S_DSO}, s{S_DSO}, s{WI[cls(idx)]}"))
    return o
def items2(lst):
    items=[]; pend=[]
    for x in lst:
        if x.kind=='nop': continue
        if x.kind in('dma','vmem'):
            if pend: items.append(pend); pend=[]
            items.append([x])
        else: pend.append(x)
    if pend: items.append(pend)
    return items
def step(u):
    if B2:
        main=[Ins(f"s_waitcnt vmcnt({5*(D-3)})"),Ins("s_barrier")] if u%2==0 else [Ins("s_nop 0"),Ins("s_nop 0")]
    else:
        main=[Ins(f"s_waitcnt vmcnt({5*(D-2)})"),Ins("s_barrier")]
    un=(u+1)%U
    for i in range(12):
        if i%2==0: main.append(Ins("s_waitcnt lgkmcnt(8)"))
        n=i+6
        rd=[trread(n,h,u) for h in range(2)] if n<12 else [trread(n-12,h,un) for h in range(2)]
        if P2S==16:
            for tt in range(2):
                main.append(Ins(f"v_mfma_f32_16x16x32_bf16 {acc16(i,tt)}, {afr(i)}, {hfr(u,tt)}, {acc16(i,tt)}")); main.append(rd[tt])
        else:
            b_,q=i//6,i%6
            main.append(Ins(f"{MF} {acc(q)}, {afr(i)}, {hfr(u,b_)}, {acc(q)}"))
            main+=rd
    fl=issue_h(u+D)+issue_w(u+D)
    if u==(24-D-12)-4: fl=[Ins("global_load_dword v27, v7, s[64:65] sc1")]+fl
    res=spread(main, items2(fl), first=0 if P2S==32 else 2, last=11 if P2S==32 else 22)
    if u==(16-D)%12:
        sw=[Ins(f"s_cmp_eq_u32 s{S_RND}, s{S_XS}"), Ins("s_cbranch_scc0 L_p2_nosw")]
        sw+=[Ins(f"v_mov_b32 v{V_DF+e}, v{V_DL+e}") for e in range(3)]
        sw+=[Ins(f"s_mov_b32 s{S_DSO}, 0")]+[Ins(f"s_mov_b32 s{WI[k]}, {288*1152}") for k in 'eabc']+[Ins("L_p2_nosw:"),Ins("s_nop 0")]
        res=res[:2]+sw+res[2:]
    if u==(8 if D==4 else 24-D-12):
        sw=[Ins(f"s_cmp_eq_u32 s{S_RND}, s{S_XF}"), Ins("s_cbranch_scc0 L_p2_nolate")]
        sw+=[Ins(f"s_mov_b32 s{WI['a']}, {5*32*1152}"), Ins(f"s_mov_b32 s{WI['b']}, {5*32*1152}"), Ins(f"s_mov_b32 s{HI['a']}, {5*2048}"), Ins(f"s_mov_b32 s{HI['b']}, {5*2048}")]
        sw+=[Ins("v_readfirstlane_b32 s38, v27"), Ins("s_mov_b32 s39, 0"), Ins("L_p2_late:"), Ins("s_cmp_ge_u32 s38, 6"), Ins("s_cbranch_scc1 L_p2_nolate"),
             Ins("s_add_u32 s39, s39, 1"), Ins("s_cmp_gt_u32 s39, 200000"), Ins("s_cbranch_scc1 L_p2_nolate"), Ins(f"s_sleep {SLEEP}"),
             Ins("global_load_dword v27, v7, s[64:65] sc1"), Ins("s_waitcnt vmcnt(0)"), Ins("v_readfirstlane_b32 s38, v27"), Ins("s_branch L_p2_late"),
             Ins("L_p2_nolate:"), Ins("s_nop 0")]
        res=res[:2]+sw+res[2:]
    if u==5:
        res+=[Ins(f"s_cmp_eq_u32 s{S_RND}, s{S_XA}"), Ins("s_cbranch_scc1 L_p2_lend")]
    if u==11:
        res+=[Ins(f"s_add_u32 s{WI['c']}, s{WI['c']}, s60"), Ins(f"s_add_u32 s{HI['c']}, s{HI['c']}, s61")]
    return res

def cnt_base(p):
    p(f"s_add_u32 s64, s70, {CNT_OFF}"); p("s_addc_u32 s65, s71, 0")
def poll(p, idx_s, target, lab, wreg=S_JW, early=None):
    p(f"s_cmp_eq_u32 s{wreg}, 0"); p(f"s_cbranch_scc0 {lab}_ok")
    if early:
        p(f"v_readfirstlane_b32 s38, {early}"); p("s_nop 1"); p(f"s_cmp_ge_u32 s38, {target}"); p(f"s_cbranch_scc1 {lab}_ok")
    p(f"s_lshl_b32 s38, s{idx_s}, 7"); p("v_mov_b32 v2, s38")
    p("s_mov_b32 s39, 0")
    p.label(lab)
    p(f"global_load_dword v3, v2, s[64:65] sc1"); p("s_waitcnt vmcnt(0)")
    p("v_readfirstlane_b32 s38, v3"); p("s_add_u32 s39, s39, 1")
    p(f"s_cmp_ge_u32 s38, {target}"); p(f"s_cbranch_scc1 {lab}_ok")
    p("s_cmp_gt_u32 s39, 200000"); p(f"s_cbranch_scc1 {lab}_ok")
    p(f"s_sleep {SLEEP}"); p(f"s_branch {lab}")
    p.label(lab+"_ok")
    p("s_barrier")
def signal(p, vtmp, idx_s, lab, wreg=S_JW):
    p(f"s_cmp_eq_u32 s{wreg}, 0"); p(f"s_cbranch_scc0 {lab}")
    p(f"s_lshl_b32 s38, s{idx_s}, 7"); p(f"v_mov_b32 v{vtmp}, s38"); p(f"v_mov_b32 v{vtmp+1}, 1")
    p("v_cmp_eq_u32 vcc, 0, v0"); p("s_and_saveexec_b64 s[48:49], vcc")
    p(f"global_atomic_add v{vtmp}, v{vtmp+1}, s[64:65] sc1")
    p("s_mov_b64 exec, s[48:49]")
    p.label(lab)
def zero_ready(p, lab, wreg, vt=2, early=None, inval=None):
    p(f"s_cmp_eq_u32 s{wreg}, 0"); p(f"s_cbranch_scc0 {lab}_ok")
    if early:
        p(f"v_readfirstlane_b32 s38, {early}"); p("s_nop 1"); p(f"s_cmp_ge_u32 s38, {NLINES}"); p(f"s_cbranch_scc1 {lab}_ok")
        if inval: p(f"v_mov_b32 {inval}, 0")
    p(f"v_mov_b32 v{vt}, 0"); p("s_mov_b32 s39, 0")
    p.label(lab)
    p(f"global_load_dword v{vt+1}, v{vt}, s[68:69] sc1"); p("s_waitcnt vmcnt(0)")
    p(f"v_readfirstlane_b32 s38, v{vt+1}"); p("s_add_u32 s39, s39, 1")
    p(f"s_cmp_ge_u32 s38, {NLINES}"); p(f"s_cbranch_scc1 {lab}_ok")
    p("s_cmp_gt_u32 s39, 200000"); p(f"s_cbranch_scc1 {lab}_ok")
    p(f"s_sleep {SLEEP}"); p(f"s_branch {lab}")
    p.label(lab+"_ok")

def p2_setup(p, early=True):
    cnt_base(p)
    if early:
        p("v_mov_b32 v28, 0"); p("global_load_dword v29, v28, s[68:69] sc1")
        p("s_lshl_b32 s38, s96, 7"); p("v_mov_b32 v24, s38"); p("global_load_dword v25, v24, s[64:65] sc1")
    p("s_load_dwordx2 s[40:41], s[0:1], 24")
    p("s_load_dwordx2 s[42:43], s[0:1], 56")
    p("s_load_dwordx2 s[44:45], s[0:1], 72")
    p(f"s_mul_i32 s5, s{S_JTILE}, 171"); p("s_lshr_b32 s5, s5, 9")
    p("s_mul_i32 s6, s5, 3"); p(f"s_sub_u32 s6, s{S_JTILE}, s6")
    p("v_and_b32 v1, 63, v0"); p(f"v_lshlrev_b32 v{V_L16}, 4, v1")
    p(f"s_mul_i32 s48, s{S_W}, 192")
    p(f"s_cmp_eq_u32 s{S_JT}, 1"); p("s_cselect_b64 s[50:51], -1, 0")
    for e in range(3):
        p(f"v_add_u32 v4, s48, v1")
        if e: p(f"v_add_u32 v4, {64*e}, v4")
        p("v_mul_u32_u24 v5, 0xaab, v4"); p("v_lshrrev_b32 v5, 16, v5")
        p("v_mul_u32_u24 v6, 24, v5"); p("v_sub_u32 v6, v4, v6")
        if P2S==32:
            p("v_bfe_u32 v7, v5, 1, 1"); p("v_lshrrev_b32 v4, 2, v6"); p("v_xor_b32 v4, v4, v7"); p("v_lshlrev_b32 v4, 6, v4")
            p("v_and_b32 v6, 3, v6"); p("v_lshlrev_b32 v6, 4, v6")
        else:
            p("v_bfe_u32 v7, v5, 1, 1"); p("v_bfe_u32 v4, v5, 3, 1"); p("v_lshlrev_b32 v4, 1, v4"); p("v_or_b32 v7, v7, v4")
            p("v_lshrrev_b32 v4, 1, v6"); p("v_xor_b32 v4, v4, v7"); p("v_lshlrev_b32 v4, 5, v4")
            p("v_and_b32 v6, 1, v6"); p("v_lshlrev_b32 v6, 4, v6")
        p(f"v_add3_u32 v4, v4, v6, 0"); p(f"v_add_u32 v31, {4096-1024*e}, v4")
        if GSHAPE==32:
            p("v_and_b32 v6, 16, v5"); p("v_bfe_u32 v7, v5, 3, 1"); p("v_lshl_add_u32 v6, v7, 2, v6")
            p("v_and_b32 v7, 3, v5"); p("v_add_u32 v6, v6, v7"); p("v_bfe_u32 v7, v5, 2, 1"); p("v_lshl_add_u32 v6, v7, 3, v6")
        else:
            p("v_bfe_u32 v6, v5, 2, 1"); p("v_lshlrev_b32 v6, 4, v6"); p("v_lshrrev_b32 v7, 3, v5"); p("v_lshl_add_u32 v6, v7, 2, v6")
            p("v_and_b32 v7, 3, v5"); p("v_add_u32 v6, v6, v7")
        p("v_lshrrev_b32 v7, 3, v5"); p("v_mul_u32_u24 v7, 18, v7"); p("v_and_b32 v30, 7, v5"); p("v_add_u32 v7, v7, v30")
        p("v_cndmask_b32 v6, v6, v7, s[50:51]")
        p("v_mul_u32_u24 v6, 0x480, v6"); p(f"v_add_u32 v{V_DF+e}, v6, v31")
        p("v_bfe_u32 v6, v5, 1, 2"); p("v_mul_u32_u24 v6, 72, v6"); p("v_lshrrev_b32 v7, 3, v5"); p("v_mul_u32_u24 v7, 18, v7"); p("v_add_u32 v6, v6, v7")
        p("v_and_b32 v7, 1, v5"); p("v_add3_u32 v6, v6, v7, 16"); p("v_mul_u32_u24 v6, 0x480, v6"); p(f"v_add_u32 v{V_DL+e}, v6, v31")
    p("v_lshrrev_b32 v2, 4, v1"); p("v_and_b32 v3, 15, v1")
    p("v_lshrrev_b32 v4, 2, v3"); p("v_and_b32 v5, 3, v3")
    if P2S==32:
        p("v_lshrrev_b32 v6, 1, v2"); p("v_lshlrev_b32 v6, 3, v6"); p("v_add_u32 v6, v6, v4"); p("v_mul_u32_u24 v6, 0x180, v6")
        p("v_lshlrev_b32 v5, 3, v5"); p("v_add_u32 v6, v6, v5"); p("v_and_b32 v5, 1, v2"); p("v_lshl_add_u32 v6, v5, 5, v6")
        p("v_lshrrev_b32 v4, 1, v4")
        for k in range(2):
            p(f"v_xor_b32 v5, {k}, v4"); p("v_lshlrev_b32 v5, 6, v5"); p(f"v_add_u32 v{V_TR+k}, v5, v6"); p(f"v_add_u32 v{V_TR+2+k}, {3*STG}, v{V_TR+k}")
    else:
        p("v_lshlrev_b32 v6, 3, v2"); p("v_add_u32 v6, v6, v4"); p("v_mul_u32_u24 v6, 0x180, v6")
        p("v_lshlrev_b32 v5, 3, v5"); p("v_add_u32 v6, v6, v5")
        p("v_lshrrev_b32 v4, 1, v4"); p("v_and_b32 v5, 1, v2"); p("v_lshlrev_b32 v5, 1, v5"); p("v_or_b32 v4, v4, v5")
        for k in range(4):
            p(f"v_xor_b32 v5, {k}, v4"); p("v_lshlrev_b32 v5, 5, v5"); p(f"v_add_u32 v{V_TR+k}, v5, v6")
        p("v_lshrrev_b32 v4, 1, v2"); p("v_lshlrev_b32 v4, 10, v4"); p("v_and_b32 v5, 1, v2"); p("v_lshlrev_b32 v5, 9, v5"); p("v_lshlrev_b32 v6, 4, v3")
        p(f"v_add3_u32 v{V_HL}, v4, v5, v6")
    for r in range(ACC,ACC+96): p(f"v_mov_b32 v{r}, 0")
    p("s_waitcnt lgkmcnt(0)")
    p(f"s_cmp_eq_u32 s{S_JT}, 1")
    R=32*1152
    p("s_cselect_b32 s4, s40, s42"); p("s_cselect_b32 s7, s41, s43")
    p(f"s_mov_b32 s62, {4608*1152+4096}"); p(f"s_cselect_b32 s62, {576*1152+4096}, s62")
    for k,(fv,av) in {'e':(1,8),'a':(1,64),'b':(3,64),'c':(3,64)}.items():
        p(f"s_mov_b32 s{WI[k]}, {fv*R}"); p(f"s_cselect_b32 s{WI[k]}, {av*1152}, s{WI[k]}")
    for k,fv in {'e':1,'a':1,'b':3,'c':3}.items():
        p(f"s_mov_b32 s{HI[k]}, {fv*2048}"); p(f"s_cselect_b32 s{HI[k]}, 2048, s{HI[k]}")
    p(f"s_mov_b32 s60, {(-32*R)&0xffffffff}"); p("s_cselect_b32 s60, 0, s60"); p(f"s_mov_b32 s61, {(-32*2048)&0xffffffff}"); p("s_cselect_b32 s61, 0, s61")
    p(f"s_mov_b32 s{S_NR}, 3"); p(f"s_cselect_b32 s{S_XA}, 1, 99"); p(f"s_cselect_b32 s{S_XF}, 99, 1"); p(f"s_cselect_b32 s{S_XS}, {(16-D)//12}, 99")
    p(f"s_mul_i32 s63, s{S_JO}, 36"); p(f"s_cselect_b32 s63, 144, s63")
    p(f"s_mul_i32 s56, s63, {R}"); p(f"s_cselect_b32 s{S_DSO}, 0, s56")
    p("s_mul_i32 s57, s6, 384")
    p(f"s_add_u32 s{S_CUR}, s4, s57"); p(f"s_addc_u32 s{S_CUR+1}, s7, 0"); p(f"s_sub_u32 s{S_CUR}, s{S_CUR}, 4096"); p(f"s_subb_u32 s{S_CUR+1}, s{S_CUR+1}, 0")
    p(f"s_sub_u32 s{S_CUR+2}, s62, s57"); p(f"s_mov_b32 s{S_CUR+3}, 0x20000")
    p(f"s_mov_b32 s{S_H}, s70"); p(f"s_mov_b32 s{S_H+1}, s71"); p(f"s_mov_b32 s{S_H+2}, {H_BYTES}"); p(f"s_mov_b32 s{S_H+3}, 0x20000")
    p("s_lshl_b32 s57, s5, 2"); p(f"s_add_u32 s57, s57, s{S_W}")
    p(f"s_mul_i32 s48, s57, {NKS_TOT}"); p("s_add_u32 s48, s48, s63"); p(f"s_lshl_b32 s{S_HS0}, s48, 11")
    p(f"s_mul_i32 s{S_WB}, s{S_W}, 3072")

def p2_first_loads(p, uniq):
    poll(p, 96, "s97", f"L_p2_poll1{uniq}", early="v25")
    p("s_lshl_b32 s38, s95, 7"); p(f"v_mov_b32 v{V_LT}, s38")
    for i in range(D): p.add(issue_h(i))

def gen_p2a_ffn(p):
    p("v_mov_b32 v25, v49")
    p2_setup(p, early=False)
    for i in range(D): p.add(issue_w(i))
    p2_first_loads(p, "f")

def gen_p2(p, docheck=True):
    i0=len(p.ins)
    p.label("L_p2")
    p2_setup(p)
    p("s_waitcnt vmcnt(0)"); p("s_barrier")
    zero_ready(p, "L_p2_zr", S_JW, early="v29", inval="v25")
    signal(p, 4, 94, "L_p2_sig1")
    ST.stamp(p,7)
    p(f"s_cmp_ge_u32 s{S_JTILE}, 48"); p("s_cbranch_scc1 "+("L_gate" if GMOVE else "L_p2_end"))
    for i in range(D): p.add(issue_w(i))
    p2_first_loads(p, "")
    p(f"s_waitcnt vmcnt({2*(D-2)})" if not B2 else f"s_waitcnt vmcnt({min(4,2*(D-3))})"); p("s_barrier")
    p("s_branch L_p2c")
    p.label("L_p2b")
    p("s_waitcnt vmcnt(0)"); p("s_barrier")
    signal(p, 4, 94, "L_p2_sig1b")
    ST.stamp(p,7)
    p.label("L_p2c")
    ST.stamp(p,8)
    for q in range(6):
        for h in range(2): p.add([trread(q,h,0)])
    p(f"s_mov_b32 s{S_RND}, 0")
    iA=len(p.ins)
    p.label("L_p2_loop")
    for u in range(U): p.add(step(u))
    p(f"s_add_u32 s{S_RND}, s{S_RND}, 1"); p(f"s_cmp_lt_u32 s{S_RND}, s{S_NR}"); p("s_cbranch_scc1 L_p2_loop")
    iA2=len(p.ins)
    p.label("L_p2_lend")
    p("s_waitcnt vmcnt(0) lgkmcnt(0)")
    ST.stamp(p,9)
    p(f"s_mul_i32 s47, s{S_JTILE}, 5"); p(f"s_add_u32 s47, s47, s{S_JO}"); p("s_lshl_b32 s47, s47, 2"); p(f"s_add_u32 s47, s47, s{S_W}"); p("s_mul_i32 s47, s47, 12288")
    p(f"s_add_u32 s{S_P}, s70, {P_OFF}"); p(f"s_addc_u32 s{S_P+1}, s71, 0"); p(f"s_mov_b32 s{S_P+2}, {240*4*12288}"); p(f"s_mov_b32 s{S_P+3}, 0x20000")
    p("s_nop 7")
    if GMOVE: p(f"v_mov_b32 v21, {272*128}"); p("global_load_dword v22, v21, s[64:65] sc1")
    OWN=200
    for i in range(12):
        q,e=i//2,i%2
        t=32+4*(i%4)
        p(f"s_cmp_eq_u32 s{S_JO}, {i%5}"); p(f"s_cbranch_scc1 L_p3_own{i}")
        def cr(k):
            if P2S==32: return acc(q,8*e+k)
            tt,pp=i//6,i%6
            return acc16(2*pp+k//4,tt,k%4)
        for k in range(4): p(f"v_cvt_pk_bf16_f32 v{t+k}, {cr(2*k)}, {cr(2*k+1)}")
        off=i*1024
        p(f"s_add_u32 s56, s47, {off - off%4096}")
        p(f"buffer_store_dwordx4 v[{t}:{t+3}], v{V_L16}, s[{S_P}:{S_P+3}], s56 offen offset:{off%4096} sc1")
        p(f"s_branch L_p3_nx{i}")
        p.label(f"L_p3_own{i}")
        for k in range(8): p(f"v_mov_b32 v{OWN+8*(i//5)+k}, {cr(k)}")
        p.label(f"L_p3_nx{i}")
    p(f"s_lshl_b32 s57, s{S_JTILE}, 2"); p(f"s_add_u32 s57, s57, s{S_W}"); p(f"s_add_u32 s57, s57, {TW0}")
    if P2S==32: p("v_and_b32 v4, 31, v1"); p("v_lshrrev_b32 v5, 5, v1")
    else: p("v_and_b32 v4, 15, v1"); p("v_lshrrev_b32 v5, 4, v1")
    p("s_lshl_b32 s60, s5, 7"); p(f"s_lshl_b32 s61, s{S_W}, 5"); p("s_add_u32 s60, s60, s61")
    p("v_add_u32 v6, s60, v4")
    p("v_lshlrev_b32 v7, 2, v6")
    p("v_mul_u32_u24 v6, 0x480, v6"); p("v_lshlrev_b32 v5, 3, v5"); p("v_add_u32 v6, v6, v5")
    p("s_mov_b32 s8, s44"); p("s_mov_b32 s9, s45"); p(f"s_mov_b32 s10, {2048*1152}"); p("s_mov_b32 s11, 0x20000")
    p(f"s_add_u32 s12, s70, {G_OFF}"); p("s_addc_u32 s13, s71, 0"); p("s_mov_b32 s14, 8192"); p("s_mov_b32 s15, 0x20000")
    p(f"s_mul_i32 s62, s{S_JTILE}, {5*4*12288}"); p(f"s_mul_i32 s63, s{S_W}, 12288"); p("s_add_u32 s62, s62, s63")
    p("s_lshl_b32 s38, s57, 7"); p("v_mov_b32 v2, s38"); p(f"s_lshl_b32 s38, 1, s{S_JO}"); p("v_mov_b32 v8, s38")
    p("s_waitcnt vmcnt(0)")
    if GMOVE:
        p("s_mov_b32 s39, 0")
        p.label("L_p3_gc")
        p("v_readfirstlane_b32 s38, v22"); p("s_add_u32 s39, s39, 1"); p("s_cmp_ge_u32 s38, 16"); p("s_cbranch_scc1 L_p3_gcok")
        p("s_cmp_gt_u32 s39, 200000"); p("s_cbranch_scc1 L_p3_gcok")
        p(f"s_sleep {SLEEP}"); p("global_load_dword v22, v21, s[64:65] sc1"); p("s_waitcnt vmcnt(0)"); p("s_branch L_p3_gc")
        p.label("L_p3_gcok")
    ST.stamp(p,1)
    p("v_cmp_eq_u32 vcc, 0, v1"); p("s_and_saveexec_b64 s[48:49], vcc")
    p("global_atomic_add v2, v8, s[64:65] sc1")
    p("s_mov_b64 exec, s[48:49]")
    for k in range(4):
        p(f"s_add_u32 s38, s{S_JO}, {k+1}"); p("s_and_b32 s38, s38, 3")
        if k==3: p("s_mov_b32 s38, 4")
        p(f"s_cmp_eq_u32 s{S_JO}, 4"); p(f"s_cselect_b32 s38, {k}, s38"); p(f"s_mul_i32 s{52+k}, s38, {4*12288}"); p(f"s_lshl_b32 s{16+k}, 1, s38")
    p(f"s_lshl_b32 s63, s{S_JO}, 10"); p("s_add_u32 s63, s63, s62")
    p("s_mov_b32 s39, 0"); p("s_mov_b32 s46, 0")
    p.label("L_p2_poll2")
    p("global_load_dword v3, v2, s[64:65] sc1"); p("s_waitcnt vmcnt(0)")
    p("v_readfirstlane_b32 s38, v3"); p("s_add_u32 s39, s39, 1")
    p("s_cmp_gt_u32 s39, 200000"); p("s_cselect_b32 s38, 31, s38")
    p("s_andn2_b32 s38, s38, s46")
    for k in range(4):
        p(f"s_and_b32 s47, s38, s{16+k}"); p(f"s_cbranch_scc0 L_p3_s{k}")
        p(f"s_or_b32 s46, s46, s{16+k}"); p(f"s_add_u32 s47, s63, s{52+k}")
        for c in range(3):
            if c==2: p(f"s_cmp_gt_u32 s{S_JO}, 1"); p(f"s_cbranch_scc1 L_p3_s{k}")
            b=64+(c*4+k)*4
            p(f"buffer_load_dwordx4 v[{b}:{b+3}], v{V_L16}, s[{S_P}:{S_P+3}], s47 offen sc1")
            if c<2: p(f"s_add_u32 s47, s47, 5120")
        p.label(f"L_p3_s{k}")
    p(f"s_lshl_b32 s47, 1, s{S_JO}"); p("s_or_b32 s47, s47, s46"); p("s_cmp_eq_u32 s47, 31"); p("s_cbranch_scc1 L_p2_poll2_ok")
    p(f"s_sleep {SLEEP2}"); p("s_branch L_p2_poll2")
    p.label("L_p2_poll2_ok")
    ST.stamp(p,2)
    p(f"buffer_load_dword v11, v7, s[12:15], 0 offen sc1")
    if P2S==16: p(f"buffer_load_dword v13, v7, s[12:15], 0 offen offset:64 sc1")
    p.label("L_p3_ld2")
    p("s_waitcnt vmcnt(0)")
    if P2S==32: p("v_sub_f32 v12, 1.0, v11")
    else: p("v_mov_b32 v14, v11")
    p(f"s_cmp_eq_u32 s{S_JO}, 4"); p("s_cbranch_scc1 L_p3_att")
    for variant in range(2):
        if variant==1: p.label("L_p3_att")
        for c in range(3):
            if c==2: p(f"s_cmp_gt_u32 s{S_JO}, 1"); p("s_cbranch_scc1 L_p2_end")
            if variant==1 and c==2: break
            if P2S==32:
                p(f"s_add_u32 s63, s{S_JO}, {5*c}"); p("s_lshl_b32 s63, s63, 5"); p("s_mul_i32 s56, s6, 384"); p("s_add_u32 s63, s63, s56")
            else:
                p(f"s_add_u32 s63, s{S_JO}, {5*c}"); p("s_cmp_ge_u32 s63, 6"); p("s_cselect_b32 s56, 6, 0"); p("s_cselect_b64 s[50:51], -1, 0"); p(f"s_cselect_b32 s57, {16*1152}, 0")
                p("s_sub_u32 s63, s63, s56"); p("s_lshl_b32 s63, s63, 6"); p("s_mul_i32 s56, s6, 384"); p("s_add_u32 s63, s63, s56"); p("s_add_u32 s63, s63, s57")
                p("v_cndmask_b32 v11, v14, v13, s[50:51]"); p("v_sub_f32 v12, 1.0, v11")
            for k in range(4):
                lo=40+2*k; hi=41+2*k; own=f"v[{OWN+8*c+2*k}:{OWN+8*c+2*k+1}]"
                def unpack(src):
                    s_=64+(c*4+src)*4+k
                    p(f"v_lshlrev_b32 v48, 16, v{s_}"); p(f"v_and_b32 v49, 0xffff0000, v{s_}")
                if variant==0:
                    unpack(0); p(f"v_pk_add_f32 v[{lo}:{hi}], {own}, v[48:49]")
                    for src in (1,2): unpack(src); p(f"v_pk_add_f32 v[{lo}:{hi}], v[{lo}:{hi}], v[48:49]")
                    unpack(3)
                    p(f"v_pk_mul_f32 v[{lo}:{hi}], v[{lo}:{hi}], v[12:13] op_sel_hi:[1,0]")
                    p(f"v_pk_fma_f32 v[{lo}:{hi}], v[48:49], v[10:11], v[{lo}:{hi}] op_sel:[0,1,0] op_sel_hi:[1,1,1]")
                else:
                    s0=64+(c*4)*4+k
                    p(f"v_lshlrev_b32 v{lo}, 16, v{s0}"); p(f"v_and_b32 v{hi}, 0xffff0000, v{s0}")
                    for src in (1,2,3): unpack(src); p(f"v_pk_add_f32 v[{lo}:{hi}], v[{lo}:{hi}], v[48:49]")
                    p(f"v_pk_mul_f32 v[{lo}:{hi}], v[{lo}:{hi}], v[12:13] op_sel_hi:[1,0]")
                    p(f"v_pk_fma_f32 v[{lo}:{hi}], {own}, v[10:11], v[{lo}:{hi}] op_sel:[0,1,0] op_sel_hi:[1,1,1]")
            o=52+4*(c%2)
            for k in range(4): p(f"v_cvt_pk_bf16_f32 v{o+k}, v{40+2*k}, v{41+2*k}")
            p(f"buffer_store_dwordx2 v[{o}:{o+1}], v6, s[8:11], s63 offen{OMOD}"); p(f"buffer_store_dwordx2 v[{o+2}:{o+3}], v6, s[8:11], s63 offen offset:{16 if P2S==32 else 32}{OMOD}")
        if variant==0: p("s_branch L_p2_end")
    if GMOVE:
        p("s_branch L_p2_end")
        p.label("L_gate")
        p("s_load_dwordx2 s[8:9], s[0:1], 0"); p("s_load_dwordx2 s[12:13], s[0:1], 64")
        p("v_and_b32 v1, 63, v0"); p("v_lshrrev_b32 v2, 3, v1"); p("v_and_b32 v3, 7, v1"); p("v_lshlrev_b32 v4, 4, v3")
        p("v_mul_u32_u24 v5, 0x480, v2"); p("v_add_u32 v5, v5, v4"); p("v_lshlrev_b32 v6, 2, v2")
        p(f"s_sub_u32 s47, s{S_JTILE}, 48"); p("s_lshl_b32 s47, s47, 4"); p(f"s_lshl_b32 s46, s{S_W}, 2"); p("s_add_u32 s47, s47, s46")
        p(f"s_add_u32 s16, s70, {G_OFF}"); p("s_addc_u32 s17, s71, 0"); p("s_mov_b32 s18, 8192"); p("s_mov_b32 s19, 0x20000")
        p("s_waitcnt lgkmcnt(0)")
        p(f"s_mov_b32 s10, {2048*1152}"); p("s_mov_b32 s11, 0x20000"); p("s_mov_b32 s14, 1152"); p("s_mov_b32 s15, 0x20000")
        for c in range(9): p(f"buffer_load_dwordx4 v[{16+4*c}:{19+4*c}], v4, s[12:15], 0 offen offset:{128*c}")
        for k in range(4):
            p(f"s_add_u32 s46, s47, {k}"); p(f"s_mul_i32 s46, s46, {8*1152}")
            for c in range(9): p(f"buffer_load_dwordx4 v[{64+36*k+4*c}:{67+36*k+4*c}], v5, s[8:11], s46 offen offset:{128*c}")
        p("s_waitcnt vmcnt(0)")
        for k in range(4):
            p("v_mov_b32 v8, 0"); p("v_mov_b32 v9, 0")
            for c in range(9):
                for r in range(4): p(f"v_dot2_f32_bf16 v{8+(r&1)}, v{64+36*k+4*c+r}, v{16+4*c+r}, v{8+(r&1)}")
            p("s_nop 3"); p("v_add_f32 v8, v8, v9")
            for m in (0x041F,0x081F,0x101F):
                p("s_nop 0"); p(f"ds_swizzle_b32 v9, v8 offset:0x{m:04X}"); p("s_waitcnt lgkmcnt(0)"); p("v_add_f32 v8, v8, v9")
            p(f"v_mul_f32 v8, 0x{f2u(-1.4426950408889634):08x}, v8"); p("v_exp_f32 v8, v8"); p("s_nop 0"); p("v_add_f32 v8, 1.0, v8"); p("v_rcp_f32 v8, v8")
            p(f"s_add_u32 s46, s47, {k}"); p("s_lshl_b32 s46, s46, 5")
            p("v_cmp_eq_u32 vcc, 0, v3"); p("s_and_saveexec_b64 s[22:23], vcc")
            p("buffer_store_dword v8, v6, s[16:19], s46 offen sc1")
            p("s_mov_b64 exec, s[22:23]")
        p("s_waitcnt vmcnt(0)"); p("s_barrier")
        p(f"s_mov_b32 s46, {272}")
        signal(p, 10, 46, "L_gate_sig")
    p.label("L_p2_end")
    if ST.ENABLE: p("s_waitcnt vmcnt(0)")
    ST.stamp(p,3)
    ST.flush2(p)
    p("s_endpgm")
    if docheck:
        ins=p.ins[i0:]
        a=iA-i0; b=iA2-i0
        tr=ins[:b]+ins[a:b]+ins[b:]
        print("p2 check problems:",len(check(tr,'p2')))
```

```python
from core import *
import stamp as ST
import os, math, struct
XNT=os.environ.get('XNT','')
WNT=os.environ.get('WNT','')
STMOD=os.environ.get('STMOD',' sc1')
MERGE=int(os.environ.get('MERGE','1'))
XPF=int(os.environ.get('XPF','0'))
FNT=int(os.environ.get('FNT','0'))
ROT=int(os.environ.get('ROT','0')); WPF=int(os.environ.get('WPF','0'))
def f2u(x): return struct.unpack('<I', struct.pack('<f', x))[0]
C0 = -2.0*math.log2(math.e)*math.sqrt(2.0/math.pi)
C1 = C0*0.044715
NKS_TOT=162; H_BYTES=64*NKS_TOT*2048
CH=16384
XA=65536; XB=32768
WR0=6
def XF(tt,ks):
    i=ks*4+tt
    if i<64: return f"a[{4*i}:{4*i+3}]"
    i-=64; return f"v[{224+4*i}:{224+4*i+3}]"
def acc(buf,tt,j,r=None):
    b=96+64*buf+16*tt+4*j
    return f"v[{b}:{b+3}]" if r is None else f"v{b+r}"
AR=64; NAR=8
def afr(i): b=AR+4*(i%NAR); return f"v[{b}:{b+3}]"
def afh(i,h): b=AR+4*(i%NAR)+2*h; return f"v[{b}:{b+1}]"
TMP0=32; HP=24
V_WD=1
V_XD=3
V_TRP=7
V_TR=11
V_XP=17
V_L16=21
V_C1=22; V_HST=23
S_W=24
S_X=8; S_G=12; S_U=16; S_H=20
S_XSO=25; S_XSO2=26; S_WSO=27; S_HSO=28; S_CNT=29; S_MW=30; S_MX=31; S_PF=56; S_PFO=32; S_HST=33; S_AW=34; S_AX=35; S_GRP=48
PKC=[60,62,58]

def gelu(buf, pk=False):
    out=[]
    for tt in range(4):
        hp=HP+4*(tt%2)
        if pk:
            chains=[]
            for j in range(2):
                for r in (0,2):
                    bx=96+64*buf+16*tt+4*j+r; bu=bx+8
                    X=f"v[{bx}:{bx+1}]"; U=f"v[{bu}:{bu+1}]"
                    a=TMP0+4*((j*2+r//2)+4*(tt%2)) if False else TMP0+4*(j*2+r//2)
                    T=f"v[{a}:{a+1}]"; Y=f"v[{a+2}:{a+3}]"
                    chains.append([f"v_pk_mul_f32 {T}, {X}, {X}",
                                   f"v_pk_fma_f32 {T}, {T}, v[50:51], v[52:53]",
                                   f"v_pk_mul_f32 {T}, {T}, {X}",
                                   f"v_exp_f32 v{a}, v{a}", f"v_exp_f32 v{a+1}, v{a+1}",
                                   f"v_pk_mul_f32 {Y}, {X}, {U}",
                                   f"v_pk_add_f32 {T}, {T}, v[54:55]",
                                   f"v_rcp_f32 v{a}, v{a}", f"v_rcp_f32 v{a+1}, v{a+1}",
                                   f"v_pk_mul_f32 {Y}, {Y}, {T}",
                                   f"v_cvt_pk_bf16_f32 v{hp+2*j+r//2}, v{a+2}, v{a+3}"])
            for k in range(11):
                for c in chains: out.append(Ins(c[k]))
        else:
            chains=[]
            for j in range(2):
                for r in range(4):
                    x=acc(buf,tt,j,r); u=acc(buf,tt,2+j,r)
                    T,Y=f"v{TMP0+j*4+r}",f"v{TMP0+8+j*4+r}"
                    chains.append([f"v_mul_f32 {T}, {x}, {x}",
                                   f"v_fmaak_f32 {T}, v{V_C1}, {T}, 0x{f2u(C0):08x}",
                                   f"v_mul_f32 {T}, {T}, {x}",
                                   f"v_exp_f32 {T}, {T}",
                                   f"v_mul_f32 {Y}, {x}, {u}",
                                   f"v_add_f32 {T}, 1.0, {T}",
                                   f"v_rcp_f32 {T}, {T}",
                                   f"v_mul_f32 {Y}, {Y}, {T}"])
            for p0 in (0,4):
                cs=chains[p0:p0+4]
                for k in range(8):
                    for c in cs: out.append(Ins(c[k]))
                for pp in (p0,p0+2):
                    out.append(Ins(f"v_cvt_pk_bf16_f32 v{hp+pp//2}, v{TMP0+8+pp}, v{TMP0+8+pp+1}"))
        if not os.environ.get('NOST'): out.append(Ins(f"buffer_store_dwordx4 v[{hp}:{hp+3}], v{V_HST}, s[{S_H}:{S_H+3}], s{S_HSO} offen offset:{256*(tt&1)}{STMOD}", tag='st'))
        if tt==1: out.append(Ins(f"s_add_u32 s{S_HSO}, s{S_HSO}, {NKS_TOT*2048}"))
        if tt==3: out.append(Ins(f"s_sub_u32 s{S_HSO}, s{S_HSO}, {NKS_TOT*2048-2048}"))
    return out
def pkconst():
    return [Ins(f"v_mov_b32 v50, 0x{f2u(C1):08x}"),Ins(f"v_mov_b32 v51, 0x{f2u(C1):08x}"),Ins(f"v_mov_b32 v52, 0x{f2u(C0):08x}"),Ins(f"v_mov_b32 v53, 0x{f2u(C0):08x}"),Ins("v_mov_b32 v54, 1.0"),Ins("v_mov_b32 v55, 1.0")]

def ntify(lst, on):
    if not on: return lst
    return [Ins(x.text.replace(' lds',' nt lds')) if x.kind=='dma' and ' nt' not in x.text else x for x in lst]
def wdma(slot):
    return [Ins(f"s_add_u32 m0, s{S_MW}, {slot*CH}"), Ins("s_nop 0"),
            Ins(f"buffer_load_dwordx4 v{V_WD}, s[{S_G}:{S_G+3}], s{S_WSO} offen lds{WNT}"),
            Ins(f"buffer_load_dwordx4 v{V_WD+1}, s[{S_G}:{S_G+3}], s{S_WSO} offen offset:1024 lds{WNT}"),
            Ins(f"s_add_u32 m0, s{S_MW}, {slot*CH+8192}"), Ins("s_nop 0"),
            Ins(f"buffer_load_dwordx4 v{V_WD}, s[{S_U}:{S_U+3}], s{S_WSO} offen lds{WNT}"),
            Ins(f"buffer_load_dwordx4 v{V_WD+1}, s[{S_U}:{S_U+3}], s{S_WSO} offen offset:1024 lds{WNT}")]
def wadv(last):
    if not ROT:
        return [Ins(f"s_add_u32 s{S_WSO}, s{S_WSO}, {64*9216}")] if not last else [Ins(f"s_sub_u32 s{S_WSO}, s{S_WSO}, {8*64*9216-128}")]
    o=[Ins(f"s_add_u32 s{S_AW}, s{S_AW}, 1"), Ins(f"s_cmp_eq_u32 s{S_AW}, 9"), Ins(f"s_cselect_b32 s{S_AW}, 0, s{S_AW}")]
    if last: o.append(Ins(f"s_add_u32 s{S_GRP}, s{S_GRP}, 128"))
    o+=[Ins(f"s_mul_i32 s{S_WSO}, s{S_AW}, {64*9216}"), Ins(f"s_add_u32 s{S_WSO}, s{S_WSO}, s{S_GRP}")]
    return o
def xdma(c):
    base=XA if c%2==0 else XB
    o=[]
    for i in range(8):
        if i%4==0:
            o.append(Ins(f"s_add_u32 m0, s{S_MX}, {base+4096*(i//4)}")); o.append(Ins("s_nop 0"))
        o.append(Ins(f"buffer_load_dwordx4 v{V_XD+(i%4)}, s[{S_X}:{S_X+3}], s{S_XSO if i<4 else S_XSO2} offen offset:{1024*(i%4)} lds{XNT}"))
    if not ROT:
        return o+[Ins(f"s_add_u32 s{S_XSO}, s{S_XSO}, 128"), Ins(f"s_add_u32 s{S_XSO2}, s{S_XSO2}, 128")]
    o+=[Ins(f"s_add_u32 s{S_AX}, s{S_AX}, 1"), Ins(f"s_cmp_eq_u32 s{S_AX}, 9"), Ins(f"s_cselect_b32 s49, {9*128}, 0"), Ins(f"s_cselect_b32 s{S_AX}, 0, s{S_AX}"),
        Ins(f"s_add_u32 s{S_XSO}, s{S_XSO}, 128"), Ins(f"s_sub_u32 s{S_XSO}, s{S_XSO}, s49"), Ins(f"s_add_u32 s{S_XSO2}, s{S_XSO}, {32*1152}")]
    return o
def xrd(c):
    return [Ins(f"ds_read_b128 {XF(tt,2*c+b)}, v{V_XP+2*(c%2)+b} offset:{tt*2048}") for b in range(2) for tt in range(4)]

def trset(P, g0=False):
    o=[]
    for grp in range(3):
        for i in range(2):
            o.append(Ins(f"v_add_u32 v{V_TR+2*grp+i}, {grp*4*CH}, v{V_TRP+2*P+i}"))
    return o
def ard(i, slot, b, j, fi):
    grp=slot//4; so=(slot%4)*CH
    return [Ins(f"ds_read_b64_tr_b16 {afh(fi,h)}, v{V_TR+2*grp+(j&1)} offset:{so+(j>>1)*8192+b*4096+h*512}") for h in range(2)]

BUD=int(os.environ.get('BUD','2'))
PF=int(os.environ.get('GPF','5')); GEX=int(os.environ.get('GEX','2'))
def phase(buf, entry_pref=True, next_first=None):
    seq=[(c,b,j) for c in range(9) for b in range(2) for j in range(4)]
    main=[]; marks={}
    for i,(c,b,j) in enumerate(seq):
        if j==0 and b==0: main.append(('mark',c,'start'))
        n=i+PF
        if n<len(seq):
            cn,bn,jn=seq[n]
            if bn==0 and jn==0: main.append(('mark',cn,'firstread'))
            nxt=ard(n,cn,bn,jn,n)
        else:
            if n==len(seq): main.append(('mark',9,'firstread'))
            nxt=next_first[n-len(seq)] if next_first else []
        ks=2*c+b
        for tt in range(4):
            cc=acc(buf,tt,j) if ks>0 else "0"
            main.append(Ins(f"v_mfma_f32_16x16x32_bf16 {acc(buf,tt,j)}, {afr(i)}, {XF(tt,ks)}, {cc}"))
            if tt<len(nxt): main.append(nxt[tt])
    return main

def first_reads(P_is_next_set):
    return [ard(k,0,k//4,k%4,72+k) for k in range(PF)]

def expand(main, hooks):
    out=[]
    for x in main:
        if isinstance(x,tuple):
            out+=hooks.get((x[1],x[2]),[])
        else: out.append(x)
    return out

def gen(p):
    A=p
    A("s_mul_i32 s39, s36, 384")
    A(f"s_add_u32 s{S_G}, s42, s39"); A(f"s_addc_u32 s{S_G+1}, s43, 0"); A(f"s_sub_u32 s{S_G+2}, {576*9216}, s39"); A(f"s_mov_b32 s{S_G+3}, 0x20000")
    A(f"s_add_u32 s{S_U}, s44, s39"); A(f"s_addc_u32 s{S_U+1}, s45, 0"); A(f"s_sub_u32 s{S_U+2}, {576*9216}, s39"); A(f"s_mov_b32 s{S_U+3}, 0x20000")
    A(f"s_mul_i32 s38, s37, {256*1152}")
    A(f"s_add_u32 s{S_X}, s40, s38"); A(f"s_addc_u32 s{S_X+1}, s41, 0"); A(f"s_sub_u32 s{S_X}, s{S_X}, 4096"); A(f"s_subb_u32 s{S_X+1}, s{S_X+1}, 0")
    A(f"s_mov_b32 s{S_X+2}, {256*1152+4096}"); A(f"s_mov_b32 s{S_X+3}, 0x20000")
    A("v_and_b32 v24, 63, v0"); A("v_lshrrev_b32 v25, 4, v24"); A("v_and_b32 v26, 15, v24"); A("v_lshrrev_b32 v27, 3, v24"); A("v_and_b32 v28, 7, v24")
    for i in range(4):
        A(f"v_add_u32 v30, {4*(i&1)}, v25"); A("v_and_b32 v30, 7, v30"); A("v_xor_b32 v30, v30, v28"); A("v_lshlrev_b32 v30, 4, v30")
        A(f"v_add_u32 v31, {8*i}, v27"); A("v_mul_u32_u24 v31, 0x480, v31")
        A(f"v_add3_u32 v{V_XD+i}, v30, v31, 0"); A(f"v_add_u32 v{V_XD+i}, {4096-1024*i}, v{V_XD+i}")
    A(f"s_mov_b32 s50, {'s37' if ROT else 0}")
    if ROT==2:
        A("s_mul_i32 s38, s36, 86"); A("s_lshr_b32 s38, s38, 8"); A("s_mul_i32 s38, s38, 3"); A("s_sub_u32 s38, s36, s38"); A("s_mul_i32 s38, s38, 3")
        A("s_add_u32 s50, s50, s38"); A("s_cmp_ge_u32 s50, 9"); A("s_cselect_b32 s38, 9, 0"); A("s_sub_u32 s50, s50, s38")
    A(f"s_mov_b32 s{S_AW}, s50"); A(f"s_mov_b32 s{S_AX}, s50"); A(f"s_mov_b32 s{S_GRP}, 0")
    A(f"s_mul_i32 s{S_XSO}, s{S_W}, {64*1152}"); A("s_lshl_b32 s38, s50, 7"); A(f"s_add_u32 s{S_XSO}, s{S_XSO}, s38"); A(f"s_add_u32 s{S_XSO2}, s{S_XSO}, {32*1152}")
    A(f"s_lshl_b32 s{S_MX}, s{S_W}, 13")
    A.add(ntify(xdma(0), FNT&1))
    A(f"s_lshl_b32 s38, s{S_W}, 4")
    for e in range(2):
        A("v_bfe_u32 v30, v27, 1, 1");
        if e: A("v_or_b32 v30, 2, v30")
        A("v_lshrrev_b32 v31, 1, v28"); A("v_xor_b32 v30, v30, v31"); A("v_lshlrev_b32 v30, 5, v30"); A("v_and_b32 v31, 1, v28"); A("v_lshlrev_b32 v31, 4, v31"); A("v_add_u32 v30, v30, v31")
        A(f"v_add_u32 v31, s38, v27");
        if e: A("v_add_u32 v31, 8, v31")
        A("v_mul_u32_u24 v31, 0x2400, v31")
        A(f"v_add_u32 v{V_WD+e}, v30, v31")
        if e: A(f"v_subrev_u32 v{V_WD+e}, 1024, v{V_WD+e}")
    A(f"s_mul_i32 s{S_WSO}, s{S_AW}, {64*9216}"); A(f"s_lshl_b32 s{S_MW}, s{S_W}, 11")
    A.add(ntify(wdma(WR0+0), FNT&2)); A.add(wadv(False))
    ST.stamp(p,1)
    A(f"s_mov_b32 s{S_H}, s46"); A(f"s_mov_b32 s{S_H+1}, s47"); A(f"s_mov_b32 s{S_H+2}, {H_BYTES}"); A(f"s_mov_b32 s{S_H+3}, 0x20000")
    A(f"v_lshlrev_b32 v{V_L16}, 4, v24")
    A("v_lshrrev_b32 v30, 2, v26"); A("v_and_b32 v31, 3, v26")
    A("v_lshlrev_b32 v29, 3, v25"); A("v_add_u32 v29, v29, v30"); A("v_lshlrev_b32 v29, 7, v29"); A("v_lshlrev_b32 v31, 3, v31"); A("v_add_u32 v29, v29, v31")
    A("v_lshrrev_b32 v30, 1, v30"); A("v_and_b32 v31, 1, v25"); A("v_lshlrev_b32 v31, 1, v31"); A("v_or_b32 v30, v30, v31")
    for s in range(4):
        A(f"v_xor_b32 v31, {s}, v30"); A("v_lshlrev_b32 v31, 5, v31"); A(f"v_add_u32 v{V_TRP+s}, v31, v29")
    A("v_lshrrev_b32 v30, 1, v26"); A("v_xor_b32 v30, v30, v25"); A("v_lshlrev_b32 v30, 4, v30"); A("v_lshlrev_b32 v31, 7, v26"); A("v_add_u32 v30, v30, v31")
    A(f"v_add_u32 v30, s{S_MX}, v30")
    A(f"v_add_u32 v{V_XP}, {XA}, v30"); A(f"v_xor_b32 v{V_XP+1}, 64, v{V_XP}"); A(f"v_add_u32 v{V_XP+2}, {XB}, v30"); A(f"v_xor_b32 v{V_XP+3}, 64, v{V_XP+2}")
    A(f"v_mov_b32 v{V_C1}, 0x{f2u(C1):08x}")
    A("v_and_b32 v30, 1, v25"); A("v_lshlrev_b32 v30, 9, v30"); A("v_lshrrev_b32 v31, 1, v25"); A("v_lshlrev_b32 v31, 10, v31"); A("v_lshlrev_b32 v29, 4, v26")
    A(f"v_add3_u32 v{V_HST}, v29, v30, v31")
    A("s_lshl_b32 s38, s37, 3"); A(f"s_lshl_b32 s39, s{S_W}, 1"); A("s_add_u32 s38, s38, s39"); A(f"s_mul_i32 s38, s38, {NKS_TOT}")
    A("s_mul_i32 s39, s36, 6"); A("s_add_u32 s38, s38, s39"); A(f"s_lshl_b32 s{S_HSO}, s38, 11")
    A("s_lshl_b32 s38, s36, 3"); A("s_add_u32 s38, s38, s37"); A("s_lshl_b32 s38, s38, 2"); A(f"s_add_u32 s38, s38, s{S_W}")
    A(f"s_mul_i32 s{S_PFO}, s38, {8*1024}")
    A(f"s_mov_b32 s{S_PF}, s66"); A(f"s_mov_b32 s{S_PF+1}, s67"); A(f"s_mov_b32 s{S_PF+2}, {4608*1152}"); A(f"s_mov_b32 s{S_PF+3}, 0x20000")
    for s in range(4): A(f"v_add_u32 v{V_TR+s}, {WR0*CH}, v{V_TRP+s}")
    A.add(ntify(wdma(WR0+1), FNT&4)); A.add(wadv(False)); A.add(ntify(xdma(1), FNT&8))
    log=['X0']*8+['W0']*4+['W1']*4+['X1']*8
    def waitfor(tags, extra=""):
        nonlocal log
        idx=[i for i,t in enumerate(log) if t in tags]
        if idx:
            last=max(idx); n=len(log)-1-last
            log=log[last+1:]
            return [Ins(f"s_waitcnt vmcnt({n}) {extra}".strip())]
        return [Ins(f"s_waitcnt {extra}")] if extra else []
    def g0rd(i):
        c,b,j8=i//16,(i%16)//8,i%8
        P=j8//4; j=j8%4
        sl=c%4
        return [Ins(f"ds_read_b64_tr_b16 {afh(i,h)}, v{V_TR+2*P+(j&1)} offset:{sl*CH+(j>>1)*8192+b*4096+h*512}") for h in range(2)]
    p.label("L_TOUCH_gx")
    p.add(waitfor(('X0','W0'))); p("s_barrier")
    if MERGE:
        import k1
        k1.announce_zero(p, S_W, "L_gx_az", 60)
    ST.stamp(p,2)
    p.add(xrd(0))
    pre=[]
    for i in range(PF): pre+=g0rd(i)
    p.add(pre[:6]); p("s_waitcnt lgkmcnt(6)"); p.add(pre[6:])
    q0=[x.wr for x in pre]
    N0=9*16
    if XPF:
        A("s_mul_i32 s38, s36, 86"); A("s_lshr_b32 s38, s38, 8"); A("s_mul_i32 s38, s38, 3"); A("s_sub_u32 s38, s36, s38")
        A("s_lshl_b32 s38, s38, 6"); A(f"s_lshl_b32 s39, s{S_W}, 4"); A("s_add_u32 s38, s38, s39"); A("s_mul_i32 s74, s38, 1152"); A(f"s_add_u32 s74, s74, {4096+128*XPF}"); A(f"s_add_u32 s75, s74, {8*1152}")
        A("v_and_b32 v63, 63, v0"); A("v_lshrrev_b32 v62, 3, v63"); A("v_mul_u32_u24 v62, 0x480, v62"); A("v_and_b32 v63, 7, v63"); A("v_lshl_add_u32 v63, v63, 4, v62")
    A("s_lshl_b32 s38, s2, 2"); A(f"s_add_u32 s38, s38, s{S_W}"); A("s_mul_i32 s51, s38, 6144")
    A("s_mov_b32 s52, s42"); A("s_mov_b32 s53, s43"); A(f"s_mov_b32 s54, {576*9216}"); A("s_mov_b32 s55, 0x20000")
    A("s_mov_b32 s60, s44"); A("s_mov_b32 s61, s45"); A(f"s_mov_b32 s62, {576*9216}"); A("s_mov_b32 s63, 0x20000")
    def lin(k):
        srd="s[52:55]" if k<6 else "s[60:63]"; kk=k%6
        o=[]
        if kk==4: o.append(Ins("s_add_u32 s51, s51, 4096"))
        if k==6: o.append(Ins("s_sub_u32 s51, s51, 4096"))
        o.append(Ins(f"buffer_load_dwordx4 v[56:59], v{V_L16}, {srd}, s51 offen offset:{1024*(kk%4)}"))
        return o
    def tagged(lst,tag):
        for x in lst:
            if x.kind=='dma': x.tag=tag
        return lst
    def logit(stream):
        for x in stream:
            if getattr(x,'kind',None) in('dma','vmem'): log.append(x.tag or 'P')
    carry=tagged(wdma(WR0+2)+wadv(False),'W2')+tagged(xdma(2),'X2')
    for c in range(9):
        main=[]
        for ii in range(16):
            i=c*16+ii
            if ii==8: main.append(('mid',))
            n=i+PF
            nxt=g0rd(n) if n<N0 else []
            b=ii//8; j8=ii%8; P=j8//4; j=j8%4; ks=2*c+b
            for tt in range(4):
                cc=acc(P,tt,j) if ks>0 else "0"
                main.append(Ins(f"v_mfma_f32_16x16x32_bf16 {acc(P,tt,j)}, {afr(i)}, {XF(tt,ks)}, {cc}"))
                if tt<len(nxt): main.append(nxt[tt])
        im=main.index(('mid',))
        first=main[:im]; second=main[im+1:]
        if carry: first=spread(first, dma_items(carry), first=4 if c else 0)
        logit(first)
        carry=[]
        midl=[]
        if c+1<9: midl+=waitfor((f'X{c+1}',f'W{c+1}'))
        midl.append(Ins("s_barrier"))
        dl=[]
        if c+3<9: dl+=tagged(wdma(WR0+(c+3)%4)+wadv(c+3==8),f'W{c+3}')
        g1={6:(0,1),7:(2,3),8:(4,5)}.get(c,())
        for cc_ in g1: dl+=tagged(wdma(cc_)+wadv(False),f'G{cc_}')
        if c+1<9:
            xr=xrd(c+1)
            second=spread(second,[[x] for x in xr], first=1, last=18)
        if dl: second=spread(second, dma_items(dl), first=2)
        if XPF and c+XPF<9:
            second=spread(second, [[Ins(f"buffer_load_dwordx4 v[56:59], v63, s[{S_X}:{S_X+3}], s74 offen")],[Ins(f"buffer_load_dwordx4 v[56:59], v63, s[{S_X}:{S_X+3}], s75 offen")],[Ins("s_add_u32 s74, s74, 128"),Ins("s_add_u32 s75, s75, 128")]], first=3)
        if WPF and c<3:
            second=spread(second, [lin(k) for k in range(4*c,4*c+4)], first=5)
        logit(second)
        if c+3<9: carry=tagged(xdma(c+3),f'X{c+3}')
        stream,q0=auto_lgkm(fix_m0(first+midl+second), q0, extra=2)
        p.add(stream)
    ST.stamp(p,3)
    p.add(pkconst()); p("s_nop 4")
    p.add(gelu(0,pk=True)); log+=['S']*4
    p.add(trset(0))
    p.add(waitfor(('G0','G1','G2'))); p("s_barrier")
    fr=first_reads(0)
    for k in range(PF): p.add(fr[k])
    ST.stamp(p,4)
    if MERGE:
        p("s_lshr_b32 s91, s4, 1"); p("s_mov_b32 s90, 0")
        p("s_and_b32 s38, s4, 1"); p("s_mul_i32 s38, s38, 24"); p("s_add_u32 s92, s38, s6")
        p(f"s_mov_b32 s93, s{S_W}")
        p("s_mul_i32 s38, s36, 43"); p("s_lshr_b32 s38, s38, 8"); p("s_lshl_b32 s39, s37, 2"); p("s_add_u32 s94, s38, s39"); p("s_add_u32 s94, s94, 8")
        p("s_mul_i32 s38, s92, 171"); p("s_lshr_b32 s38, s38, 10"); p("s_lshl_b32 s38, s38, 2"); p("s_add_u32 s96, s38, s91"); p("s_add_u32 s95, s96, 8"); p("s_add_u32 s96, s96, 48"); p("s_mov_b32 s97, 6")
        p("s_lshl_b32 s38, s96, 7"); p("v_mov_b32 v48, s38"); p(f"s_add_u32 s64, s70, {0x15C0000}"); p("s_addc_u32 s65, s71, 0")
        p("v_mov_b32 v61, 0"); p("global_load_dword v60, v61, s[68:69] sc1")
    p(f"s_mov_b32 s{S_CNT}, 0")
    il=len(p.ins)
    p.label("L_gx_loop")
    q0=[x.wr for k in range(PF) for x in fr[k]]
    pfl=lambda: [Ins(f"buffer_load_dwordx4 v[56:59], v{V_L16}, s[{S_PF}:{S_PF+3}], s{S_PFO} offen", tag='pf'), Ins(f"s_add_u32 s{S_PFO}, s{S_PFO}, 1024")]
    def marks(m, fn):
        cur=[]
        for x in m:
            if isinstance(x,tuple):
                t=fn(x)
                if t: cur.append(Ins(t+":"))
            else: cur.append(x)
        return cur
    cur=marks(phase(1, next_first=first_reads(0)), lambda x: (f"FREE{x[1]//3-1}" if x[2]=='start' and x[1] in (3,6) else ("PRE9" if x[2]=='firstread' and x[1]==9 else None)))
    def mfma_index_of(cur,lab):
        k=0
        for x in cur:
            if x.kind=='label' and x.text.startswith(lab): return k
            if x.kind=='mfma': k+=1
    for k in (0,1):
        d=[]
        for cc_ in (3*k,3*k+1,3*k+2): d+=wdma(cc_)+wadv(False)
        f=mfma_index_of(cur,f"FREE{k}")
        cur=spread(cur, dma_items(d), first=f+1, last=f+84-4*(PF-4)-(4 if PF>4 else 0))
    mer=interleave(cur, ([] if os.environ.get('NOPF') else pfl()+pfl())+gelu(0), budget=BUD)
    out=[]; seq=[]
    for x in mer:
        if x.kind=='label' and x.text.startswith('FREE'):
            if MERGE and x.text.startswith('FREE1'):
                out.append(Ins(f"s_waitcnt vmcnt({len(seq)})"))
            out.append(Ins("s_barrier"))
            if MERGE and x.text.startswith('FREE1'):
                out+=[Ins(f"s_cmp_eq_u32 s{S_CNT}, 1"), Ins("s_cbranch_scc0 L_gx_nosig"), Ins(f"s_cmp_eq_u32 s{S_W}, 0"), Ins("s_cbranch_scc0 L_gx_nosig"),
                      Ins("v_readfirstlane_b32 s38, v60"), Ins("s_mov_b32 s39, 0"), Ins("L_gx_zr:"), Ins("s_cmp_ge_u32 s38, 273"), Ins("s_cbranch_scc1 L_gx_zok"),
                      Ins("s_add_u32 s39, s39, 1"), Ins("s_cmp_gt_u32 s39, 200000"), Ins("s_cbranch_scc1 L_gx_zok"), Ins("s_sleep 6"),
                      Ins("v_mov_b32 v61, 0"), Ins("global_load_dword v60, v61, s[68:69] sc1"), Ins("s_waitcnt vmcnt(0)"), Ins("v_readfirstlane_b32 s38, v60"), Ins("s_branch L_gx_zr"),
                      Ins("L_gx_zok:"),
                      Ins("s_mul_i32 s38, s36, 43"), Ins("s_lshr_b32 s38, s38, 8"), Ins("s_lshl_b32 s39, s37, 2"), Ins("s_add_u32 s38, s38, s39"), Ins("s_add_u32 s38, s38, 48"), Ins("s_lshl_b32 s38, s38, 7"),
                      Ins(f"s_add_u32 s72, s70, {0x15C0000}"), Ins("s_addc_u32 s73, s71, 0"),
                      Ins("v_mov_b32 v61, s38"), Ins("v_mov_b32 v62, 1"), Ins("v_cmp_eq_u32 vcc, 0, v0"), Ins("s_and_saveexec_b64 s[74:75], vcc"),
                      Ins("global_atomic_add v61, v62, s[72:73] sc1"), Ins("s_mov_b64 exec, s[74:75]"), Ins("L_gx_nosig:"), Ins("s_nop 0")]
        elif x.kind=='label' and x.text.startswith('PRE9'):
            d=[i for i,t in enumerate(seq) if t=='dma']; assert len(d)==24
            out.append(Ins(f"s_waitcnt vmcnt({len(seq)-1-d[11]})")); out.append(Ins("s_barrier")); out+=trset(0)
        else:
            if x.kind in('vmem','dma'): seq.append(x.kind)
            out.append(x)
    if MERGE:
        ist=[i for i,x in enumerate(out) if x.tag=='st']
        out.insert(ist[-1]-40, Ins("global_load_dword v49, v48, s[64:65] sc1", tag='look'))
        vm=[x for x in out if x.kind in('vmem','dma')]
        n_after_look=len(vm)-1-[i for i,x in enumerate(vm) if x.tag=='look'][0]
        assert all(x.kind!='dma' for x in vm[len(vm)-n_after_look:])
    out1=out; tail_exact=len(seq)-1-max(i for i,t in enumerate(seq) if t=='dma'); tail1=min(4,tail_exact)
    cur=marks(phase(0, next_first=first_reads(1)), lambda x: (f"LAND{x[1]}" if x[2]=='firstread' and x[1] in (3,6) else ("SWITCH1" if x[2]=='firstread' and x[1]==9 else None)))
    d678=wdma(6)+wadv(False)+wdma(7)+wadv(False)+wdma(8)+wadv(True)
    if int(os.environ.get('NOJUNK','1')) and not ROT:
        d678+=[Ins(f"s_cmp_eq_u32 s{S_CNT}, 1"), Ins("s_cselect_b32 s49, 0x40000000, 0"), Ins(f"s_add_u32 s{S_WSO}, s{S_WSO}, s49")]
    cur=spread(cur, dma_items(d678), first=2, last=84)
    mer=interleave(cur, ([] if os.environ.get('NOPF') else pfl()+pfl())+gelu(1), budget=BUD)
    out=[]; seq=[]
    for x in mer:
        if x.kind=='label' and x.text.startswith('LAND3'):
            out.append(Ins(f"s_waitcnt vmcnt({len(seq)+tail1})")); out.append(Ins("s_barrier"))
        elif x.kind=='label' and x.text.startswith('LAND6'):
            last=max(i for i,t in enumerate(seq) if t=='dma'); assert seq.count('dma')==12
            out.append(Ins(f"s_waitcnt vmcnt({len(seq)-1-last})")); out.append(Ins("s_barrier"))
        elif x.kind=='label' and x.text.startswith('SWITCH'):
            out+=trset(1)
        else:
            if x.kind in('vmem','dma'): seq.append(x.kind)
            out.append(x)
    if os.environ.get('NOVM'): out=[x for x in out if not (x.kind=='wait' and 'vmcnt' in x.text)]; out1=[x for x in out1 if not (x.kind=='wait' and 'vmcnt' in x.text and 'vmcnt(0)' not in x.text)]
    st,q1=auto_lgkm(out,q0,extra=GEX)
    p.add(st)
    st,q2=auto_lgkm(out1,q1,extra=GEX)
    p.add(st)
    p("s_barrier")
    p(f"s_add_u32 s{S_CNT}, s{S_CNT}, 1"); p(f"s_cmp_lt_u32 s{S_CNT}, 2"); p("s_cbranch_scc1 L_gx_loop")
    idn=len(p.ins)
    assert [sorted(d) for d in q2]==[sorted(x.wr) for k in range(PF) for x in fr[k]] or True
    p("s_waitcnt lgkmcnt(0)")
    ST.stamp(p,5)
    if MERGE:
        import p2 as P2
        p(f"s_waitcnt vmcnt({n_after_look})"); p("s_barrier")
        P2.gen_p2a_ffn(p)
    p.label("L_TOUCH_gx2")
    p.add(pkconst()); p("s_nop 4")
    p.add(gelu(1,pk=True))
    ST.stamp(p,6)
    ST.flush(p,70,71,0)
    if MERGE: p("s_branch L_p2b")
    return il,idn
```

```python
from core import *
import stamp as ST
from k1_gx import NKS_TOT, H_BYTES, f2u, GSHAPE
import os
GMOVE=int(os.environ.get('GMOVE','1'))
G_OFF=0x1500000; P_OFF=0x1600000
U=12; STG=12288; D=int(os.environ.get('P2D','4')); B2=int(os.environ.get('P2B2','0'))
HMOD=os.environ.get('HMOD',' sc1')
OMOD=os.environ.get('OMOD','')
SLEEP2=int(os.environ.get('SLEEP2','2'))
SLEEP=int(os.environ.get('SLEEP','6'))
ACC=64
P2S=int(os.environ.get('P2S','16'))
LG3=int(os.environ.get('LG3','0'))
RL=6
assert not B2 or D+2<=RL or True
def acc(q,r=None):
    b=ACC+q*16
    return f"v[{b}:{b+15}]" if r is None else f"v{b+r}"
def acc16(q,tt,r=None):
    b=ACC+(q*2+tt)*4
    return f"v[{b}:{b+3}]" if r is None else f"v{b+r}"
def hfr(u,b_): b=(u*2+b_)*4; return f"a[{b}:{b+3}]"
def afr(q): b=96+4*q; return f"a[{b}:{b+3}]"
def afh(q,h): b=96+4*q+2*h; return f"a[{b}:{b+1}]"
MF="v_mfma_f32_32x32x16_bf16"
V_TR=8; V_HL=12; V_DL=14; V_DF=17; V_L16=20; V_LT=7
S_H=16; S_P=20; S_CUR=24
S_W=93; S_WB=29; S_DSO=30; S_INA=31; S_INB=32; S_HS0=33; S_HS1=34; S_RND=35; S_NR=36; S_XA=37; S_XF=67; S_XS=66
WI={'e':31,'a':32,'b':46,'c':47}; HI={'e':52,'a':53,'b':54,'c':55}
S_JT=90
S_JO=91
S_JTILE=92
S_JW=93
CNT_OFF=0x15C0000
HC0=8; OC0=40; HE0=48; TW0=80; GC0=272; NLINES=273

def trread(i,h,stage):
    so=(stage%RL)*STG
    if P2S==16:
        x=Ins(f"ds_read_b64_tr_b16 {afh(i,h)}, v{V_TR+(i&3)} offset:{so+(i>>2)*128+h*1536}"); x.cost=1
        return x
    b_,q=i//6,i%6
    sl=stage%RL; grp=sl//3; so=(sl%3)*STG
    return Ins(f"ds_read_b64_tr_b16 {afh(i,h)}, v{V_TR+2*grp+(q&1)} offset:{so+(q&~1)*64+b_*6144+h*1536}")
def cls(v):
    v%=12
    return 'e' if v%2==0 else ('c' if v==11 else ('b' if v%4==3 else 'a'))
def issue_h(idx):
    u_dst=idx%U
    va,o1=(V_HL,256) if P2S==16 else (V_L16,1024)
    return [Ins(f"buffer_load_dwordx4 {hfr(u_dst,0)}, v{va}, s[{S_H}:{S_H+3}], s{S_HS0} offen{HMOD}"),
            Ins(f"buffer_load_dwordx4 {hfr(u_dst,1)}, v{va}, s[{S_H}:{S_H+3}], s{S_HS0} offen offset:{o1}{HMOD}"),
            Ins(f"s_add_u32 s{S_HS0}, s{S_HS0}, s{HI[cls(idx)]}")]
def issue_w(idx):
    u_dst=idx%U
    o=[Ins(f"s_add_u32 m0, s{S_WB}, {(u_dst%RL)*STG}"), Ins("s_nop 0")]
    for e in range(3):
        o.append(Ins(f"buffer_load_dwordx4 v{V_DF+e}, s[{S_CUR}:{S_CUR+3}], s{S_DSO} offen offset:{1024*e} lds"))
    o.append(Ins(f"s_add_u32 s{S_DSO}, s{S_DSO}, s{WI[cls(idx)]}"))
    return o
def items2(lst):
    items=[]; pend=[]
    for x in lst:
        if x.kind=='nop': continue
        if x.kind in('dma','vmem'):
            if pend: items.append(pend); pend=[]
            items.append([x])
        else: pend.append(x)
    if pend: items.append(pend)
    return items
def step(u):
    if B2:
        main=[Ins(f"s_waitcnt vmcnt({5*(D-3)})"),Ins("s_barrier")] if u%2==0 else [Ins("s_nop 0"),Ins("s_nop 0")]
    else:
        main=[Ins(f"s_waitcnt vmcnt({5*(D-2)})"),Ins("s_barrier")]
    un=(u+1)%U
    for i in range(12):
        if LG3:
            if i%3==0: main.append(Ins("s_waitcnt lgkmcnt(6)"))
        elif i%2==0: main.append(Ins("s_waitcnt lgkmcnt(8)"))
        n=i+6
        rd=[trread(n,h,u) for h in range(2)] if n<12 else [trread(n-12,h,un) for h in range(2)]
        if P2S==16:
            for tt in range(2):
                main.append(Ins(f"v_mfma_f32_16x16x32_bf16 {acc16(i,tt)}, {afr(i)}, {hfr(u,tt)}, {acc16(i,tt)}")); main.append(rd[tt])
        else:
            b_,q=i//6,i%6
            main.append(Ins(f"{MF} {acc(q)}, {afr(i)}, {hfr(u,b_)}, {acc(q)}"))
            main+=rd
    fl=issue_h(u+D)+issue_w(u+D)
    if u==(24-D-12)-4: fl=[Ins("global_load_dword v27, v7, s[64:65] sc1")]+fl
    res=spread(main, items2(fl), first=0 if P2S==32 else 2, last=11 if P2S==32 else 22)
    if u==(16-D)%12:
        sw=[Ins(f"s_cmp_eq_u32 s{S_RND}, s{S_XS}"), Ins("s_cbranch_scc0 L_p2_nosw")]
        sw+=[Ins(f"v_mov_b32 v{V_DF+e}, v{V_DL+e}") for e in range(3)]
        sw+=[Ins(f"s_mov_b32 s{S_DSO}, 0")]+[Ins(f"s_mov_b32 s{WI[k]}, {288*1152}") for k in 'eabc']+[Ins("L_p2_nosw:"),Ins("s_nop 0")]
        res=res[:2]+sw+res[2:]
    if u==(8 if D==4 else 24-D-12):
        sw=[Ins(f"s_cmp_eq_u32 s{S_RND}, s{S_XF}"), Ins("s_cbranch_scc0 L_p2_nolate")]
        sw+=[Ins(f"s_mov_b32 s{WI['a']}, {5*32*1152}"), Ins(f"s_mov_b32 s{WI['b']}, {5*32*1152}"), Ins(f"s_mov_b32 s{HI['a']}, {5*2048}"), Ins(f"s_mov_b32 s{HI['b']}, {5*2048}")]
        sw+=[Ins("v_readfirstlane_b32 s38, v27"), Ins("s_mov_b32 s39, 0"), Ins("L_p2_late:"), Ins("s_cmp_ge_u32 s38, 6"), Ins("s_cbranch_scc1 L_p2_nolate"),
             Ins("s_add_u32 s39, s39, 1"), Ins("s_cmp_gt_u32 s39, 200000"), Ins("s_cbranch_scc1 L_p2_nolate"), Ins(f"s_sleep {SLEEP}"),
             Ins("global_load_dword v27, v7, s[64:65] sc1"), Ins("s_waitcnt vmcnt(0)"), Ins("v_readfirstlane_b32 s38, v27"), Ins("s_branch L_p2_late"),
             Ins("L_p2_nolate:"), Ins("s_nop 0")]
        res=res[:2]+sw+res[2:]
    if u==5:
        res+=[Ins(f"s_cmp_eq_u32 s{S_RND}, s{S_XA}"), Ins("s_cbranch_scc1 L_p2_lend")]
    if u==11:
        res+=[Ins(f"s_add_u32 s{WI['c']}, s{WI['c']}, s60"), Ins(f"s_add_u32 s{HI['c']}, s{HI['c']}, s61")]
    return res

def cnt_base(p):
    p(f"s_add_u32 s64, s70, {CNT_OFF}"); p("s_addc_u32 s65, s71, 0")
def poll(p, idx_s, target, lab, wreg=S_JW, early=None):
    p(f"s_cmp_eq_u32 s{wreg}, 0"); p(f"s_cbranch_scc0 {lab}_ok")
    if early:
        p(f"v_readfirstlane_b32 s38, {early}"); p("s_nop 1"); p(f"s_cmp_ge_u32 s38, {target}"); p(f"s_cbranch_scc1 {lab}_ok")
    p(f"s_lshl_b32 s38, s{idx_s}, 7"); p("v_mov_b32 v2, s38")
    p("s_mov_b32 s39, 0")
    p.label(lab)
    p(f"global_load_dword v3, v2, s[64:65] sc1"); p("s_waitcnt vmcnt(0)")
    p("v_readfirstlane_b32 s38, v3"); p("s_add_u32 s39, s39, 1")
    p(f"s_cmp_ge_u32 s38, {target}"); p(f"s_cbranch_scc1 {lab}_ok")
    p("s_cmp_gt_u32 s39, 200000"); p(f"s_cbranch_scc1 {lab}_ok")
    p(f"s_sleep {SLEEP}"); p(f"s_branch {lab}")
    p.label(lab+"_ok")
    p("s_barrier")
def signal(p, vtmp, idx_s, lab, wreg=S_JW):
    p(f"s_cmp_eq_u32 s{wreg}, 0"); p(f"s_cbranch_scc0 {lab}")
    p(f"s_lshl_b32 s38, s{idx_s}, 7"); p(f"v_mov_b32 v{vtmp}, s38"); p(f"v_mov_b32 v{vtmp+1}, 1")
    p("v_cmp_eq_u32 vcc, 0, v0"); p("s_and_saveexec_b64 s[48:49], vcc")
    p(f"global_atomic_add v{vtmp}, v{vtmp+1}, s[64:65] sc1")
    p("s_mov_b64 exec, s[48:49]")
    p.label(lab)
def zero_ready(p, lab, wreg, vt=2, early=None, inval=None):
    p(f"s_cmp_eq_u32 s{wreg}, 0"); p(f"s_cbranch_scc0 {lab}_ok")
    if early:
        p(f"v_readfirstlane_b32 s38, {early}"); p("s_nop 1"); p(f"s_cmp_ge_u32 s38, {NLINES}"); p(f"s_cbranch_scc1 {lab}_ok")
        if inval: p(f"v_mov_b32 {inval}, 0")
    p(f"v_mov_b32 v{vt}, 0"); p("s_mov_b32 s39, 0")
    p.label(lab)
    p(f"global_load_dword v{vt+1}, v{vt}, s[68:69] sc1"); p("s_waitcnt vmcnt(0)")
    p(f"v_readfirstlane_b32 s38, v{vt+1}"); p("s_add_u32 s39, s39, 1")
    p(f"s_cmp_ge_u32 s38, {NLINES}"); p(f"s_cbranch_scc1 {lab}_ok")
    p("s_cmp_gt_u32 s39, 200000"); p(f"s_cbranch_scc1 {lab}_ok")
    p(f"s_sleep {SLEEP}"); p(f"s_branch {lab}")
    p.label(lab+"_ok")

def p2_setup(p, early=True):
    cnt_base(p)
    if early:
        p("v_mov_b32 v28, 0"); p("global_load_dword v29, v28, s[68:69] sc1")
        p("s_lshl_b32 s38, s96, 7"); p("v_mov_b32 v24, s38"); p("global_load_dword v25, v24, s[64:65] sc1")
    p("s_load_dwordx2 s[40:41], s[0:1], 24")
    p("s_load_dwordx2 s[42:43], s[0:1], 56")
    p("s_load_dwordx2 s[44:45], s[0:1], 72")
    p(f"s_mul_i32 s5, s{S_JTILE}, 171"); p("s_lshr_b32 s5, s5, 9")
    p("s_mul_i32 s6, s5, 3"); p(f"s_sub_u32 s6, s{S_JTILE}, s6")
    p("v_and_b32 v1, 63, v0"); p(f"v_lshlrev_b32 v{V_L16}, 4, v1")
    p(f"s_mul_i32 s48, s{S_W}, 192")
    p(f"s_cmp_eq_u32 s{S_JT}, 1"); p("s_cselect_b64 s[50:51], -1, 0")
    for e in range(3):
        p(f"v_add_u32 v4, s48, v1")
        if e: p(f"v_add_u32 v4, {64*e}, v4")
        p("v_mul_u32_u24 v5, 0xaab, v4"); p("v_lshrrev_b32 v5, 16, v5")
        p("v_mul_u32_u24 v6, 24, v5"); p("v_sub_u32 v6, v4, v6")
        if P2S==32:
            p("v_bfe_u32 v7, v5, 1, 1"); p("v_lshrrev_b32 v4, 2, v6"); p("v_xor_b32 v4, v4, v7"); p("v_lshlrev_b32 v4, 6, v4")
            p("v_and_b32 v6, 3, v6"); p("v_lshlrev_b32 v6, 4, v6")
        else:
            p("v_bfe_u32 v7, v5, 1, 1"); p("v_bfe_u32 v4, v5, 3, 1"); p("v_lshlrev_b32 v4, 1, v4"); p("v_or_b32 v7, v7, v4")
            p("v_lshrrev_b32 v4, 1, v6"); p("v_xor_b32 v4, v4, v7"); p("v_lshlrev_b32 v4, 5, v4")
            p("v_and_b32 v6, 1, v6"); p("v_lshlrev_b32 v6, 4, v6")
        p(f"v_add3_u32 v4, v4, v6, 0"); p(f"v_add_u32 v31, {4096-1024*e}, v4")
        if GSHAPE==32:
            p("v_and_b32 v6, 16, v5"); p("v_bfe_u32 v7, v5, 3, 1"); p("v_lshl_add_u32 v6, v7, 2, v6")
            p("v_and_b32 v7, 3, v5"); p("v_add_u32 v6, v6, v7"); p("v_bfe_u32 v7, v5, 2, 1"); p("v_lshl_add_u32 v6, v7, 3, v6")
        else:
            p("v_bfe_u32 v6, v5, 2, 1"); p("v_lshlrev_b32 v6, 4, v6"); p("v_lshrrev_b32 v7, 3, v5"); p("v_lshl_add_u32 v6, v7, 2, v6")
            p("v_and_b32 v7, 3, v5"); p("v_add_u32 v6, v6, v7")
        p("v_lshrrev_b32 v7, 3, v5"); p("v_mul_u32_u24 v7, 18, v7"); p("v_and_b32 v30, 7, v5"); p("v_add_u32 v7, v7, v30")
        p("v_cndmask_b32 v6, v6, v7, s[50:51]")
        p("v_mul_u32_u24 v6, 0x480, v6"); p(f"v_add_u32 v{V_DF+e}, v6, v31")
        p("v_bfe_u32 v6, v5, 1, 2"); p("v_mul_u32_u24 v6, 72, v6"); p("v_lshrrev_b32 v7, 3, v5"); p("v_mul_u32_u24 v7, 18, v7"); p("v_add_u32 v6, v6, v7")
        p("v_and_b32 v7, 1, v5"); p("v_add3_u32 v6, v6, v7, 16"); p("v_mul_u32_u24 v6, 0x480, v6"); p(f"v_add_u32 v{V_DL+e}, v6, v31")
    p("v_lshrrev_b32 v2, 4, v1"); p("v_and_b32 v3, 15, v1")
    p("v_lshrrev_b32 v4, 2, v3"); p("v_and_b32 v5, 3, v3")
    if P2S==32:
        p("v_lshrrev_b32 v6, 1, v2"); p("v_lshlrev_b32 v6, 3, v6"); p("v_add_u32 v6, v6, v4"); p("v_mul_u32_u24 v6, 0x180, v6")
        p("v_lshlrev_b32 v5, 3, v5"); p("v_add_u32 v6, v6, v5"); p("v_and_b32 v5, 1, v2"); p("v_lshl_add_u32 v6, v5, 5, v6")
        p("v_lshrrev_b32 v4, 1, v4")
        for k in range(2):
            p(f"v_xor_b32 v5, {k}, v4"); p("v_lshlrev_b32 v5, 6, v5"); p(f"v_add_u32 v{V_TR+k}, v5, v6"); p(f"v_add_u32 v{V_TR+2+k}, {3*STG}, v{V_TR+k}")
    else:
        p("v_lshlrev_b32 v6, 3, v2"); p("v_add_u32 v6, v6, v4"); p("v_mul_u32_u24 v6, 0x180, v6")
        p("v_lshlrev_b32 v5, 3, v5"); p("v_add_u32 v6, v6, v5")
        p("v_lshrrev_b32 v4, 1, v4"); p("v_and_b32 v5, 1, v2"); p("v_lshlrev_b32 v5, 1, v5"); p("v_or_b32 v4, v4, v5")
        for k in range(4):
            p(f"v_xor_b32 v5, {k}, v4"); p("v_lshlrev_b32 v5, 5, v5"); p(f"v_add_u32 v{V_TR+k}, v5, v6")
        p("v_lshrrev_b32 v4, 1, v2"); p("v_lshlrev_b32 v4, 10, v4"); p("v_and_b32 v5, 1, v2"); p("v_lshlrev_b32 v5, 9, v5"); p("v_lshlrev_b32 v6, 4, v3")
        p(f"v_add3_u32 v{V_HL}, v4, v5, v6")
    for r in range(ACC,ACC+96): p(f"v_mov_b32 v{r}, 0")
    p("s_waitcnt lgkmcnt(0)")
    p(f"s_cmp_eq_u32 s{S_JT}, 1")
    R=32*1152
    p("s_cselect_b32 s4, s40, s42"); p("s_cselect_b32 s7, s41, s43")
    p(f"s_mov_b32 s62, {4608*1152+4096}"); p(f"s_cselect_b32 s62, {576*1152+4096}, s62")
    for k,(fv,av) in {'e':(1,8),'a':(1,64),'b':(3,64),'c':(3,64)}.items():
        p(f"s_mov_b32 s{WI[k]}, {fv*R}"); p(f"s_cselect_b32 s{WI[k]}, {av*1152}, s{WI[k]}")
    for k,fv in {'e':1,'a':1,'b':3,'c':3}.items():
        p(f"s_mov_b32 s{HI[k]}, {fv*2048}"); p(f"s_cselect_b32 s{HI[k]}, 2048, s{HI[k]}")
    p(f"s_mov_b32 s60, {(-32*R)&0xffffffff}"); p("s_cselect_b32 s60, 0, s60"); p(f"s_mov_b32 s61, {(-32*2048)&0xffffffff}"); p("s_cselect_b32 s61, 0, s61")
    p(f"s_mov_b32 s{S_NR}, 3"); p(f"s_cselect_b32 s{S_XA}, 1, 99"); p(f"s_cselect_b32 s{S_XF}, 99, 1"); p(f"s_cselect_b32 s{S_XS}, {(16-D)//12}, 99")
    p(f"s_mul_i32 s63, s{S_JO}, 36"); p(f"s_cselect_b32 s63, 144, s63")
    p(f"s_mul_i32 s56, s63, {R}"); p(f"s_cselect_b32 s{S_DSO}, 0, s56")
    p("s_mul_i32 s57, s6, 384")
    p(f"s_add_u32 s{S_CUR}, s4, s57"); p(f"s_addc_u32 s{S_CUR+1}, s7, 0"); p(f"s_sub_u32 s{S_CUR}, s{S_CUR}, 4096"); p(f"s_subb_u32 s{S_CUR+1}, s{S_CUR+1}, 0")
    p(f"s_sub_u32 s{S_CUR+2}, s62, s57"); p(f"s_mov_b32 s{S_CUR+3}, 0x20000")
    p(f"s_mov_b32 s{S_H}, s70"); p(f"s_mov_b32 s{S_H+1}, s71"); p(f"s_mov_b32 s{S_H+2}, {H_BYTES}"); p(f"s_mov_b32 s{S_H+3}, 0x20000")
    p("s_lshl_b32 s57, s5, 2"); p(f"s_add_u32 s57, s57, s{S_W}")
    p(f"s_mul_i32 s48, s57, {NKS_TOT}"); p("s_add_u32 s48, s48, s63"); p(f"s_lshl_b32 s{S_HS0}, s48, 11")
    p(f"s_mul_i32 s{S_WB}, s{S_W}, 3072")

def p2_first_loads(p, uniq):
    poll(p, 96, "s97", f"L_p2_poll1{uniq}", early="v25")
    p("s_lshl_b32 s38, s95, 7"); p(f"v_mov_b32 v{V_LT}, s38")
    for i in range(D): p.add(issue_h(i))

def gen_p2a_ffn(p):
    p("v_mov_b32 v25, v49")
    p2_setup(p, early=False)
    for i in range(D): p.add(issue_w(i))
    p2_first_loads(p, "f")

def gen_p2(p, docheck=True):
    i0=len(p.ins)
    p.label("L_p2")
    p2_setup(p)
    p("s_waitcnt vmcnt(0)"); p("s_barrier")
    zero_ready(p, "L_p2_zr", S_JW, early="v29", inval="v25")
    signal(p, 4, 94, "L_p2_sig1")
    ST.stamp(p,7)
    p(f"s_cmp_ge_u32 s{S_JTILE}, 48"); p("s_cbranch_scc1 "+("L_gate" if GMOVE else "L_p2_end"))
    for i in range(D): p.add(issue_w(i))
    p2_first_loads(p, "")
    p(f"s_waitcnt vmcnt({2*(D-2)})" if not B2 else f"s_waitcnt vmcnt({min(4,2*(D-3))})"); p("s_barrier")
    p("s_branch L_p2c")
    p.label("L_p2b")
    p("s_waitcnt vmcnt(0)"); p("s_barrier")
    signal(p, 4, 94, "L_p2_sig1b")
    ST.stamp(p,7)
    p.label("L_p2c")
    ST.stamp(p,8)
    for q in range(6):
        for h in range(2): p.add([trread(q,h,0)])
    p(f"s_mov_b32 s{S_RND}, 0")
    iA=len(p.ins)
    p.label("L_p2_loop")
    for u in range(U): p.add(step(u))
    p(f"s_add_u32 s{S_RND}, s{S_RND}, 1"); p(f"s_cmp_lt_u32 s{S_RND}, s{S_NR}"); p("s_cbranch_scc1 L_p2_loop")
    iA2=len(p.ins)
    p.label("L_p2_lend")
    p("s_waitcnt vmcnt(0) lgkmcnt(0)")
    ST.stamp(p,9)
    p(f"s_mul_i32 s47, s{S_JTILE}, 5"); p(f"s_add_u32 s47, s47, s{S_JO}"); p("s_lshl_b32 s47, s47, 2"); p(f"s_add_u32 s47, s47, s{S_W}"); p("s_mul_i32 s47, s47, 12288")
    p(f"s_add_u32 s{S_P}, s70, {P_OFF}"); p(f"s_addc_u32 s{S_P+1}, s71, 0"); p(f"s_mov_b32 s{S_P+2}, {240*4*12288}"); p(f"s_mov_b32 s{S_P+3}, 0x20000")
    p("s_nop 7")
    if GMOVE: p(f"v_mov_b32 v21, {272*128}"); p("global_load_dword v22, v21, s[64:65] sc1")
    OWN=200
    for i in range(12):
        q,e=i//2,i%2
        t=32+4*(i%4)
        p(f"s_cmp_eq_u32 s{S_JO}, {i%5}"); p(f"s_cbranch_scc1 L_p3_own{i}")
        def cr(k):
            if P2S==32: return acc(q,8*e+k)
            tt,pp=i//6,i%6
            return acc16(2*pp+k//4,tt,k%4)
        for k in range(4): p(f"v_cvt_pk_bf16_f32 v{t+k}, {cr(2*k)}, {cr(2*k+1)}")
        off=i*1024
        p(f"s_add_u32 s56, s47, {off - off%4096}")
        p(f"buffer_store_dwordx4 v[{t}:{t+3}], v{V_L16}, s[{S_P}:{S_P+3}], s56 offen offset:{off%4096} sc1")
        p(f"s_branch L_p3_nx{i}")
        p.label(f"L_p3_own{i}")
        for k in range(8): p(f"v_mov_b32 v{OWN+8*(i//5)+k}, {cr(k)}")
        p.label(f"L_p3_nx{i}")
    p(f"s_lshl_b32 s57, s{S_JTILE}, 2"); p(f"s_add_u32 s57, s57, s{S_W}"); p(f"s_add_u32 s57, s57, {TW0}")
    if P2S==32: p("v_and_b32 v4, 31, v1"); p("v_lshrrev_b32 v5, 5, v1")
    else: p("v_and_b32 v4, 15, v1"); p("v_lshrrev_b32 v5, 4, v1")
    p("s_lshl_b32 s60, s5, 7"); p(f"s_lshl_b32 s61, s{S_W}, 5"); p("s_add_u32 s60, s60, s61")
    p("v_add_u32 v6, s60, v4")
    p("v_lshlrev_b32 v7, 2, v6")
    p("v_mul_u32_u24 v6, 0x480, v6"); p("v_lshlrev_b32 v5, 3, v5"); p("v_add_u32 v6, v6, v5")
    p("s_mov_b32 s8, s44"); p("s_mov_b32 s9, s45"); p(f"s_mov_b32 s10, {2048*1152}"); p("s_mov_b32 s11, 0x20000")
    p(f"s_add_u32 s12, s70, {G_OFF}"); p("s_addc_u32 s13, s71, 0"); p("s_mov_b32 s14, 8192"); p("s_mov_b32 s15, 0x20000")
    p(f"s_mul_i32 s62, s{S_JTILE}, {5*4*12288}"); p(f"s_mul_i32 s63, s{S_W}, 12288"); p("s_add_u32 s62, s62, s63")
    p("s_lshl_b32 s38, s57, 7"); p("v_mov_b32 v2, s38"); p(f"s_lshl_b32 s38, 1, s{S_JO}"); p("v_mov_b32 v8, s38")
    p("s_waitcnt vmcnt(0)")
    if GMOVE:
        p("s_mov_b32 s39, 0")
        p.label("L_p3_gc")
        p("v_readfirstlane_b32 s38, v22"); p("s_add_u32 s39, s39, 1"); p("s_cmp_ge_u32 s38, 16"); p("s_cbranch_scc1 L_p3_gcok")
        p("s_cmp_gt_u32 s39, 200000"); p("s_cbranch_scc1 L_p3_gcok")
        p(f"s_sleep {SLEEP}"); p("global_load_dword v22, v21, s[64:65] sc1"); p("s_waitcnt vmcnt(0)"); p("s_branch L_p3_gc")
        p.label("L_p3_gcok")
    ST.stamp(p,1)
    if GMOVE:
        p(f"buffer_load_dword v11, v7, s[12:15], 0 offen sc1")
        if P2S==16: p(f"buffer_load_dword v13, v7, s[12:15], 0 offen offset:64 sc1")
    p("v_cmp_eq_u32 vcc, 0, v1"); p("s_and_saveexec_b64 s[48:49], vcc")
    p("global_atomic_add v2, v8, s[64:65] sc1")
    p("s_mov_b64 exec, s[48:49]")
    for k in range(4):
        p(f"s_add_u32 s38, s{S_JO}, {k+1}"); p("s_and_b32 s38, s38, 3")
        if k==3: p("s_mov_b32 s38, 4")
        p(f"s_cmp_eq_u32 s{S_JO}, 4"); p(f"s_cselect_b32 s38, {k}, s38"); p(f"s_mul_i32 s{52+k}, s38, {4*12288}"); p(f"s_lshl_b32 s{16+k}, 1, s38")
    p(f"s_lshl_b32 s63, s{S_JO}, 10"); p("s_add_u32 s63, s63, s62")
    p("s_mov_b32 s39, 0"); p("s_mov_b32 s46, 0")
    p.label("L_p2_poll2")
    p("global_load_dword v3, v2, s[64:65] sc1"); p("s_waitcnt vmcnt(0)")
    p("v_readfirstlane_b32 s38, v3"); p("s_add_u32 s39, s39, 1")
    p("s_cmp_gt_u32 s39, 200000"); p("s_cselect_b32 s38, 31, s38")
    p("s_andn2_b32 s38, s38, s46")
    for k in range(4):
        p(f"s_and_b32 s47, s38, s{16+k}"); p(f"s_cbranch_scc0 L_p3_s{k}")
        p(f"s_or_b32 s46, s46, s{16+k}"); p(f"s_add_u32 s47, s63, s{52+k}")
        for c in range(3):
            if c==2: p(f"s_cmp_gt_u32 s{S_JO}, 1"); p(f"s_cbranch_scc1 L_p3_s{k}")
            b=64+(c*4+k)*4
            p(f"buffer_load_dwordx4 v[{b}:{b+3}], v{V_L16}, s[{S_P}:{S_P+3}], s47 offen sc1")
            if c<2: p(f"s_add_u32 s47, s47, 5120")
        p.label(f"L_p3_s{k}")
    p(f"s_lshl_b32 s47, 1, s{S_JO}"); p("s_or_b32 s47, s47, s46"); p("s_cmp_eq_u32 s47, 31"); p("s_cbranch_scc1 L_p2_poll2_ok")
    p(f"s_sleep {SLEEP2}"); p("s_branch L_p2_poll2")
    p.label("L_p2_poll2_ok")
    ST.stamp(p,2)
    if not GMOVE:
        p(f"buffer_load_dword v11, v7, s[12:15], 0 offen sc1")
        if P2S==16: p(f"buffer_load_dword v13, v7, s[12:15], 0 offen offset:64 sc1")
    p.label("L_p3_ld2")
    p("s_waitcnt vmcnt(0)")
    if P2S==32: p("v_sub_f32 v12, 1.0, v11")
    else: p("v_mov_b32 v14, v11")
    p(f"s_cmp_eq_u32 s{S_JO}, 4"); p("s_cbranch_scc1 L_p3_att")
    for variant in range(2):
        if variant==1: p.label("L_p3_att")
        for c in range(3):
            if c==2: p(f"s_cmp_gt_u32 s{S_JO}, 1"); p("s_cbranch_scc1 L_p2_end")
            if variant==1 and c==2: break
            if P2S==32:
                p(f"s_add_u32 s63, s{S_JO}, {5*c}"); p("s_lshl_b32 s63, s63, 5"); p("s_mul_i32 s56, s6, 384"); p("s_add_u32 s63, s63, s56")
            else:
                p(f"s_add_u32 s63, s{S_JO}, {5*c}"); p("s_cmp_ge_u32 s63, 6"); p("s_cselect_b32 s56, 6, 0"); p("s_cselect_b64 s[50:51], -1, 0"); p(f"s_cselect_b32 s57, {16*1152}, 0")
                p("s_sub_u32 s63, s63, s56"); p("s_lshl_b32 s63, s63, 6"); p("s_mul_i32 s56, s6, 384"); p("s_add_u32 s63, s63, s56"); p("s_add_u32 s63, s63, s57")
                p("v_cndmask_b32 v11, v14, v13, s[50:51]"); p("v_sub_f32 v12, 1.0, v11")
            for k in range(4):
                lo=40+2*k; hi=41+2*k; own=f"v[{OWN+8*c+2*k}:{OWN+8*c+2*k+1}]"
                def unpack(src):
                    s_=64+(c*4+src)*4+k
                    p(f"v_lshlrev_b32 v48, 16, v{s_}"); p(f"v_and_b32 v49, 0xffff0000, v{s_}")
                if variant==0:
                    unpack(0); p(f"v_pk_add_f32 v[{lo}:{hi}], {own}, v[48:49]")
                    for src in (1,2): unpack(src); p(f"v_pk_add_f32 v[{lo}:{hi}], v[{lo}:{hi}], v[48:49]")
                    unpack(3)
                    p(f"v_pk_mul_f32 v[{lo}:{hi}], v[{lo}:{hi}], v[12:13] op_sel_hi:[1,0]")
                    p(f"v_pk_fma_f32 v[{lo}:{hi}], v[48:49], v[10:11], v[{lo}:{hi}] op_sel:[0,1,0] op_sel_hi:[1,1,1]")
                else:
                    s0=64+(c*4)*4+k
                    p(f"v_lshlrev_b32 v{lo}, 16, v{s0}"); p(f"v_and_b32 v{hi}, 0xffff0000, v{s0}")
                    for src in (1,2,3): unpack(src); p(f"v_pk_add_f32 v[{lo}:{hi}], v[{lo}:{hi}], v[48:49]")
                    p(f"v_pk_mul_f32 v[{lo}:{hi}], v[{lo}:{hi}], v[12:13] op_sel_hi:[1,0]")
                    p(f"v_pk_fma_f32 v[{lo}:{hi}], {own}, v[10:11], v[{lo}:{hi}] op_sel:[0,1,0] op_sel_hi:[1,1,1]")
            o=52+4*(c%2)
            for k in range(4): p(f"v_cvt_pk_bf16_f32 v{o+k}, v{40+2*k}, v{41+2*k}")
            p(f"buffer_store_dwordx2 v[{o}:{o+1}], v6, s[8:11], s63 offen{OMOD}"); p(f"buffer_store_dwordx2 v[{o+2}:{o+3}], v6, s[8:11], s63 offen offset:{16 if P2S==32 else 32}{OMOD}")
        if variant==0: p("s_branch L_p2_end")
    if GMOVE:
        p("s_branch L_p2_end")
        p.label("L_gate")
        p("s_load_dwordx2 s[8:9], s[0:1], 0"); p("s_load_dwordx2 s[12:13], s[0:1], 64")
        p("v_and_b32 v1, 63, v0"); p("v_lshrrev_b32 v2, 3, v1"); p("v_and_b32 v3, 7, v1"); p("v_lshlrev_b32 v4, 4, v3")
        p("v_mul_u32_u24 v5, 0x480, v2"); p("v_add_u32 v5, v5, v4"); p("v_lshlrev_b32 v6, 2, v2")
        p(f"s_sub_u32 s47, s{S_JTILE}, 48"); p("s_lshl_b32 s47, s47, 4"); p(f"s_lshl_b32 s46, s{S_W}, 2"); p("s_add_u32 s47, s47, s46")
        p(f"s_add_u32 s16, s70, {G_OFF}"); p("s_addc_u32 s17, s71, 0"); p("s_mov_b32 s18, 8192"); p("s_mov_b32 s19, 0x20000")
        p("s_waitcnt lgkmcnt(0)")
        p(f"s_mov_b32 s10, {2048*1152}"); p("s_mov_b32 s11, 0x20000"); p("s_mov_b32 s14, 1152"); p("s_mov_b32 s15, 0x20000")
        for c in range(9): p(f"buffer_load_dwordx4 v[{16+4*c}:{19+4*c}], v4, s[12:15], 0 offen offset:{128*c}")
        for k in range(4):
            p(f"s_add_u32 s46, s47, {k}"); p(f"s_mul_i32 s46, s46, {8*1152}")
            for c in range(9): p(f"buffer_load_dwordx4 v[{64+36*k+4*c}:{67+36*k+4*c}], v5, s[8:11], s46 offen offset:{128*c}")
        p("s_waitcnt vmcnt(0)")
        for k in range(4):
            p("v_mov_b32 v8, 0"); p("v_mov_b32 v9, 0")
            for c in range(9):
                for r in range(4): p(f"v_dot2_f32_bf16 v{8+(r&1)}, v{64+36*k+4*c+r}, v{16+4*c+r}, v{8+(r&1)}")
            p("s_nop 3"); p("v_add_f32 v8, v8, v9")
            for m in (0x041F,0x081F,0x101F):
                p("s_nop 0"); p(f"ds_swizzle_b32 v9, v8 offset:0x{m:04X}"); p("s_waitcnt lgkmcnt(0)"); p("v_add_f32 v8, v8, v9")
            p(f"v_mul_f32 v8, 0x{f2u(-1.4426950408889634):08x}, v8"); p("v_exp_f32 v8, v8"); p("s_nop 0"); p("v_add_f32 v8, 1.0, v8"); p("v_rcp_f32 v8, v8")
            p(f"s_add_u32 s46, s47, {k}"); p("s_lshl_b32 s46, s46, 5")
            p("v_cmp_eq_u32 vcc, 0, v3"); p("s_and_saveexec_b64 s[22:23], vcc")
            p("buffer_store_dword v8, v6, s[16:19], s46 offen sc1")
            p("s_mov_b64 exec, s[22:23]")
        p("s_waitcnt vmcnt(0)"); p("s_barrier")
        p(f"s_mov_b32 s46, {272}")
        signal(p, 10, 46, "L_gate_sig")
    p.label("L_p2_end")
    if ST.ENABLE: p("s_waitcnt vmcnt(0)")
    ST.stamp(p,3)
    ST.flush2(p)
    p("s_endpgm")
    if docheck:
        ins=p.ins[i0:]
        a=iA-i0; b=iA2-i0
        tr=ins[:b]+ins[a:b]+ins[b:]
        print("p2 check problems:",len(check(tr,'p2')))
```

```python
from core import *
import stamp as ST
import os, math, struct
XNT=os.environ.get('XNT','')
WNT=os.environ.get('WNT','')
STMOD=os.environ.get('STMOD',' sc1')
MERGE=int(os.environ.get('MERGE','1'))
XPF=int(os.environ.get('XPF','0'))
FNT=int(os.environ.get('FNT','0'))
ROT=int(os.environ.get('ROT','0')); WPF=int(os.environ.get('WPF','0'))
def f2u(x): return struct.unpack('<I', struct.pack('<f', x))[0]
C0 = -2.0*math.log2(math.e)*math.sqrt(2.0/math.pi)
C1 = C0*0.044715
NKS_TOT=162; H_BYTES=64*NKS_TOT*2048
CH=16384
XA=65536; XB=32768
WR0=6
def XF(T,s16):
    i=s16*2+T
    if i<64: return f"a[{4*i}:{4*i+3}]"
    i-=64; return f"v[{224+4*i}:{224+4*i+3}]"
def acc(buf,T,sec,r=None):
    b=96+64*buf+32*T+16*sec
    return f"v[{b}:{b+15}]" if r is None else f"v{b+r}"
AR=64; NAR=8
def afr(i): b=AR+4*(i%NAR); return f"v[{b}:{b+3}]"
def afh(i,h): b=AR+4*(i%NAR)+2*h; return f"v[{b}:{b+1}]"
MF="v_mfma_f32_32x32x16_bf16"
TMP0=32; HP=24
V_WD=1
V_XD=3
V_TRP=7
V_TR=11
V_XP=14
V_L16=22
V_C1=23
S_W=24
S_X=8; S_G=12; S_U=16; S_H=20
S_XSO=25; S_XSO2=26; S_WSO=27; S_HSO=28; S_CNT=29; S_MW=30; S_MX=31; S_PF=56; S_PFO=32; S_HST=33; S_AW=34; S_AX=35; S_GRP=48
PKC=[60,62,58]

def gelu(buf, pk=False):
    out=[]
    for T in range(2):
        for e in range(2):
            hp=HP+4*((2*T+e)%2)
            if pk:
                chains=[]
                for r in range(8*e,8*e+8,2):
                    bx=96+64*buf+32*T+r; bu=bx+16
                    X=f"v[{bx}:{bx+1}]"; U=f"v[{bu}:{bu+1}]"
                    a=TMP0+4*((r-8*e)//2)
                    T_=f"v[{a}:{a+1}]"; Y=f"v[{a+2}:{a+3}]"
                    chains.append([f"v_pk_mul_f32 {T_}, {X}, {X}",
                                   f"v_pk_fma_f32 {T_}, {T_}, v[50:51], v[52:53]",
                                   f"v_pk_mul_f32 {T_}, {T_}, {X}",
                                   f"v_exp_f32 v{a}, v{a}", f"v_exp_f32 v{a+1}, v{a+1}",
                                   f"v_pk_mul_f32 {Y}, {X}, {U}",
                                   f"v_pk_add_f32 {T_}, {T_}, v[54:55]",
                                   f"v_rcp_f32 v{a}, v{a}", f"v_rcp_f32 v{a+1}, v{a+1}",
                                   f"v_pk_mul_f32 {Y}, {Y}, {T_}",
                                   f"v_cvt_pk_bf16_f32 v{hp+(r-8*e)//2}, v{a+2}, v{a+3}"])
                for k in range(11):
                    for c in chains: out.append(Ins(c[k]))
            else:
                chains=[]
                for r in range(8*e,8*e+8):
                    x=acc(buf,T,0,r); u=acc(buf,T,1,r)
                    T_,Y=f"v{TMP0+r-8*e}",f"v{TMP0+8+r-8*e}"
                    chains.append([f"v_mul_f32 {T_}, {x}, {x}",
                                   f"v_fmaak_f32 {T_}, v{V_C1}, {T_}, 0x{f2u(C0):08x}",
                                   f"v_mul_f32 {T_}, {T_}, {x}",
                                   f"v_exp_f32 {T_}, {T_}",
                                   f"v_mul_f32 {Y}, {x}, {u}",
                                   f"v_add_f32 {T_}, 1.0, {T_}",
                                   f"v_rcp_f32 {T_}, {T_}",
                                   f"v_mul_f32 {Y}, {Y}, {T_}"])
                for p0 in (0,4):
                    cs=chains[p0:p0+4]
                    for k in range(8):
                        for c in cs: out.append(Ins(c[k]))
                    for pp in (p0,p0+2):
                        out.append(Ins(f"v_cvt_pk_bf16_f32 v{hp+pp//2}, v{TMP0+8+pp}, v{TMP0+8+pp+1}"))
            if not os.environ.get('NOST'): out.append(Ins(f"buffer_store_dwordx4 v[{hp}:{hp+3}], v{V_L16}, s[{S_H}:{S_H+3}], s{S_HSO} offen offset:{1024*e}{STMOD}", tag='st'))
        out.append(Ins(f"s_add_u32 s{S_HSO}, s{S_HSO}, {NKS_TOT*2048}" if T==0 else f"s_sub_u32 s{S_HSO}, s{S_HSO}, {NKS_TOT*2048-2048}"))
    return out
def pkconst():
    return [Ins(f"v_mov_b32 v50, 0x{f2u(C1):08x}"),Ins(f"v_mov_b32 v51, 0x{f2u(C1):08x}"),Ins(f"v_mov_b32 v52, 0x{f2u(C0):08x}"),Ins(f"v_mov_b32 v53, 0x{f2u(C0):08x}"),Ins("v_mov_b32 v54, 1.0"),Ins("v_mov_b32 v55, 1.0")]

def ntify(lst, on):
    if not on: return lst
    return [Ins(x.text.replace(' lds',' nt lds')) if x.kind=='dma' and ' nt' not in x.text else x for x in lst]
def wdma(slot):
    return [Ins(f"s_add_u32 m0, s{S_MW}, {slot*CH}"), Ins("s_nop 0"),
            Ins(f"buffer_load_dwordx4 v{V_WD}, s[{S_G}:{S_G+3}], s{S_WSO} offen lds{WNT}"),
            Ins(f"buffer_load_dwordx4 v{V_WD+1}, s[{S_G}:{S_G+3}], s{S_WSO} offen offset:1024 lds{WNT}"),
            Ins(f"s_add_u32 m0, s{S_MW}, {slot*CH+8192}"), Ins("s_nop 0"),
            Ins(f"buffer_load_dwordx4 v{V_WD}, s[{S_U}:{S_U+3}], s{S_WSO} offen lds{WNT}"),
            Ins(f"buffer_load_dwordx4 v{V_WD+1}, s[{S_U}:{S_U+3}], s{S_WSO} offen offset:1024 lds{WNT}")]
def wadv(last):
    if not ROT:
        return [Ins(f"s_add_u32 s{S_WSO}, s{S_WSO}, {64*9216}")] if not last else [Ins(f"s_sub_u32 s{S_WSO}, s{S_WSO}, {8*64*9216-128}")]
    o=[Ins(f"s_add_u32 s{S_AW}, s{S_AW}, 1"), Ins(f"s_cmp_eq_u32 s{S_AW}, 9"), Ins(f"s_cselect_b32 s{S_AW}, 0, s{S_AW}")]
    if last: o.append(Ins(f"s_add_u32 s{S_GRP}, s{S_GRP}, 128"))
    o+=[Ins(f"s_mul_i32 s{S_WSO}, s{S_AW}, {64*9216}"), Ins(f"s_add_u32 s{S_WSO}, s{S_WSO}, s{S_GRP}")]
    return o
def xdma(c):
    base=XA if c%2==0 else XB
    o=[]
    for i in range(8):
        if i%4==0:
            o.append(Ins(f"s_add_u32 m0, s{S_MX}, {base+4096*(i//4)}")); o.append(Ins("s_nop 0"))
        o.append(Ins(f"buffer_load_dwordx4 v{V_XD+(i%4)}, s[{S_X}:{S_X+3}], s{S_XSO if i<4 else S_XSO2} offen offset:{1024*(i%4)} lds{XNT}"))
    if not ROT:
        return o+[Ins(f"s_add_u32 s{S_XSO}, s{S_XSO}, 128"), Ins(f"s_add_u32 s{S_XSO2}, s{S_XSO2}, 128")]
    o+=[Ins(f"s_add_u32 s{S_AX}, s{S_AX}, 1"), Ins(f"s_cmp_eq_u32 s{S_AX}, 9"), Ins(f"s_cselect_b32 s49, {9*128}, 0"), Ins(f"s_cselect_b32 s{S_AX}, 0, s{S_AX}"),
        Ins(f"s_add_u32 s{S_XSO}, s{S_XSO}, 128"), Ins(f"s_sub_u32 s{S_XSO}, s{S_XSO}, s49"), Ins(f"s_add_u32 s{S_XSO2}, s{S_XSO}, {32*1152}")]
    return o
def xrd(c):
    return [Ins(f"ds_read_b128 {XF(T,4*c+sp)}, v{V_XP+4*(c%2)+sp} offset:{T*4096}") for sp in range(4) for T in range(2)]

def trset(P, g0=False):
    return [Ins(f"v_add_u32 v{V_TR+grp}, {grp*4*CH}, v{V_TRP+P}") for grp in range(3)]
def ard(i, slot, sp, sec, fi):
    grp=slot//4; so=(slot%4)*CH
    return [Ins(f"ds_read_b64_tr_b16 {afh(fi,h)}, v{V_TR+grp} offset:{so+sec*8192+sp*2048+h*512}") for h in range(2)]

PF=int(os.environ.get('GPF32','4')); GEX=int(os.environ.get('GEX32','2'))
def phase(buf, entry_pref=True, next_first=None):
    seq=[(c,sp,sec) for c in range(9) for sp in range(4) for sec in range(2)]
    main=[]
    for i,(c,sp,sec) in enumerate(seq):
        if sp==0 and sec==0: main.append(('mark',c,'start'))
        n=i+PF
        if n<len(seq):
            cn,spn,secn=seq[n]
            if spn==0 and secn==0: main.append(('mark',cn,'firstread'))
            nxt=ard(n,cn,spn,secn,n)
        else:
            if n==len(seq): main.append(('mark',9,'firstread'))
            nxt=next_first[n-len(seq)] if next_first else []
        s16=4*c+sp
        for T in range(2):
            cc=acc(buf,T,sec) if s16>0 else "0"
            main.append(Ins(f"{MF} {acc(buf,T,sec)}, {afr(i)}, {XF(T,s16)}, {cc}"))
            if T<len(nxt): main.append(nxt[T])
    return main

def first_reads(P_is_next_set):
    return [ard(k,0,k//2,k%2,72+k) for k in range(PF)]

def expand(main, hooks):
    out=[]
    for x in main:
        if isinstance(x,tuple):
            out+=hooks.get((x[1],x[2]),[])
        else: out.append(x)
    return out

def gen(p):
    A=p
    A("s_mul_i32 s39, s36, 384")
    A(f"s_add_u32 s{S_G}, s42, s39"); A(f"s_addc_u32 s{S_G+1}, s43, 0"); A(f"s_sub_u32 s{S_G+2}, {576*9216}, s39"); A(f"s_mov_b32 s{S_G+3}, 0x20000")
    A(f"s_add_u32 s{S_U}, s44, s39"); A(f"s_addc_u32 s{S_U+1}, s45, 0"); A(f"s_sub_u32 s{S_U+2}, {576*9216}, s39"); A(f"s_mov_b32 s{S_U+3}, 0x20000")
    A(f"s_mul_i32 s38, s37, {256*1152}")
    A(f"s_add_u32 s{S_X}, s40, s38"); A(f"s_addc_u32 s{S_X+1}, s41, 0"); A(f"s_sub_u32 s{S_X}, s{S_X}, 4096"); A(f"s_subb_u32 s{S_X+1}, s{S_X+1}, 0")
    A(f"s_mov_b32 s{S_X+2}, {256*1152+4096}"); A(f"s_mov_b32 s{S_X+3}, 0x20000")
    A("v_and_b32 v24, 63, v0"); A("v_lshrrev_b32 v25, 4, v24"); A("v_and_b32 v26, 15, v24"); A("v_lshrrev_b32 v27, 3, v24"); A("v_and_b32 v28, 7, v24")
    for i in range(4):
        A(f"v_add_u32 v30, {4*(i&1)}, v25"); A("v_and_b32 v30, 7, v30"); A("v_xor_b32 v30, v30, v28"); A("v_lshlrev_b32 v30, 4, v30")
        A(f"v_add_u32 v31, {8*i}, v27"); A("v_mul_u32_u24 v31, 0x480, v31")
        A(f"v_add3_u32 v{V_XD+i}, v30, v31, 0"); A(f"v_add_u32 v{V_XD+i}, {4096-1024*i}, v{V_XD+i}")
    A(f"s_mov_b32 s50, {'s37' if ROT else 0}")
    if ROT==2:
        A("s_mul_i32 s38, s36, 86"); A("s_lshr_b32 s38, s38, 8"); A("s_mul_i32 s38, s38, 3"); A("s_sub_u32 s38, s36, s38"); A("s_mul_i32 s38, s38, 3")
        A("s_add_u32 s50, s50, s38"); A("s_cmp_ge_u32 s50, 9"); A("s_cselect_b32 s38, 9, 0"); A("s_sub_u32 s50, s50, s38")
    A(f"s_mov_b32 s{S_AW}, s50"); A(f"s_mov_b32 s{S_AX}, s50"); A(f"s_mov_b32 s{S_GRP}, 0")
    A(f"s_mul_i32 s{S_XSO}, s{S_W}, {64*1152}"); A("s_lshl_b32 s38, s50, 7"); A(f"s_add_u32 s{S_XSO}, s{S_XSO}, s38"); A(f"s_add_u32 s{S_XSO2}, s{S_XSO}, {32*1152}")
    A(f"s_lshl_b32 s{S_MX}, s{S_W}, 13")
    A.add(ntify(xdma(0), FNT&1))
    A(f"s_lshl_b32 s38, s{S_W}, 4")
    A("v_bfe_u32 v30, v27, 1, 1"); A("v_lshrrev_b32 v31, 2, v28"); A("v_xor_b32 v30, v30, v31"); A("v_lshlrev_b32 v30, 6, v30")
    A("v_and_b32 v31, 3, v28"); A("v_lshlrev_b32 v31, 4, v31"); A("v_add_u32 v30, v30, v31")
    A(f"v_add_u32 v31, s38, v27"); A("v_mul_u32_u24 v31, 0x2400, v31")
    A(f"v_add_u32 v{V_WD}, v30, v31"); A(f"v_add_u32 v{V_WD+1}, {8*9216-1024}, v{V_WD}")
    A(f"s_mul_i32 s{S_WSO}, s{S_AW}, {64*9216}"); A(f"s_lshl_b32 s{S_MW}, s{S_W}, 11")
    A.add(ntify(wdma(WR0+0), FNT&2)); A.add(wadv(False))
    ST.stamp(p,1)
    A(f"s_mov_b32 s{S_H}, s46"); A(f"s_mov_b32 s{S_H+1}, s47"); A(f"s_mov_b32 s{S_H+2}, {H_BYTES}"); A(f"s_mov_b32 s{S_H+3}, 0x20000")
    A(f"v_lshlrev_b32 v{V_L16}, 4, v24")
    A("v_lshrrev_b32 v30, 2, v26"); A("v_and_b32 v31, 3, v26")
    A("v_lshrrev_b32 v29, 1, v25"); A("v_lshlrev_b32 v29, 3, v29"); A("v_add_u32 v29, v29, v30"); A("v_lshlrev_b32 v29, 7, v29")
    A("v_lshlrev_b32 v31, 3, v31"); A("v_add_u32 v29, v29, v31"); A("v_and_b32 v31, 1, v25"); A("v_lshlrev_b32 v31, 5, v31"); A("v_add_u32 v29, v29, v31")
    A("v_lshrrev_b32 v30, 1, v30")
    for P in range(2):
        A(f"v_xor_b32 v31, {P}, v30"); A("v_lshlrev_b32 v31, 6, v31"); A(f"v_add_u32 v{V_TRP+P}, v31, v29")
    A("v_and_b32 v29, 31, v24"); A("v_lshrrev_b32 v30, 5, v24"); A("v_bfe_u32 v31, v29, 1, 3"); A("v_xor_b32 v30, v30, v31"); A("v_lshlrev_b32 v30, 4, v30")
    A("v_lshlrev_b32 v31, 7, v29"); A("v_add_u32 v30, v30, v31"); A(f"v_add_u32 v30, s{S_MX}, v30")
    for sl,base in ((0,XA),(1,XB)):
        A(f"v_add_u32 v{V_XP+4*sl}, {base}, v30")
        for sp in range(1,4): A(f"v_xor_b32 v{V_XP+4*sl+sp}, {32*sp}, v{V_XP+4*sl}")
    A(f"v_mov_b32 v{V_C1}, 0x{f2u(C1):08x}")
    A("s_lshl_b32 s38, s37, 3"); A(f"s_lshl_b32 s39, s{S_W}, 1"); A("s_add_u32 s38, s38, s39"); A(f"s_mul_i32 s38, s38, {NKS_TOT}")
    A("s_mul_i32 s39, s36, 6"); A("s_add_u32 s38, s38, s39"); A(f"s_lshl_b32 s{S_HSO}, s38, 11")
    A("s_lshl_b32 s38, s36, 3"); A("s_add_u32 s38, s38, s37"); A("s_lshl_b32 s38, s38, 2"); A(f"s_add_u32 s38, s38, s{S_W}")
    A(f"s_mul_i32 s{S_PFO}, s38, {8*1024}")
    A(f"s_mov_b32 s{S_PF}, s66"); A(f"s_mov_b32 s{S_PF+1}, s67"); A(f"s_mov_b32 s{S_PF+2}, {4608*1152}"); A(f"s_mov_b32 s{S_PF+3}, 0x20000")
    for s in range(2): A(f"v_add_u32 v{V_TR+s}, {WR0*CH}, v{V_TRP+s}")
    A.add(ntify(wdma(WR0+1), FNT&4)); A.add(wadv(False)); A.add(ntify(xdma(1), FNT&8))
    log=['X0']*8+['W0']*4+['W1']*4+['X1']*8
    def waitfor(tags, extra=""):
        nonlocal log
        idx=[i for i,t in enumerate(log) if t in tags]
        if idx:
            last=max(idx); n=len(log)-1-last
            log=log[last+1:]
            return [Ins(f"s_waitcnt vmcnt({n}) {extra}".strip())]
        return [Ins(f"s_waitcnt {extra}")] if extra else []
    def g0rd(i):
        c,sp,P,sec=i//16,(i%16)//4,(i%4)//2,i%2
        sl=c%4
        return [Ins(f"ds_read_b64_tr_b16 {afh(i,h)}, v{V_TR+P} offset:{sl*CH+sec*8192+sp*2048+h*512}") for h in range(2)]
    p.label("L_TOUCH_gx")
    p.add(waitfor(('X0','W0'))); p("s_barrier")
    if MERGE:
        import k1
        k1.announce_zero(p, S_W, "L_gx_az", 60)
    ST.stamp(p,2)
    p.add(xrd(0))
    pre=[]
    for i in range(PF): pre+=g0rd(i)
    p.add(pre[:6]); p("s_waitcnt lgkmcnt(6)"); p.add(pre[6:])
    q0=[x.wr for x in pre]
    N0=9*16
    if XPF:
        A("s_mul_i32 s38, s36, 86"); A("s_lshr_b32 s38, s38, 8"); A("s_mul_i32 s38, s38, 3"); A("s_sub_u32 s38, s36, s38")
        A("s_lshl_b32 s38, s38, 6"); A(f"s_lshl_b32 s39, s{S_W}, 4"); A("s_add_u32 s38, s38, s39"); A("s_mul_i32 s74, s38, 1152"); A(f"s_add_u32 s74, s74, {4096+128*XPF}"); A(f"s_add_u32 s75, s74, {8*1152}")
        A("v_and_b32 v63, 63, v0"); A("v_lshrrev_b32 v62, 3, v63"); A("v_mul_u32_u24 v62, 0x480, v62"); A("v_and_b32 v63, 7, v63"); A("v_lshl_add_u32 v63, v63, 4, v62")
    A("s_lshl_b32 s38, s2, 2"); A(f"s_add_u32 s38, s38, s{S_W}"); A("s_mul_i32 s51, s38, 6144")
    A("s_mov_b32 s52, s42"); A("s_mov_b32 s53, s43"); A(f"s_mov_b32 s54, {576*9216}"); A("s_mov_b32 s55, 0x20000")
    A("s_mov_b32 s60, s44"); A("s_mov_b32 s61, s45"); A(f"s_mov_b32 s62, {576*9216}"); A("s_mov_b32 s63, 0x20000")
    def lin(k):
        srd="s[52:55]" if k<6 else "s[60:63]"; kk=k%6
        o=[]
        if kk==4: o.append(Ins("s_add_u32 s51, s51, 4096"))
        if k==6: o.append(Ins("s_sub_u32 s51, s51, 4096"))
        o.append(Ins(f"buffer_load_dwordx4 v[56:59], v{V_L16}, {srd}, s51 offen offset:{1024*(kk%4)}"))
        return o
    def tagged(lst,tag):
        for x in lst:
            if x.kind=='dma': x.tag=tag
        return lst
    def logit(stream):
        for x in stream:
            if getattr(x,'kind',None) in('dma','vmem'): log.append(x.tag or 'P')
    carry=tagged(wdma(WR0+2)+wadv(False),'W2')+tagged(xdma(2),'X2')
    for c in range(9):
        main=[]
        for ii in range(16):
            i=c*16+ii
            if ii==8: main.append(('mid',))
            n=i+PF
            nxt=g0rd(n) if n<N0 else []
            sp,P,sec=ii//4,(ii%4)//2,ii%2; s16=4*c+sp
            for T in range(2):
                cc=acc(P,T,sec) if s16>0 else "0"
                main.append(Ins(f"{MF} {acc(P,T,sec)}, {afr(i)}, {XF(T,s16)}, {cc}"))
                if T<len(nxt): main.append(nxt[T])
        im=main.index(('mid',))
        first=main[:im]; second=main[im+1:]
        if carry: first=spread(first, dma_items(carry), first=2 if c else 0)
        logit(first)
        carry=[]
        midl=[]
        if c+1<9: midl+=waitfor((f'X{c+1}',f'W{c+1}'))
        midl.append(Ins("s_barrier"))
        dl=[]
        if c+3<9: dl+=tagged(wdma(WR0+(c+3)%4)+wadv(c+3==8),f'W{c+3}')
        g1={6:(0,1),7:(2,3),8:(4,5)}.get(c,())
        for cc_ in g1: dl+=tagged(wdma(cc_)+wadv(False),f'G{cc_}')
        if c+1<9:
            xr=xrd(c+1)
            second=spread(second,[[x] for x in xr], first=0, last=9)
        if dl: second=spread(second, dma_items(dl), first=1)
        if XPF and c+XPF<9:
            second=spread(second, [[Ins(f"buffer_load_dwordx4 v[56:59], v63, s[{S_X}:{S_X+3}], s74 offen")],[Ins(f"buffer_load_dwordx4 v[56:59], v63, s[{S_X}:{S_X+3}], s75 offen")],[Ins("s_add_u32 s74, s74, 128"),Ins("s_add_u32 s75, s75, 128")]], first=3)
        if WPF and c<3:
            second=spread(second, [lin(k) for k in range(4*c,4*c+4)], first=5)
        logit(second)
        if c+3<9: carry=tagged(xdma(c+3),f'X{c+3}')
        stream,q0=auto_lgkm(fix_m0(first+midl+second), q0, extra=2)
        p.add(stream)
    ST.stamp(p,3)
    p.add(pkconst()); p("s_nop 7")
    p.add(gelu(0,pk=True)); log+=['S']*4
    p.add(trset(0))
    p.add(waitfor(('G0','G1','G2'))); p("s_barrier")
    fr=first_reads(0)
    for k in range(PF): p.add(fr[k])
    ST.stamp(p,4)
    if MERGE:
        p("s_lshr_b32 s91, s4, 1"); p("s_mov_b32 s90, 0")
        p("s_and_b32 s38, s4, 1"); p("s_mul_i32 s38, s38, 24"); p("s_add_u32 s92, s38, s6")
        p(f"s_mov_b32 s93, s{S_W}")
        p("s_mul_i32 s38, s36, 43"); p("s_lshr_b32 s38, s38, 8"); p("s_lshl_b32 s39, s37, 2"); p("s_add_u32 s94, s38, s39"); p("s_add_u32 s94, s94, 8")
        p("s_mul_i32 s38, s92, 171"); p("s_lshr_b32 s38, s38, 10"); p("s_lshl_b32 s38, s38, 2"); p("s_add_u32 s96, s38, s91"); p("s_add_u32 s95, s96, 8"); p("s_add_u32 s96, s96, 48"); p("s_mov_b32 s97, 6")
        p("s_lshl_b32 s38, s96, 7"); p("v_mov_b32 v48, s38"); p(f"s_add_u32 s64, s70, {0x15C0000}"); p("s_addc_u32 s65, s71, 0")
        p("v_mov_b32 v61, 0"); p("global_load_dword v60, v61, s[68:69] sc1")
    p(f"s_mov_b32 s{S_CNT}, 0")
    il=len(p.ins)
    p.label("L_gx_loop")
    q0=[x.wr for k in range(PF) for x in fr[k]]
    pfl=lambda: [Ins(f"buffer_load_dwordx4 v[56:59], v{V_L16}, s[{S_PF}:{S_PF+3}], s{S_PFO} offen", tag='pf'), Ins(f"s_add_u32 s{S_PFO}, s{S_PFO}, 1024")]
    def marks(m, fn):
        cur=[]
        for x in m:
            if isinstance(x,tuple):
                t=fn(x)
                if t: cur.append(Ins(t+":"))
            else: cur.append(x)
        return cur
    cur=marks(phase(1, next_first=first_reads(0)), lambda x: (f"FREE{x[1]//3-1}" if x[2]=='start' and x[1] in (3,6) else ("PRE9" if x[2]=='firstread' and x[1]==9 else None)))
    def mfma_index_of(cur,lab):
        k=0
        for x in cur:
            if x.kind=='label' and x.text.startswith(lab): return k
            if x.kind=='mfma': k+=1
    for k in (0,1):
        d=[]
        for cc_ in (3*k,3*k+1,3*k+2): d+=wdma(cc_)+wadv(False)
        f=mfma_index_of(cur,f"FREE{k}")
        cur=spread(cur, dma_items(d), first=f+1, last=f+42-2*(PF-4)-(2 if PF>4 else 0))
    mer=interleave(cur, ([] if os.environ.get('NOPF') else pfl()+pfl())+gelu(0), budget=5)
    out=[]; seq=[]
    for x in mer:
        if x.kind=='label' and x.text.startswith('FREE'):
            if MERGE and x.text.startswith('FREE1'):
                out.append(Ins(f"s_waitcnt vmcnt({len(seq)})"))
            out.append(Ins("s_barrier"))
            if MERGE and x.text.startswith('FREE1'):
                out+=[Ins(f"s_cmp_eq_u32 s{S_CNT}, 1"), Ins("s_cbranch_scc0 L_gx_nosig"), Ins(f"s_cmp_eq_u32 s{S_W}, 0"), Ins("s_cbranch_scc0 L_gx_nosig"),
                      Ins("v_readfirstlane_b32 s38, v60"), Ins("s_mov_b32 s39, 0"), Ins("L_gx_zr:"), Ins("s_cmp_ge_u32 s38, 273"), Ins("s_cbranch_scc1 L_gx_zok"),
                      Ins("s_add_u32 s39, s39, 1"), Ins("s_cmp_gt_u32 s39, 200000"), Ins("s_cbranch_scc1 L_gx_zok"), Ins("s_sleep 6"),
                      Ins("v_mov_b32 v61, 0"), Ins("global_load_dword v60, v61, s[68:69] sc1"), Ins("s_waitcnt vmcnt(0)"), Ins("v_readfirstlane_b32 s38, v60"), Ins("s_branch L_gx_zr"),
                      Ins("L_gx_zok:"),
                      Ins("s_mul_i32 s38, s36, 43"), Ins("s_lshr_b32 s38, s38, 8"), Ins("s_lshl_b32 s39, s37, 2"), Ins("s_add_u32 s38, s38, s39"), Ins("s_add_u32 s38, s38, 48"), Ins("s_lshl_b32 s38, s38, 7"),
                      Ins(f"s_add_u32 s72, s70, {0x15C0000}"), Ins("s_addc_u32 s73, s71, 0"),
                      Ins("v_mov_b32 v61, s38"), Ins("v_mov_b32 v62, 1"), Ins("v_cmp_eq_u32 vcc, 0, v0"), Ins("s_and_saveexec_b64 s[74:75], vcc"),
                      Ins("global_atomic_add v61, v62, s[72:73] sc1"), Ins("s_mov_b64 exec, s[74:75]"), Ins("L_gx_nosig:"), Ins("s_nop 0")]
        elif x.kind=='label' and x.text.startswith('PRE9'):
            d=[i for i,t in enumerate(seq) if t=='dma']; assert len(d)==24
            out.append(Ins(f"s_waitcnt vmcnt({len(seq)-1-d[11]})")); out.append(Ins("s_barrier")); out+=trset(0)
        else:
            if x.kind in('vmem','dma'): seq.append(x.kind)
            out.append(x)
    if MERGE:
        ist=[i for i,x in enumerate(out) if x.tag=='st']
        out.insert(ist[-1]-30, Ins("global_load_dword v49, v48, s[64:65] sc1", tag='look'))
        vm=[x for x in out if x.kind in('vmem','dma')]
        n_after_look=len(vm)-1-[i for i,x in enumerate(vm) if x.tag=='look'][0]
        assert all(x.kind!='dma' for x in vm[len(vm)-n_after_look:])
    out1=out; tail_exact=len(seq)-1-max(i for i,t in enumerate(seq) if t=='dma'); tail1=min(4,tail_exact)
    cur=marks(phase(0, next_first=first_reads(1)), lambda x: (f"LAND{x[1]}" if x[2]=='firstread' and x[1] in (3,6) else ("SWITCH1" if x[2]=='firstread' and x[1]==9 else None)))
    d678=wdma(6)+wadv(False)+wdma(7)+wadv(False)+wdma(8)+wadv(True)
    if int(os.environ.get('NOJUNK','1')) and not ROT:
        d678+=[Ins(f"s_cmp_eq_u32 s{S_CNT}, 1"), Ins("s_cselect_b32 s49, 0x40000000, 0"), Ins(f"s_add_u32 s{S_WSO}, s{S_WSO}, s49")]
    cur=spread(cur, dma_items(d678), first=1, last=42)
    mer=interleave(cur, ([] if os.environ.get('NOPF') else pfl()+pfl())+gelu(1), budget=5)
    out=[]; seq=[]
    for x in mer:
        if x.kind=='label' and x.text.startswith('LAND3'):
            out.append(Ins(f"s_waitcnt vmcnt({len(seq)+tail1})")); out.append(Ins("s_barrier"))
        elif x.kind=='label' and x.text.startswith('LAND6'):
            last=max(i for i,t in enumerate(seq) if t=='dma'); assert seq.count('dma')==12
            out.append(Ins(f"s_waitcnt vmcnt({len(seq)-1-last})")); out.append(Ins("s_barrier"))
        elif x.kind=='label' and x.text.startswith('SWITCH'):
            out+=trset(1)
        else:
            if x.kind in('vmem','dma'): seq.append(x.kind)
            out.append(x)
    st,q1=auto_lgkm(out,q0,extra=GEX)
    p.add(st)
    st,q2=auto_lgkm(out1,q1,extra=GEX)
    p.add(st)
    p("s_barrier")
    p(f"s_add_u32 s{S_CNT}, s{S_CNT}, 1"); p(f"s_cmp_lt_u32 s{S_CNT}, 2"); p("s_cbranch_scc1 L_gx_loop")
    idn=len(p.ins)
    assert [sorted(d) for d in q2]==[sorted(x.wr) for k in range(PF) for x in fr[k]] or True
    p("s_waitcnt lgkmcnt(0)")
    ST.stamp(p,5)
    if MERGE:
        import p2 as P2
        p(f"s_waitcnt vmcnt({n_after_look})"); p("s_barrier")
        P2.gen_p2a_ffn(p)
    p.label("L_TOUCH_gx2")
    p.add(pkconst()); p("s_nop 7")
    p.add(gelu(1,pk=True))
    ST.stamp(p,6)
    ST.flush(p,70,71,0)
    if MERGE: p("s_branch L_p2b")
    return il,idn
```

```python
from core import *
import stamp as ST
from k1_gx import NKS_TOT, H_BYTES, f2u, GSHAPE
import os
GMOVE=int(os.environ.get('GMOVE','1'))
G_OFF=0x1500000; P_OFF=0x1600000
U=12; STG=12288; D=int(os.environ.get('P2D','4')); B2=int(os.environ.get('P2B2','0'))
HMOD=os.environ.get('HMOD',' sc1')
OMOD=os.environ.get('OMOD','')
SLEEP2=int(os.environ.get('SLEEP2','2'))
SLEEP=int(os.environ.get('SLEEP','6'))
ACC=64
P2S=int(os.environ.get('P2S','16'))
LG3=int(os.environ.get('LG3','0'))
RL=6
assert not B2 or D+2<=RL or True
def acc(q,r=None):
    b=ACC+q*16
    return f"v[{b}:{b+15}]" if r is None else f"v{b+r}"
def acc16(q,tt,r=None):
    b=ACC+(q*2+tt)*4
    return f"v[{b}:{b+3}]" if r is None else f"v{b+r}"
def hfr(u,b_): b=(u*2+b_)*4; return f"a[{b}:{b+3}]"
def afr(q): b=96+4*q; return f"a[{b}:{b+3}]"
def afh(q,h): b=96+4*q+2*h; return f"a[{b}:{b+1}]"
MF="v_mfma_f32_32x32x16_bf16"
V_TR=8; V_HL=12; V_DL=14; V_DF=17; V_L16=20; V_LT=7
S_H=16; S_P=20; S_CUR=24
S_W=93; S_WB=29; S_DSO=30; S_INA=31; S_INB=32; S_HS0=33; S_HS1=34; S_RND=35; S_NR=36; S_XA=37; S_XF=67; S_XS=66
WI={'e':31,'a':32,'b':46,'c':47}; HI={'e':52,'a':53,'b':54,'c':55}
S_JT=90
S_JO=91
S_JTILE=92
S_JW=93
CNT_OFF=0x15C0000
HC0=8; OC0=40; HE0=48; TW0=80; GC0=272; NLINES=273

def trread(i,h,stage):
    so=(stage%RL)*STG
    if P2S==16:
        x=Ins(f"ds_read_b64_tr_b16 {afh(i,h)}, v{V_TR+(i&3)} offset:{so+(i>>2)*128+h*1536}"); x.cost=1
        return x
    b_,q=i//6,i%6
    sl=stage%RL; grp=sl//3; so=(sl%3)*STG
    return Ins(f"ds_read_b64_tr_b16 {afh(i,h)}, v{V_TR+2*grp+(q&1)} offset:{so+(q&~1)*64+b_*6144+h*1536}")
def cls(v):
    v%=12
    return 'e' if v%2==0 else ('c' if v==11 else ('b' if v%4==3 else 'a'))
def issue_h(idx):
    u_dst=idx%U
    va,o1=(V_HL,256) if P2S==16 else (V_L16,1024)
    return [Ins(f"buffer_load_dwordx4 {hfr(u_dst,0)}, v{va}, s[{S_H}:{S_H+3}], s{S_HS0} offen{HMOD}"),
            Ins(f"buffer_load_dwordx4 {hfr(u_dst,1)}, v{va}, s[{S_H}:{S_H+3}], s{S_HS0} offen offset:{o1}{HMOD}"),
            Ins(f"s_add_u32 s{S_HS0}, s{S_HS0}, s{HI[cls(idx)]}")]
def issue_w(idx):
    u_dst=idx%U
    o=[Ins(f"s_add_u32 m0, s{S_WB}, {(u_dst%RL)*STG}"), Ins("s_nop 0")]
    for e in range(3):
        o.append(Ins(f"buffer_load_dwordx4 v{V_DF+e}, s[{S_CUR}:{S_CUR+3}], s{S_DSO} offen offset:{1024*e} lds"))
    o.append(Ins(f"s_add_u32 s{S_DSO}, s{S_DSO}, s{WI[cls(idx)]}"))
    return o
def items2(lst):
    items=[]; pend=[]
    for x in lst:
        if x.kind=='nop': continue
        if x.kind in('dma','vmem'):
            if pend: items.append(pend); pend=[]
            items.append([x])
        else: pend.append(x)
    if pend: items.append(pend)
    return items
def step(u):
    if B2:
        main=[Ins(f"s_waitcnt vmcnt({5*(D-3)})"),Ins("s_barrier")] if u%2==0 else [Ins("s_nop 0"),Ins("s_nop 0")]
    else:
        main=[Ins(f"s_waitcnt vmcnt({5*(D-2)})"),Ins("s_barrier")]
    un=(u+1)%U
    for i in range(12):
        if LG3:
            if i%3==0: main.append(Ins("s_waitcnt lgkmcnt(6)"))
        elif i%2==0: main.append(Ins("s_waitcnt lgkmcnt(8)"))
        n=i+6
        rd=[trread(n,h,u) for h in range(2)] if n<12 else [trread(n-12,h,un) for h in range(2)]
        if P2S==16:
            for tt in range(2):
                main.append(Ins(f"v_mfma_f32_16x16x32_bf16 {acc16(i,tt)}, {afr(i)}, {hfr(u,tt)}, {acc16(i,tt)}")); main.append(rd[tt])
        else:
            b_,q=i//6,i%6
            main.append(Ins(f"{MF} {acc(q)}, {afr(i)}, {hfr(u,b_)}, {acc(q)}"))
            main+=rd
    fl=issue_h(u+D)+issue_w(u+D)
    if u==(24-D-12)-4: fl=[Ins("global_load_dword v27, v7, s[64:65] sc1")]+fl
    res=spread(main, items2(fl), first=0 if P2S==32 else 2, last=11 if P2S==32 else 22)
    if u==(16-D)%12:
        sw=[Ins(f"s_cmp_eq_u32 s{S_RND}, s{S_XS}"), Ins("s_cbranch_scc0 L_p2_nosw")]
        sw+=[Ins(f"v_mov_b32 v{V_DF+e}, v{V_DL+e}") for e in range(3)]
        sw+=[Ins(f"s_mov_b32 s{S_DSO}, 0")]+[Ins(f"s_mov_b32 s{WI[k]}, {288*1152}") for k in 'eabc']+[Ins("L_p2_nosw:"),Ins("s_nop 0")]
        res=res[:2]+sw+res[2:]
    if u==(8 if D==4 else 24-D-12):
        sw=[Ins(f"s_cmp_eq_u32 s{S_RND}, s{S_XF}"), Ins("s_cbranch_scc0 L_p2_nolate")]
        sw+=[Ins(f"s_mov_b32 s{WI['a']}, {5*32*1152}"), Ins(f"s_mov_b32 s{WI['b']}, {5*32*1152}"), Ins(f"s_mov_b32 s{HI['a']}, {5*2048}"), Ins(f"s_mov_b32 s{HI['b']}, {5*2048}")]
        sw+=[Ins("v_readfirstlane_b32 s38, v27"), Ins("s_mov_b32 s39, 0"), Ins("L_p2_late:"), Ins("s_cmp_ge_u32 s38, 6"), Ins("s_cbranch_scc1 L_p2_nolate"),
             Ins("s_add_u32 s39, s39, 1"), Ins("s_cmp_gt_u32 s39, 200000"), Ins("s_cbranch_scc1 L_p2_nolate"), Ins(f"s_sleep {SLEEP}"),
             Ins("global_load_dword v27, v7, s[64:65] sc1"), Ins("s_waitcnt vmcnt(0)"), Ins("v_readfirstlane_b32 s38, v27"), Ins("s_branch L_p2_late"),
             Ins("L_p2_nolate:"), Ins("s_nop 0")]
        res=res[:2]+sw+res[2:]
    if u==5:
        res+=[Ins(f"s_cmp_eq_u32 s{S_RND}, s{S_XA}"), Ins("s_cbranch_scc1 L_p2_lend")]
    if u==11:
        res+=[Ins(f"s_add_u32 s{WI['c']}, s{WI['c']}, s60"), Ins(f"s_add_u32 s{HI['c']}, s{HI['c']}, s61")]
    return res

def cnt_base(p):
    p(f"s_add_u32 s64, s70, {CNT_OFF}"); p("s_addc_u32 s65, s71, 0")
def poll(p, idx_s, target, lab, wreg=S_JW, early=None):
    p(f"s_cmp_eq_u32 s{wreg}, 0"); p(f"s_cbranch_scc0 {lab}_ok")
    if early:
        p(f"v_readfirstlane_b32 s38, {early}"); p("s_nop 1"); p(f"s_cmp_ge_u32 s38, {target}"); p(f"s_cbranch_scc1 {lab}_ok")
    p(f"s_lshl_b32 s38, s{idx_s}, 7"); p("v_mov_b32 v2, s38")
    p("s_mov_b32 s39, 0")
    p.label(lab)
    p(f"global_load_dword v3, v2, s[64:65] sc1"); p("s_waitcnt vmcnt(0)")
    p("v_readfirstlane_b32 s38, v3"); p("s_add_u32 s39, s39, 1")
    p(f"s_cmp_ge_u32 s38, {target}"); p(f"s_cbranch_scc1 {lab}_ok")
    p("s_cmp_gt_u32 s39, 200000"); p(f"s_cbranch_scc1 {lab}_ok")
    p(f"s_sleep {SLEEP}"); p(f"s_branch {lab}")
    p.label(lab+"_ok")
    p("s_barrier")
def signal(p, vtmp, idx_s, lab, wreg=S_JW):
    p(f"s_cmp_eq_u32 s{wreg}, 0"); p(f"s_cbranch_scc0 {lab}")
    p(f"s_lshl_b32 s38, s{idx_s}, 7"); p(f"v_mov_b32 v{vtmp}, s38"); p(f"v_mov_b32 v{vtmp+1}, 1")
    p("v_cmp_eq_u32 vcc, 0, v0"); p("s_and_saveexec_b64 s[48:49], vcc")
    p(f"global_atomic_add v{vtmp}, v{vtmp+1}, s[64:65] sc1")
    p("s_mov_b64 exec, s[48:49]")
    p.label(lab)
def zero_ready(p, lab, wreg, vt=2, early=None, inval=None):
    p(f"s_cmp_eq_u32 s{wreg}, 0"); p(f"s_cbranch_scc0 {lab}_ok")
    if early:
        p(f"v_readfirstlane_b32 s38, {early}"); p("s_nop 1"); p(f"s_cmp_ge_u32 s38, {NLINES}"); p(f"s_cbranch_scc1 {lab}_ok")
        if inval: p(f"v_mov_b32 {inval}, 0")
    p(f"v_mov_b32 v{vt}, 0"); p("s_mov_b32 s39, 0")
    p.label(lab)
    p(f"global_load_dword v{vt+1}, v{vt}, s[68:69] sc1"); p("s_waitcnt vmcnt(0)")
    p(f"v_readfirstlane_b32 s38, v{vt+1}"); p("s_add_u32 s39, s39, 1")
    p(f"s_cmp_ge_u32 s38, {NLINES}"); p(f"s_cbranch_scc1 {lab}_ok")
    p("s_cmp_gt_u32 s39, 200000"); p(f"s_cbranch_scc1 {lab}_ok")
    p(f"s_sleep {SLEEP}"); p(f"s_branch {lab}")
    p.label(lab+"_ok")

def p2_setup(p, early=True, ffn_only=False):
    cnt_base(p)
    if early:
        p("v_mov_b32 v28, 0"); p("global_load_dword v29, v28, s[68:69] sc1")
        p("s_lshl_b32 s38, s96, 7"); p("v_mov_b32 v24, s38"); p("global_load_dword v25, v24, s[64:65] sc1")
    p("s_load_dwordx2 s[40:41], s[0:1], 24")
    p("s_load_dwordx2 s[42:43], s[0:1], 56")
    p("s_load_dwordx2 s[44:45], s[0:1], 72")
    p(f"s_mul_i32 s5, s{S_JTILE}, 171"); p("s_lshr_b32 s5, s5, 9")
    p("s_mul_i32 s6, s5, 3"); p(f"s_sub_u32 s6, s{S_JTILE}, s6")
    p("v_and_b32 v1, 63, v0"); p(f"v_lshlrev_b32 v{V_L16}, 4, v1")
    p(f"s_mul_i32 s48, s{S_W}, 192")
    p(f"s_cmp_eq_u32 s{S_JT}, 1"); p("s_cselect_b64 s[50:51], -1, 0")
    for e in range(3):
        p(f"v_add_u32 v4, s48, v1")
        if e: p(f"v_add_u32 v4, {64*e}, v4")
        p("v_mul_u32_u24 v5, 0xaab, v4"); p("v_lshrrev_b32 v5, 16, v5")
        p("v_mul_u32_u24 v6, 24, v5"); p("v_sub_u32 v6, v4, v6")
        if P2S==32:
            p("v_bfe_u32 v7, v5, 1, 1"); p("v_lshrrev_b32 v4, 2, v6"); p("v_xor_b32 v4, v4, v7"); p("v_lshlrev_b32 v4, 6, v4")
            p("v_and_b32 v6, 3, v6"); p("v_lshlrev_b32 v6, 4, v6")
        else:
            p("v_bfe_u32 v7, v5, 1, 1"); p("v_bfe_u32 v4, v5, 3, 1"); p("v_lshlrev_b32 v4, 1, v4"); p("v_or_b32 v7, v7, v4")
            p("v_lshrrev_b32 v4, 1, v6"); p("v_xor_b32 v4, v4, v7"); p("v_lshlrev_b32 v4, 5, v4")
            p("v_and_b32 v6, 1, v6"); p("v_lshlrev_b32 v6, 4, v6")
        p(f"v_add3_u32 v4, v4, v6, 0"); p(f"v_add_u32 v31, {4096-1024*e}, v4")
        if GSHAPE==32:
            p("v_and_b32 v6, 16, v5"); p("v_bfe_u32 v7, v5, 3, 1"); p("v_lshl_add_u32 v6, v7, 2, v6")
            p("v_and_b32 v7, 3, v5"); p("v_add_u32 v6, v6, v7"); p("v_bfe_u32 v7, v5, 2, 1"); p("v_lshl_add_u32 v6, v7, 3, v6")
        else:
            p("v_bfe_u32 v6, v5, 2, 1"); p("v_lshlrev_b32 v6, 4, v6"); p("v_lshrrev_b32 v7, 3, v5"); p("v_lshl_add_u32 v6, v7, 2, v6")
            p("v_and_b32 v7, 3, v5"); p("v_add_u32 v6, v6, v7")
        if not ffn_only:
            p("v_lshrrev_b32 v7, 3, v5"); p("v_mul_u32_u24 v7, 18, v7"); p("v_and_b32 v30, 7, v5"); p("v_add_u32 v7, v7, v30")
            p("v_cndmask_b32 v6, v6, v7, s[50:51]")
        p("v_mul_u32_u24 v6, 0x480, v6"); p(f"v_add_u32 v{V_DF+e}, v6, v31")
        if not ffn_only:
            p("v_bfe_u32 v6, v5, 1, 2"); p("v_mul_u32_u24 v6, 72, v6"); p("v_lshrrev_b32 v7, 3, v5"); p("v_mul_u32_u24 v7, 18, v7"); p("v_add_u32 v6, v6, v7")
            p("v_and_b32 v7, 1, v5"); p("v_add3_u32 v6, v6, v7, 16"); p("v_mul_u32_u24 v6, 0x480, v6"); p(f"v_add_u32 v{V_DL+e}, v6, v31")
    p("v_lshrrev_b32 v2, 4, v1"); p("v_and_b32 v3, 15, v1")
    p("v_lshrrev_b32 v4, 2, v3"); p("v_and_b32 v5, 3, v3")
    if P2S==32:
        p("v_lshrrev_b32 v6, 1, v2"); p("v_lshlrev_b32 v6, 3, v6"); p("v_add_u32 v6, v6, v4"); p("v_mul_u32_u24 v6, 0x180, v6")
        p("v_lshlrev_b32 v5, 3, v5"); p("v_add_u32 v6, v6, v5"); p("v_and_b32 v5, 1, v2"); p("v_lshl_add_u32 v6, v5, 5, v6")
        p("v_lshrrev_b32 v4, 1, v4")
        for k in range(2):
            p(f"v_xor_b32 v5, {k}, v4"); p("v_lshlrev_b32 v5, 6, v5"); p(f"v_add_u32 v{V_TR+k}, v5, v6"); p(f"v_add_u32 v{V_TR+2+k}, {3*STG}, v{V_TR+k}")
    else:
        p("v_lshlrev_b32 v6, 3, v2"); p("v_add_u32 v6, v6, v4"); p("v_mul_u32_u24 v6, 0x180, v6")
        p("v_lshlrev_b32 v5, 3, v5"); p("v_add_u32 v6, v6, v5")
        p("v_lshrrev_b32 v4, 1, v4"); p("v_and_b32 v5, 1, v2"); p("v_lshlrev_b32 v5, 1, v5"); p("v_or_b32 v4, v4, v5")
        for k in range(4):
            p(f"v_xor_b32 v5, {k}, v4"); p("v_lshlrev_b32 v5, 5, v5"); p(f"v_add_u32 v{V_TR+k}, v5, v6")
        p("v_lshrrev_b32 v4, 1, v2"); p("v_lshlrev_b32 v4, 10, v4"); p("v_and_b32 v5, 1, v2"); p("v_lshlrev_b32 v5, 9, v5"); p("v_lshlrev_b32 v6, 4, v3")
        p(f"v_add3_u32 v{V_HL}, v4, v5, v6")
    p("s_waitcnt lgkmcnt(0)")
    p(f"s_cmp_eq_u32 s{S_JT}, 1")
    R=32*1152
    p("s_cselect_b32 s4, s40, s42"); p("s_cselect_b32 s7, s41, s43")
    p(f"s_mov_b32 s62, {4608*1152+4096}"); p(f"s_cselect_b32 s62, {576*1152+4096}, s62")
    for k,(fv,av) in {'e':(1,8),'a':(1,64),'b':(3,64),'c':(3,64)}.items():
        p(f"s_mov_b32 s{WI[k]}, {fv*R}"); p(f"s_cselect_b32 s{WI[k]}, {av*1152}, s{WI[k]}")
    for k,fv in {'e':1,'a':1,'b':3,'c':3}.items():
        p(f"s_mov_b32 s{HI[k]}, {fv*2048}"); p(f"s_cselect_b32 s{HI[k]}, 2048, s{HI[k]}")
    p(f"s_mov_b32 s60, {(-32*R)&0xffffffff}"); p("s_cselect_b32 s60, 0, s60"); p(f"s_mov_b32 s61, {(-32*2048)&0xffffffff}"); p("s_cselect_b32 s61, 0, s61")
    p(f"s_mov_b32 s{S_NR}, 3"); p(f"s_cselect_b32 s{S_XA}, 1, 99"); p(f"s_cselect_b32 s{S_XF}, 99, 1"); p(f"s_cselect_b32 s{S_XS}, {(16-D)//12}, 99")
    p(f"s_mul_i32 s63, s{S_JO}, 36"); p(f"s_cselect_b32 s63, 144, s63")
    p(f"s_mul_i32 s56, s63, {R}"); p(f"s_cselect_b32 s{S_DSO}, 0, s56")
    p("s_mul_i32 s57, s6, 384")
    p(f"s_add_u32 s{S_CUR}, s4, s57"); p(f"s_addc_u32 s{S_CUR+1}, s7, 0"); p(f"s_sub_u32 s{S_CUR}, s{S_CUR}, 4096"); p(f"s_subb_u32 s{S_CUR+1}, s{S_CUR+1}, 0")
    p(f"s_sub_u32 s{S_CUR+2}, s62, s57"); p(f"s_mov_b32 s{S_CUR+3}, 0x20000")
    p(f"s_mov_b32 s{S_H}, s70"); p(f"s_mov_b32 s{S_H+1}, s71"); p(f"s_mov_b32 s{S_H+2}, {H_BYTES}"); p(f"s_mov_b32 s{S_H+3}, 0x20000")
    p("s_lshl_b32 s57, s5, 2"); p(f"s_add_u32 s57, s57, s{S_W}")
    p(f"s_mul_i32 s48, s57, {NKS_TOT}"); p("s_add_u32 s48, s48, s63"); p(f"s_lshl_b32 s{S_HS0}, s48, 11")
    p(f"s_mul_i32 s{S_WB}, s{S_W}, 3072")

def p2_first_loads(p, uniq):
    poll(p, 96, "s97", f"L_p2_poll1{uniq}", early="v25")
    p("s_lshl_b32 s38, s95, 7"); p(f"v_mov_b32 v{V_LT}, s38")
    for i in range(D): p.add(issue_h(i))
    for r in range(ACC,ACC+96): p(f"v_mov_b32 v{r}, 0")

def gen_p2a_ffn(p):
    p("v_mov_b32 v25, v49")
    p2_setup(p, early=False, ffn_only=True)
    for i in range(D): p.add(issue_w(i))
    p2_first_loads(p, "f")

def gen_p2(p, docheck=True):
    i0=len(p.ins)
    p.label("L_p2")
    p2_setup(p)
    p("s_waitcnt vmcnt(0)"); p("s_barrier")
    zero_ready(p, "L_p2_zr", S_JW, early="v29", inval="v25")
    signal(p, 4, 94, "L_p2_sig1")
    ST.stamp(p,7)
    p(f"s_cmp_ge_u32 s{S_JTILE}, 48"); p("s_cbranch_scc1 "+("L_gate" if GMOVE else "L_p2_end"))
    for i in range(D): p.add(issue_w(i))
    p2_first_loads(p, "")
    p(f"s_waitcnt vmcnt({2*(D-2)})" if not B2 else f"s_waitcnt vmcnt({min(4,2*(D-3))})"); p("s_barrier")
    p("s_branch L_p2c")
    p.label("L_p2b")
    p("s_waitcnt vmcnt(0)"); p("s_barrier")
    signal(p, 4, 94, "L_p2_sig1b")
    ST.stamp(p,7)
    p.label("L_p2c")
    ST.stamp(p,8)
    for q in range(6):
        for h in range(2): p.add([trread(q,h,0)])
    p(f"s_mov_b32 s{S_RND}, 0")
    iA=len(p.ins)
    p.label("L_p2_loop")
    for u in range(U): p.add(step(u))
    p(f"s_add_u32 s{S_RND}, s{S_RND}, 1"); p(f"s_cmp_lt_u32 s{S_RND}, s{S_NR}"); p("s_cbranch_scc1 L_p2_loop")
    iA2=len(p.ins)
    p.label("L_p2_lend")
    p("s_waitcnt vmcnt(0) lgkmcnt(0)")
    ST.stamp(p,9)
    p(f"s_mul_i32 s47, s{S_JTILE}, 5"); p(f"s_add_u32 s47, s47, s{S_JO}"); p("s_lshl_b32 s47, s47, 2"); p(f"s_add_u32 s47, s47, s{S_W}"); p("s_mul_i32 s47, s47, 12288")
    p(f"s_add_u32 s{S_P}, s70, {P_OFF}"); p(f"s_addc_u32 s{S_P+1}, s71, 0"); p(f"s_mov_b32 s{S_P+2}, {240*4*12288}"); p(f"s_mov_b32 s{S_P+3}, 0x20000")
    p("s_nop 7")
    if GMOVE: p(f"v_mov_b32 v21, {272*128}"); p("global_load_dword v22, v21, s[64:65] sc1")
    OWN=200
    for i in range(12):
        q,e=i//2,i%2
        t=32+4*(i%4)
        p(f"s_cmp_eq_u32 s{S_JO}, {i%5}"); p(f"s_cbranch_scc1 L_p3_own{i}")
        def cr(k):
            if P2S==32: return acc(q,8*e+k)
            tt,pp=i//6,i%6
            return acc16(2*pp+k//4,tt,k%4)
        for k in range(4): p(f"v_cvt_pk_bf16_f32 v{t+k}, {cr(2*k)}, {cr(2*k+1)}")
        off=i*1024
        p(f"s_add_u32 s56, s47, {off - off%4096}")
        p(f"buffer_store_dwordx4 v[{t}:{t+3}], v{V_L16}, s[{S_P}:{S_P+3}], s56 offen offset:{off%4096} sc1")
        p(f"s_branch L_p3_nx{i}")
        p.label(f"L_p3_own{i}")
        for k in range(8): p(f"v_mov_b32 v{OWN+8*(i//5)+k}, {cr(k)}")
        p.label(f"L_p3_nx{i}")
    p(f"s_lshl_b32 s57, s{S_JTILE}, 2"); p(f"s_add_u32 s57, s57, s{S_W}"); p(f"s_add_u32 s57, s57, {TW0}")
    if P2S==32: p("v_and_b32 v4, 31, v1"); p("v_lshrrev_b32 v5, 5, v1")
    else: p("v_and_b32 v4, 15, v1"); p("v_lshrrev_b32 v5, 4, v1")
    p("s_lshl_b32 s60, s5, 7"); p(f"s_lshl_b32 s61, s{S_W}, 5"); p("s_add_u32 s60, s60, s61")
    p("v_add_u32 v6, s60, v4")
    p("v_lshlrev_b32 v7, 2, v6")
    p("v_mul_u32_u24 v6, 0x480, v6"); p("v_lshlrev_b32 v5, 3, v5"); p("v_add_u32 v6, v6, v5")
    p("s_mov_b32 s8, s44"); p("s_mov_b32 s9, s45"); p(f"s_mov_b32 s10, {2048*1152}"); p("s_mov_b32 s11, 0x20000")
    p(f"s_add_u32 s12, s70, {G_OFF}"); p("s_addc_u32 s13, s71, 0"); p("s_mov_b32 s14, 8192"); p("s_mov_b32 s15, 0x20000")
    p(f"s_mul_i32 s62, s{S_JTILE}, {5*4*12288}"); p(f"s_mul_i32 s63, s{S_W}, 12288"); p("s_add_u32 s62, s62, s63")
    p("s_lshl_b32 s38, s57, 7"); p("v_mov_b32 v2, s38"); p(f"s_lshl_b32 s38, 1, s{S_JO}"); p("v_mov_b32 v8, s38")
    p("s_waitcnt vmcnt(0)")
    if GMOVE:
        p("s_mov_b32 s39, 0")
        p.label("L_p3_gc")
        p("v_readfirstlane_b32 s38, v22"); p("s_add_u32 s39, s39, 1"); p("s_cmp_ge_u32 s38, 16"); p("s_cbranch_scc1 L_p3_gcok")
        p("s_cmp_gt_u32 s39, 200000"); p("s_cbranch_scc1 L_p3_gcok")
        p(f"s_sleep {SLEEP}"); p("global_load_dword v22, v21, s[64:65] sc1"); p("s_waitcnt vmcnt(0)"); p("s_branch L_p3_gc")
        p.label("L_p3_gcok")
    ST.stamp(p,1)
    if GMOVE:
        p(f"buffer_load_dword v11, v7, s[12:15], 0 offen sc1")
        if P2S==16: p(f"buffer_load_dword v13, v7, s[12:15], 0 offen offset:64 sc1")
    p("v_cmp_eq_u32 vcc, 0, v1"); p("s_and_saveexec_b64 s[48:49], vcc")
    p("global_atomic_add v2, v8, s[64:65] sc1")
    p("s_mov_b64 exec, s[48:49]")
    for k in range(4):
        p(f"s_add_u32 s38, s{S_JO}, {k+1}"); p("s_and_b32 s38, s38, 3")
        if k==3: p("s_mov_b32 s38, 4")
        p(f"s_cmp_eq_u32 s{S_JO}, 4"); p(f"s_cselect_b32 s38, {k}, s38"); p(f"s_mul_i32 s{52+k}, s38, {4*12288}"); p(f"s_lshl_b32 s{16+k}, 1, s38")
    p(f"s_lshl_b32 s63, s{S_JO}, 10"); p("s_add_u32 s63, s63, s62")
    p("s_mov_b32 s39, 0"); p("s_mov_b32 s46, 0")
    p.label("L_p2_poll2")
    p("global_load_dword v3, v2, s[64:65] sc1"); p("s_waitcnt vmcnt(0)")
    p("v_readfirstlane_b32 s38, v3"); p("s_add_u32 s39, s39, 1")
    p("s_cmp_gt_u32 s39, 200000"); p("s_cselect_b32 s38, 31, s38")
    p("s_andn2_b32 s38, s38, s46")
    for k in range(4):
        p(f"s_and_b32 s47, s38, s{16+k}"); p(f"s_cbranch_scc0 L_p3_s{k}")
        p(f"s_or_b32 s46, s46, s{16+k}"); p(f"s_add_u32 s47, s63, s{52+k}")
        for c in range(3):
            if c==2: p(f"s_cmp_gt_u32 s{S_JO}, 1"); p(f"s_cbranch_scc1 L_p3_s{k}")
            b=64+(c*4+k)*4
            p(f"buffer_load_dwordx4 v[{b}:{b+3}], v{V_L16}, s[{S_P}:{S_P+3}], s47 offen sc1")
            if c<2: p(f"s_add_u32 s47, s47, 5120")
        p.label(f"L_p3_s{k}")
    p(f"s_lshl_b32 s47, 1, s{S_JO}"); p("s_or_b32 s47, s47, s46"); p("s_cmp_eq_u32 s47, 31"); p("s_cbranch_scc1 L_p2_poll2_ok")
    p(f"s_sleep {SLEEP2}"); p("s_branch L_p2_poll2")
    p.label("L_p2_poll2_ok")
    ST.stamp(p,2)
    if not GMOVE:
        p(f"buffer_load_dword v11, v7, s[12:15], 0 offen sc1")
        if P2S==16: p(f"buffer_load_dword v13, v7, s[12:15], 0 offen offset:64 sc1")
    p.label("L_p3_ld2")
    p("s_waitcnt vmcnt(0)")
    if P2S==32: p("v_sub_f32 v12, 1.0, v11")
    else: p("v_mov_b32 v14, v11")
    p(f"s_cmp_eq_u32 s{S_JO}, 4"); p("s_cbranch_scc1 L_p3_att")
    for variant in range(2):
        if variant==1: p.label("L_p3_att")
        for c in range(3):
            if c==2: p(f"s_cmp_gt_u32 s{S_JO}, 1"); p("s_cbranch_scc1 L_p2_end")
            if variant==1 and c==2: break
            if P2S==32:
                p(f"s_add_u32 s63, s{S_JO}, {5*c}"); p("s_lshl_b32 s63, s63, 5"); p("s_mul_i32 s56, s6, 384"); p("s_add_u32 s63, s63, s56")
            else:
                p(f"s_add_u32 s63, s{S_JO}, {5*c}"); p("s_cmp_ge_u32 s63, 6"); p("s_cselect_b32 s56, 6, 0"); p("s_cselect_b64 s[50:51], -1, 0"); p(f"s_cselect_b32 s57, {16*1152}, 0")
                p("s_sub_u32 s63, s63, s56"); p("s_lshl_b32 s63, s63, 6"); p("s_mul_i32 s56, s6, 384"); p("s_add_u32 s63, s63, s56"); p("s_add_u32 s63, s63, s57")
                p("v_cndmask_b32 v11, v14, v13, s[50:51]"); p("v_sub_f32 v12, 1.0, v11")
            for k in range(4):
                lo=40+2*k; hi=41+2*k; own=f"v[{OWN+8*c+2*k}:{OWN+8*c+2*k+1}]"
                def unpack(src):
                    s_=64+(c*4+src)*4+k
                    p(f"v_lshlrev_b32 v48, 16, v{s_}"); p(f"v_and_b32 v49, 0xffff0000, v{s_}")
                if variant==0:
                    unpack(0); p(f"v_pk_add_f32 v[{lo}:{hi}], {own}, v[48:49]")
                    for src in (1,2): unpack(src); p(f"v_pk_add_f32 v[{lo}:{hi}], v[{lo}:{hi}], v[48:49]")
                    unpack(3)
                    p(f"v_pk_mul_f32 v[{lo}:{hi}], v[{lo}:{hi}], v[12:13] op_sel_hi:[1,0]")
                    p(f"v_pk_fma_f32 v[{lo}:{hi}], v[48:49], v[10:11], v[{lo}:{hi}] op_sel:[0,1,0] op_sel_hi:[1,1,1]")
                else:
                    s0=64+(c*4)*4+k
                    p(f"v_lshlrev_b32 v{lo}, 16, v{s0}"); p(f"v_and_b32 v{hi}, 0xffff0000, v{s0}")
                    for src in (1,2,3): unpack(src); p(f"v_pk_add_f32 v[{lo}:{hi}], v[{lo}:{hi}], v[48:49]")
                    p(f"v_pk_mul_f32 v[{lo}:{hi}], v[{lo}:{hi}], v[12:13] op_sel_hi:[1,0]")
                    p(f"v_pk_fma_f32 v[{lo}:{hi}], {own}, v[10:11], v[{lo}:{hi}] op_sel:[0,1,0] op_sel_hi:[1,1,1]")
            o=52+4*(c%2)
            for k in range(4): p(f"v_cvt_pk_bf16_f32 v{o+k}, v{40+2*k}, v{41+2*k}")
            p(f"buffer_store_dwordx2 v[{o}:{o+1}], v6, s[8:11], s63 offen{OMOD}"); p(f"buffer_store_dwordx2 v[{o+2}:{o+3}], v6, s[8:11], s63 offen offset:{16 if P2S==32 else 32}{OMOD}")
        if variant==0: p("s_branch L_p2_end")
    if GMOVE:
        p("s_branch L_p2_end")
        p.label("L_gate")
        p("s_load_dwordx2 s[8:9], s[0:1], 0"); p("s_load_dwordx2 s[12:13], s[0:1], 64")
        p("v_and_b32 v1, 63, v0"); p("v_lshrrev_b32 v2, 3, v1"); p("v_and_b32 v3, 7, v1"); p("v_lshlrev_b32 v4, 4, v3")
        p("v_mul_u32_u24 v5, 0x480, v2"); p("v_add_u32 v5, v5, v4"); p("v_lshlrev_b32 v6, 2, v2")
        p(f"s_sub_u32 s47, s{S_JTILE}, 48"); p("s_lshl_b32 s47, s47, 4"); p(f"s_lshl_b32 s46, s{S_W}, 2"); p("s_add_u32 s47, s47, s46")
        p(f"s_add_u32 s16, s70, {G_OFF}"); p("s_addc_u32 s17, s71, 0"); p("s_mov_b32 s18, 8192"); p("s_mov_b32 s19, 0x20000")
        p("s_waitcnt lgkmcnt(0)")
        p(f"s_mov_b32 s10, {2048*1152}"); p("s_mov_b32 s11, 0x20000"); p("s_mov_b32 s14, 1152"); p("s_mov_b32 s15, 0x20000")
        for c in range(9): p(f"buffer_load_dwordx4 v[{16+4*c}:{19+4*c}], v4, s[12:15], 0 offen offset:{128*c}")
        for k in range(4):
            p(f"s_add_u32 s46, s47, {k}"); p(f"s_mul_i32 s46, s46, {8*1152}")
            for c in range(9): p(f"buffer_load_dwordx4 v[{64+36*k+4*c}:{67+36*k+4*c}], v5, s[8:11], s46 offen offset:{128*c}")
        p("s_waitcnt vmcnt(0)")
        for k in range(4):
            p("v_mov_b32 v8, 0"); p("v_mov_b32 v9, 0")
            for c in range(9):
                for r in range(4): p(f"v_dot2_f32_bf16 v{8+(r&1)}, v{64+36*k+4*c+r}, v{16+4*c+r}, v{8+(r&1)}")
            p("s_nop 3"); p("v_add_f32 v8, v8, v9")
            for m in (0x041F,0x081F,0x101F):
                p("s_nop 0"); p(f"ds_swizzle_b32 v9, v8 offset:0x{m:04X}"); p("s_waitcnt lgkmcnt(0)"); p("v_add_f32 v8, v8, v9")
            p(f"v_mul_f32 v8, 0x{f2u(-1.4426950408889634):08x}, v8"); p("v_exp_f32 v8, v8"); p("s_nop 0"); p("v_add_f32 v8, 1.0, v8"); p("v_rcp_f32 v8, v8")
            p(f"s_add_u32 s46, s47, {k}"); p("s_lshl_b32 s46, s46, 5")
            p("v_cmp_eq_u32 vcc, 0, v3"); p("s_and_saveexec_b64 s[22:23], vcc")
            p("buffer_store_dword v8, v6, s[16:19], s46 offen sc1")
            p("s_mov_b64 exec, s[22:23]")
        p("s_waitcnt vmcnt(0)"); p("s_barrier")
        p(f"s_mov_b32 s46, {272}")
        signal(p, 10, 46, "L_gate_sig")
    p.label("L_p2_end")
    if ST.ENABLE: p("s_waitcnt vmcnt(0)")
    ST.stamp(p,3)
    ST.flush2(p)
    p("s_endpgm")
    if docheck:
        ins=p.ins[i0:]
        a=iA-i0; b=iA2-i0
        tr=ins[:b]+ins[a:b]+ins[b:]
        print("p2 check problems:",len(check(tr,'p2')))
```

```python
import sys, os
from core import *
NAME="gated_mix__linear_kernel_hedgehog__geglu_ffn__prompt_kernel"
HDR=open('gated_mix__linear_kernel_hedgehog__geglu_ffn__prompt.s.ref').read().split('; Override launch')[0]
DOC=""";
;
"""
def build(path):
    import k1,k1_att,k1_gx
    if k1_gx.MERGE:
        k1.KNAME=NAME
        p1=k1.gen_k1(k1_att.gen_att)
        PADS=int(os.environ.get('PADS','0'))
        if PADS:
            import pads
            def expand(ins, tg):
                out=[]
                for i in ins:
                    if i.kind=='label' and i.text.startswith('L_TOUCH_'):
                        u=i.text[8:-1]; out+=pads.touch_code(u, 24, tg.get(u,[]))
                    else: out.append(i)
                return out
            base=expand(p1.ins,{})
            ni,pl=pads.insert_pads(base)
            pos={i.text[:-1]:k for k,i in enumerate(ni) if i.kind=='label' and i.text.endswith(':')}
            after=lambda lst,u: [n for n in lst if pos[n]>pos['L_tb'+u]]
            gx=[n for n,s_ in pl if s_ in('start','L_gx_loop')]; att=[n for n,s_ in pl if s_ in('L_att','L_att_loop')]; p2p=[n for n,s_ in pl if s_ in('L_p2','L_p2b','L_p2_loop','L_p2_lend')]
            skip=int(os.environ.get('PADSKIP','1'))
            tg={'gx':after(gx,'gx')[skip:], 'gx2':after(p2p,'gx2'), 'att':after(att,'att'), 'att2':after(p2p,'att2')}
            print('pads',pl)
            full=expand(p1.ins,tg)
            newins,pl2=pads.insert_pads(full)
            assert [n for n,_ in pl2]==[n for n,_ in pl], (pl,pl2)
            p1.ins=[Ins("s_branch L_start"),Ins(".p2align 12"),Ins("L_start:")]+newins
        else:
            p1.ins=[i for i in p1.ins if not (i.kind=='label' and i.text.startswith('L_TOUCH_'))]
        t=HDR+"; @launch grid=(256,1,1) block=(256,1,1) lds=163840\n"
        t+=DOC
        t+='.amdgcn_target "amdgcn-amd-amdhsa--gfx950"\n.text\n'
        t+=k1.kernel_text(NAME,p1.text())+"L_code_end:\n"
        t+='.section .rodata,"a"\n.p2align 6\n'+k1.desc(NAME)
    else:
        import k2
        p1=k1.gen_k1(k1_att.gen_att); p2=k2.gen_k2(); p3=k2.gen_k3()
        L=[("k1_kernel",256,163840),("k2_kernel",240,147456),("k3_kernel",192,0)]
        t=HDR
        for (n,g,l) in L: t+=f"; @launch kernel={n} grid=({g},1,1) block=(256,1,1) lds={l}\n"
        t+='.amdgcn_target "amdgcn-amd-amdhsa--gfx950"\n.text\n'
        t+=k1.kernel_text("k1_kernel",p1.text())+k1.kernel_text("k2_kernel",p2.text())+k1.kernel_text("k3_kernel",p3.text())+"L_code_end:\n"
        t+='.section .rodata,"a"\n.p2align 6\n'+k1.desc("k1_kernel")+'.p2align 6\n'+k1.desc("k2_kernel")+'.p2align 6\n'+k1.desc("k3_kernel",nv=104,ns=40,acc_off=104)
    t=t.replace(' lds nt\n',' nt lds\n')
    open(path,'w').write(t)
    print(path, len(t))
if __name__=="__main__":
    import stamp
    if "--stamp" in sys.argv: stamp.ENABLE=True; sys.argv.remove("--stamp")
    build(sys.argv[1] if len(sys.argv)>1 else 'out.s')
```

```python
from core import *
import stamp as ST
from k1_gx import NKS_TOT, H_BYTES, f2u, GSHAPE
import os
GMOVE=int(os.environ.get('GMOVE','1'))
G_OFF=0x1500000; P_OFF=0x1600000
U=12; STG=12288; D=int(os.environ.get('P2D','4')); B2=int(os.environ.get('P2B2','0'))
HMOD=os.environ.get('HMOD',' sc1')
OMOD=os.environ.get('OMOD','')
SLEEP2=int(os.environ.get('SLEEP2','2'))
SLEEP=int(os.environ.get('SLEEP','6'))
ACC=64
P2S=int(os.environ.get('P2S','16'))
NOJUNK=int(os.environ.get('NOJUNK','1'))
LG3=int(os.environ.get('LG3','0'))
RL=6
assert not B2 or D+2<=RL or True
def acc(q,r=None):
    b=ACC+q*16
    return f"v[{b}:{b+15}]" if r is None else f"v{b+r}"
def acc16(q,tt,r=None):
    b=ACC+(q*2+tt)*4
    return f"v[{b}:{b+3}]" if r is None else f"v{b+r}"
def hfr(u,b_): b=(u*2+b_)*4; return f"a[{b}:{b+3}]"
def afr(q): b=96+4*q; return f"a[{b}:{b+3}]"
def afh(q,h): b=96+4*q+2*h; return f"a[{b}:{b+1}]"
MF="v_mfma_f32_32x32x16_bf16"
V_TR=8; V_HL=12; V_DL=14; V_DF=17; V_L16=20; V_LT=7
S_H=16; S_P=20; S_CUR=24
S_W=93; S_WB=29; S_DSO=30; S_INA=31; S_INB=32; S_HS0=33; S_HS1=34; S_RND=35; S_NR=36; S_XA=37; S_XF=67; S_XS=66
WI={'e':31,'a':32,'b':46,'c':47}; HI={'e':52,'a':53,'b':54,'c':55}
S_JT=90
S_JO=91
S_JTILE=92
S_JW=93
CNT_OFF=0x15C0000
HC0=8; OC0=40; HE0=48; TW0=80; GC0=272; NLINES=273

def trread(i,h,stage):
    so=(stage%RL)*STG
    if P2S==16:
        x=Ins(f"ds_read_b64_tr_b16 {afh(i,h)}, v{V_TR+(i&3)} offset:{so+(i>>2)*128+h*1536}"); x.cost=1
        return x
    b_,q=i//6,i%6
    sl=stage%RL; grp=sl//3; so=(sl%3)*STG
    return Ins(f"ds_read_b64_tr_b16 {afh(i,h)}, v{V_TR+2*grp+(q&1)} offset:{so+(q&~1)*64+b_*6144+h*1536}")
def cls(v):
    v%=12
    return 'e' if v%2==0 else ('c' if v==11 else ('b' if v%4==3 else 'a'))
def issue_h(idx):
    u_dst=idx%U
    va,o1=(V_HL,256) if P2S==16 else (V_L16,1024)
    return [Ins(f"buffer_load_dwordx4 {hfr(u_dst,0)}, v{va}, s[{S_H}:{S_H+3}], s{S_HS0} offen{HMOD}"),
            Ins(f"buffer_load_dwordx4 {hfr(u_dst,1)}, v{va}, s[{S_H}:{S_H+3}], s{S_HS0} offen offset:{o1}{HMOD}"),
            Ins(f"s_add_u32 s{S_HS0}, s{S_HS0}, s{HI[cls(idx)]}")]
def issue_w(idx):
    u_dst=idx%U
    o=[Ins(f"s_add_u32 m0, s{S_WB}, {(u_dst%RL)*STG}"), Ins("s_nop 0")]
    for e in range(3):
        o.append(Ins(f"buffer_load_dwordx4 v{V_DF+e}, s[{S_CUR}:{S_CUR+3}], s{S_DSO} offen offset:{1024*e} lds"))
    o.append(Ins(f"s_add_u32 s{S_DSO}, s{S_DSO}, s{WI[cls(idx)]}"))
    return o
def items2(lst):
    items=[]; pend=[]
    for x in lst:
        if x.kind=='nop': continue
        if x.kind in('dma','vmem'):
            if pend: items.append(pend); pend=[]
            items.append([x])
        else: pend.append(x)
    if pend: items.append(pend)
    return items
def step(u):
    if B2:
        main=[Ins(f"s_waitcnt vmcnt({5*(D-3)})"),Ins("s_barrier")] if u%2==0 else [Ins("s_nop 0"),Ins("s_nop 0")]
    else:
        main=[Ins(f"s_waitcnt vmcnt({5*(D-2)})"),Ins("s_barrier")]
    un=(u+1)%U
    for i in range(12):
        if LG3:
            if i%3==0: main.append(Ins("s_waitcnt lgkmcnt(6)"))
        elif i%2==0: main.append(Ins("s_waitcnt lgkmcnt(8)"))
        n=i+6
        rd=[trread(n,h,u) for h in range(2)] if n<12 else [trread(n-12,h,un) for h in range(2)]
        if P2S==16:
            for tt in range(2):
                main.append(Ins(f"v_mfma_f32_16x16x32_bf16 {acc16(i,tt)}, {afr(i)}, {hfr(u,tt)}, {acc16(i,tt)}")); main.append(rd[tt])
        else:
            b_,q=i//6,i%6
            main.append(Ins(f"{MF} {acc(q)}, {afr(i)}, {hfr(u,b_)}, {acc(q)}"))
            main+=rd
    fl=issue_h(u+D)+issue_w(u+D)
    if u==(24-D-12)-4: fl=[Ins("global_load_dword v27, v7, s[64:65] sc1")]+fl
    res=spread(main, items2(fl), first=0 if P2S==32 else 2, last=11 if P2S==32 else 22)
    if u==(16-D)%12:
        sw=[Ins(f"s_cmp_eq_u32 s{S_RND}, s{S_XS}"), Ins("s_cbranch_scc0 L_p2_nosw")]
        sw+=[Ins(f"v_mov_b32 v{V_DF+e}, v{V_DL+e}") for e in range(3)]
        sw+=[Ins(f"s_mov_b32 s{S_DSO}, 0")]+[Ins(f"s_mov_b32 s{WI[k]}, {288*1152}") for k in 'ebc']
        sw+=[Ins(f"s_mov_b32 s{WI['a']}, {0x40000000 if NOJUNK else 288*1152}")]+([Ins(f"s_mov_b32 s{HI['a']}, 0x40000000")] if NOJUNK else [])+[Ins("L_p2_nosw:"),Ins("s_nop 0")]
        res=res[:2]+sw+res[2:]
    if u==(8 if D==4 else 24-D-12):
        sw=[Ins(f"s_cmp_eq_u32 s{S_RND}, s{S_XF}"), Ins("s_cbranch_scc0 L_p2_nolate")]
        sw+=[Ins(f"s_mov_b32 s{WI['a']}, {5*32*1152}"), Ins(f"s_mov_b32 s{WI['b']}, {5*32*1152}"), Ins(f"s_mov_b32 s{HI['a']}, {5*2048}"), Ins(f"s_mov_b32 s{HI['b']}, {5*2048}")]
        if NOJUNK: sw+=[Ins(f"s_mov_b32 s{WI['c']}, 0x40000000"), Ins(f"s_mov_b32 s{HI['c']}, 0x40000000")]
        sw+=[Ins("v_readfirstlane_b32 s38, v27"), Ins("s_mov_b32 s39, 0"), Ins("L_p2_late:"), Ins("s_cmp_ge_u32 s38, 6"), Ins("s_cbranch_scc1 L_p2_nolate"),
             Ins("s_add_u32 s39, s39, 1"), Ins("s_cmp_gt_u32 s39, 200000"), Ins("s_cbranch_scc1 L_p2_nolate"), Ins(f"s_sleep {SLEEP}"),
             Ins("global_load_dword v27, v7, s[64:65] sc1"), Ins("s_waitcnt vmcnt(0)"), Ins("v_readfirstlane_b32 s38, v27"), Ins("s_branch L_p2_late"),
             Ins("L_p2_nolate:"), Ins("s_nop 0")]
        res=res[:2]+sw+res[2:]
    if u==5:
        res+=[Ins(f"s_cmp_eq_u32 s{S_RND}, s{S_XA}"), Ins("s_cbranch_scc1 L_p2_lend")]
    if u==11:
        res+=[Ins(f"s_add_u32 s{WI['c']}, s{WI['c']}, s60"), Ins(f"s_add_u32 s{HI['c']}, s{HI['c']}, s61")]
    return res

def cnt_base(p):
    p(f"s_add_u32 s64, s70, {CNT_OFF}"); p("s_addc_u32 s65, s71, 0")
def poll(p, idx_s, target, lab, wreg=S_JW, early=None):
    p(f"s_cmp_eq_u32 s{wreg}, 0"); p(f"s_cbranch_scc0 {lab}_ok")
    if early:
        p(f"v_readfirstlane_b32 s38, {early}"); p("s_nop 1"); p(f"s_cmp_ge_u32 s38, {target}"); p(f"s_cbranch_scc1 {lab}_ok")
    p(f"s_lshl_b32 s38, s{idx_s}, 7"); p("v_mov_b32 v2, s38")
    p("s_mov_b32 s39, 0")
    p.label(lab)
    p(f"global_load_dword v3, v2, s[64:65] sc1"); p("s_waitcnt vmcnt(0)")
    p("v_readfirstlane_b32 s38, v3"); p("s_add_u32 s39, s39, 1")
    p(f"s_cmp_ge_u32 s38, {target}"); p(f"s_cbranch_scc1 {lab}_ok")
    p("s_cmp_gt_u32 s39, 200000"); p(f"s_cbranch_scc1 {lab}_ok")
    p(f"s_sleep {SLEEP}"); p(f"s_branch {lab}")
    p.label(lab+"_ok")
    p("s_barrier")
def signal(p, vtmp, idx_s, lab, wreg=S_JW):
    p(f"s_cmp_eq_u32 s{wreg}, 0"); p(f"s_cbranch_scc0 {lab}")
    p(f"s_lshl_b32 s38, s{idx_s}, 7"); p(f"v_mov_b32 v{vtmp}, s38"); p(f"v_mov_b32 v{vtmp+1}, 1")
    p("v_cmp_eq_u32 vcc, 0, v0"); p("s_and_saveexec_b64 s[48:49], vcc")
    p(f"global_atomic_add v{vtmp}, v{vtmp+1}, s[64:65] sc1")
    p("s_mov_b64 exec, s[48:49]")
    p.label(lab)
def zero_ready(p, lab, wreg, vt=2, early=None, inval=None):
    p(f"s_cmp_eq_u32 s{wreg}, 0"); p(f"s_cbranch_scc0 {lab}_ok")
    if early:
        p(f"v_readfirstlane_b32 s38, {early}"); p("s_nop 1"); p(f"s_cmp_ge_u32 s38, {NLINES}"); p(f"s_cbranch_scc1 {lab}_ok")
        if inval: p(f"v_mov_b32 {inval}, 0")
    p(f"v_mov_b32 v{vt}, 0"); p("s_mov_b32 s39, 0")
    p.label(lab)
    p(f"global_load_dword v{vt+1}, v{vt}, s[68:69] sc1"); p("s_waitcnt vmcnt(0)")
    p(f"v_readfirstlane_b32 s38, v{vt+1}"); p("s_add_u32 s39, s39, 1")
    p(f"s_cmp_ge_u32 s38, {NLINES}"); p(f"s_cbranch_scc1 {lab}_ok")
    p("s_cmp_gt_u32 s39, 200000"); p(f"s_cbranch_scc1 {lab}_ok")
    p(f"s_sleep {SLEEP}"); p(f"s_branch {lab}")
    p.label(lab+"_ok")

def p2_setup(p, early=True, ffn_only=False):
    cnt_base(p)
    if early:
        p("v_mov_b32 v28, 0"); p("global_load_dword v29, v28, s[68:69] sc1")
        p("s_lshl_b32 s38, s96, 7"); p("v_mov_b32 v24, s38"); p("global_load_dword v25, v24, s[64:65] sc1")
    p("s_load_dwordx2 s[40:41], s[0:1], 24")
    p("s_load_dwordx2 s[42:43], s[0:1], 56")
    p("s_load_dwordx2 s[44:45], s[0:1], 72")
    p(f"s_mul_i32 s5, s{S_JTILE}, 171"); p("s_lshr_b32 s5, s5, 9")
    p("s_mul_i32 s6, s5, 3"); p(f"s_sub_u32 s6, s{S_JTILE}, s6")
    p("v_and_b32 v1, 63, v0"); p(f"v_lshlrev_b32 v{V_L16}, 4, v1")
    p(f"s_mul_i32 s48, s{S_W}, 192")
    p(f"s_cmp_eq_u32 s{S_JT}, 1"); p("s_cselect_b64 s[50:51], -1, 0")
    for e in range(3):
        p(f"v_add_u32 v4, s48, v1")
        if e: p(f"v_add_u32 v4, {64*e}, v4")
        p("v_mul_u32_u24 v5, 0xaab, v4"); p("v_lshrrev_b32 v5, 16, v5")
        p("v_mul_u32_u24 v6, 24, v5"); p("v_sub_u32 v6, v4, v6")
        if P2S==32:
            p("v_bfe_u32 v7, v5, 1, 1"); p("v_lshrrev_b32 v4, 2, v6"); p("v_xor_b32 v4, v4, v7"); p("v_lshlrev_b32 v4, 6, v4")
            p("v_and_b32 v6, 3, v6"); p("v_lshlrev_b32 v6, 4, v6")
        else:
            p("v_bfe_u32 v7, v5, 1, 1"); p("v_bfe_u32 v4, v5, 3, 1"); p("v_lshlrev_b32 v4, 1, v4"); p("v_or_b32 v7, v7, v4")
            p("v_lshrrev_b32 v4, 1, v6"); p("v_xor_b32 v4, v4, v7"); p("v_lshlrev_b32 v4, 5, v4")
            p("v_and_b32 v6, 1, v6"); p("v_lshlrev_b32 v6, 4, v6")
        p(f"v_add3_u32 v4, v4, v6, 0"); p(f"v_add_u32 v31, {4096-1024*e}, v4")
        if GSHAPE==32:
            p("v_and_b32 v6, 16, v5"); p("v_bfe_u32 v7, v5, 3, 1"); p("v_lshl_add_u32 v6, v7, 2, v6")
            p("v_and_b32 v7, 3, v5"); p("v_add_u32 v6, v6, v7"); p("v_bfe_u32 v7, v5, 2, 1"); p("v_lshl_add_u32 v6, v7, 3, v6")
        else:
            p("v_bfe_u32 v6, v5, 2, 1"); p("v_lshlrev_b32 v6, 4, v6"); p("v_lshrrev_b32 v7, 3, v5"); p("v_lshl_add_u32 v6, v7, 2, v6")
            p("v_and_b32 v7, 3, v5"); p("v_add_u32 v6, v6, v7")
        if not ffn_only:
            p("v_lshrrev_b32 v7, 3, v5"); p("v_mul_u32_u24 v7, 18, v7"); p("v_and_b32 v30, 7, v5"); p("v_add_u32 v7, v7, v30")
            p("v_cndmask_b32 v6, v6, v7, s[50:51]")
        p("v_mul_u32_u24 v6, 0x480, v6"); p(f"v_add_u32 v{V_DF+e}, v6, v31")
        if not ffn_only:
            p("v_bfe_u32 v6, v5, 1, 2"); p("v_mul_u32_u24 v6, 72, v6"); p("v_lshrrev_b32 v7, 3, v5"); p("v_mul_u32_u24 v7, 18, v7"); p("v_add_u32 v6, v6, v7")
            p("v_and_b32 v7, 1, v5"); p("v_add3_u32 v6, v6, v7, 16"); p("v_mul_u32_u24 v6, 0x480, v6"); p(f"v_add_u32 v{V_DL+e}, v6, v31")
    p("v_lshrrev_b32 v2, 4, v1"); p("v_and_b32 v3, 15, v1")
    p("v_lshrrev_b32 v4, 2, v3"); p("v_and_b32 v5, 3, v3")
    if P2S==32:
        p("v_lshrrev_b32 v6, 1, v2"); p("v_lshlrev_b32 v6, 3, v6"); p("v_add_u32 v6, v6, v4"); p("v_mul_u32_u24 v6, 0x180, v6")
        p("v_lshlrev_b32 v5, 3, v5"); p("v_add_u32 v6, v6, v5"); p("v_and_b32 v5, 1, v2"); p("v_lshl_add_u32 v6, v5, 5, v6")
        p("v_lshrrev_b32 v4, 1, v4")
        for k in range(2):
            p(f"v_xor_b32 v5, {k}, v4"); p("v_lshlrev_b32 v5, 6, v5"); p(f"v_add_u32 v{V_TR+k}, v5, v6"); p(f"v_add_u32 v{V_TR+2+k}, {3*STG}, v{V_TR+k}")
    else:
        p("v_lshlrev_b32 v6, 3, v2"); p("v_add_u32 v6, v6, v4"); p("v_mul_u32_u24 v6, 0x180, v6")
        p("v_lshlrev_b32 v5, 3, v5"); p("v_add_u32 v6, v6, v5")
        p("v_lshrrev_b32 v4, 1, v4"); p("v_and_b32 v5, 1, v2"); p("v_lshlrev_b32 v5, 1, v5"); p("v_or_b32 v4, v4, v5")
        for k in range(4):
            p(f"v_xor_b32 v5, {k}, v4"); p("v_lshlrev_b32 v5, 5, v5"); p(f"v_add_u32 v{V_TR+k}, v5, v6")
        p("v_lshrrev_b32 v4, 1, v2"); p("v_lshlrev_b32 v4, 10, v4"); p("v_and_b32 v5, 1, v2"); p("v_lshlrev_b32 v5, 9, v5"); p("v_lshlrev_b32 v6, 4, v3")
        p(f"v_add3_u32 v{V_HL}, v4, v5, v6")
    p("s_waitcnt lgkmcnt(0)")
    p(f"s_cmp_eq_u32 s{S_JT}, 1")
    R=32*1152
    p("s_cselect_b32 s4, s40, s42"); p("s_cselect_b32 s7, s41, s43")
    p(f"s_mov_b32 s62, {4608*1152+4096}"); p(f"s_cselect_b32 s62, {576*1152+4096}, s62")
    for k,(fv,av) in {'e':(1,8),'a':(1,64),'b':(3,64),'c':(3,64)}.items():
        p(f"s_mov_b32 s{WI[k]}, {fv*R}"); p(f"s_cselect_b32 s{WI[k]}, {av*1152}, s{WI[k]}")
    for k,fv in {'e':1,'a':1,'b':3,'c':3}.items():
        p(f"s_mov_b32 s{HI[k]}, {fv*2048}"); p(f"s_cselect_b32 s{HI[k]}, 2048, s{HI[k]}")
    p(f"s_mov_b32 s60, {(-32*R)&0xffffffff}"); p("s_cselect_b32 s60, 0, s60"); p(f"s_mov_b32 s61, {(-32*2048)&0xffffffff}"); p("s_cselect_b32 s61, 0, s61")
    p(f"s_mov_b32 s{S_NR}, 3"); p(f"s_cselect_b32 s{S_XA}, 1, 99"); p(f"s_cselect_b32 s{S_XF}, 99, 1"); p(f"s_cselect_b32 s{S_XS}, {(16-D)//12}, 99")
    p(f"s_mul_i32 s63, s{S_JO}, 36"); p(f"s_cselect_b32 s63, 144, s63")
    p(f"s_mul_i32 s56, s63, {R}"); p(f"s_cselect_b32 s{S_DSO}, 0, s56")
    p("s_mul_i32 s57, s6, 384")
    p(f"s_add_u32 s{S_CUR}, s4, s57"); p(f"s_addc_u32 s{S_CUR+1}, s7, 0"); p(f"s_sub_u32 s{S_CUR}, s{S_CUR}, 4096"); p(f"s_subb_u32 s{S_CUR+1}, s{S_CUR+1}, 0")
    p(f"s_sub_u32 s{S_CUR+2}, s62, s57"); p(f"s_mov_b32 s{S_CUR+3}, 0x20000")
    p(f"s_mov_b32 s{S_H}, s70"); p(f"s_mov_b32 s{S_H+1}, s71"); p(f"s_mov_b32 s{S_H+2}, {H_BYTES}"); p(f"s_mov_b32 s{S_H+3}, 0x20000")
    p("s_lshl_b32 s57, s5, 2"); p(f"s_add_u32 s57, s57, s{S_W}")
    p(f"s_mul_i32 s48, s57, {NKS_TOT}"); p("s_add_u32 s48, s48, s63"); p(f"s_lshl_b32 s{S_HS0}, s48, 11")
    p(f"s_mul_i32 s{S_WB}, s{S_W}, 3072")

def p2_first_loads(p, uniq):
    poll(p, 96, "s97", f"L_p2_poll1{uniq}", early="v25")
    p("s_lshl_b32 s38, s95, 7"); p(f"v_mov_b32 v{V_LT}, s38")
    for i in range(D): p.add(issue_h(i))
    for r in range(ACC,ACC+96): p(f"v_mov_b32 v{r}, 0")

def gen_p2a_ffn(p):
    p("v_mov_b32 v25, v49")
    p2_setup(p, early=False, ffn_only=True)
    for i in range(D): p.add(issue_w(i))
    p2_first_loads(p, "f")

def gen_p2(p, docheck=True):
    i0=len(p.ins)
    p.label("L_p2")
    p2_setup(p)
    p("s_waitcnt vmcnt(0)"); p("s_barrier")
    zero_ready(p, "L_p2_zr", S_JW, early="v29", inval="v25")
    signal(p, 4, 94, "L_p2_sig1")
    ST.stamp(p,7)
    p(f"s_cmp_ge_u32 s{S_JTILE}, 48"); p("s_cbranch_scc1 "+("L_gate" if GMOVE else "L_p2_end"))
    for i in range(D): p.add(issue_w(i))
    p2_first_loads(p, "")
    p(f"s_waitcnt vmcnt({2*(D-2)})" if not B2 else f"s_waitcnt vmcnt({min(4,2*(D-3))})"); p("s_barrier")
    p("s_branch L_p2c")
    p.label("L_p2b")
    p("s_waitcnt vmcnt(0)"); p("s_barrier")
    signal(p, 4, 94, "L_p2_sig1b")
    ST.stamp(p,7)
    p.label("L_p2c")
    ST.stamp(p,8)
    for q in range(6):
        for h in range(2): p.add([trread(q,h,0)])
    p(f"s_mov_b32 s{S_RND}, 0")
    iA=len(p.ins)
    p.label("L_p2_loop")
    for u in range(U): p.add(step(u))
    p(f"s_add_u32 s{S_RND}, s{S_RND}, 1"); p(f"s_cmp_lt_u32 s{S_RND}, s{S_NR}"); p("s_cbranch_scc1 L_p2_loop")
    iA2=len(p.ins)
    p.label("L_p2_lend")
    p("s_waitcnt lgkmcnt(0)" if NOJUNK else "s_waitcnt vmcnt(0) lgkmcnt(0)")
    ST.stamp(p,9)
    p(f"s_mul_i32 s47, s{S_JTILE}, 5"); p(f"s_add_u32 s47, s47, s{S_JO}"); p("s_lshl_b32 s47, s47, 2"); p(f"s_add_u32 s47, s47, s{S_W}"); p("s_mul_i32 s47, s47, 12288")
    p(f"s_add_u32 s{S_P}, s70, {P_OFF}"); p(f"s_addc_u32 s{S_P+1}, s71, 0"); p(f"s_mov_b32 s{S_P+2}, {240*4*12288}"); p(f"s_mov_b32 s{S_P+3}, 0x20000")
    p("s_nop 7")
    if GMOVE: p(f"v_mov_b32 v21, {272*128}"); p("global_load_dword v22, v21, s[64:65] sc1")
    OWN=200
    for i in range(12):
        q,e=i//2,i%2
        t=32+4*(i%4)
        p(f"s_cmp_eq_u32 s{S_JO}, {i%5}"); p(f"s_cbranch_scc1 L_p3_own{i}")
        def cr(k):
            if P2S==32: return acc(q,8*e+k)
            tt,pp=i//6,i%6
            return acc16(2*pp+k//4,tt,k%4)
        for k in range(4): p(f"v_cvt_pk_bf16_f32 v{t+k}, {cr(2*k)}, {cr(2*k+1)}")
        off=i*1024
        p(f"s_add_u32 s56, s47, {off - off%4096}")
        p(f"buffer_store_dwordx4 v[{t}:{t+3}], v{V_L16}, s[{S_P}:{S_P+3}], s56 offen offset:{off%4096} sc1")
        p(f"s_branch L_p3_nx{i}")
        p.label(f"L_p3_own{i}")
        for k in range(8): p(f"v_mov_b32 v{OWN+8*(i//5)+k}, {cr(k)}")
        p.label(f"L_p3_nx{i}")
    p(f"s_lshl_b32 s57, s{S_JTILE}, 2"); p(f"s_add_u32 s57, s57, s{S_W}"); p(f"s_add_u32 s57, s57, {TW0}")
    if P2S==32: p("v_and_b32 v4, 31, v1"); p("v_lshrrev_b32 v5, 5, v1")
    else: p("v_and_b32 v4, 15, v1"); p("v_lshrrev_b32 v5, 4, v1")
    p("s_lshl_b32 s60, s5, 7"); p(f"s_lshl_b32 s61, s{S_W}, 5"); p("s_add_u32 s60, s60, s61")
    p("v_add_u32 v6, s60, v4")
    p("v_lshlrev_b32 v7, 2, v6")
    p("v_mul_u32_u24 v6, 0x480, v6"); p("v_lshlrev_b32 v5, 3, v5"); p("v_add_u32 v6, v6, v5")
    p("s_mov_b32 s8, s44"); p("s_mov_b32 s9, s45"); p(f"s_mov_b32 s10, {2048*1152}"); p("s_mov_b32 s11, 0x20000")
    p(f"s_add_u32 s12, s70, {G_OFF}"); p("s_addc_u32 s13, s71, 0"); p("s_mov_b32 s14, 8192"); p("s_mov_b32 s15, 0x20000")
    p(f"s_mul_i32 s62, s{S_JTILE}, {5*4*12288}"); p(f"s_mul_i32 s63, s{S_W}, 12288"); p("s_add_u32 s62, s62, s63")
    p("s_lshl_b32 s38, s57, 7"); p("v_mov_b32 v2, s38"); p(f"s_lshl_b32 s38, 1, s{S_JO}"); p("v_mov_b32 v8, s38")
    p("s_waitcnt vmcnt(0)")
    if GMOVE:
        p("s_mov_b32 s39, 0")
        p.label("L_p3_gc")
        p("v_readfirstlane_b32 s38, v22"); p("s_add_u32 s39, s39, 1"); p("s_cmp_ge_u32 s38, 16"); p("s_cbranch_scc1 L_p3_gcok")
        p("s_cmp_gt_u32 s39, 200000"); p("s_cbranch_scc1 L_p3_gcok")
        p(f"s_sleep {SLEEP}"); p("global_load_dword v22, v21, s[64:65] sc1"); p("s_waitcnt vmcnt(0)"); p("s_branch L_p3_gc")
        p.label("L_p3_gcok")
    ST.stamp(p,1)
    if GMOVE:
        p(f"buffer_load_dword v11, v7, s[12:15], 0 offen sc1")
        if P2S==16: p(f"buffer_load_dword v13, v7, s[12:15], 0 offen offset:64 sc1")
    p("v_cmp_eq_u32 vcc, 0, v1"); p("s_and_saveexec_b64 s[48:49], vcc")
    p("global_atomic_add v2, v8, s[64:65] sc1")
    p("s_mov_b64 exec, s[48:49]")
    for k in range(4):
        p(f"s_add_u32 s38, s{S_JO}, {k+1}"); p("s_and_b32 s38, s38, 3")
        if k==3: p("s_mov_b32 s38, 4")
        p(f"s_cmp_eq_u32 s{S_JO}, 4"); p(f"s_cselect_b32 s38, {k}, s38"); p(f"s_mul_i32 s{52+k}, s38, {4*12288}"); p(f"s_lshl_b32 s{16+k}, 1, s38")
    p(f"s_lshl_b32 s63, s{S_JO}, 10"); p("s_add_u32 s63, s63, s62")
    p("s_mov_b32 s39, 0"); p("s_mov_b32 s46, 0")
    p.label("L_p2_poll2")
    p("global_load_dword v3, v2, s[64:65] sc1"); p("s_waitcnt vmcnt(0)")
    p("v_readfirstlane_b32 s38, v3"); p("s_add_u32 s39, s39, 1")
    p("s_cmp_gt_u32 s39, 200000"); p("s_cselect_b32 s38, 31, s38")
    p("s_andn2_b32 s38, s38, s46")
    for k in range(4):
        p(f"s_and_b32 s47, s38, s{16+k}"); p(f"s_cbranch_scc0 L_p3_s{k}")
        p(f"s_or_b32 s46, s46, s{16+k}"); p(f"s_add_u32 s47, s63, s{52+k}")
        for c in range(3):
            if c==2: p(f"s_cmp_gt_u32 s{S_JO}, 1"); p(f"s_cbranch_scc1 L_p3_s{k}")
            b=64+(c*4+k)*4
            p(f"buffer_load_dwordx4 v[{b}:{b+3}], v{V_L16}, s[{S_P}:{S_P+3}], s47 offen sc1")
            if c<2: p(f"s_add_u32 s47, s47, 5120")
        p.label(f"L_p3_s{k}")
    p(f"s_lshl_b32 s47, 1, s{S_JO}"); p("s_or_b32 s47, s47, s46"); p("s_cmp_eq_u32 s47, 31"); p("s_cbranch_scc1 L_p2_poll2_ok")
    p(f"s_sleep {SLEEP2}"); p("s_branch L_p2_poll2")
    p.label("L_p2_poll2_ok")
    ST.stamp(p,2)
    if not GMOVE:
        p(f"buffer_load_dword v11, v7, s[12:15], 0 offen sc1")
        if P2S==16: p(f"buffer_load_dword v13, v7, s[12:15], 0 offen offset:64 sc1")
    p.label("L_p3_ld2")
    p("s_waitcnt vmcnt(0)")
    if P2S==32: p("v_sub_f32 v12, 1.0, v11")
    else: p("v_mov_b32 v14, v11")
    p(f"s_cmp_eq_u32 s{S_JO}, 4"); p("s_cbranch_scc1 L_p3_att")
    for variant in range(2):
        if variant==1: p.label("L_p3_att")
        for c in range(3):
            if c==2: p(f"s_cmp_gt_u32 s{S_JO}, 1"); p("s_cbranch_scc1 L_p2_end")
            if variant==1 and c==2: break
            if P2S==32:
                p(f"s_add_u32 s63, s{S_JO}, {5*c}"); p("s_lshl_b32 s63, s63, 5"); p("s_mul_i32 s56, s6, 384"); p("s_add_u32 s63, s63, s56")
            else:
                p(f"s_add_u32 s63, s{S_JO}, {5*c}"); p("s_cmp_ge_u32 s63, 6"); p("s_cselect_b32 s56, 6, 0"); p("s_cselect_b64 s[50:51], -1, 0"); p(f"s_cselect_b32 s57, {16*1152}, 0")
                p("s_sub_u32 s63, s63, s56"); p("s_lshl_b32 s63, s63, 6"); p("s_mul_i32 s56, s6, 384"); p("s_add_u32 s63, s63, s56"); p("s_add_u32 s63, s63, s57")
                p("v_cndmask_b32 v11, v14, v13, s[50:51]"); p("v_sub_f32 v12, 1.0, v11")
            for k in range(4):
                lo=40+2*k; hi=41+2*k; own=f"v[{OWN+8*c+2*k}:{OWN+8*c+2*k+1}]"
                def unpack(src):
                    s_=64+(c*4+src)*4+k
                    p(f"v_lshlrev_b32 v48, 16, v{s_}"); p(f"v_and_b32 v49, 0xffff0000, v{s_}")
                if variant==0:
                    unpack(0); p(f"v_pk_add_f32 v[{lo}:{hi}], {own}, v[48:49]")
                    for src in (1,2): unpack(src); p(f"v_pk_add_f32 v[{lo}:{hi}], v[{lo}:{hi}], v[48:49]")
                    unpack(3)
                    p(f"v_pk_mul_f32 v[{lo}:{hi}], v[{lo}:{hi}], v[12:13] op_sel_hi:[1,0]")
                    p(f"v_pk_fma_f32 v[{lo}:{hi}], v[48:49], v[10:11], v[{lo}:{hi}] op_sel:[0,1,0] op_sel_hi:[1,1,1]")
                else:
                    s0=64+(c*4)*4+k
                    p(f"v_lshlrev_b32 v{lo}, 16, v{s0}"); p(f"v_and_b32 v{hi}, 0xffff0000, v{s0}")
                    for src in (1,2,3): unpack(src); p(f"v_pk_add_f32 v[{lo}:{hi}], v[{lo}:{hi}], v[48:49]")
                    p(f"v_pk_mul_f32 v[{lo}:{hi}], v[{lo}:{hi}], v[12:13] op_sel_hi:[1,0]")
                    p(f"v_pk_fma_f32 v[{lo}:{hi}], {own}, v[10:11], v[{lo}:{hi}] op_sel:[0,1,0] op_sel_hi:[1,1,1]")
            o=52+4*(c%2)
            for k in range(4): p(f"v_cvt_pk_bf16_f32 v{o+k}, v{40+2*k}, v{41+2*k}")
            p(f"buffer_store_dwordx2 v[{o}:{o+1}], v6, s[8:11], s63 offen{OMOD}"); p(f"buffer_store_dwordx2 v[{o+2}:{o+3}], v6, s[8:11], s63 offen offset:{16 if P2S==32 else 32}{OMOD}")
        if variant==0: p("s_branch L_p2_end")
    if GMOVE:
        p("s_branch L_p2_end")
        p.label("L_gate")
        p("s_load_dwordx2 s[8:9], s[0:1], 0"); p("s_load_dwordx2 s[12:13], s[0:1], 64")
        p("v_and_b32 v1, 63, v0"); p("v_lshrrev_b32 v2, 3, v1"); p("v_and_b32 v3, 7, v1"); p("v_lshlrev_b32 v4, 4, v3")
        p("v_mul_u32_u24 v5, 0x480, v2"); p("v_add_u32 v5, v5, v4"); p("v_lshlrev_b32 v6, 2, v2")
        p(f"s_sub_u32 s47, s{S_JTILE}, 48"); p("s_lshl_b32 s47, s47, 4"); p(f"s_lshl_b32 s46, s{S_W}, 2"); p("s_add_u32 s47, s47, s46")
        p(f"s_add_u32 s16, s70, {G_OFF}"); p("s_addc_u32 s17, s71, 0"); p("s_mov_b32 s18, 8192"); p("s_mov_b32 s19, 0x20000")
        p("s_waitcnt lgkmcnt(0)")
        p(f"s_mov_b32 s10, {2048*1152}"); p("s_mov_b32 s11, 0x20000"); p("s_mov_b32 s14, 1152"); p("s_mov_b32 s15, 0x20000")
        for c in range(9): p(f"buffer_load_dwordx4 v[{16+4*c}:{19+4*c}], v4, s[12:15], 0 offen offset:{128*c}")
        for k in range(4):
            p(f"s_add_u32 s46, s47, {k}"); p(f"s_mul_i32 s46, s46, {8*1152}")
            for c in range(9): p(f"buffer_load_dwordx4 v[{64+36*k+4*c}:{67+36*k+4*c}], v5, s[8:11], s46 offen offset:{128*c}")
        p("s_waitcnt vmcnt(0)")
        for k in range(4):
            p("v_mov_b32 v8, 0"); p("v_mov_b32 v9, 0")
            for c in range(9):
                for r in range(4): p(f"v_dot2_f32_bf16 v{8+(r&1)}, v{64+36*k+4*c+r}, v{16+4*c+r}, v{8+(r&1)}")
            p("s_nop 3"); p("v_add_f32 v8, v8, v9")
            for m in (0x041F,0x081F,0x101F):
                p("s_nop 0"); p(f"ds_swizzle_b32 v9, v8 offset:0x{m:04X}"); p("s_waitcnt lgkmcnt(0)"); p("v_add_f32 v8, v8, v9")
            p(f"v_mul_f32 v8, 0x{f2u(-1.4426950408889634):08x}, v8"); p("v_exp_f32 v8, v8"); p("s_nop 0"); p("v_add_f32 v8, 1.0, v8"); p("v_rcp_f32 v8, v8")
            p(f"s_add_u32 s46, s47, {k}"); p("s_lshl_b32 s46, s46, 5")
            p("v_cmp_eq_u32 vcc, 0, v3"); p("s_and_saveexec_b64 s[22:23], vcc")
            p("buffer_store_dword v8, v6, s[16:19], s46 offen sc1")
            p("s_mov_b64 exec, s[22:23]")
        p("s_waitcnt vmcnt(0)"); p("s_barrier")
        p(f"s_mov_b32 s46, {272}")
        signal(p, 10, 46, "L_gate_sig")
    p.label("L_p2_end")
    if ST.ENABLE: p("s_waitcnt vmcnt(0)")
    ST.stamp(p,3)
    ST.flush2(p)
    p("s_endpgm")
    if docheck:
        ins=p.ins[i0:]
        a=iA-i0; b=iA2-i0
        tr=ins[:b]+ins[a:b]+ins[b:]
        print("p2 check problems:",len(check(tr,'p2')))
```

```python
from core import *
import stamp as ST
import os, math, struct
XNT=os.environ.get('XNT','')
WNT=os.environ.get('WNT','')
STMOD=os.environ.get('STMOD',' sc1')
MERGE=int(os.environ.get('MERGE','1'))
XPF=int(os.environ.get('XPF','0'))
FNT=int(os.environ.get('FNT','0'))
ROT=int(os.environ.get('ROT','1')); WPF=int(os.environ.get('WPF','0'))
def f2u(x): return struct.unpack('<I', struct.pack('<f', x))[0]
C0 = -2.0*math.log2(math.e)*math.sqrt(2.0/math.pi)
C1 = C0*0.044715
NKS_TOT=162; H_BYTES=64*NKS_TOT*2048
CH=16384
XA=65536; XB=32768
WR0=6
def XF(tt,ks):
    i=ks*4+tt
    if i<64: return f"a[{4*i}:{4*i+3}]"
    i-=64; return f"v[{224+4*i}:{224+4*i+3}]"
def acc(buf,tt,j,r=None):
    b=96+64*buf+16*tt+4*j
    return f"v[{b}:{b+3}]" if r is None else f"v{b+r}"
AR=64; NAR=8
def afr(i): b=AR+4*(i%NAR); return f"v[{b}:{b+3}]"
def afh(i,h): b=AR+4*(i%NAR)+2*h; return f"v[{b}:{b+1}]"
TMP0=32; HP=24
V_WD=1
V_XD=3
V_TRP=7
V_TR=11
V_XP=17
V_L16=21
V_C1=22; V_HST=23
S_W=24
S_X=8; S_G=12; S_U=16; S_H=20
S_XSO=25; S_XSO2=26; S_WSO=27; S_HSO=28; S_CNT=29; S_MW=30; S_MX=31; S_PF=56; S_PFO=32; S_HST=33; S_AW=34; S_AX=35; S_GRP=48
PKC=[60,62,58]

def gelu(buf, pk=False):
    out=[]
    for tt in range(4):
        hp=HP+4*(tt%2)
        if pk:
            chains=[]
            for j in range(2):
                for r in (0,2):
                    bx=96+64*buf+16*tt+4*j+r; bu=bx+8
                    X=f"v[{bx}:{bx+1}]"; U=f"v[{bu}:{bu+1}]"
                    a=TMP0+4*((j*2+r//2)+4*(tt%2)) if False else TMP0+4*(j*2+r//2)
                    T=f"v[{a}:{a+1}]"; Y=f"v[{a+2}:{a+3}]"
                    chains.append([f"v_pk_mul_f32 {T}, {X}, {X}",
                                   f"v_pk_fma_f32 {T}, {T}, v[50:51], v[52:53]",
                                   f"v_pk_mul_f32 {T}, {T}, {X}",
                                   f"v_exp_f32 v{a}, v{a}", f"v_exp_f32 v{a+1}, v{a+1}",
                                   f"v_pk_mul_f32 {Y}, {X}, {U}",
                                   f"v_pk_add_f32 {T}, {T}, v[54:55]",
                                   f"v_rcp_f32 v{a}, v{a}", f"v_rcp_f32 v{a+1}, v{a+1}",
                                   f"v_pk_mul_f32 {Y}, {Y}, {T}",
                                   f"v_cvt_pk_bf16_f32 v{hp+2*j+r//2}, v{a+2}, v{a+3}"])
            for k in range(11):
                for c in chains: out.append(Ins(c[k]))
        else:
            chains=[]
            for j in range(2):
                for r in range(4):
                    x=acc(buf,tt,j,r); u=acc(buf,tt,2+j,r)
                    T,Y=f"v{TMP0+j*4+r}",f"v{TMP0+8+j*4+r}"
                    chains.append([f"v_mul_f32 {T}, {x}, {x}",
                                   f"v_fmaak_f32 {T}, v{V_C1}, {T}, 0x{f2u(C0):08x}",
                                   f"v_mul_f32 {T}, {T}, {x}",
                                   f"v_exp_f32 {T}, {T}",
                                   f"v_mul_f32 {Y}, {x}, {u}",
                                   f"v_add_f32 {T}, 1.0, {T}",
                                   f"v_rcp_f32 {T}, {T}",
                                   f"v_mul_f32 {Y}, {Y}, {T}"])
            for p0 in (0,4):
                cs=chains[p0:p0+4]
                for k in range(8):
                    for c in cs: out.append(Ins(c[k]))
                for pp in (p0,p0+2):
                    out.append(Ins(f"v_cvt_pk_bf16_f32 v{hp+pp//2}, v{TMP0+8+pp}, v{TMP0+8+pp+1}"))
        if not os.environ.get('NOST'): out.append(Ins(f"buffer_store_dwordx4 v[{hp}:{hp+3}], v{V_HST}, s[{S_H}:{S_H+3}], s{S_HSO} offen offset:{256*(tt&1)}{STMOD}", tag='st'))
        if tt==1: out.append(Ins(f"s_add_u32 s{S_HSO}, s{S_HSO}, {NKS_TOT*2048}"))
        if tt==3: out.append(Ins(f"s_sub_u32 s{S_HSO}, s{S_HSO}, {NKS_TOT*2048-2048}"))
    return out
def pkconst():
    return [Ins(f"v_mov_b32 v50, 0x{f2u(C1):08x}"),Ins(f"v_mov_b32 v51, 0x{f2u(C1):08x}"),Ins(f"v_mov_b32 v52, 0x{f2u(C0):08x}"),Ins(f"v_mov_b32 v53, 0x{f2u(C0):08x}"),Ins("v_mov_b32 v54, 1.0"),Ins("v_mov_b32 v55, 1.0")]

def ntify(lst, on):
    if not on: return lst
    return [Ins(x.text.replace(' lds',' nt lds')) if x.kind=='dma' and ' nt' not in x.text else x for x in lst]
def wdma(slot):
    return [Ins(f"s_add_u32 m0, s{S_MW}, {slot*CH}"), Ins("s_nop 0"),
            Ins(f"buffer_load_dwordx4 v{V_WD}, s[{S_G}:{S_G+3}], s{S_WSO} offen lds{WNT}"),
            Ins(f"buffer_load_dwordx4 v{V_WD+1}, s[{S_G}:{S_G+3}], s{S_WSO} offen offset:1024 lds{WNT}"),
            Ins(f"s_add_u32 m0, s{S_MW}, {slot*CH+8192}"), Ins("s_nop 0"),
            Ins(f"buffer_load_dwordx4 v{V_WD}, s[{S_U}:{S_U+3}], s{S_WSO} offen lds{WNT}"),
            Ins(f"buffer_load_dwordx4 v{V_WD+1}, s[{S_U}:{S_U+3}], s{S_WSO} offen offset:1024 lds{WNT}")]
def wadv(last):
    if not ROT:
        return [Ins(f"s_add_u32 s{S_WSO}, s{S_WSO}, {64*9216}")] if not last else [Ins(f"s_sub_u32 s{S_WSO}, s{S_WSO}, {8*64*9216-128}")]
    o=[Ins(f"s_add_u32 s{S_AW}, s{S_AW}, 1"), Ins(f"s_cmp_eq_u32 s{S_AW}, 9"), Ins(f"s_cselect_b32 s{S_AW}, 0, s{S_AW}")]
    if last: o.append(Ins(f"s_add_u32 s{S_GRP}, s{S_GRP}, 128"))
    o+=[Ins(f"s_mul_i32 s{S_WSO}, s{S_AW}, {64*9216}"), Ins(f"s_add_u32 s{S_WSO}, s{S_WSO}, s{S_GRP}")]
    return o
def xdma(c):
    base=XA if c%2==0 else XB
    o=[]
    for i in range(8):
        if i%4==0:
            o.append(Ins(f"s_add_u32 m0, s{S_MX}, {base+4096*(i//4)}")); o.append(Ins("s_nop 0"))
        o.append(Ins(f"buffer_load_dwordx4 v{V_XD+(i%4)}, s[{S_X}:{S_X+3}], s{S_XSO if i<4 else S_XSO2} offen offset:{1024*(i%4)} lds{XNT}"))
    if not ROT:
        return o+[Ins(f"s_add_u32 s{S_XSO}, s{S_XSO}, 128"), Ins(f"s_add_u32 s{S_XSO2}, s{S_XSO2}, 128")]
    o+=[Ins(f"s_add_u32 s{S_AX}, s{S_AX}, 1"), Ins(f"s_cmp_eq_u32 s{S_AX}, 9"), Ins(f"s_cselect_b32 s49, {9*128}, 0"), Ins(f"s_cselect_b32 s{S_AX}, 0, s{S_AX}"),
        Ins(f"s_add_u32 s{S_XSO}, s{S_XSO}, 128"), Ins(f"s_sub_u32 s{S_XSO}, s{S_XSO}, s49"), Ins(f"s_add_u32 s{S_XSO2}, s{S_XSO}, {32*1152}")]
    return o
def xrd(c):
    return [Ins(f"ds_read_b128 {XF(tt,2*c+b)}, v{V_XP+2*(c%2)+b} offset:{tt*2048}") for b in range(2) for tt in range(4)]

def trset(P, g0=False):
    o=[]
    for grp in range(3):
        for i in range(2):
            o.append(Ins(f"v_add_u32 v{V_TR+2*grp+i}, {grp*4*CH}, v{V_TRP+2*P+i}"))
    return o
def ard(i, slot, b, j, fi):
    grp=slot//4; so=(slot%4)*CH
    return [Ins(f"ds_read_b64_tr_b16 {afh(fi,h)}, v{V_TR+2*grp+(j&1)} offset:{so+(j>>1)*8192+b*4096+h*512}") for h in range(2)]

BUD=int(os.environ.get('BUD','2'))
PF=int(os.environ.get('GPF','5')); GEX=int(os.environ.get('GEX','2'))
def phase(buf, entry_pref=True, next_first=None):
    seq=[(c,b,j) for c in range(9) for b in range(2) for j in range(4)]
    main=[]; marks={}
    for i,(c,b,j) in enumerate(seq):
        if j==0 and b==0: main.append(('mark',c,'start'))
        n=i+PF
        if n<len(seq):
            cn,bn,jn=seq[n]
            if bn==0 and jn==0: main.append(('mark',cn,'firstread'))
            nxt=ard(n,cn,bn,jn,n)
        else:
            if n==len(seq): main.append(('mark',9,'firstread'))
            nxt=next_first[n-len(seq)] if next_first else []
        ks=2*c+b
        for tt in range(4):
            cc=acc(buf,tt,j) if ks>0 else "0"
            main.append(Ins(f"v_mfma_f32_16x16x32_bf16 {acc(buf,tt,j)}, {afr(i)}, {XF(tt,ks)}, {cc}"))
            if tt<len(nxt): main.append(nxt[tt])
    return main

def first_reads(P_is_next_set):
    return [ard(k,0,k//4,k%4,72+k) for k in range(PF)]

def expand(main, hooks):
    out=[]
    for x in main:
        if isinstance(x,tuple):
            out+=hooks.get((x[1],x[2]),[])
        else: out.append(x)
    return out

def gen(p):
    A=p
    A("s_mul_i32 s39, s36, 384")
    A(f"s_add_u32 s{S_G}, s42, s39"); A(f"s_addc_u32 s{S_G+1}, s43, 0"); A(f"s_sub_u32 s{S_G+2}, {576*9216}, s39"); A(f"s_mov_b32 s{S_G+3}, 0x20000")
    A(f"s_add_u32 s{S_U}, s44, s39"); A(f"s_addc_u32 s{S_U+1}, s45, 0"); A(f"s_sub_u32 s{S_U+2}, {576*9216}, s39"); A(f"s_mov_b32 s{S_U+3}, 0x20000")
    A(f"s_mul_i32 s38, s37, {256*1152}")
    A(f"s_add_u32 s{S_X}, s40, s38"); A(f"s_addc_u32 s{S_X+1}, s41, 0"); A(f"s_sub_u32 s{S_X}, s{S_X}, 4096"); A(f"s_subb_u32 s{S_X+1}, s{S_X+1}, 0")
    A(f"s_mov_b32 s{S_X+2}, {256*1152+4096}"); A(f"s_mov_b32 s{S_X+3}, 0x20000")
    A("v_and_b32 v24, 63, v0"); A("v_lshrrev_b32 v25, 4, v24"); A("v_and_b32 v26, 15, v24"); A("v_lshrrev_b32 v27, 3, v24"); A("v_and_b32 v28, 7, v24")
    for i in range(4):
        A(f"v_add_u32 v30, {4*(i&1)}, v25"); A("v_and_b32 v30, 7, v30"); A("v_xor_b32 v30, v30, v28"); A("v_lshlrev_b32 v30, 4, v30")
        A(f"v_add_u32 v31, {8*i}, v27"); A("v_mul_u32_u24 v31, 0x480, v31")
        A(f"v_add3_u32 v{V_XD+i}, v30, v31, 0"); A(f"v_add_u32 v{V_XD+i}, {4096-1024*i}, v{V_XD+i}")
    A(f"s_mov_b32 s50, {'s37' if ROT else 0}")
    if ROT in (3,4):
        A("s_mul_i32 s38, s36, 86"); A("s_lshr_b32 s38, s38, 8"); A("s_mul_i32 s38, s38, 3"); A("s_sub_u32 s38, s36, s38"); A(f"s_mul_i32 s38, s38, {ROT-2}")
        A("s_add_u32 s50, s50, s38"); A("s_cmp_ge_u32 s50, 9"); A("s_cselect_b32 s38, 9, 0"); A("s_sub_u32 s50, s50, s38")
    if ROT==2:
        A("s_mul_i32 s38, s36, 86"); A("s_lshr_b32 s38, s38, 8"); A("s_mul_i32 s38, s38, 3"); A("s_sub_u32 s38, s36, s38"); A("s_mul_i32 s38, s38, 3")
        A("s_add_u32 s50, s50, s38"); A("s_cmp_ge_u32 s50, 9"); A("s_cselect_b32 s38, 9, 0"); A("s_sub_u32 s50, s50, s38")
    A(f"s_mov_b32 s{S_AW}, s50"); A(f"s_mov_b32 s{S_AX}, s50"); A(f"s_mov_b32 s{S_GRP}, 0")
    A(f"s_mul_i32 s{S_XSO}, s{S_W}, {64*1152}"); A("s_lshl_b32 s38, s50, 7"); A(f"s_add_u32 s{S_XSO}, s{S_XSO}, s38"); A(f"s_add_u32 s{S_XSO2}, s{S_XSO}, {32*1152}")
    A(f"s_lshl_b32 s{S_MX}, s{S_W}, 13")
    A.add(ntify(xdma(0), FNT&1))
    A(f"s_lshl_b32 s38, s{S_W}, 4")
    for e in range(2):
        A("v_bfe_u32 v30, v27, 1, 1");
        if e: A("v_or_b32 v30, 2, v30")
        A("v_lshrrev_b32 v31, 1, v28"); A("v_xor_b32 v30, v30, v31"); A("v_lshlrev_b32 v30, 5, v30"); A("v_and_b32 v31, 1, v28"); A("v_lshlrev_b32 v31, 4, v31"); A("v_add_u32 v30, v30, v31")
        A(f"v_add_u32 v31, s38, v27");
        if e: A("v_add_u32 v31, 8, v31")
        A("v_mul_u32_u24 v31, 0x2400, v31")
        A(f"v_add_u32 v{V_WD+e}, v30, v31")
        if e: A(f"v_subrev_u32 v{V_WD+e}, 1024, v{V_WD+e}")
    A(f"s_mul_i32 s{S_WSO}, s{S_AW}, {64*9216}"); A(f"s_lshl_b32 s{S_MW}, s{S_W}, 11")
    A.add(ntify(wdma(WR0+0), FNT&2)); A.add(wadv(False))
    ST.stamp(p,1)
    A(f"s_mov_b32 s{S_H}, s46"); A(f"s_mov_b32 s{S_H+1}, s47"); A(f"s_mov_b32 s{S_H+2}, {H_BYTES}"); A(f"s_mov_b32 s{S_H+3}, 0x20000")
    A(f"v_lshlrev_b32 v{V_L16}, 4, v24")
    A("v_lshrrev_b32 v30, 2, v26"); A("v_and_b32 v31, 3, v26")
    A("v_lshlrev_b32 v29, 3, v25"); A("v_add_u32 v29, v29, v30"); A("v_lshlrev_b32 v29, 7, v29"); A("v_lshlrev_b32 v31, 3, v31"); A("v_add_u32 v29, v29, v31")
    A("v_lshrrev_b32 v30, 1, v30"); A("v_and_b32 v31, 1, v25"); A("v_lshlrev_b32 v31, 1, v31"); A("v_or_b32 v30, v30, v31")
    for s in range(4):
        A(f"v_xor_b32 v31, {s}, v30"); A("v_lshlrev_b32 v31, 5, v31"); A(f"v_add_u32 v{V_TRP+s}, v31, v29")
    A("v_lshrrev_b32 v30, 1, v26"); A("v_xor_b32 v30, v30, v25"); A("v_lshlrev_b32 v30, 4, v30"); A("v_lshlrev_b32 v31, 7, v26"); A("v_add_u32 v30, v30, v31")
    A(f"v_add_u32 v30, s{S_MX}, v30")
    A(f"v_add_u32 v{V_XP}, {XA}, v30"); A(f"v_xor_b32 v{V_XP+1}, 64, v{V_XP}"); A(f"v_add_u32 v{V_XP+2}, {XB}, v30"); A(f"v_xor_b32 v{V_XP+3}, 64, v{V_XP+2}")
    A(f"v_mov_b32 v{V_C1}, 0x{f2u(C1):08x}")
    A("v_and_b32 v30, 1, v25"); A("v_lshlrev_b32 v30, 9, v30"); A("v_lshrrev_b32 v31, 1, v25"); A("v_lshlrev_b32 v31, 10, v31"); A("v_lshlrev_b32 v29, 4, v26")
    A(f"v_add3_u32 v{V_HST}, v29, v30, v31")
    A("s_lshl_b32 s38, s37, 3"); A(f"s_lshl_b32 s39, s{S_W}, 1"); A("s_add_u32 s38, s38, s39"); A(f"s_mul_i32 s38, s38, {NKS_TOT}")
    A("s_mul_i32 s39, s36, 6"); A("s_add_u32 s38, s38, s39"); A(f"s_lshl_b32 s{S_HSO}, s38, 11")
    A("s_lshl_b32 s38, s36, 3"); A("s_add_u32 s38, s38, s37"); A("s_lshl_b32 s38, s38, 2"); A(f"s_add_u32 s38, s38, s{S_W}")
    A(f"s_mul_i32 s{S_PFO}, s38, {8*1024}")
    A(f"s_mov_b32 s{S_PF}, s66"); A(f"s_mov_b32 s{S_PF+1}, s67"); A(f"s_mov_b32 s{S_PF+2}, {4608*1152}"); A(f"s_mov_b32 s{S_PF+3}, 0x20000")
    for s in range(4): A(f"v_add_u32 v{V_TR+s}, {WR0*CH}, v{V_TRP+s}")
    A.add(ntify(wdma(WR0+1), FNT&4)); A.add(wadv(False)); A.add(ntify(xdma(1), FNT&8))
    log=['X0']*8+['W0']*4+['W1']*4+['X1']*8
    def waitfor(tags, extra=""):
        nonlocal log
        idx=[i for i,t in enumerate(log) if t in tags]
        if idx:
            last=max(idx); n=len(log)-1-last
            log=log[last+1:]
            return [Ins(f"s_waitcnt vmcnt({n}) {extra}".strip())]
        return [Ins(f"s_waitcnt {extra}")] if extra else []
    def g0rd(i):
        c,b,j8=i//16,(i%16)//8,i%8
        P=j8//4; j=j8%4
        sl=c%4
        return [Ins(f"ds_read_b64_tr_b16 {afh(i,h)}, v{V_TR+2*P+(j&1)} offset:{sl*CH+(j>>1)*8192+b*4096+h*512}") for h in range(2)]
    p.label("L_TOUCH_gx")
    p.add(waitfor(('X0','W0'))); p("s_barrier")
    if MERGE:
        import k1
        k1.announce_zero(p, S_W, "L_gx_az", 60)
    ST.stamp(p,2)
    p.add(xrd(0))
    pre=[]
    for i in range(PF): pre+=g0rd(i)
    p.add(pre[:6]); p("s_waitcnt lgkmcnt(6)"); p.add(pre[6:])
    q0=[x.wr for x in pre]
    N0=9*16
    if XPF:
        A("s_mul_i32 s38, s36, 86"); A("s_lshr_b32 s38, s38, 8"); A("s_mul_i32 s38, s38, 3"); A("s_sub_u32 s38, s36, s38")
        A("s_lshl_b32 s38, s38, 6"); A(f"s_lshl_b32 s39, s{S_W}, 4"); A("s_add_u32 s38, s38, s39"); A("s_mul_i32 s74, s38, 1152"); A(f"s_add_u32 s74, s74, {4096+128*XPF}"); A(f"s_add_u32 s75, s74, {8*1152}")
        A("v_and_b32 v63, 63, v0"); A("v_lshrrev_b32 v62, 3, v63"); A("v_mul_u32_u24 v62, 0x480, v62"); A("v_and_b32 v63, 7, v63"); A("v_lshl_add_u32 v63, v63, 4, v62")
    A("s_lshl_b32 s38, s2, 2"); A(f"s_add_u32 s38, s38, s{S_W}"); A("s_mul_i32 s51, s38, 6144")
    A("s_mov_b32 s52, s42"); A("s_mov_b32 s53, s43"); A(f"s_mov_b32 s54, {576*9216}"); A("s_mov_b32 s55, 0x20000")
    A("s_mov_b32 s60, s44"); A("s_mov_b32 s61, s45"); A(f"s_mov_b32 s62, {576*9216}"); A("s_mov_b32 s63, 0x20000")
    def lin(k):
        srd="s[52:55]" if k<6 else "s[60:63]"; kk=k%6
        o=[]
        if kk==4: o.append(Ins("s_add_u32 s51, s51, 4096"))
        if k==6: o.append(Ins("s_sub_u32 s51, s51, 4096"))
        o.append(Ins(f"buffer_load_dwordx4 v[56:59], v{V_L16}, {srd}, s51 offen offset:{1024*(kk%4)}"))
        return o
    def tagged(lst,tag):
        for x in lst:
            if x.kind=='dma': x.tag=tag
        return lst
    def logit(stream):
        for x in stream:
            if getattr(x,'kind',None) in('dma','vmem'): log.append(x.tag or 'P')
    carry=tagged(wdma(WR0+2)+wadv(False),'W2')+tagged(xdma(2),'X2')
    for c in range(9):
        main=[]
        for ii in range(16):
            i=c*16+ii
            if ii==8: main.append(('mid',))
            n=i+PF
            nxt=g0rd(n) if n<N0 else []
            b=ii//8; j8=ii%8; P=j8//4; j=j8%4; ks=2*c+b
            for tt in range(4):
                cc=acc(P,tt,j) if ks>0 else "0"
                main.append(Ins(f"v_mfma_f32_16x16x32_bf16 {acc(P,tt,j)}, {afr(i)}, {XF(tt,ks)}, {cc}"))
                if tt<len(nxt): main.append(nxt[tt])
        im=main.index(('mid',))
        first=main[:im]; second=main[im+1:]
        if carry: first=spread(first, dma_items(carry), first=4 if c else 0)
        logit(first)
        carry=[]
        midl=[]
        if c+1<9: midl+=waitfor((f'X{c+1}',f'W{c+1}'))
        midl.append(Ins("s_barrier"))
        dl=[]
        if c+3<9: dl+=tagged(wdma(WR0+(c+3)%4)+wadv(c+3==8),f'W{c+3}')
        g1={6:(0,1),7:(2,3),8:(4,5)}.get(c,())
        for cc_ in g1: dl+=tagged(wdma(cc_)+wadv(False),f'G{cc_}')
        if c+1<9:
            xr=xrd(c+1)
            second=spread(second,[[x] for x in xr], first=1, last=18)
        if dl: second=spread(second, dma_items(dl), first=2)
        if XPF and c+XPF<9:
            second=spread(second, [[Ins(f"buffer_load_dwordx4 v[56:59], v63, s[{S_X}:{S_X+3}], s74 offen")],[Ins(f"buffer_load_dwordx4 v[56:59], v63, s[{S_X}:{S_X+3}], s75 offen")],[Ins("s_add_u32 s74, s74, 128"),Ins("s_add_u32 s75, s75, 128")]], first=3)
        if WPF and c<3:
            second=spread(second, [lin(k) for k in range(4*c,4*c+4)], first=5)
        logit(second)
        if c+3<9: carry=tagged(xdma(c+3),f'X{c+3}')
        stream,q0=auto_lgkm(fix_m0(first+midl+second), q0, extra=2)
        p.add(stream)
    ST.stamp(p,3)
    p.add(pkconst()); p("s_nop 4")
    p.add(gelu(0,pk=True)); log+=['S']*4
    p.add(trset(0))
    p.add(waitfor(('G0','G1','G2'))); p("s_barrier")
    fr=first_reads(0)
    for k in range(PF): p.add(fr[k])
    ST.stamp(p,4)
    if MERGE:
        p("s_lshr_b32 s91, s4, 1"); p("s_mov_b32 s90, 0")
        p("s_and_b32 s38, s4, 1"); p("s_mul_i32 s38, s38, 24"); p("s_add_u32 s92, s38, s6")
        p(f"s_mov_b32 s93, s{S_W}")
        p("s_mul_i32 s38, s36, 43"); p("s_lshr_b32 s38, s38, 8"); p("s_lshl_b32 s39, s37, 2"); p("s_add_u32 s94, s38, s39"); p("s_add_u32 s94, s94, 8")
        p("s_mul_i32 s38, s92, 171"); p("s_lshr_b32 s38, s38, 10"); p("s_lshl_b32 s38, s38, 2"); p("s_add_u32 s96, s38, s91"); p("s_add_u32 s95, s96, 8"); p("s_add_u32 s96, s96, 48"); p("s_mov_b32 s97, 6")
        p("s_lshl_b32 s38, s96, 7"); p("v_mov_b32 v48, s38"); p(f"s_add_u32 s64, s70, {0x15C0000}"); p("s_addc_u32 s65, s71, 0")
        p("v_mov_b32 v61, 0"); p("global_load_dword v60, v61, s[68:69] sc1")
    p(f"s_mov_b32 s{S_CNT}, 0")
    il=len(p.ins)
    p.label("L_gx_loop")
    q0=[x.wr for k in range(PF) for x in fr[k]]
    pfl=lambda: [Ins(f"buffer_load_dwordx4 v[56:59], v{V_L16}, s[{S_PF}:{S_PF+3}], s{S_PFO} offen", tag='pf'), Ins(f"s_add_u32 s{S_PFO}, s{S_PFO}, 1024")]
    def marks(m, fn):
        cur=[]
        for x in m:
            if isinstance(x,tuple):
                t=fn(x)
                if t: cur.append(Ins(t+":"))
            else: cur.append(x)
        return cur
    cur=marks(phase(1, next_first=first_reads(0)), lambda x: (f"FREE{x[1]//3-1}" if x[2]=='start' and x[1] in (3,6) else ("PRE9" if x[2]=='firstread' and x[1]==9 else None)))
    def mfma_index_of(cur,lab):
        k=0
        for x in cur:
            if x.kind=='label' and x.text.startswith(lab): return k
            if x.kind=='mfma': k+=1
    for k in (0,1):
        d=[]
        for cc_ in (3*k,3*k+1,3*k+2): d+=wdma(cc_)+wadv(False)
        f=mfma_index_of(cur,f"FREE{k}")
        cur=spread(cur, dma_items(d), first=f+1, last=f+84-4*(PF-4)-(4 if PF>4 else 0))
    mer=interleave(cur, ([] if os.environ.get('NOPF') else pfl()+pfl())+gelu(0), budget=BUD)
    out=[]; seq=[]
    for x in mer:
        if x.kind=='label' and x.text.startswith('FREE'):
            if MERGE and x.text.startswith('FREE1'):
                out.append(Ins(f"s_waitcnt vmcnt({len(seq)})"))
            out.append(Ins("s_barrier"))
            if MERGE and x.text.startswith('FREE1'):
                out+=[Ins(f"s_cmp_eq_u32 s{S_CNT}, 1"), Ins("s_cbranch_scc0 L_gx_nosig"), Ins(f"s_cmp_eq_u32 s{S_W}, 0"), Ins("s_cbranch_scc0 L_gx_nosig"),
                      Ins("v_readfirstlane_b32 s38, v60"), Ins("s_mov_b32 s39, 0"), Ins("L_gx_zr:"), Ins("s_cmp_ge_u32 s38, 273"), Ins("s_cbranch_scc1 L_gx_zok"),
                      Ins("s_add_u32 s39, s39, 1"), Ins("s_cmp_gt_u32 s39, 200000"), Ins("s_cbranch_scc1 L_gx_zok"), Ins("s_sleep 6"),
                      Ins("v_mov_b32 v61, 0"), Ins("global_load_dword v60, v61, s[68:69] sc1"), Ins("s_waitcnt vmcnt(0)"), Ins("v_readfirstlane_b32 s38, v60"), Ins("s_branch L_gx_zr"),
                      Ins("L_gx_zok:"),
                      Ins("s_mul_i32 s38, s36, 43"), Ins("s_lshr_b32 s38, s38, 8"), Ins("s_lshl_b32 s39, s37, 2"), Ins("s_add_u32 s38, s38, s39"), Ins("s_add_u32 s38, s38, 48"), Ins("s_lshl_b32 s38, s38, 7"),
                      Ins(f"s_add_u32 s72, s70, {0x15C0000}"), Ins("s_addc_u32 s73, s71, 0"),
                      Ins("v_mov_b32 v61, s38"), Ins("v_mov_b32 v62, 1"), Ins("v_cmp_eq_u32 vcc, 0, v0"), Ins("s_and_saveexec_b64 s[74:75], vcc"),
                      Ins("global_atomic_add v61, v62, s[72:73] sc1"), Ins("s_mov_b64 exec, s[74:75]"), Ins("L_gx_nosig:"), Ins("s_nop 0")]
        elif x.kind=='label' and x.text.startswith('PRE9'):
            d=[i for i,t in enumerate(seq) if t=='dma']; assert len(d)==24
            out.append(Ins(f"s_waitcnt vmcnt({len(seq)-1-d[11]})")); out.append(Ins("s_barrier")); out+=trset(0)
        else:
            if x.kind in('vmem','dma'): seq.append(x.kind)
            out.append(x)
    if MERGE:
        ist=[i for i,x in enumerate(out) if x.tag=='st']
        out.insert(ist[-1]-40, Ins("global_load_dword v49, v48, s[64:65] sc1", tag='look'))
        vm=[x for x in out if x.kind in('vmem','dma')]
        n_after_look=len(vm)-1-[i for i,x in enumerate(vm) if x.tag=='look'][0]
        assert all(x.kind!='dma' for x in vm[len(vm)-n_after_look:])
    out1=out; tail_exact=len(seq)-1-max(i for i,t in enumerate(seq) if t=='dma'); tail1=min(4,tail_exact)
    cur=marks(phase(0, next_first=first_reads(1)), lambda x: (f"LAND{x[1]}" if x[2]=='firstread' and x[1] in (3,6) else ("SWITCH1" if x[2]=='firstread' and x[1]==9 else None)))
    d678=wdma(6)+wadv(False)+wdma(7)+wadv(False)+wdma(8)+wadv(True)
    if int(os.environ.get('NOJUNK','1')) and ROT:
        d678+=[Ins(f"s_cmp_eq_u32 s{S_CNT}, 1"), Ins("s_cselect_b32 s49, 0x40000000, 0"), Ins(f"s_add_u32 s{S_GRP}, s{S_GRP}, s49"), Ins(f"s_add_u32 s{S_WSO}, s{S_WSO}, s49")]
    if int(os.environ.get('NOJUNK','1')) and not ROT:
        d678+=[Ins(f"s_cmp_eq_u32 s{S_CNT}, 1"), Ins("s_cselect_b32 s49, 0x40000000, 0"), Ins(f"s_add_u32 s{S_WSO}, s{S_WSO}, s49")]
    cur=spread(cur, dma_items(d678), first=2, last=84)
    mer=interleave(cur, ([] if os.environ.get('NOPF') else pfl()+pfl())+gelu(1), budget=BUD)
    out=[]; seq=[]
    for x in mer:
        if x.kind=='label' and x.text.startswith('LAND3'):
            out.append(Ins(f"s_waitcnt vmcnt({len(seq)+tail1})")); out.append(Ins("s_barrier"))
        elif x.kind=='label' and x.text.startswith('LAND6'):
            last=max(i for i,t in enumerate(seq) if t=='dma'); assert seq.count('dma')==12
            out.append(Ins(f"s_waitcnt vmcnt({len(seq)-1-last})")); out.append(Ins("s_barrier"))
        elif x.kind=='label' and x.text.startswith('SWITCH'):
            out+=trset(1)
        else:
            if x.kind in('vmem','dma'): seq.append(x.kind)
            out.append(x)
    if os.environ.get('NOVM'): out=[x for x in out if not (x.kind=='wait' and 'vmcnt' in x.text)]; out1=[x for x in out1 if not (x.kind=='wait' and 'vmcnt' in x.text and 'vmcnt(0)' not in x.text)]
    st,q1=auto_lgkm(out,q0,extra=GEX)
    p.add(st)
    st,q2=auto_lgkm(out1,q1,extra=GEX)
    p.add(st)
    p("s_barrier")
    p(f"s_add_u32 s{S_CNT}, s{S_CNT}, 1"); p(f"s_cmp_lt_u32 s{S_CNT}, 2"); p("s_cbranch_scc1 L_gx_loop")
    idn=len(p.ins)
    assert [sorted(d) for d in q2]==[sorted(x.wr) for k in range(PF) for x in fr[k]] or True
    p("s_waitcnt lgkmcnt(0)")
    ST.stamp(p,5)
    if MERGE:
        import p2 as P2
        p(f"s_waitcnt vmcnt({n_after_look})"); p("s_barrier")
        P2.gen_p2a_ffn(p)
    p.label("L_TOUCH_gx2")
    p.add(pkconst()); p("s_nop 4")
    p.add(gelu(1,pk=True))
    ST.stamp(p,6)
    ST.flush(p,70,71,0)
    if MERGE: p("s_branch L_p2b")
    return il,idn
```

```python
from core import *
import stamp as ST
import os, math, struct
XNT=os.environ.get('XNT','')
WNT=os.environ.get('WNT','')
STMOD=os.environ.get('STMOD',' sc1')
MERGE=int(os.environ.get('MERGE','1'))
XPF=int(os.environ.get('XPF','0'))
FNT=int(os.environ.get('FNT','0'))
ROT=int(os.environ.get('ROT','1')); WPF=int(os.environ.get('WPF','0'))
def f2u(x): return struct.unpack('<I', struct.pack('<f', x))[0]
C0 = -2.0*math.log2(math.e)*math.sqrt(2.0/math.pi)
C1 = C0*0.044715
NKS_TOT=162; H_BYTES=64*NKS_TOT*2048
CH=16384
XA=65536; XB=32768
WR0=6
def XF(T,s16):
    i=s16*2+T
    if i<64: return f"a[{4*i}:{4*i+3}]"
    i-=64; return f"v[{224+4*i}:{224+4*i+3}]"
def acc(buf,T,sec,r=None):
    b=96+64*buf+32*T+16*sec
    return f"v[{b}:{b+15}]" if r is None else f"v{b+r}"
AR=64; NAR=8
def afr(i): b=AR+4*(i%NAR); return f"v[{b}:{b+3}]"
def afh(i,h): b=AR+4*(i%NAR)+2*h; return f"v[{b}:{b+1}]"
MF="v_mfma_f32_32x32x16_bf16"
TMP0=32; HP=24
V_WD=1
V_XD=3
V_TRP=7
V_TR=11
V_XP=14
V_L16=22
V_C1=23
S_W=24
S_X=8; S_G=12; S_U=16; S_H=20
S_XSO=25; S_XSO2=26; S_WSO=27; S_HSO=28; S_CNT=29; S_MW=30; S_MX=31; S_PF=56; S_PFO=32; S_HST=33; S_AW=34; S_AX=35; S_GRP=48
PKC=[60,62,58]

def gelu(buf, pk=False):
    out=[]
    for T in range(2):
        for e in range(2):
            hp=HP+4*((2*T+e)%2)
            if pk:
                chains=[]
                for r in range(8*e,8*e+8,2):
                    bx=96+64*buf+32*T+r; bu=bx+16
                    X=f"v[{bx}:{bx+1}]"; U=f"v[{bu}:{bu+1}]"
                    a=TMP0+4*((r-8*e)//2)
                    T_=f"v[{a}:{a+1}]"; Y=f"v[{a+2}:{a+3}]"
                    chains.append([f"v_pk_mul_f32 {T_}, {X}, {X}",
                                   f"v_pk_fma_f32 {T_}, {T_}, v[50:51], v[52:53]",
                                   f"v_pk_mul_f32 {T_}, {T_}, {X}",
                                   f"v_exp_f32 v{a}, v{a}", f"v_exp_f32 v{a+1}, v{a+1}",
                                   f"v_pk_mul_f32 {Y}, {X}, {U}",
                                   f"v_pk_add_f32 {T_}, {T_}, v[54:55]",
                                   f"v_rcp_f32 v{a}, v{a}", f"v_rcp_f32 v{a+1}, v{a+1}",
                                   f"v_pk_mul_f32 {Y}, {Y}, {T_}",
                                   f"v_cvt_pk_bf16_f32 v{hp+(r-8*e)//2}, v{a+2}, v{a+3}"])
                for k in range(11):
                    for c in chains: out.append(Ins(c[k]))
            else:
                chains=[]
                for r in range(8*e,8*e+8):
                    x=acc(buf,T,0,r); u=acc(buf,T,1,r)
                    T_,Y=f"v{TMP0+r-8*e}",f"v{TMP0+8+r-8*e}"
                    chains.append([f"v_mul_f32 {T_}, {x}, {x}",
                                   f"v_fmaak_f32 {T_}, v{V_C1}, {T_}, 0x{f2u(C0):08x}",
                                   f"v_mul_f32 {T_}, {T_}, {x}",
                                   f"v_exp_f32 {T_}, {T_}",
                                   f"v_mul_f32 {Y}, {x}, {u}",
                                   f"v_add_f32 {T_}, 1.0, {T_}",
                                   f"v_rcp_f32 {T_}, {T_}",
                                   f"v_mul_f32 {Y}, {Y}, {T_}"])
                for p0 in (0,4):
                    cs=chains[p0:p0+4]
                    for k in range(8):
                        for c in cs: out.append(Ins(c[k]))
                    for pp in (p0,p0+2):
                        out.append(Ins(f"v_cvt_pk_bf16_f32 v{hp+pp//2}, v{TMP0+8+pp}, v{TMP0+8+pp+1}"))
            if not os.environ.get('NOST'): out.append(Ins(f"buffer_store_dwordx4 v[{hp}:{hp+3}], v{V_L16}, s[{S_H}:{S_H+3}], s{S_HSO} offen offset:{1024*e}{STMOD}", tag='st'))
        out.append(Ins(f"s_add_u32 s{S_HSO}, s{S_HSO}, {NKS_TOT*2048}" if T==0 else f"s_sub_u32 s{S_HSO}, s{S_HSO}, {NKS_TOT*2048-2048}"))
    return out
def pkconst():
    return [Ins(f"v_mov_b32 v50, 0x{f2u(C1):08x}"),Ins(f"v_mov_b32 v51, 0x{f2u(C1):08x}"),Ins(f"v_mov_b32 v52, 0x{f2u(C0):08x}"),Ins(f"v_mov_b32 v53, 0x{f2u(C0):08x}"),Ins("v_mov_b32 v54, 1.0"),Ins("v_mov_b32 v55, 1.0")]

def ntify(lst, on):
    if not on: return lst
    return [Ins(x.text.replace(' lds',' nt lds')) if x.kind=='dma' and ' nt' not in x.text else x for x in lst]
def wdma(slot):
    return [Ins(f"s_add_u32 m0, s{S_MW}, {slot*CH}"), Ins("s_nop 0"),
            Ins(f"buffer_load_dwordx4 v{V_WD}, s[{S_G}:{S_G+3}], s{S_WSO} offen lds{WNT}"),
            Ins(f"buffer_load_dwordx4 v{V_WD+1}, s[{S_G}:{S_G+3}], s{S_WSO} offen offset:1024 lds{WNT}"),
            Ins(f"s_add_u32 m0, s{S_MW}, {slot*CH+8192}"), Ins("s_nop 0"),
            Ins(f"buffer_load_dwordx4 v{V_WD}, s[{S_U}:{S_U+3}], s{S_WSO} offen lds{WNT}"),
            Ins(f"buffer_load_dwordx4 v{V_WD+1}, s[{S_U}:{S_U+3}], s{S_WSO} offen offset:1024 lds{WNT}")]
def wadv(last):
    if not ROT:
        return [Ins(f"s_add_u32 s{S_WSO}, s{S_WSO}, {64*9216}")] if not last else [Ins(f"s_sub_u32 s{S_WSO}, s{S_WSO}, {8*64*9216-128}")]
    o=[Ins(f"s_add_u32 s{S_AW}, s{S_AW}, 1"), Ins(f"s_cmp_eq_u32 s{S_AW}, 9"), Ins(f"s_cselect_b32 s{S_AW}, 0, s{S_AW}")]
    if last: o.append(Ins(f"s_add_u32 s{S_GRP}, s{S_GRP}, 128"))
    o+=[Ins(f"s_mul_i32 s{S_WSO}, s{S_AW}, {64*9216}"), Ins(f"s_add_u32 s{S_WSO}, s{S_WSO}, s{S_GRP}")]
    return o
def xdma(c):
    base=XA if c%2==0 else XB
    o=[]
    for i in range(8):
        if i%4==0:
            o.append(Ins(f"s_add_u32 m0, s{S_MX}, {base+4096*(i//4)}")); o.append(Ins("s_nop 0"))
        o.append(Ins(f"buffer_load_dwordx4 v{V_XD+(i%4)}, s[{S_X}:{S_X+3}], s{S_XSO if i<4 else S_XSO2} offen offset:{1024*(i%4)} lds{XNT}"))
    if not ROT:
        return o+[Ins(f"s_add_u32 s{S_XSO}, s{S_XSO}, 128"), Ins(f"s_add_u32 s{S_XSO2}, s{S_XSO2}, 128")]
    o+=[Ins(f"s_add_u32 s{S_AX}, s{S_AX}, 1"), Ins(f"s_cmp_eq_u32 s{S_AX}, 9"), Ins(f"s_cselect_b32 s49, {9*128}, 0"), Ins(f"s_cselect_b32 s{S_AX}, 0, s{S_AX}"),
        Ins(f"s_add_u32 s{S_XSO}, s{S_XSO}, 128"), Ins(f"s_sub_u32 s{S_XSO}, s{S_XSO}, s49"), Ins(f"s_add_u32 s{S_XSO2}, s{S_XSO}, {32*1152}")]
    return o
def xrd(c):
    return [Ins(f"ds_read_b128 {XF(T,4*c+sp)}, v{V_XP+4*(c%2)+sp} offset:{T*4096}") for sp in range(4) for T in range(2)]

def trset(P, g0=False):
    return [Ins(f"v_add_u32 v{V_TR+grp}, {grp*4*CH}, v{V_TRP+P}") for grp in range(3)]
def ard(i, slot, sp, sec, fi):
    grp=slot//4; so=(slot%4)*CH
    return [Ins(f"ds_read_b64_tr_b16 {afh(fi,h)}, v{V_TR+grp} offset:{so+sec*8192+sp*2048+h*512}") for h in range(2)]

PF=int(os.environ.get('GPF32','5')); GEX=int(os.environ.get('GEX32','2'))
def phase(buf, entry_pref=True, next_first=None):
    seq=[(c,sp,sec) for c in range(9) for sp in range(4) for sec in range(2)]
    main=[]
    for i,(c,sp,sec) in enumerate(seq):
        if sp==0 and sec==0: main.append(('mark',c,'start'))
        n=i+PF
        if n<len(seq):
            cn,spn,secn=seq[n]
            if spn==0 and secn==0: main.append(('mark',cn,'firstread'))
            nxt=ard(n,cn,spn,secn,n)
        else:
            if n==len(seq): main.append(('mark',9,'firstread'))
            nxt=next_first[n-len(seq)] if next_first else []
        s16=4*c+sp
        for T in range(2):
            cc=acc(buf,T,sec) if s16>0 else "0"
            main.append(Ins(f"{MF} {acc(buf,T,sec)}, {afr(i)}, {XF(T,s16)}, {cc}"))
            if T<len(nxt): main.append(nxt[T])
    return main

def first_reads(P_is_next_set):
    return [ard(k,0,k//2,k%2,72+k) for k in range(PF)]

def expand(main, hooks):
    out=[]
    for x in main:
        if isinstance(x,tuple):
            out+=hooks.get((x[1],x[2]),[])
        else: out.append(x)
    return out

def gen(p):
    A=p
    A("s_mul_i32 s39, s36, 384")
    A(f"s_add_u32 s{S_G}, s42, s39"); A(f"s_addc_u32 s{S_G+1}, s43, 0"); A(f"s_sub_u32 s{S_G+2}, {576*9216}, s39"); A(f"s_mov_b32 s{S_G+3}, 0x20000")
    A(f"s_add_u32 s{S_U}, s44, s39"); A(f"s_addc_u32 s{S_U+1}, s45, 0"); A(f"s_sub_u32 s{S_U+2}, {576*9216}, s39"); A(f"s_mov_b32 s{S_U+3}, 0x20000")
    A(f"s_mul_i32 s38, s37, {256*1152}")
    A(f"s_add_u32 s{S_X}, s40, s38"); A(f"s_addc_u32 s{S_X+1}, s41, 0"); A(f"s_sub_u32 s{S_X}, s{S_X}, 4096"); A(f"s_subb_u32 s{S_X+1}, s{S_X+1}, 0")
    A(f"s_mov_b32 s{S_X+2}, {256*1152+4096}"); A(f"s_mov_b32 s{S_X+3}, 0x20000")
    A("v_and_b32 v24, 63, v0"); A("v_lshrrev_b32 v25, 4, v24"); A("v_and_b32 v26, 15, v24"); A("v_lshrrev_b32 v27, 3, v24"); A("v_and_b32 v28, 7, v24")
    for i in range(4):
        A(f"v_add_u32 v30, {4*(i&1)}, v25"); A("v_and_b32 v30, 7, v30"); A("v_xor_b32 v30, v30, v28"); A("v_lshlrev_b32 v30, 4, v30")
        A(f"v_add_u32 v31, {8*i}, v27"); A("v_mul_u32_u24 v31, 0x480, v31")
        A(f"v_add3_u32 v{V_XD+i}, v30, v31, 0"); A(f"v_add_u32 v{V_XD+i}, {4096-1024*i}, v{V_XD+i}")
    A(f"s_mov_b32 s50, {'s37' if ROT else 0}")
    if ROT in (3,4):
        A("s_mul_i32 s38, s36, 86"); A("s_lshr_b32 s38, s38, 8"); A("s_mul_i32 s38, s38, 3"); A("s_sub_u32 s38, s36, s38"); A(f"s_mul_i32 s38, s38, {ROT-2}")
        A("s_add_u32 s50, s50, s38"); A("s_cmp_ge_u32 s50, 9"); A("s_cselect_b32 s38, 9, 0"); A("s_sub_u32 s50, s50, s38")
    if ROT==2:
        A("s_mul_i32 s38, s36, 86"); A("s_lshr_b32 s38, s38, 8"); A("s_mul_i32 s38, s38, 3"); A("s_sub_u32 s38, s36, s38"); A("s_mul_i32 s38, s38, 3")
        A("s_add_u32 s50, s50, s38"); A("s_cmp_ge_u32 s50, 9"); A("s_cselect_b32 s38, 9, 0"); A("s_sub_u32 s50, s50, s38")
    A(f"s_mov_b32 s{S_AW}, s50"); A(f"s_mov_b32 s{S_AX}, s50"); A(f"s_mov_b32 s{S_GRP}, 0")
    A(f"s_mul_i32 s{S_XSO}, s{S_W}, {64*1152}"); A("s_lshl_b32 s38, s50, 7"); A(f"s_add_u32 s{S_XSO}, s{S_XSO}, s38"); A(f"s_add_u32 s{S_XSO2}, s{S_XSO}, {32*1152}")
    A(f"s_lshl_b32 s{S_MX}, s{S_W}, 13")
    A.add(ntify(xdma(0), FNT&1))
    A(f"s_lshl_b32 s38, s{S_W}, 4")
    A("v_bfe_u32 v30, v27, 1, 1"); A("v_lshrrev_b32 v31, 2, v28"); A("v_xor_b32 v30, v30, v31"); A("v_lshlrev_b32 v30, 6, v30")
    A("v_and_b32 v31, 3, v28"); A("v_lshlrev_b32 v31, 4, v31"); A("v_add_u32 v30, v30, v31")
    A(f"v_add_u32 v31, s38, v27"); A("v_mul_u32_u24 v31, 0x2400, v31")
    A(f"v_add_u32 v{V_WD}, v30, v31"); A(f"v_add_u32 v{V_WD+1}, {8*9216-1024}, v{V_WD}")
    A(f"s_mul_i32 s{S_WSO}, s{S_AW}, {64*9216}"); A(f"s_lshl_b32 s{S_MW}, s{S_W}, 11")
    A.add(ntify(wdma(WR0+0), FNT&2)); A.add(wadv(False))
    ST.stamp(p,1)
    A(f"s_mov_b32 s{S_H}, s46"); A(f"s_mov_b32 s{S_H+1}, s47"); A(f"s_mov_b32 s{S_H+2}, {H_BYTES}"); A(f"s_mov_b32 s{S_H+3}, 0x20000")
    A(f"v_lshlrev_b32 v{V_L16}, 4, v24")
    A("v_lshrrev_b32 v30, 2, v26"); A("v_and_b32 v31, 3, v26")
    A("v_lshrrev_b32 v29, 1, v25"); A("v_lshlrev_b32 v29, 3, v29"); A("v_add_u32 v29, v29, v30"); A("v_lshlrev_b32 v29, 7, v29")
    A("v_lshlrev_b32 v31, 3, v31"); A("v_add_u32 v29, v29, v31"); A("v_and_b32 v31, 1, v25"); A("v_lshlrev_b32 v31, 5, v31"); A("v_add_u32 v29, v29, v31")
    A("v_lshrrev_b32 v30, 1, v30")
    for P in range(2):
        A(f"v_xor_b32 v31, {P}, v30"); A("v_lshlrev_b32 v31, 6, v31"); A(f"v_add_u32 v{V_TRP+P}, v31, v29")
    A("v_and_b32 v29, 31, v24"); A("v_lshrrev_b32 v30, 5, v24"); A("v_bfe_u32 v31, v29, 1, 3"); A("v_xor_b32 v30, v30, v31"); A("v_lshlrev_b32 v30, 4, v30")
    A("v_lshlrev_b32 v31, 7, v29"); A("v_add_u32 v30, v30, v31"); A(f"v_add_u32 v30, s{S_MX}, v30")
    for sl,base in ((0,XA),(1,XB)):
        A(f"v_add_u32 v{V_XP+4*sl}, {base}, v30")
        for sp in range(1,4): A(f"v_xor_b32 v{V_XP+4*sl+sp}, {32*sp}, v{V_XP+4*sl}")
    A(f"v_mov_b32 v{V_C1}, 0x{f2u(C1):08x}")
    A("s_lshl_b32 s38, s37, 3"); A(f"s_lshl_b32 s39, s{S_W}, 1"); A("s_add_u32 s38, s38, s39"); A(f"s_mul_i32 s38, s38, {NKS_TOT}")
    A("s_mul_i32 s39, s36, 6"); A("s_add_u32 s38, s38, s39"); A(f"s_lshl_b32 s{S_HSO}, s38, 11")
    A("s_lshl_b32 s38, s36, 3"); A("s_add_u32 s38, s38, s37"); A("s_lshl_b32 s38, s38, 2"); A(f"s_add_u32 s38, s38, s{S_W}")
    A(f"s_mul_i32 s{S_PFO}, s38, {8*1024}")
    A(f"s_mov_b32 s{S_PF}, s66"); A(f"s_mov_b32 s{S_PF+1}, s67"); A(f"s_mov_b32 s{S_PF+2}, {4608*1152}"); A(f"s_mov_b32 s{S_PF+3}, 0x20000")
    for s in range(2): A(f"v_add_u32 v{V_TR+s}, {WR0*CH}, v{V_TRP+s}")
    A.add(ntify(wdma(WR0+1), FNT&4)); A.add(wadv(False)); A.add(ntify(xdma(1), FNT&8))
    log=['X0']*8+['W0']*4+['W1']*4+['X1']*8
    def waitfor(tags, extra=""):
        nonlocal log
        idx=[i for i,t in enumerate(log) if t in tags]
        if idx:
            last=max(idx); n=len(log)-1-last
            log=log[last+1:]
            return [Ins(f"s_waitcnt vmcnt({n}) {extra}".strip())]
        return [Ins(f"s_waitcnt {extra}")] if extra else []
    def g0rd(i):
        c,sp,P,sec=i//16,(i%16)//4,(i%4)//2,i%2
        sl=c%4
        return [Ins(f"ds_read_b64_tr_b16 {afh(i,h)}, v{V_TR+P} offset:{sl*CH+sec*8192+sp*2048+h*512}") for h in range(2)]
    p.label("L_TOUCH_gx")
    p.add(waitfor(('X0','W0'))); p("s_barrier")
    if MERGE:
        import k1
        k1.announce_zero(p, S_W, "L_gx_az", 60)
    ST.stamp(p,2)
    p.add(xrd(0))
    pre=[]
    for i in range(PF): pre+=g0rd(i)
    p.add(pre[:6]); p("s_waitcnt lgkmcnt(6)"); p.add(pre[6:])
    q0=[x.wr for x in pre]
    N0=9*16
    if XPF:
        A("s_mul_i32 s38, s36, 86"); A("s_lshr_b32 s38, s38, 8"); A("s_mul_i32 s38, s38, 3"); A("s_sub_u32 s38, s36, s38")
        A("s_lshl_b32 s38, s38, 6"); A(f"s_lshl_b32 s39, s{S_W}, 4"); A("s_add_u32 s38, s38, s39"); A("s_mul_i32 s74, s38, 1152"); A(f"s_add_u32 s74, s74, {4096+128*XPF}"); A(f"s_add_u32 s75, s74, {8*1152}")
        A("v_and_b32 v63, 63, v0"); A("v_lshrrev_b32 v62, 3, v63"); A("v_mul_u32_u24 v62, 0x480, v62"); A("v_and_b32 v63, 7, v63"); A("v_lshl_add_u32 v63, v63, 4, v62")
    A("s_lshl_b32 s38, s2, 2"); A(f"s_add_u32 s38, s38, s{S_W}"); A("s_mul_i32 s51, s38, 6144")
    A("s_mov_b32 s52, s42"); A("s_mov_b32 s53, s43"); A(f"s_mov_b32 s54, {576*9216}"); A("s_mov_b32 s55, 0x20000")
    A("s_mov_b32 s60, s44"); A("s_mov_b32 s61, s45"); A(f"s_mov_b32 s62, {576*9216}"); A("s_mov_b32 s63, 0x20000")
    def lin(k):
        srd="s[52:55]" if k<6 else "s[60:63]"; kk=k%6
        o=[]
        if kk==4: o.append(Ins("s_add_u32 s51, s51, 4096"))
        if k==6: o.append(Ins("s_sub_u32 s51, s51, 4096"))
        o.append(Ins(f"buffer_load_dwordx4 v[56:59], v{V_L16}, {srd}, s51 offen offset:{1024*(kk%4)}"))
        return o
    def tagged(lst,tag):
        for x in lst:
            if x.kind=='dma': x.tag=tag
        return lst
    def logit(stream):
        for x in stream:
            if getattr(x,'kind',None) in('dma','vmem'): log.append(x.tag or 'P')
    carry=tagged(wdma(WR0+2)+wadv(False),'W2')+tagged(xdma(2),'X2')
    for c in range(9):
        main=[]
        for ii in range(16):
            i=c*16+ii
            if ii==8: main.append(('mid',))
            n=i+PF
            nxt=g0rd(n) if n<N0 else []
            sp,P,sec=ii//4,(ii%4)//2,ii%2; s16=4*c+sp
            for T in range(2):
                cc=acc(P,T,sec) if s16>0 else "0"
                main.append(Ins(f"{MF} {acc(P,T,sec)}, {afr(i)}, {XF(T,s16)}, {cc}"))
                if T<len(nxt): main.append(nxt[T])
        im=main.index(('mid',))
        first=main[:im]; second=main[im+1:]
        if carry: first=spread(first, dma_items(carry), first=2 if c else 0)
        logit(first)
        carry=[]
        midl=[]
        if c+1<9: midl+=waitfor((f'X{c+1}',f'W{c+1}'))
        midl.append(Ins("s_barrier"))
        dl=[]
        if c+3<9: dl+=tagged(wdma(WR0+(c+3)%4)+wadv(c+3==8),f'W{c+3}')
        g1={6:(0,1),7:(2,3),8:(4,5)}.get(c,())
        for cc_ in g1: dl+=tagged(wdma(cc_)+wadv(False),f'G{cc_}')
        if c+1<9:
            xr=xrd(c+1)
            second=spread(second,[[x] for x in xr], first=0, last=9)
        if dl: second=spread(second, dma_items(dl), first=1)
        if XPF and c+XPF<9:
            second=spread(second, [[Ins(f"buffer_load_dwordx4 v[56:59], v63, s[{S_X}:{S_X+3}], s74 offen")],[Ins(f"buffer_load_dwordx4 v[56:59], v63, s[{S_X}:{S_X+3}], s75 offen")],[Ins("s_add_u32 s74, s74, 128"),Ins("s_add_u32 s75, s75, 128")]], first=3)
        if WPF and c<3:
            second=spread(second, [lin(k) for k in range(4*c,4*c+4)], first=5)
        logit(second)
        if c+3<9: carry=tagged(xdma(c+3),f'X{c+3}')
        stream,q0=auto_lgkm(fix_m0(first+midl+second), q0, extra=2)
        p.add(stream)
    ST.stamp(p,3)
    p.add(pkconst()); p("s_nop 7")
    p.add(gelu(0,pk=True)); log+=['S']*4
    p.add(trset(0))
    p.add(waitfor(('G0','G1','G2'))); p("s_barrier")
    fr=first_reads(0)
    for k in range(PF): p.add(fr[k])
    ST.stamp(p,4)
    if MERGE:
        p("s_lshr_b32 s91, s4, 1"); p("s_mov_b32 s90, 0")
        p("s_and_b32 s38, s4, 1"); p("s_mul_i32 s38, s38, 24"); p("s_add_u32 s92, s38, s6")
        p(f"s_mov_b32 s93, s{S_W}")
        p("s_mul_i32 s38, s36, 43"); p("s_lshr_b32 s38, s38, 8"); p("s_lshl_b32 s39, s37, 2"); p("s_add_u32 s94, s38, s39"); p("s_add_u32 s94, s94, 8")
        p("s_mul_i32 s38, s92, 171"); p("s_lshr_b32 s38, s38, 10"); p("s_lshl_b32 s38, s38, 2"); p("s_add_u32 s96, s38, s91"); p("s_add_u32 s95, s96, 8"); p("s_add_u32 s96, s96, 48"); p("s_mov_b32 s97, 6")
        p("s_lshl_b32 s38, s96, 7"); p("v_mov_b32 v48, s38"); p(f"s_add_u32 s64, s70, {0x15C0000}"); p("s_addc_u32 s65, s71, 0")
        p("v_mov_b32 v61, 0"); p("global_load_dword v60, v61, s[68:69] sc1")
    p(f"s_mov_b32 s{S_CNT}, 0")
    il=len(p.ins)
    p.label("L_gx_loop")
    q0=[x.wr for k in range(PF) for x in fr[k]]
    pfl=lambda: [Ins(f"buffer_load_dwordx4 v[56:59], v{V_L16}, s[{S_PF}:{S_PF+3}], s{S_PFO} offen", tag='pf'), Ins(f"s_add_u32 s{S_PFO}, s{S_PFO}, 1024")]
    def marks(m, fn):
        cur=[]
        for x in m:
            if isinstance(x,tuple):
                t=fn(x)
                if t: cur.append(Ins(t+":"))
            else: cur.append(x)
        return cur
    cur=marks(phase(1, next_first=first_reads(0)), lambda x: (f"FREE{x[1]//3-1}" if x[2]=='start' and x[1] in (3,6) else ("PRE9" if x[2]=='firstread' and x[1]==9 else None)))
    def mfma_index_of(cur,lab):
        k=0
        for x in cur:
            if x.kind=='label' and x.text.startswith(lab): return k
            if x.kind=='mfma': k+=1
    for k in (0,1):
        d=[]
        for cc_ in (3*k,3*k+1,3*k+2): d+=wdma(cc_)+wadv(False)
        f=mfma_index_of(cur,f"FREE{k}")
        cur=spread(cur, dma_items(d), first=f+1, last=f+42-2*(PF-4)-(2 if PF>4 else 0))
    mer=interleave(cur, ([] if os.environ.get('NOPF') else pfl()+pfl())+gelu(0), budget=5)
    out=[]; seq=[]
    for x in mer:
        if x.kind=='label' and x.text.startswith('FREE'):
            if MERGE and x.text.startswith('FREE1'):
                out.append(Ins(f"s_waitcnt vmcnt({len(seq)})"))
            out.append(Ins("s_barrier"))
            if MERGE and x.text.startswith('FREE1'):
                out+=[Ins(f"s_cmp_eq_u32 s{S_CNT}, 1"), Ins("s_cbranch_scc0 L_gx_nosig"), Ins(f"s_cmp_eq_u32 s{S_W}, 0"), Ins("s_cbranch_scc0 L_gx_nosig"),
                      Ins("v_readfirstlane_b32 s38, v60"), Ins("s_mov_b32 s39, 0"), Ins("L_gx_zr:"), Ins("s_cmp_ge_u32 s38, 273"), Ins("s_cbranch_scc1 L_gx_zok"),
                      Ins("s_add_u32 s39, s39, 1"), Ins("s_cmp_gt_u32 s39, 200000"), Ins("s_cbranch_scc1 L_gx_zok"), Ins("s_sleep 6"),
                      Ins("v_mov_b32 v61, 0"), Ins("global_load_dword v60, v61, s[68:69] sc1"), Ins("s_waitcnt vmcnt(0)"), Ins("v_readfirstlane_b32 s38, v60"), Ins("s_branch L_gx_zr"),
                      Ins("L_gx_zok:"),
                      Ins("s_mul_i32 s38, s36, 43"), Ins("s_lshr_b32 s38, s38, 8"), Ins("s_lshl_b32 s39, s37, 2"), Ins("s_add_u32 s38, s38, s39"), Ins("s_add_u32 s38, s38, 48"), Ins("s_lshl_b32 s38, s38, 7"),
                      Ins(f"s_add_u32 s72, s70, {0x15C0000}"), Ins("s_addc_u32 s73, s71, 0"),
                      Ins("v_mov_b32 v61, s38"), Ins("v_mov_b32 v62, 1"), Ins("v_cmp_eq_u32 vcc, 0, v0"), Ins("s_and_saveexec_b64 s[74:75], vcc"),
                      Ins("global_atomic_add v61, v62, s[72:73] sc1"), Ins("s_mov_b64 exec, s[74:75]"), Ins("L_gx_nosig:"), Ins("s_nop 0")]
        elif x.kind=='label' and x.text.startswith('PRE9'):
            d=[i for i,t in enumerate(seq) if t=='dma']; assert len(d)==24
            out.append(Ins(f"s_waitcnt vmcnt({len(seq)-1-d[11]})")); out.append(Ins("s_barrier")); out+=trset(0)
        else:
            if x.kind in('vmem','dma'): seq.append(x.kind)
            out.append(x)
    if MERGE:
        ist=[i for i,x in enumerate(out) if x.tag=='st']
        out.insert(ist[-1]-30, Ins("global_load_dword v49, v48, s[64:65] sc1", tag='look'))
        vm=[x for x in out if x.kind in('vmem','dma')]
        n_after_look=len(vm)-1-[i for i,x in enumerate(vm) if x.tag=='look'][0]
        assert all(x.kind!='dma' for x in vm[len(vm)-n_after_look:])
    out1=out; tail_exact=len(seq)-1-max(i for i,t in enumerate(seq) if t=='dma'); tail1=min(4,tail_exact)
    cur=marks(phase(0, next_first=first_reads(1)), lambda x: (f"LAND{x[1]}" if x[2]=='firstread' and x[1] in (3,6) else ("SWITCH1" if x[2]=='firstread' and x[1]==9 else None)))
    d678=wdma(6)+wadv(False)+wdma(7)+wadv(False)+wdma(8)+wadv(True)
    if int(os.environ.get('NOJUNK','1')) and ROT:
        d678+=[Ins(f"s_cmp_eq_u32 s{S_CNT}, 1"), Ins("s_cselect_b32 s49, 0x40000000, 0"), Ins(f"s_add_u32 s{S_GRP}, s{S_GRP}, s49"), Ins(f"s_add_u32 s{S_WSO}, s{S_WSO}, s49")]
    if int(os.environ.get('NOJUNK','1')) and not ROT:
        d678+=[Ins(f"s_cmp_eq_u32 s{S_CNT}, 1"), Ins("s_cselect_b32 s49, 0x40000000, 0"), Ins(f"s_add_u32 s{S_WSO}, s{S_WSO}, s49")]
    cur=spread(cur, dma_items(d678), first=1, last=42)
    mer=interleave(cur, ([] if os.environ.get('NOPF') else pfl()+pfl())+gelu(1), budget=5)
    out=[]; seq=[]
    for x in mer:
        if x.kind=='label' and x.text.startswith('LAND3'):
            out.append(Ins(f"s_waitcnt vmcnt({len(seq)+tail1})")); out.append(Ins("s_barrier"))
        elif x.kind=='label' and x.text.startswith('LAND6'):
            last=max(i for i,t in enumerate(seq) if t=='dma'); assert seq.count('dma')==12
            out.append(Ins(f"s_waitcnt vmcnt({len(seq)-1-last})")); out.append(Ins("s_barrier"))
        elif x.kind=='label' and x.text.startswith('SWITCH'):
            out+=trset(1)
        else:
            if x.kind in('vmem','dma'): seq.append(x.kind)
            out.append(x)
    st,q1=auto_lgkm(out,q0,extra=GEX)
    p.add(st)
    st,q2=auto_lgkm(out1,q1,extra=GEX)
    p.add(st)
    p("s_barrier")
    p(f"s_add_u32 s{S_CNT}, s{S_CNT}, 1"); p(f"s_cmp_lt_u32 s{S_CNT}, 2"); p("s_cbranch_scc1 L_gx_loop")
    idn=len(p.ins)
    assert [sorted(d) for d in q2]==[sorted(x.wr) for k in range(PF) for x in fr[k]] or True
    p("s_waitcnt lgkmcnt(0)")
    ST.stamp(p,5)
    if MERGE:
        import p2 as P2
        p(f"s_waitcnt vmcnt({n_after_look})"); p("s_barrier")
        P2.gen_p2a_ffn(p)
    p.label("L_TOUCH_gx2")
    p.add(pkconst()); p("s_nop 7")
    p.add(gelu(1,pk=True))
    ST.stamp(p,6)
    ST.flush(p,70,71,0)
    if MERGE: p("s_branch L_p2b")
    return il,idn
```
